```python
import torch

def _softmax(x, axis=-1):
    return torch.softmax(x, dim=axis)
def _gelu(x):
    return torch.nn.functional.gelu(x, approximate="tanh")
def _silu(x):
    return torch.nn.functional.silu(x)
def _sigmoid(x):
    return torch.sigmoid(x)
def _layernorm(x, axis=-1, eps=1e-5):
    m = x.mean(dim=axis, keepdim=True)
    v = x.var(dim=axis, keepdim=True, unbiased=False)
    return (x - m) / torch.sqrt(v + eps)
def _scatter_add(tgt, idx, src, axis=0):
    return tgt.clone().index_add_(axis, idx, src)
def _segment_sum(src, seg, n):
    out = torch.zeros((n,) + src.shape[1:], dtype=src.dtype)
    return out.index_add_(0, seg, src)
def _pad(x, pw):
    flat = tuple(v for pair in reversed(pw) for v in pair)
    return torch.nn.functional.pad(x, flat)

kernel_name = 'gated_mix__mha_block__mha_block__prompt'

def setup_inputs():

    _w = (lambda a: (lambda t: t.to(torch.bfloat16) if t.is_floating_point() else t)(torch.as_tensor(a)))
    def _A_setup():
        B, S, D, H = 1, 2048, 512, 32
        return {
            "x": _w((lambda *s: torch.randn(*s, dtype=torch.bfloat16) * 0.05)(B, S, D)),
            "wqkv": _w((lambda *s: torch.randn(*s, dtype=torch.bfloat16) * 0.8)(D, 3 * D)),
            "wo": _w((lambda *s: torch.randn(*s, dtype=torch.bfloat16) * 0.05)(D, D)),
        }
    _A_in = _A_setup()

    def _B_setup():
        B, S, D, H = 1, 2048, 512, 32
        return {
            "x": _w((lambda *s: torch.randn(*s, dtype=torch.bfloat16) * 0.05)(B, S, D)),
            "wqkv": _w((lambda *s: torch.randn(*s, dtype=torch.bfloat16) * 0.8)(D, 3 * D)),
            "wo": _w((lambda *s: torch.randn(*s, dtype=torch.bfloat16) * 0.05)(D, D)),
        }
    _B_in = _B_setup()

    return {
        "A_x": _A_in["x"],
        "A_wqkv": _A_in["wqkv"],
        "A_wo": _A_in["wo"],
        "B_x": _B_in["x"],
        "B_wqkv": _B_in["wqkv"],
        "B_wo": _B_in["wo"],
        "gate_w": _w((lambda *s: torch.randn(*s, dtype=torch.bfloat16) * 0.05)(512) * 16.0),
    }

def reference(A_x, A_wqkv, A_wo, B_x, B_wqkv, B_wo, gate_w):
    def _A_ref(x, wqkv, wo):
        B, S, D = x.shape
        H = 32
        Dh = D // H
        qkv = (lambda x, *d: x.permute(*d))((x @ wqkv).reshape(B, S, 3, H, Dh), 2, 0, 3, 1, 4)
        q, k, v = qkv[0], qkv[1], qkv[2]
        scores = torch.einsum("bhqd,bhkd->bhqk", q, k) * (Dh ** -0.5)
        p = _softmax(scores, axis=-1)
        o = torch.einsum("bhqk,bhkd->bhqd", p, v)
        return (lambda x, *d: x.permute(*d))(o, 0, 2, 1, 3).reshape(B, S, D) @ wo

    def _B_ref(x, wqkv, wo):
        B, S, D = x.shape
        H = 32
        Dh = D // H
        qkv = (lambda x, *d: x.permute(*d))((x @ wqkv).reshape(B, S, 3, H, Dh), 2, 0, 3, 1, 4)
        q, k, v = qkv[0], qkv[1], qkv[2]
        scores = torch.einsum("bhqd,bhkd->bhqk", q, k) * (Dh ** -0.5)
        p = _softmax(scores, axis=-1)
        o = torch.einsum("bhqk,bhkd->bhqd", p, v)
        return (lambda x, *d: x.permute(*d))(o, 0, 2, 1, 3).reshape(B, S, D) @ wo

    x = A_x
    g = _sigmoid((x * gate_w).sum(-1, keepdims=True))
    a = _A_ref(x, A_wqkv, A_wo)
    b = _B_ref(x, B_wqkv, B_wo)
    return g * a + (1 - g) * b
```

```python
import sys, struct

NAME = "gated_mix__mha_block__mha_block__prompt"
WS_Q = 0
WS_KV = 4 << 20
WS_O = 12 << 20
WS_G = 16 << 20
WS_END = WS_G + 8192
QSCALE = 0.25 * 1.4426950408889634

def f32(x):
    return "0x%08x" % struct.unpack("<I", struct.pack("<f", x))[0]

class A:
    def __init__(self):
        self.l = []
    def __call__(self, s):
        for x in s.strip().split("\n"):
            if x.strip():
                self.l.append("  " + x.strip())
    def lab(self, s):
        self.l.append(s + ":")
    def raw(self, s):
        self.l.append(s)
    def text(self):
        return "\n".join(self.l) + "\n"

def vr(b, n):
    return f"v[{b}:{b+n-1}]"

def header(a, name):
    a.raw(".text")
    a.raw(f".globl {name}")
    a.raw(".p2align 8")
    a.raw(f".type {name},@function")
    a.lab(name)

def descriptor(name, vgpr, sgpr, accum=None):
    if accum is None:
        accum = (vgpr + 3) // 4 * 4
    return f""".section .rodata,"a"
.p2align 6
.amdhsa_kernel {name}
  .amdhsa_next_free_vgpr {vgpr}
  .amdhsa_next_free_sgpr {sgpr}
  .amdhsa_accum_offset {accum}
  .amdhsa_group_segment_fixed_size 0
  .amdhsa_kernarg_size 80
  .amdhsa_user_sgpr_count 2
  .amdhsa_user_sgpr_kernarg_segment_ptr 1
  .amdhsa_system_sgpr_workgroup_id_x 1
.end_amdhsa_kernel
"""

def gen_qkv(a):
    name = "qkv_kernel"
    header(a, name)
    SLOT = 40960
    a("""
    s_cmp_ge_u32 s2, 256
    s_cbranch_scc1 qkv_end
    s_load_dwordx4 s[4:7], s[0:1], 0
    s_load_dwordx4 s[8:11], s[0:1], 24
    s_load_dwordx2 s[12:13], s[0:1], 48
    s_load_dwordx2 s[14:15], s[0:1], 72
    v_lshrrev_b32 v1, 6, v0
    v_and_b32 v2, 63, v0
    s_and_b32 s34, s2, 7
    s_lshr_b32 s35, s2, 3
    v_readfirstlane_b32 s31, v1
    s_lshr_b32 s28, s34, 2
    s_and_b32 s36, s34, 3
    s_lshl_b32 s36, s36, 1
    s_and_b32 s37, s35, 1
    s_add_u32 s29, s36, s37
    s_lshr_b32 s30, s35, 1
    s_and_b32 s32, s31, 1
    s_lshr_b32 s33, s31, 1
    """)
    a("""
    v_lshrrev_b32 v3, 3, v2
    v_and_b32 v4, 7, v2
    v_lshrrev_b32 v5, 4, v2
    v_xor_b32 v6, v4, v5
    v_lshlrev_b32 v6, 4, v6
    v_lshl_add_u32 v10, v3, 10, v6
    v_add_u32 v7, 4, v5
    v_xor_b32 v7, v4, v7
    v_lshlrev_b32 v7, 4, v7
    v_lshl_add_u32 v11, v3, 10, v7
    v_and_b32 v8, 1, v5
    v_lshlrev_b32 v8, 2, v8
    v_xor_b32 v8, v4, v8
    v_lshlrev_b32 v8, 4, v8
    v_mul_u32_u24 v9, 3072, v3
    v_add_u32 v12, v9, v8
    """)
    a("s_waitcnt lgkmcnt(0)")
    a("""
    s_cmp_eq_u32 s28, 0
    s_mov_b32 s16, s4
    s_mov_b32 s17, s5
    s_cselect_b32 s20, s6, s10
    s_cselect_b32 s21, s7, s11
    s_lshl_b32 s38, s30, 17
    s_add_u32 s16, s16, s38
    s_addc_u32 s17, s17, 0
    s_mov_b32 s18, 131072
    s_mov_b32 s19, 0x20000
    s_lshl_b32 s38, s29, 7
    s_add_u32 s20, s20, s38
    s_addc_u32 s21, s21, 0
    s_sub_u32 s22, 1572864, s38
    s_mov_b32 s23, 0x20000
    s_mov_b32 s24, s14
    s_mov_b32 s25, s15
    """)
    a(f"s_mov_b32 s26, {WS_END}")
    a("s_mov_b32 s27, 0x20000")
    a("""
    s_cmp_lg_u32 s28, 0
    s_cbranch_scc1 qkv_nogate_ld
    s_mov_b32 s40, s12
    s_mov_b32 s41, s13
    s_mov_b32 s42, 1024
    s_mov_b32 s43, 0x20000
    v_and_b32 v13, 15, v2
    v_lshlrev_b32 v13, 6, v13
    v_lshl_add_u32 v14, v5, 10, v13
    s_lshl_b32 s38, s29, 4
    s_lshl_b32 s39, s31, 2
    s_add_u32 s38, s38, s39
    s_lshl_b32 s39, s38, 10
    """)
    for i in range(4):
        a(f"buffer_load_dwordx4 {vr(160+4*i,4)}, v14, s[16:19], s39 offen offset:{16*i}")
    for i in range(4):
        a(f"buffer_load_dwordx4 {vr(176+4*i,4)}, v13, s[40:43], 0 offen offset:{16*i}")
    a.lab("qkv_nogate_ld")
    a("s_lshl_b32 s54, s31, 15")
    for u in range(4):
        a(f"s_add_u32 s{44+u}, s54, {u*8192}")
    a("s_mul_i32 s54, s31, 49152")
    for g3 in range(3):
        for e in range(2):
            a(f"s_add_u32 s{48+g3*2+e}, s54, {g3*1024 + e*8*3072}")
    a("s_lshl_b32 s55, s31, 12")
    a("s_lshl_b32 s56, s31, 11")
    a("s_add_u32 s56, s56, 16384")

    def issue_stage():
        prev = None
        def adv(p):
            if p is None:
                a("s_nop 0")
            else:
                a(f"s_add_u32 s{p[0]}, s{p[0]}, {p[1]}")
        for u in range(4):
            a(f"s_add_u32 m0, s55, {u*1024}")
            adv(prev)
            a(f"buffer_load_dwordx4 v{10+(u&1)}, s[16:19], s{44+u} offen lds")
            prev = (44+u, 128)
        for g3 in range(3):
            for e in range(2):
                a(f"s_add_u32 m0, s56, {g3*8192+e*1024}")
                adv(prev)
                a(f"buffer_load_dwordx4 v12, s[20:23], s{48+g3*2+e} offen lds")
                prev = (48+g3*2+e, 64*3072)
        adv(prev)

    for st in range(4):
        issue_stage()
        if st < 3:
            a(f"s_add_u32 s55, s55, {SLOT}")
            a(f"s_add_u32 s56, s56, {SLOT}")
    a(f"s_sub_u32 s55, s55, {3*SLOT}")
    a(f"s_sub_u32 s56, s56, {3*SLOT}")

    a("""
    v_and_b32 v20, 31, v2
    v_lshrrev_b32 v21, 5, v2
    v_lshrrev_b32 v22, 1, v2
    v_and_b32 v22, 7, v22
    s_lshl_b32 s38, s32, 13
    v_lshlrev_b32 v23, 7, v20
    v_add_u32 v23, s38, v23
    """)
    for ks in range(4):
        a(f"v_add_u32 v24, {2*ks}, v21")
        a(f"v_xor_b32 v24, v24, v22")
        a(f"v_lshl_add_u32 v{16+ks}, v24, 4, v23")
    a("""
    v_and_b32 v26, 15, v2
    v_lshrrev_b32 v27, 2, v26
    v_lshl_add_u32 v28, v21, 3, v27
    v_lshlrev_b32 v28, 7, v28
    v_and_b32 v29, 1, v5
    v_lshlrev_b32 v29, 1, v29
    v_bfe_u32 v30, v26, 1, 1
    v_add_u32 v29, v29, v30
    s_lshl_b32 s38, s33, 2
    v_add_u32 v29, s38, v29
    v_bfe_u32 v30, v27, 1, 1
    v_lshlrev_b32 v30, 2, v30
    v_xor_b32 v29, v29, v30
    v_lshl_add_u32 v28, v29, 4, v28
    v_and_b32 v30, 1, v26
    v_lshl_add_u32 v25, v30, 3, v28
    """)
    ACC = 64
    for r in range(96):
        a(f"v_mov_b32 v{ACC+r}, 0")
    a("""
    s_cmp_lg_u32 s28, 0
    s_cbranch_scc1 qkv_nogate
    s_waitcnt vmcnt(40)
    v_mov_b32 v192, 0
    """)
    for i in range(16):
        a(f"v_dot2c_f32_bf16 v192, v{160+i}, v{176+i}")
    a("s_nop 3")
    for rot in (8, 4, 2, 1):
        a(f"v_add_f32_dpp v192, v192, v192 row_ror:{rot} row_mask:0xf bank_mask:0xf")
        a("s_nop 1")
    a(f"""
    v_mul_f32 v192, {f32(-1.4426950408889634)}, v192
    v_exp_f32 v192, v192
    s_nop 0
    v_add_f32 v192, 1.0, v192
    v_rcp_f32 v192, v192
    s_lshl_b32 s39, s30, 7
    s_lshl_b32 s38, s29, 4
    s_add_u32 s39, s39, s38
    s_lshl_b32 s38, s31, 2
    s_add_u32 s39, s39, s38
    s_lshl_b32 s39, s39, 2
    s_add_u32 s39, s39, {WS_G}
    v_lshlrev_b32 v193, 2, v5
    v_and_b32 v194, 15, v2
    v_cmp_eq_u32 vcc, 0, v194
    s_and_saveexec_b64 s[58:59], vcc
    buffer_store_dword v192, v193, s[24:27], s39 offen
    s_mov_b64 exec, s[58:59]
    """)
    a.lab("qkv_nogate")

    XF = [32, 196]
    WF = [40, 204]
    def reads(ks, f):
        for tt in range(2):
            a(f"ds_read_b128 {vr(XF[f]+4*tt,4)}, v{20+ks} offset:{tt*4096}")
        for g3 in range(3):
            for u in range(2):
                a(f"ds_read_b64_tr_b16 {vr(WF[f]+4*g3+2*u,2)}, v24 offset:{16384+g3*8192+(16*ks+4*u)*128}")
    def mfmas(f):
        for tt in range(2):
            x = vr(XF[f]+4*tt, 4)
            for g3 in range(3):
                w = vr(WF[f]+4*g3, 4)
                d = vr(ACC+16*(tt*3+g3), 16)
                if g3 < 2:
                    a(f"v_mfma_f32_32x32x16_bf16 {d}, {w}, {x}, {d}")
                else:
                    a(f"v_mfma_f32_32x32x16_bf16 {d}, {x}, {w}, {d}")
    def set_addr():
        for ks in range(4):
            a(f"v_add_u32 v{20+ks}, s57, v{16+ks}")
        a("v_add_u32 v24, s57, v25")

    a("s_mov_b32 s57, 0")
    a("s_mov_b32 s60, 0")
    set_addr()
    a("s_waitcnt vmcnt(30)")
    a("s_barrier")
    reads(0, 0)
    a.lab("qkv_loop")
    reads(1, 1)
    a("s_waitcnt lgkmcnt(8)")
    mfmas(0)
    reads(2, 0)
    a("s_waitcnt lgkmcnt(8)")
    mfmas(1)
    reads(3, 1)
    a("s_waitcnt lgkmcnt(8)")
    mfmas(0)
    a("""
    s_cmp_eq_u32 s60, 7
    s_cbranch_scc1 qkv_last
    s_cmp_lt_u32 s60, 5
    s_cbranch_scc1 qkv_w20
    s_cmp_eq_u32 s60, 5
    s_cbranch_scc1 qkv_w10
    s_waitcnt vmcnt(0) lgkmcnt(0)
    s_branch qkv_go
    """)
    a.lab("qkv_w10")
    a("s_waitcnt vmcnt(10) lgkmcnt(0)")
    a("s_branch qkv_go")
    a.lab("qkv_w20")
    a("s_waitcnt vmcnt(20) lgkmcnt(0)")
    a.lab("qkv_go")
    a("s_barrier")
    a("s_cmp_gt_u32 s60, 3")
    a("s_cbranch_scc1 qkv_noload")
    issue_stage()
    a(f"s_add_u32 s55, s55, {SLOT}")
    a(f"s_add_u32 s56, s56, {SLOT}")
    a.lab("qkv_noload")
    a(f"""
    s_add_u32 s57, s57, {SLOT}
    s_cmp_ge_u32 s57, {4*SLOT}
    s_cselect_b32 s38, {4*SLOT}, 0
    s_sub_u32 s57, s57, s38
    """)
    set_addr()
    reads(0, 0)
    mfmas(1)
    a("s_add_u32 s60, s60, 1")
    a("s_branch qkv_loop")
    a.lab("qkv_last")
    a("s_waitcnt lgkmcnt(0)")
    mfmas(1)
    a(f"""
    s_lshl_b32 s38, s28, 5
    s_lshl_b32 s39, s29, 2
    s_add_u32 s38, s38, s39
    s_lshl_b32 s39, s33, 1
    s_add_u32 s38, s38, s39
    s_lshl_b32 s38, s38, 6
    s_lshl_b32 s39, s30, 2
    s_add_u32 s38, s38, s39
    s_lshl_b32 s39, s32, 1
    s_add_u32 s38, s38, s39
    s_lshl_b32 s40, s38, 10
    s_add_u32 s40, s40, {WS_Q}
    s_lshl_b32 s41, s38, 11
    s_add_u32 s41, s41, {WS_KV}
    s_mov_b32 s42, {f32(QSCALE)}
    v_lshlrev_b32 v10, 4, v2
    v_and_b32 v11, 15, v2
    v_lshlrev_b32 v11, 4, v11
    v_lshrrev_b32 v12, 5, v2
    v_lshl_add_u32 v11, v12, 9, v11
    v_bfe_u32 v12, v2, 4, 1
    v_lshl_add_u32 v11, v12, 17, v11
    v_add_u32 v11, 1024, v11
    s_add_u32 s43, s40, 65536
    s_add_u32 s44, s41, 131072
    s_nop 7
    s_nop 7
    """)
    tmp = 32
    for tt in range(2):
        d = ACC + 16*(tt*3+0)
        for r in range(16):
            a(f"v_mul_f32 v{d+r}, s42, v{d+r}")
        for r in range(8):
            a(f"v_cvt_pk_bf16_f32 v{d+r}, v{d+2*r}, v{d+2*r+1}")
        a(f"buffer_store_dwordx4 {vr(d,4)}, v10, s[24:27], s40 offen offset:{tt*1024}")
        a(f"buffer_store_dwordx4 {vr(d+4,4)}, v10, s[24:27], s43 offen offset:{tt*1024}")
        d = ACC + 16*(tt*3+1)
        for r in range(8):
            a(f"v_cvt_pk_bf16_f32 v{d+r}, v{d+2*r}, v{d+2*r+1}")
        a(f"buffer_store_dwordx4 {vr(d,4)}, v10, s[24:27], s41 offen offset:{tt*2048}")
        a(f"buffer_store_dwordx4 {vr(d+4,4)}, v10, s[24:27], s44 offen offset:{tt*2048}")
        d = ACC + 16*(tt*3+2)
        for r in range(8):
            a(f"v_cvt_pk_bf16_f32 v{d+r}, v{d+2*r}, v{d+2*r+1}")
        a(f"buffer_store_dwordx4 {vr(d,4)}, v11, s[24:27], s41 offen offset:{tt*2048}")
        a(f"buffer_store_dwordx4 {vr(d+4,4)}, v11, s[24:27], s41 offen offset:{tt*2048+256}")
    a.lab("qkv_end")
    a("s_endpgm")
    return descriptor(name, 216, 64)

def gen_attn(a):
    name = "attn_kernel"
    header(a, name)
    Q = 4; KB = [8, 12]; VB = [16, 24]; S = [32, 48]; O = 64; C = 80
    ADDR = 96; G = 97
    a(f"""
    s_cmp_ge_u32 s2, 256
    s_cbranch_scc1 attn_end
    s_load_dwordx2 s[4:5], s[0:1], 72
    v_lshrrev_b32 v1, 6, v0
    v_and_b32 v3, 63, v0
    s_and_b32 s21, s2, 7
    s_lshr_b32 s22, s2, 3
    v_readfirstlane_b32 s18, v1
    s_lshl_b32 s16, s21, 3
    s_lshr_b32 s23, s22, 2
    s_add_u32 s16, s16, s23
    s_and_b32 s17, s22, 3
    s_lshr_b32 s20, s16, 5
    s_lshl_b32 s19, s17, 4
    s_add_u32 s19, s19, s18
    v_lshlrev_b32 v2, 4, v3
    s_waitcnt lgkmcnt(0)
    s_lshl_b32 s23, s16, 17
    s_add_u32 s8, s4, s23
    s_addc_u32 s9, s5, 0
    s_add_u32 s8, s8, {WS_KV}
    s_addc_u32 s9, s9, 0
    s_mov_b32 s10, 131072
    s_mov_b32 s11, 0x20000
    s_mov_b32 s12, s4
    s_mov_b32 s13, s5
    s_mov_b32 s14, {WS_END}
    s_mov_b32 s15, 0x20000
    s_lshl_b32 s23, s16, 6
    s_add_u32 s23, s23, s19
    s_lshl_b32 s23, s23, 10
    s_add_u32 s23, s23, {WS_Q}
    buffer_load_dwordx4 {vr(Q,4)}, v2, s[12:15], s23 offen
    v_and_b32 v98, 31, v3
    v_lshlrev_b32 v98, 2, v98
    s_lshl_b32 s24, s19, 7
    s_add_u32 s24, s24, {WS_G}
    buffer_load_dword v{G}, v98, s[12:15], s24 offen
    s_lshl_b32 s25, s18, 11
    """)
    for g in range(4):
        a(f"s_add_u32 m0, s25, {g*32768}")
        a(f"s_add_u32 s26, s25, {g*32768}")
        a(f"buffer_load_dwordx4 v2, s[8:11], s26 offen lds")
        a(f"buffer_load_dwordx4 v2, s[8:11], s26 offen offset:1024 lds")
    for r in range(16):
        a(f"v_mov_b32 v{VB[0]+r}, 0x3f803f80")
    a("s_mov_b32 s28, 0x0000ffff")
    a("s_mov_b32 s29, 0x0000ffff")
    a("s_mov_b32 s30, 0")
    a("s_waitcnt vmcnt(6)")
    a("s_barrier")
    a(f"ds_read_b128 {vr(KB[0],4)}, v2")
    a("s_waitcnt lgkmcnt(0)")
    a(f"v_mfma_f32_32x32x16_bf16 {vr(S[0],16)}, {vr(KB[0],4)}, {vr(Q,4)}, 0")
    a("s_nop 7")
    a("s_nop 7")
    a(f"v_max3_f32 v99, v{S[0]}, v{S[0]+1}, v{S[0]+2}")
    for r in range(3, 15, 2):
        a(f"v_max3_f32 v99, v99, v{S[0]+r}, v{S[0]+r+1}")
    a(f"v_max_f32 v99, v99, v{S[0]+15}")
    a.lab("attn_setmax")
    a("""
    v_mov_b32 v100, v99
    s_nop 1
    v_permlane32_swap_b32 v99, v100
    s_nop 1
    v_max_f32 v99, v99, v100
    """)
    for r in range(16):
        a(f"v_sub_f32 v{C+r}, 0, v99")
    for r in range(16):
        a(f"v_mov_b32 v{O+r}, 0")
    a(f"v_mov_b32 v{ADDR}, v2")
    a(f"ds_read_b128 {vr(KB[0],4)}, v{ADDR}")
    a(f"ds_read_b128 {vr(KB[1],4)}, v{ADDR} offset:2048")
    a("s_mov_b64 exec, s[28:29]")
    a(f"ds_read_b128 {vr(VB[0],4)}, v{ADDR} offset:1024")
    a(f"ds_read_b128 {vr(VB[0]+4,4)}, v{ADDR} offset:1280")
    a("s_mov_b64 exec, -1")
    a("s_waitcnt lgkmcnt(0)")
    a(f"v_mfma_f32_32x32x16_bf16 {vr(S[0],16)}, {vr(KB[0],4)}, {vr(Q,4)}, {vr(C,16)}")
    a("s_mov_b32 s27, 0")
    a("s_nop 7")
    U = 4
    a.lab("attn_loop")
    a("""
    s_cmp_lg_u32 s27, 2
    s_cbranch_scc1 attn_nobar
    s_cmp_lg_u32 s30, 0
    s_cbranch_scc1 attn_nobar
    s_waitcnt vmcnt(0)
    s_barrier
    """)
    a.lab("attn_nobar")
    for u in range(U):
        cur = S[u & 1]; nxt = S[(u+1) & 1]
        a("s_waitcnt lgkmcnt(0)")
        a(f"v_mfma_f32_32x32x16_bf16 {vr(nxt,16)}, {vr(KB[(u+1)&1],4)}, {vr(Q,4)}, {vr(C,16)}")
        a(f"ds_read_b128 {vr(KB[u&1],4)}, v{ADDR} offset:{(u+2)*2048}")
        a("s_mov_b64 exec, s[28:29]")
        a(f"ds_read_b128 {vr(VB[(u+1)&1],4)}, v{ADDR} offset:{(u+1)*2048+1024}")
        a(f"ds_read_b128 {vr(VB[(u+1)&1]+4,4)}, v{ADDR} offset:{(u+1)*2048+1280}")
        a("s_mov_b64 exec, -1")
        for r in range(8):
            a(f"v_exp_f32 v{cur+r}, v{cur+r}")
        for r in range(4):
            a(f"v_cvt_pk_bf16_f32 v{cur+r}, v{cur+2*r}, v{cur+2*r+1}")
        for r in range(8, 12):
            a(f"v_exp_f32 v{cur+r}, v{cur+r}")
        a(f"v_mfma_f32_32x32x16_bf16 {vr(O,16)}, {vr(VB[u&1],4)}, {vr(cur,4)}, {vr(O,16)}")
        for r in range(12, 16):
            a(f"v_exp_f32 v{cur+r}, v{cur+r}")
        for r in range(4):
            a(f"v_cvt_pk_bf16_f32 v{cur+4+r}, v{cur+8+2*r}, v{cur+8+2*r+1}")
        a("s_nop 1")
        a(f"v_mfma_f32_32x32x16_bf16 {vr(O,16)}, {vr(VB[u&1]+4,4)}, {vr(cur+4,4)}, {vr(O,16)}")
    a(f"v_add_u32 v{ADDR}, {U*2048}, v{ADDR}")
    a("s_add_u32 s27, s27, 1")
    a(f"s_cmp_lt_u32 s27, {64//U}")
    a("s_cbranch_scc1 attn_loop")
    a("s_nop 7")
    a("s_nop 7")
    a(f"""
    s_cmp_lg_u32 s30, 0
    s_cbranch_scc1 attn_fin
    v_max3_f32 v99, |v{O}|, |v{O+1}|, |v{O+2}|
    v_max3_f32 v99, v99, |v{O+3}|, |v{O+4}|
    v_max3_f32 v99, v99, |v{O+5}|, |v{O+6}|
    v_max3_f32 v99, v99, |v{O+7}|, v{O+8}
    v_add_f32 v100, v{O}, v{O+1}
    v_add_f32 v100, v100, v{O+2}
    v_add_f32 v100, v100, v{O+3}
    v_add_f32 v100, v100, v{O+4}
    v_add_f32 v100, v100, v{O+5}
    v_add_f32 v100, v100, v{O+6}
    v_add_f32 v100, v100, v{O+7}
    v_mul_f32 v100, 0, v100
    v_add_f32 v99, v99, v100
    s_mov_b32 s31, {f32(2.0**100)}
    v_cmp_gt_f32 vcc, s31, v99
    s_cmp_eq_u64 vcc, exec
    s_cbranch_scc1 attn_fin
    """)
    a("s_mov_b32 s30, 1")
    a("s_waitcnt lgkmcnt(0)")
    a(f"v_mov_b32 v{ADDR}, v2")
    a(f"v_mov_b32 v99, {f32(-3.0e38)}")
    a("s_mov_b32 s27, 0")
    a.lab("attn_maxloop")
    a(f"ds_read_b128 {vr(KB[0],4)}, v{ADDR}")
    a("s_waitcnt lgkmcnt(0)")
    a(f"v_mfma_f32_32x32x16_bf16 {vr(S[0],16)}, {vr(KB[0],4)}, {vr(Q,4)}, 0")
    a("s_nop 7")
    a("s_nop 7")
    for r in range(0, 16, 2):
        a(f"v_max3_f32 v99, v99, v{S[0]+r}, v{S[0]+r+1}")
    a(f"v_add_u32 v{ADDR}, 2048, v{ADDR}")
    a("s_add_u32 s27, s27, 1")
    a("s_cmp_lt_u32 s27, 64")
    a("s_cbranch_scc1 attn_maxloop")
    a("s_branch attn_setmax")
    a.lab("attn_fin")
    a(f"""
    v_rcp_f32 v99, v{O+8}
    v_sub_f32 v100, 1.0, v{G}
    s_cmp_eq_u32 s20, 0
    s_cselect_b64 vcc, -1, 0
    s_nop 1
    v_cndmask_b32 v100, v100, v{G}, vcc
    v_mul_f32 v99, v99, v100
    """)
    for r in range(8):
        a(f"v_mul_f32 v{O+r}, v{O+r}, v99")
    for r in range(4):
        a(f"v_cvt_pk_bf16_f32 v{O+r}, v{O+2*r}, v{O+2*r+1}")
    a(f"""
    s_lshl_b32 s23, s19, 6
    s_add_u32 s23, s23, s16
    s_lshl_b32 s23, s23, 10
    s_add_u32 s23, s23, {WS_O}
    buffer_store_dwordx4 {vr(O,4)}, v2, s[12:15], s23 offen
    """)
    a.lab("attn_end")
    a("s_endpgm")
    return descriptor(name, 104, 40)

def gen_proj(a):
    name = "proj_kernel"
    header(a, name)
    OF = 64
    ACC = 0 + 192
    a(f"""
    s_cmp_ge_u32 s2, 256
    s_cbranch_scc1 proj_end
    s_load_dwordx2 s[4:5], s[0:1], 16
    s_load_dwordx2 s[6:7], s[0:1], 40
    s_load_dwordx4 s[8:11], s[0:1], 56
    s_load_dwordx2 s[12:13], s[0:1], 72
    v_lshrrev_b32 v1, 6, v0
    v_and_b32 v2, 63, v0
    s_and_b32 s34, s2, 7
    s_lshr_b32 s35, s2, 3
    v_readfirstlane_b32 s31, v1
    s_lshl_b32 s28, s34, 2
    s_lshr_b32 s36, s35, 3
    s_add_u32 s28, s28, s36
    s_and_b32 s29, s35, 7
    v_lshrrev_b32 v3, 3, v2
    v_and_b32 v4, 7, v2
    v_lshrrev_b32 v5, 4, v2
    v_and_b32 v8, 1, v5
    v_lshlrev_b32 v8, 2, v8
    v_xor_b32 v8, v4, v8
    v_lshlrev_b32 v8, 4, v8
    v_lshl_add_u32 v12, v3, 10, v8
    v_lshlrev_b32 v10, 4, v2
    s_waitcnt lgkmcnt(0)
    s_cmp_lt_u32 s31, 2
    s_cselect_b32 s16, s4, s6
    s_cselect_b32 s17, s5, s7
    s_and_b32 s36, s31, 1
    s_lshl_b32 s36, s36, 18
    s_lshl_b32 s37, s29, 7
    s_add_u32 s36, s36, s37
    s_add_u32 s16, s16, s36
    s_addc_u32 s17, s17, 0
    s_sub_u32 s18, 524288, s36
    s_mov_b32 s19, 0x20000
    s_mov_b32 s20, s12
    s_mov_b32 s21, s13
    s_mov_b32 s22, {WS_END}
    s_mov_b32 s23, 0x20000
    s_mov_b32 s24, s8
    s_mov_b32 s25, s9
    s_mov_b32 s26, 2097152
    s_mov_b32 s27, 0x20000
    s_lshl_b32 s38, s28, 7
    s_lshl_b32 s39, s31, 4
    s_add_u32 s38, s38, s39
    s_lshl_b32 s38, s38, 10
    s_add_u32 s38, s38, {WS_O}
    s_add_u32 s39, s38, 65536
    s_lshl_b32 s40, s31, 15
    s_mov_b32 s41, 0
    """)
    for i in range(16):
        for e in range(2):
            a(f"s_add_u32 m0, s40, {i*2048+e*1024}")
            a(f"s_add_u32 s42, s41, {(i*16+e*8)*1024}")
            a(f"buffer_load_dwordx4 v12, s[16:19], s42 offen lds")
        a(f"s_add_u32 s43, s38, {i*1024}")
        a(f"buffer_load_dwordx4 {vr(OF+8*i,4)}, v10, s[20:23], s43 offen")
        a(f"s_add_u32 s43, s39, {i*1024}")
        a(f"buffer_load_dwordx4 {vr(OF+8*i+4,4)}, v10, s[20:23], s43 offen")
    a("""
    v_lshrrev_b32 v21, 5, v2
    v_and_b32 v26, 15, v2
    v_lshrrev_b32 v27, 2, v26
    v_lshl_add_u32 v28, v21, 2, v27
    v_lshlrev_b32 v28, 7, v28
    v_and_b32 v29, 1, v5
    v_lshlrev_b32 v29, 1, v29
    v_bfe_u32 v30, v26, 1, 1
    v_add_u32 v29, v29, v30
    v_bfe_u32 v30, v27, 1, 1
    v_lshlrev_b32 v30, 2, v30
    v_xor_b32 v29, v29, v30
    v_lshl_add_u32 v28, v29, 4, v28
    v_and_b32 v30, 1, v26
    v_lshl_add_u32 v28, v30, 3, v28
    v_add_u32 v20, s40, v28
    v_xor_b32 v21, 64, v20
    """)
    for r in range(64):
        a(f"v_mov_b32 v{ACC+r}, 0")
    WFR = [32, 40]
    def rd(i):
        f = WFR[i & 1]
        for ct in range(2):
            for u in range(2):
                a(f"ds_read_b64_tr_b16 {vr(f+4*ct+2*u,2)}, v{20+ct} offset:{(16*i+8*u)*128}")
    a("s_waitcnt vmcnt(60)")
    rd(0)
    for i in range(16):
        if i < 15:
            a(f"s_waitcnt vmcnt({max(0,60-4*(i+1))})")
            rd(i+1)
            a("s_waitcnt lgkmcnt(4)")
        else:
            a("s_waitcnt lgkmcnt(0)")
        f = WFR[i & 1]
        for ct in range(2):
            for tt in range(2):
                d = vr(ACC+16*(ct*2+tt), 16)
                a(f"v_mfma_f32_32x32x16_bf16 {d}, {vr(f+4*ct,4)}, {vr(OF+8*i+4*tt,4)}, {d}")
    a("s_barrier")
    a("""
    v_and_b32 v22, 31, v2
    v_lshrrev_b32 v23, 5, v2
    v_and_b32 v24, 7, v22
    v_lshlrev_b32 v25, 8, v22
    s_lshl_b32 s40, s31, 14
    v_add_u32 v25, s40, v25
    s_nop 7
    s_nop 7
    """)
    for ct in range(2):
        for q4 in range(4):
            a(f"v_add_u32 v26, {ct*8+2*q4}, v23")
            a(f"v_xor_b32 v26, v26, v24")
            a(f"v_lshl_add_u32 v26, v26, 4, v25")
            for tt in range(2):
                a(f"ds_write_b128 v26, {vr(ACC+16*(ct*2+tt)+4*q4,4)} offset:{tt*8192}")
    a("s_waitcnt lgkmcnt(0)")
    a("s_barrier")
    a("""
    v_lshrrev_b32 v22, 2, v0
    v_and_b32 v23, 3, v0
    v_and_b32 v24, 7, v22
    v_lshlrev_b32 v25, 8, v22
    v_lshlrev_b32 v27, 2, v23
    """)
    for c in range(4):
        a(f"v_add_u32 v26, {c}, v27")
        a(f"v_xor_b32 v26, v26, v24")
        a(f"v_lshl_add_u32 v26, v26, 4, v25")
        for w in range(4):
            a(f"ds_read_b128 {vr(64+w*16+c*4,4)}, v26 offset:{w*16384}")
    a("s_waitcnt lgkmcnt(0)")
    for r in range(16):
        a(f"v_add_f32 v{64+r}, v{64+r}, v{80+r}")
        a(f"v_add_f32 v{96+r}, v{96+r}, v{112+r}")
    for r in range(16):
        a(f"v_add_f32 v{64+r}, v{64+r}, v{96+r}")
    for r in range(8):
        a(f"v_cvt_pk_bf16_f32 v{64+r}, v{64+2*r}, v{64+2*r+1}")
    a("""
    v_lshlrev_b32 v22, 10, v22
    v_lshl_add_u32 v22, v23, 5, v22
    s_lshl_b32 s40, s28, 16
    s_lshl_b32 s41, s29, 7
    s_add_u32 s40, s40, s41
    buffer_store_dwordx4 v[64:67], v22, s[24:27], s40 offen
    buffer_store_dwordx4 v[68:71], v22, s[24:27], s40 offen offset:16
    """)
    a.lab("proj_end")
    a("s_endpgm")
    return descriptor(name, 256, 48)

HEAD = open("cdna_kernels/%s.s.ref" % NAME).read().split("; Override")[0]

def main(out):
    a = A()
    descs = []
    descs.append(gen_qkv(a))
    descs.append(gen_attn(a))
    descs.append(gen_proj(a))
    s = HEAD
    s += "; @launch kernel=qkv_kernel grid=(256,1,1) block=(256,1,1) lds=163840\n"
    s += "; @launch kernel=attn_kernel grid=(256,1,1) block=(1024,1,1) lds=135168\n"
    s += "; @launch kernel=proj_kernel grid=(256,1,1) block=(256,1,1) lds=131072\n"
    s += '.amdgcn_target "amdgcn-amd-amdhsa--gfx950"\n'
    s += a.text()
    s += "".join(descs)
    open(out, "w").write(s)

if __name__ == "__main__":
    main(sys.argv[1] if len(sys.argv) > 1 else "cdna_kernels/%s.s" % NAME)
```

```python
def kernel(name, body, iters, nw, vgpr=128, init="", unroll=4):
    s = f"""
.text
.globl {name}
.p2align 8
.type {name},@function
{name}:
  s_load_dwordx2 s[4:5], s[0:1], 0
  s_load_dwordx2 s[6:7], s[0:1], 8
  v_lshlrev_b32 v1, 4, v0
  s_waitcnt lgkmcnt(0)
"""
    for r in range(4, vgpr, 4):
        s += f"  global_load_dwordx4 v[{r}:{r+3}], v1, s[4:5] offset:{(r*16)%4096}\n  v_add_u32 v1, 16384, v1\n"
    s += "  s_waitcnt vmcnt(0)\n"
    s += init
    s += f"""
  s_barrier
  s_memrealtime s[20:21]
  s_memtime s[8:9]
  s_mov_b32 s12, {iters}
  s_waitcnt lgkmcnt(0)
  .p2align 6
{name}_loop:
{body*unroll}
  s_sub_u32 s12, s12, 1
  s_cmp_lg_u32 s12, 0
  s_cbranch_scc1 {name}_loop
  s_nop 15
  s_memtime s[10:11]
  s_memrealtime s[22:23]
  s_waitcnt lgkmcnt(0)
  s_sub_u32 s10, s10, s8
  s_sub_u32 s22, s22, s20
  s_lshl_b32 s22, s22, 8
  v_lshrrev_b32 v1, 6, v0
  s_mul_i32 s13, s2, {nw}
  v_add_u32 v1, s13, v1
  v_lshlrev_b32 v1, 3, v1
  v_mov_b32 v2, s10
  v_mov_b32 v3, s22
  v_and_b32 v4, 63, v0
  v_cmp_eq_u32 vcc, 0, v4
  s_and_saveexec_b64 s[14:15], vcc
  global_store_dwordx2 v1, v[2:3], s[6:7]
  s_waitcnt vmcnt(0)
  s_endpgm
.section .rodata,"a"
.p2align 6
.amdhsa_kernel {name}
  .amdhsa_next_free_vgpr {vgpr}
  .amdhsa_next_free_sgpr 64
  .amdhsa_accum_offset {vgpr}
  .amdhsa_group_segment_fixed_size 0
  .amdhsa_kernarg_size 16
  .amdhsa_user_sgpr_count 2
  .amdhsa_user_sgpr_kernarg_segment_ptr 1
  .amdhsa_system_sgpr_workgroup_id_x 1
.end_amdhsa_kernel
"""
    meta = f"""  - .name: {name}
    .symbol: {name}.kd
    .kernarg_segment_size: 16
    .kernarg_segment_align: 8
    .group_segment_fixed_size: 0
    .private_segment_fixed_size: 0
    .wavefront_size: 64
    .sgpr_count: 64
    .vgpr_count: {vgpr}
    .max_flat_workgroup_size: 1024
    .args:
      - {{.name: inp, .size: 8, .offset: 0, .value_kind: global_buffer, .address_space: global}}
      - {{.name: outp, .size: 8, .offset: 8, .value_kind: global_buffer, .address_space: global}}
"""
    return s, meta
def build(kernels, fn):
    out = '.amdgcn_target "amdgcn-amd-amdhsa--gfx950"\n'
    metas = ""
    for k in kernels:
        s, m = kernel(**k)
        out += s; metas += m
    out += ".amdgpu_metadata\n---\namdhsa.version: [1, 2]\namdhsa.kernels:\n" + metas + "...\n.end_amdgpu_metadata\n"
    open(fn, "w").write(out)
```

```python
from gen3 import *
def M(d,a,b,c,t="bf16"): return f"  v_mfma_f32_32x32x16_{t} {d}, {a}, {b}, {c}\n"
def tile(cur,nxt,k,vb,mode="cvt",c0=False,O=64):
    C = "0" if c0 else "v[80:95]"
    t = "f16" if mode=="f16" else "bf16"
    s = M(f"v[{nxt}:{nxt+15}]",f"v[{k}:{k+3}]","v[4:7]",C, "bf16")
    e = lambda r: f"  v_exp_f32 v{cur+r}, v{cur+r}\n"
    if mode=="cvt": pk = lambda d,x,y: f"  v_cvt_pk_bf16_f32 v{d}, v{x}, v{y}\n"
    elif mode=="perm": pk = lambda d,x,y: f"  v_perm_b32 v{d}, v{y}, v{x}, v100\n"
    if mode in ("cvt","perm"):
        s += "".join(e(r) for r in range(8))
        s += "".join(pk(cur+r, cur+2*r, cur+2*r+1) for r in range(4))
        s += "".join(e(r) for r in range(8,16))
        s += M(f"v[{O}:{O+15}]",f"v[{vb}:{vb+3}]",f"v[{cur}:{cur+3}]",f"v[{O}:{O+15}]")
        s += "".join(pk(cur+4+r, cur+8+2*r, cur+8+2*r+1) for r in range(4))
        s += "  s_nop 1\n"
        s += M(f"v[{O}:{O+15}]",f"v[{vb+4}:{vb+7}]",f"v[{cur+4}:{cur+7}]",f"v[{O}:{O+15}]")
    else:
        s += "".join(f"  v_cvt_pkrtz_f16_f32 v{cur+r}, v{cur+2*r}, v{cur+2*r+1}\n" for r in range(8))
        def e16(r):
            return (f"  v_exp_f16_sdwa v{r}, v{r} dst_sel:WORD_0 dst_unused:UNUSED_PRESERVE src0_sel:WORD_0\n"
                    f"  v_exp_f16_sdwa v{r}, v{r} dst_sel:WORD_1 dst_unused:UNUSED_PRESERVE src0_sel:WORD_1\n")
        def e16pair(r0, r1):
            return (f"  v_exp_f16_sdwa v{r0}, v{r0} dst_sel:WORD_0 dst_unused:UNUSED_PRESERVE src0_sel:WORD_0\n"
                    f"  v_exp_f16_sdwa v{r1}, v{r1} dst_sel:WORD_0 dst_unused:UNUSED_PRESERVE src0_sel:WORD_0\n"
                    f"  v_exp_f16_sdwa v{r0}, v{r0} dst_sel:WORD_1 dst_unused:UNUSED_PRESERVE src0_sel:WORD_1\n"
                    f"  v_exp_f16_sdwa v{r1}, v{r1} dst_sel:WORD_1 dst_unused:UNUSED_PRESERVE src0_sel:WORD_1\n")
        s += e16pair(cur,cur+1)+e16pair(cur+2,cur+3)+e16pair(cur+4,cur+5)
        s += M(f"v[{O}:{O+15}]",f"v[{vb}:{vb+3}]",f"v[{cur}:{cur+3}]",f"v[{O}:{O+15}]","f16")
        s += e16pair(cur+6,cur+7)
        s += "  s_nop 1\n"
        s += M(f"v[{O}:{O+15}]",f"v[{vb+4}:{vb+7}]",f"v[{cur+4}:{cur+7}]",f"v[{O}:{O+15}]","f16")
    return s
def two(**kw): return tile(32,48,12,16,**kw)+tile(48,32,8,24,**kw)
base_init = "".join(f"  v_mov_b32 v{r}, -4.0\n" for r in range(80,96)) + "".join(f"  v_mov_b32 v{r}, 0\n" for r in range(32,80)) + "  v_mov_b32 v100, 0x07060302\n"
shr = "".join(f"  v_and_b32 v{r}, 0xbf7fbf7f, v{r}\n  v_and_b32 v{r}, 0xbfffbfff, v{r}\n" for r in range(4,16))
zv = "  v_and_b32 v1, 16, v0\n  v_cmp_eq_u32 vcc, 0, v1\n  s_nop 1\n" + "".join(f"  v_cndmask_b32 v{r}, 0, v{r}, vcc\n" for r in range(16,32))
zv16 = zv + "".join(f"  v_and_b32 v{r}, 0xbbffbbff, v{r}\n" for r in range(16,32))
bodies={}
bodies['base'] = (two(), base_init+shr+zv)
bodies['perm'] = (two(mode="perm"), base_init+shr+zv)
bodies['f16'] = (two(mode="f16"), base_init+shr+zv16)
bodies['c0'] = (two(c0=True), base_init+shr+zv)
ks=[]; args=[]
for name,(b,i) in bodies.items():
    ks.append(dict(name=f"{name}", body=b, iters=16, nw=16, init=i, unroll=2))
    args += [f"{name}", "256", "1024", "0", "6"]
ks.append(dict(name="base_w8", body=bodies['base'][0], iters=32, nw=8, init=bodies['base'][1], unroll=2)); args += ["base_w8","256","512","0","6"]
ks.append(dict(name="base_w4", body=bodies['base'][0], iters=64, nw=4, init=bodies['base'][1], unroll=2)); args += ["base_w4","256","256","0","6"]
build(ks, "mb8.s")
open("mb8.args","w").write(" ".join(args))
```

```python
import sys, struct

NAME = "gated_mix__mha_block__mha_block__prompt"
WS_Q = 0
WS_KV = 4 << 20
WS_O = 12 << 20
WS_G = 16 << 20
WS_END = WS_G + 8192
QSCALE = 0.25 * 1.4426950408889634

def f32(x):
    return "0x%08x" % struct.unpack("<I", struct.pack("<f", x))[0]

class A:
    def __init__(self):
        self.l = []
    def __call__(self, s):
        for x in s.strip().split("\n"):
            if x.strip():
                self.l.append("  " + x.strip())
    def lab(self, s):
        self.l.append(s + ":")
    def raw(self, s):
        self.l.append(s)
    def text(self):
        return "\n".join(self.l) + "\n"

PROF = False
OPT = dict(prio=1, U=4, zero_rows=1)
WS_T = 32 << 20
SB = 70
def stamp(a, k):
    if PROF:
        a(f"s_memtime s[{SB+2*k}:{SB+2*k+1}]")
def stamp_start(a):
    if PROF:
        a(f"s_memrealtime s[{SB+16}:{SB+17}]")
        stamp(a, 0)
def stamp_end(a, kern, nw, wv, tmpv):
    if not PROF:
        return
    a("s_waitcnt vmcnt(0)")
    a(f"s_memrealtime s[{SB+18}:{SB+19}]")
    stamp(a, 7)
    a("s_load_dwordx2 s[90:91], s[0:1], 72")
    a("s_waitcnt lgkmcnt(0)")
    a(f"s_lshl_b32 s92, s2, 4")
    a(f"s_add_u32 s92, s92, s{wv}")
    a(f"s_add_u32 s92, s92, {kern*256*16}")
    a(f"s_lshl_b32 s92, s92, 7")
    a(f"s_add_u32 s92, s92, {WS_T}")
    a("s_add_u32 s90, s90, s92")
    a("s_addc_u32 s91, s91, 0")
    a("s_mov_b64 exec, 1")
    a(f"v_mov_b32 v{tmpv}, 0")
    for k in range(10):
        a(f"v_mov_b32 v{tmpv+2}, s{SB+2*k}")
        a(f"v_mov_b32 v{tmpv+3}, s{SB+2*k+1}")
        a(f"global_store_dwordx2 v{tmpv}, v[{tmpv+2}:{tmpv+3}], s[90:91] offset:{8*k}")
        a("s_nop 1")

def vr(b, n):
    return f"v[{b}:{b+n-1}]"

def header(a, name):
    a.raw(".text")
    a.raw(f".globl {name}")
    a.raw(".p2align 8")
    a.raw(f".type {name},@function")
    a.lab(name)

def descriptor(name, vgpr, sgpr, accum=None):
    if accum is None:
        accum = (vgpr + 3) // 4 * 4
    return f""".section .rodata,"a"
.p2align 6
.amdhsa_kernel {name}
  .amdhsa_next_free_vgpr {vgpr}
  .amdhsa_next_free_sgpr {sgpr}
  .amdhsa_accum_offset {accum}
  .amdhsa_group_segment_fixed_size 0
  .amdhsa_kernarg_size 80
  .amdhsa_user_sgpr_count 2
  .amdhsa_user_sgpr_kernarg_segment_ptr 1
  .amdhsa_system_sgpr_workgroup_id_x 1
.end_amdhsa_kernel
"""

def gen_qkv(a):
    name = "qkv_kernel"
    header(a, name)
    SLOT = 40960
    ST = OPT.get("st", "")
    stf = {0: "", 1: " sc1", 2: " nt", 3: " sc0 sc1"}[OPT.get("qst", 0)]
    a("s_cmp_ge_u32 s2, 256")
    a("s_cbranch_scc1 qkv_end")
    stamp_start(a)
    a("""
    s_load_dwordx4 s[4:7], s[0:1], 0
    s_load_dwordx2 s[10:11], s[0:1], 32
    s_load_dwordx2 s[12:13], s[0:1], 48
    s_load_dwordx2 s[14:15], s[0:1], 72
    v_lshrrev_b32 v1, 6, v0
    v_and_b32 v2, 63, v0
    s_and_b32 s34, s2, 7
    s_lshr_b32 s35, s2, 3
    v_readfirstlane_b32 s31, v1
    """)
    if OPT.get("map", 1) == 0:
        a("""
        s_lshr_b32 s28, s34, 2
        s_and_b32 s36, s34, 3
        s_lshl_b32 s36, s36, 1
        s_and_b32 s37, s35, 1
        s_add_u32 s29, s36, s37
        s_lshr_b32 s30, s35, 1
        """)
    else:
        a("""
        s_lshr_b32 s36, s34, 1
        s_lshl_b32 s36, s36, 2
        s_and_b32 s37, s35, 3
        s_add_u32 s36, s36, s37
        s_lshr_b32 s28, s36, 3
        s_and_b32 s29, s36, 7
        s_and_b32 s30, s34, 1
        s_lshl_b32 s30, s30, 3
        s_lshr_b32 s37, s35, 2
        s_add_u32 s30, s30, s37
        """)
    a("""
    v_lshrrev_b32 v5, 4, v2
    s_cmp_ge_u32 s31, 4
    s_cbranch_scc0 qkv_compute
    """)
    a("""
    s_sub_u32 s31, s31, 4
    s_setprio 3
    v_lshrrev_b32 v3, 3, v2
    v_and_b32 v4, 7, v2
    v_xor_b32 v6, v4, v5
    v_lshlrev_b32 v6, 4, v6
    v_lshl_add_u32 v10, v3, 10, v6
    v_add_u32 v7, 4, v5
    v_xor_b32 v7, v4, v7
    v_lshlrev_b32 v7, 4, v7
    v_lshl_add_u32 v11, v3, 10, v7
    v_and_b32 v8, 1, v5
    v_lshlrev_b32 v8, 2, v8
    v_xor_b32 v8, v4, v8
    v_lshlrev_b32 v8, 4, v8
    v_mul_u32_u24 v9, 3072, v3
    v_add_u32 v12, v9, v8
    s_lshl_b32 s54, s31, 15
    """)
    for u in range(4):
        a(f"s_add_u32 s{44+u}, s54, {u*8192}")
    a("s_mul_i32 s54, s31, 49152")
    for g3 in range(3):
        for e in range(2):
            a(f"s_add_u32 s{48+g3*2+e}, s54, {g3*1024 + e*8*3072}")
    a("s_lshl_b32 s55, s31, 12")
    a("s_lshl_b32 s56, s31, 11")
    a("s_add_u32 s56, s56, 16384")
    a("s_lshl_b32 s38, s30, 17")
    a("s_lshl_b32 s39, s29, 7")
    a("s_mov_b32 s18, 131072")
    a("s_mov_b32 s19, 0x20000")
    a("s_sub_u32 s22, 1572864, s39")
    a("s_mov_b32 s23, 0x20000")
    a("s_waitcnt lgkmcnt(0)")
    stamp(a, 1)
    a("""
    s_cmp_eq_u32 s28, 0
    s_cselect_b32 s20, s6, s10
    s_cselect_b32 s21, s7, s11
    s_add_u32 s16, s4, s38
    s_addc_u32 s17, s5, 0
    s_add_u32 s20, s20, s39
    s_addc_u32 s21, s21, 0
    """)
    def issue_stage():
        prev = None
        def adv(p):
            if p is None:
                a("s_nop 0")
            else:
                a(f"s_add_u32 s{p[0]}, s{p[0]}, {p[1]}")
        seq = [("w",0,0),("x",0,0),("w",0,1),("x",1,0),("w",1,0),("x",2,0),("w",1,1),("x",3,0),("w",2,0),("w",2,1)]
        for kind, i, e in seq:
            if kind == "x":
                a(f"s_add_u32 m0, s55, {i*1024}")
                adv(prev)
                a(f"buffer_load_dwordx4 v{10+(i&1)}, s[16:19], s{44+i} offen lds")
                prev = (44+i, 128)
            else:
                a(f"s_add_u32 m0, s56, {i*8192+e*1024}")
                adv(prev)
                a(f"buffer_load_dwordx4 v12, s[20:23], s{48+i*2+e} offen lds")
                prev = (48+i*2+e, 64*3072)
        adv(prev)
    L = OPT.get("look", 2)
    def adv_slot():
        a(f"s_add_u32 s55, s55, {SLOT}")
        a(f"s_add_u32 s56, s56, {SLOT}")
        a(f"s_cmp_ge_u32 s56, {4*SLOT}")
        a(f"s_cselect_b32 s54, {4*SLOT}, 0")
        a("s_sub_u32 s55, s55, s54")
        a("s_sub_u32 s56, s56, s54")
    sched = OPT.get("sched", 0)
    if sched == 0:
        pro = [0, 1]; after = {k: [k+2] for k in range(6)}
    elif sched == 1:
        pro = [0, 1]; after = {0: [2, 3], 1: [4], 2: [5], 3: [6], 4: [7]}
    elif sched == 2:
        pro = [0, 1, 2]; after = {k: [k+3] for k in range(5)}
    elif sched == 3:
        pro = [0, 1]; after = {0: [2, 3], 1: [4], 2: [5], 3: [6], 4: [7]}
    PF = OPT.get("pf", 0)
    if PF:
        a("""
        s_and_b32 s61, s34, 1
        s_lshl_b32 s61, s61, 10
        s_lshl_b32 s62, s35, 5
        s_add_u32 s61, s61, s62
        v_add_u32 v20, s61, v2
        v_lshlrev_b32 v20, 10, v20
        v_subrev_u32 v21, 32, v2
        v_lshrrev_b32 v22, 3, v21
        v_min_u32 v22, 2, v22
        v_and_b32 v23, 7, v2
        s_lshr_b32 s62, s35, 2
        s_lshl_b32 s62, s62, 3
        v_add_u32 v23, s62, v23
        v_mul_u32_u24 v23, 3072, v23
        v_lshl_add_u32 v23, v22, 10, v23
        v_cmp_gt_u32 vcc, 32, v2
        v_mov_b32 v24, 128
        v_mov_b32 v25, 196608
        v_cndmask_b32 v20, v23, v20, vcc
        v_cndmask_b32 v24, v25, v24, vcc
        v_mov_b32 v25, s4
        v_mov_b32 v26, s20
        v_cndmask_b32 v25, v26, v25, vcc
        v_mov_b32 v26, s5
        v_mov_b32 v27, s21
        v_cndmask_b32 v26, v27, v26, vcc
        v_add_co_u32 v28, vcc, v25, v20
        s_nop 1
        v_addc_co_u32 v29, vcc, 0, v26, vcc
        s_add_u32 s62, s31, 3
        v_mul_lo_u32 v30, v24, s62
        v_mul_u32_u24 v31, 7, v24
        v_add_co_u32 v32, vcc, v28, v30
        s_nop 1
        v_addc_co_u32 v33, vcc, 0, v29, vcc
        v_add_co_u32 v34, vcc, v28, v31
        s_nop 1
        v_addc_co_u32 v35, vcc, 0, v29, vcc
        """)
    issued = []
    for st in pro:
        issue_stage(); adv_slot(); issued.append(st)
    if PF:
        a("global_load_dword v36, v[32:33], off")
        a("global_load_dword v37, v[34:35], off")
    if OPT.get("wpf", 0):
        a("s_barrier")
    stamp(a, 2)
    for k in range(8):
        n_after = len([x for x in issued if x > k])
        extra = 2 if (PF and k <= pro[-1]) else 0
        a(f"s_waitcnt vmcnt({10*n_after + extra})")
        a("s_barrier")
        if k in (0, 2, 4): stamp(a, 3 + k//2)
        for st in after.get(k, []):
            issue_stage(); adv_slot(); issued.append(st)
    a(f"""
    s_cmp_ge_u32 s31, 2
    s_cbranch_scc1 qkv_ld_done
    s_mov_b32 s40, s12
    s_mov_b32 s41, s13
    s_mov_b32 s42, 1024
    s_mov_b32 s43, 0x20000
    s_mov_b32 s24, s14
    s_mov_b32 s25, s15
    s_mov_b32 s26, {WS_END}
    s_mov_b32 s27, 0x20000
    v_and_b32 v13, 15, v2
    v_lshlrev_b32 v13, 6, v13
    v_lshl_add_u32 v14, v5, 10, v13
    s_lshl_b32 s38, s28, 3
    s_add_u32 s38, s38, s29
    s_lshl_b32 s38, s38, 3
    s_lshl_b32 s39, s31, 2
    s_add_u32 s38, s38, s39
    s_lshl_b32 s39, s38, 10
    """)
    for i in range(4):
        a(f"buffer_load_dwordx4 {vr(16+4*i,4)}, v14, s[16:19], s39 offen offset:{16*i}")
    for i in range(4):
        a(f"buffer_load_dwordx4 {vr(32+4*i,4)}, v13, s[40:43], 0 offen offset:{16*i}")
    a("v_mov_b32 v48, 0")
    a("s_waitcnt vmcnt(0)")
    for i in range(16):
        a(f"v_dot2c_f32_bf16 v48, v{16+i}, v{32+i}")
    a("s_nop 3")
    for rot in (8, 4, 2, 1):
        a(f"v_add_f32_dpp v48, v48, v48 row_ror:{rot} row_mask:0xf bank_mask:0xf")
        a("s_nop 1")
    a(f"""
    v_mul_f32 v48, {f32(-1.4426950408889634)}, v48
    v_exp_f32 v48, v48
    s_nop 0
    v_add_f32 v48, 1.0, v48
    v_rcp_f32 v48, v48
    s_lshl_b32 s39, s30, 7
    s_add_u32 s39, s39, s38
    s_lshl_b32 s39, s39, 2
    s_add_u32 s39, s39, {WS_G}
    v_lshlrev_b32 v49, 2, v5
    v_and_b32 v50, 15, v2
    v_cmp_eq_u32 vcc, 0, v50
    s_and_saveexec_b64 s[58:59], vcc
    buffer_store_dword v48, v49, s[24:27], s39 offen
    s_mov_b64 exec, s[58:59]
    """)
    a.lab("qkv_ld_done")
    stamp(a, 6)
    if PROF:
        a("s_add_u32 s31, s31, 4")
    stamp_end(a, 0, 8, 31, 0)
    a("s_endpgm")

    a.lab("qkv_compute")
    a("""
    s_and_b32 s32, s31, 1
    s_lshr_b32 s33, s31, 1
    v_and_b32 v20, 31, v2
    v_lshrrev_b32 v21, 5, v2
    v_lshrrev_b32 v22, 1, v2
    v_and_b32 v22, 7, v22
    s_lshl_b32 s38, s32, 13
    v_lshlrev_b32 v23, 7, v20
    v_add_u32 v23, s38, v23
    """)
    for ks in range(4):
        a(f"v_add_u32 v24, {2*ks}, v21")
        a(f"v_xor_b32 v24, v24, v22")
        a(f"v_lshl_add_u32 v{16+ks}, v24, 4, v23")
    a("""
    v_and_b32 v26, 15, v2
    v_lshrrev_b32 v27, 2, v26
    v_lshl_add_u32 v28, v21, 3, v27
    v_lshlrev_b32 v28, 7, v28
    v_and_b32 v29, 1, v5
    v_lshlrev_b32 v29, 1, v29
    v_bfe_u32 v30, v26, 1, 1
    v_add_u32 v29, v29, v30
    s_lshl_b32 s38, s33, 2
    v_add_u32 v29, s38, v29
    v_bfe_u32 v30, v27, 1, 1
    v_lshlrev_b32 v30, 2, v30
    v_xor_b32 v29, v29, v30
    v_lshl_add_u32 v28, v29, 4, v28
    v_and_b32 v30, 1, v26
    v_lshl_add_u32 v25, v30, 3, v28
    """)
    ACC = 64
    XF = [32, 160]
    WF = [40, 168]
    def reads(ks, f):
        for tt in range(2):
            a(f"ds_read_b128 {vr(XF[f]+4*tt,4)}, v{20+ks} offset:{tt*4096}")
        for g3 in range(3):
            for u in range(2):
                a(f"ds_read_b64_tr_b16 {vr(WF[f]+4*g3+2*u,2)}, v24 offset:{16384+g3*8192+(16*ks+4*u)*128}")
    def mfmas(f, first=False):
        for tt in range(2):
            x = vr(XF[f]+4*tt, 4)
            for g3 in range(3):
                w = vr(WF[f]+4*g3, 4)
                d = vr(ACC+16*(tt*3+g3), 16)
                c = "0" if first else d
                if g3 < 2:
                    a(f"v_mfma_f32_32x32x16_bf16 {d}, {w}, {x}, {c}")
                else:
                    a(f"v_mfma_f32_32x32x16_bf16 {d}, {x}, {w}, {c}")
    def set_addr():
        for ks in range(4):
            a(f"v_add_u32 v{20+ks}, s57, v{16+ks}")
        a("v_add_u32 v24, s57, v25")
    for r in range(96):
        a(f"v_mov_b32 v{ACC+r}, 0")
    a(f"""
    s_lshl_b32 s38, s28, 5
    s_lshl_b32 s39, s29, 2
    s_add_u32 s38, s38, s39
    s_lshl_b32 s39, s33, 1
    s_add_u32 s38, s38, s39
    s_lshl_b32 s38, s38, 6
    s_lshl_b32 s39, s30, 2
    s_add_u32 s38, s38, s39
    s_lshl_b32 s39, s32, 1
    s_add_u32 s38, s38, s39
    s_lshl_b32 s40, s38, 10
    s_add_u32 s40, s40, {WS_Q}
    s_lshl_b32 s41, s38, 11
    s_add_u32 s41, s41, {WS_KV}
    s_mov_b32 s42, {f32(QSCALE)}
    v_lshlrev_b32 v10, 4, v2
    v_and_b32 v11, 15, v2
    v_lshlrev_b32 v11, 4, v11
    v_lshrrev_b32 v12, 5, v2
    v_lshl_add_u32 v11, v12, 9, v11
    v_bfe_u32 v12, v2, 4, 1
    v_lshl_add_u32 v11, v12, 17, v11
    v_add_u32 v11, 1024, v11
    s_add_u32 s43, s40, 65536
    s_add_u32 s44, s41, 131072
    s_mov_b32 s26, {WS_END}
    s_mov_b32 s27, 0x20000
    s_mov_b32 s57, 0
    s_mov_b32 s60, 0
    """)
    set_addr()
    a("s_waitcnt lgkmcnt(0)")
    if OPT.get("wpf", 0):
        a("""
        s_and_b32 s45, s34, 1
        s_lshl_b32 s45, s45, 10
        s_lshl_b32 s46, s35, 5
        s_add_u32 s45, s45, s46
        s_lshl_b32 s46, s31, 3
        s_add_u32 s45, s45, s46
        s_lshl_b32 s45, s45, 10
        s_add_u32 s46, s4, s45
        s_addc_u32 s47, s5, 0
        v_lshrrev_b32 v187, 3, v2
        v_and_b32 v188, 7, v2
        v_lshlrev_b32 v188, 4, v188
        v_lshl_add_u32 v186, v187, 10, v188
        s_cmp_eq_u32 s28, 0
        s_cselect_b32 s48, s6, s10
        s_cselect_b32 s49, s7, s11
        s_lshr_b32 s45, s35, 2
        s_lshl_b32 s45, s45, 3
        s_mul_i32 s45, s45, 3072
        s_min_u32 s50, s31, 2
        s_lshl_b32 s50, s50, 10
        s_add_u32 s45, s45, s50
        s_lshl_b32 s50, s29, 7
        s_add_u32 s45, s45, s50
        s_add_u32 s45, s45, 393216
        s_add_u32 s48, s48, s45
        s_addc_u32 s49, s49, 0
        v_mul_u32_u24 v187, 3072, v187
        v_add_u32 v187, v187, v188
        s_barrier
        """)
        for st in range(2, 8):
            a(f"global_load_dwordx4 v[180:183], v187, s[48:49]")
            a(f"global_load_dwordx4 v[180:183], v186, s[46:47] offset:{st*128}")
            if st < 7:
                a("v_add_u32 v187, 196608, v187")
    a("s_mov_b32 s24, s14")
    a("s_mov_b32 s25, s15")
    def read_list(ks, f):
        r = []
        r.append(f"ds_read_b64_tr_b16 {vr(WF[f]+0,2)}, v24 offset:{16384+(16*ks+0)*128}")
        r.append(f"ds_read_b64_tr_b16 {vr(WF[f]+2,2)}, v24 offset:{16384+(16*ks+4)*128}")
        r.append(f"ds_read_b128 {vr(XF[f],4)}, v{20+ks} offset:0")
        r.append(f"ds_read_b128 {vr(XF[f]+4,4)}, v{20+ks} offset:4096")
        for g3 in (1, 2):
            for u in range(2):
                r.append(f"ds_read_b64_tr_b16 {vr(WF[f]+4*g3+2*u,2)}, v24 offset:{16384+g3*8192+(16*ks+4*u)*128}")
        return r
    def group(f, rl, barrier=False):
        order = [(0,0),(0,1),(1,0),(1,1),(2,0),(2,1)]
        rl = list(rl)
        for i, (g3, tt) in enumerate(order):
            x = vr(XF[f]+4*tt, 4); w = vr(WF[f]+4*g3, 4); d = vr(ACC+16*(tt*3+g3), 16)
            if g3 < 2:
                a(f"v_mfma_f32_32x32x16_bf16 {d}, {w}, {x}, {d}")
            else:
                a(f"v_mfma_f32_32x32x16_bf16 {d}, {x}, {w}, {d}")
            if i == 0 and barrier:
                a("s_barrier")
            for _ in range(2):
                if rl:
                    a(rl.pop(0))
    a("s_barrier")
    stamp(a, 3)
    for x in read_list(0, 0):
        a(x)
    a.lab("qkv_loop")
    for ks in range(3):
        a("s_waitcnt lgkmcnt(0)")
        group(ks & 1, read_list(ks+1, (ks+1) & 1))
    a("s_cmp_eq_u32 s60, 7")
    a("s_cbranch_scc1 qkv_last")
    a(f"""
    s_add_u32 s57, s57, {SLOT}
    s_cmp_ge_u32 s57, {4*SLOT}
    s_cselect_b32 s38, {4*SLOT}, 0
    s_sub_u32 s57, s57, s38
    """)
    set_addr()
    a("s_waitcnt lgkmcnt(0)")
    group(1, read_list(0, 0), barrier=True)
    a("s_add_u32 s60, s60, 1")
    a("s_branch qkv_loop")
    a.lab("qkv_last")
    a("s_waitcnt lgkmcnt(0)")
    group(1, [])
    stamp(a, 5)
    a("s_nop 7")
    a("s_nop 7")
    for tt in range(2):
        d = ACC + 16*(tt*3+1)
        for r in range(8):
            a(f"v_cvt_pk_bf16_f32 v{d+r}, v{d+2*r}, v{d+2*r+1}")
        a(f"buffer_store_dwordx4 {vr(d,4)}, v10, s[24:27], s41 offen offset:{tt*2048}{stf}")
        a(f"buffer_store_dwordx4 {vr(d+4,4)}, v10, s[24:27], s44 offen offset:{tt*2048}{stf}")
        d = ACC + 16*(tt*3+2)
        for r in range(8):
            a(f"v_cvt_pk_bf16_f32 v{d+r}, v{d+2*r}, v{d+2*r+1}")
        a(f"buffer_store_dwordx4 {vr(d,4)}, v11, s[24:27], s41 offen offset:{tt*2048}{stf}")
        a(f"buffer_store_dwordx4 {vr(d+4,4)}, v11, s[24:27], s41 offen offset:{tt*2048+256}{stf}")
        d = ACC + 16*(tt*3+0)
        for r in range(16):
            a(f"v_mul_f32 v{d+r}, s42, v{d+r}")
        for r in range(8):
            a(f"v_cvt_pk_bf16_f32 v{d+r}, v{d+2*r}, v{d+2*r+1}")
        a(f"buffer_store_dwordx4 {vr(d,4)}, v10, s[24:27], s40 offen offset:{tt*1024}{stf}")
        a(f"buffer_store_dwordx4 {vr(d+4,4)}, v10, s[24:27], s43 offen offset:{tt*1024}{stf}")
    stamp(a, 6)
    stamp_end(a, 0, 8, 31, 0)
    a.lab("qkv_end")
    a("s_endpgm")
    return descriptor(name, 192, 100 if PROF else 64)

def gen_attn(a):
    name = "attn_kernel"
    header(a, name)
    Q = 4; KB = [8, 12]; VB = [16, 24]; S = [32, 48]; O = 64; C = 80
    ADDR = 96; G = 97
    a("s_cmp_ge_u32 s2, 256")
    a("s_cbranch_scc1 attn_end")
    stamp_start(a)
    a(f"""
    s_load_dwordx2 s[4:5], s[0:1], 72
    v_lshrrev_b32 v1, 6, v0
    v_and_b32 v3, 63, v0
    s_and_b32 s21, s2, 7
    s_lshr_b32 s22, s2, 3
    v_readfirstlane_b32 s18, v1
    s_lshl_b32 s16, s21, 3
    s_lshr_b32 s23, s22, 2
    s_add_u32 s16, s16, s23
    s_and_b32 s17, s22, 3
    s_lshr_b32 s20, s16, 5
    s_lshl_b32 s19, s17, 4
    s_add_u32 s19, s19, s18
    v_lshlrev_b32 v2, 4, v3
    s_lshl_b32 s25, s18, 11
    s_mov_b32 m0, s25
    s_lshl_b32 s23, s16, 6
    s_add_u32 s23, s23, s19
    s_lshl_b32 s23, s23, 10
    s_add_u32 s23, s23, {WS_Q}
    s_lshl_b32 s24, s19, 7
    s_add_u32 s24, s24, {WS_G}
    s_lshl_b32 s26, s16, 17
    s_add_u32 s26, s26, {WS_KV}
    s_mov_b32 s10, 131072
    s_mov_b32 s11, 0x20000
    s_mov_b32 s14, {WS_END}
    s_mov_b32 s15, 0x20000
    v_and_b32 v98, 31, v3
    v_lshlrev_b32 v98, 2, v98
    s_waitcnt lgkmcnt(0)
    s_add_u32 s8, s4, s26
    s_addc_u32 s9, s5, 0
    s_mov_b32 s12, s4
    s_mov_b32 s13, s5
    buffer_load_dwordx4 v2, s[8:11], s25 offen lds
    buffer_load_dwordx4 {vr(Q,4)}, v2, s[12:15], s23 offen
    buffer_load_dwordx4 v2, s[8:11], s25 offen offset:1024 lds
    buffer_load_dword v{G}, v98, s[12:15], s24 offen
    """)
    if OPT["zero_rows"]:
        a("""
        v_and_b32 v99, 27, v3
        v_cmp_eq_u32 vcc, 16, v99
        v_mov_b32 v100, 0x3f803f80
        s_nop 0
        v_cndmask_b32 v99, 0, v100, vcc
        """)
        for r in range(16):
            a(f"v_mov_b32 v{VB[0]+r}, v99")
    else:
        for r in range(16):
            a(f"v_mov_b32 v{VB[0]+r}, 0x3f803f80")
    a("s_mov_b32 s28, 0x0000ffff")
    a("s_mov_b32 s29, 0x0000ffff")
    a("s_mov_b32 s30, 0")
    if OPT["prio"]:
        a("s_setprio 3")
    stamp(a, 1)
    a("s_waitcnt vmcnt(0)")
    a("s_barrier")
    stamp(a, 2)
    a(f"ds_read_b128 {vr(KB[0],4)}, v2")
    a("s_waitcnt lgkmcnt(0)")
    a(f"v_mfma_f32_32x32x16_bf16 {vr(S[0],16)}, {vr(KB[0],4)}, {vr(Q,4)}, 0")
    a("s_nop 7")
    a("s_nop 7")
    a(f"v_max3_f32 v99, v{S[0]}, v{S[0]+1}, v{S[0]+2}")
    for r in range(3, 15, 2):
        a(f"v_max3_f32 v99, v99, v{S[0]+r}, v{S[0]+r+1}")
    a(f"v_max_f32 v99, v99, v{S[0]+15}")
    a("s_mov_b32 s31, 0")
    a.lab("attn_setmax")
    a("""
    v_mov_b32 v100, v99
    s_nop 1
    v_permlane32_swap_b32 v99, v100
    s_nop 1
    v_max_f32 v99, v99, v100
    """)
    for r in range(16):
        a(f"v_sub_f32 v{C+r}, 0, v99")
    for r in range(16):
        a(f"v_mov_b32 v{O+r}, 0")
    a(f"v_mov_b32 v{ADDR}, v2")
    a(f"ds_read_b128 {vr(KB[0],4)}, v{ADDR}")
    a(f"ds_read_b128 {vr(KB[1],4)}, v{ADDR} offset:2048")
    a("s_mov_b64 exec, s[28:29]")
    a(f"ds_read_b128 {vr(VB[0],4)}, v{ADDR} offset:1024")
    a(f"ds_read_b128 {vr(VB[0]+4,4)}, v{ADDR} offset:1280")
    a("s_mov_b64 exec, -1")
    a("s_waitcnt lgkmcnt(0)")
    a(f"v_mfma_f32_32x32x16_bf16 {vr(S[0],16)}, {vr(KB[0],4)}, {vr(Q,4)}, {vr(C,16)}")
    a("s_mov_b32 s27, 0")
    U = OPT["U"]
    NIT = 64 // U
    a.lab("attn_loop")
    a("s_cmp_eq_u32 s27, s31")
    a("s_cbranch_scc1 attn_event")
    a.lab("attn_body")
    for u in range(U):
        cur = S[u & 1]; nxt = S[(u+1) & 1]
        a("s_waitcnt lgkmcnt(0)")
        a(f"v_mfma_f32_32x32x16_bf16 {vr(nxt,16)}, {vr(KB[(u+1)&1],4)}, {vr(Q,4)}, {vr(C,16)}")
        a(f"ds_read_b128 {vr(KB[u&1],4)}, v{ADDR} offset:{(u+2)*2048}")
        a("s_mov_b64 exec, s[28:29]")
        a(f"ds_read_b128 {vr(VB[(u+1)&1],4)}, v{ADDR} offset:{(u+1)*2048+1024}")
        a(f"ds_read_b128 {vr(VB[(u+1)&1]+4,4)}, v{ADDR} offset:{(u+1)*2048+1280}")
        a("s_mov_b64 exec, -1")
        for r in range(8):
            a(f"v_exp_f32 v{cur+r}, v{cur+r}")
        for r in range(4):
            a(f"v_cvt_pk_bf16_f32 v{cur+r}, v{cur+2*r}, v{cur+2*r+1}")
        for r in range(8, 16):
            a(f"v_exp_f32 v{cur+r}, v{cur+r}")
        a(f"v_mfma_f32_32x32x16_bf16 {vr(O,16)}, {vr(VB[u&1],4)}, {vr(cur,4)}, {vr(O,16)}")
        for r in range(4):
            a(f"v_cvt_pk_bf16_f32 v{cur+4+r}, v{cur+8+2*r}, v{cur+8+2*r+1}")
        if u == U-1:
            a(f"v_add_u32 v{ADDR}, {U*2048}, v{ADDR}")
            a("s_add_u32 s27, s27, 1")
        else:
            a("s_nop 1")
        a(f"v_mfma_f32_32x32x16_bf16 {vr(O,16)}, {vr(VB[u&1]+4,4)}, {vr(cur+4,4)}, {vr(O,16)}")
    a(f"s_cmp_lt_u32 s27, {NIT}")
    a("s_cbranch_scc1 attn_loop")
    stamp(a, 3)
    a("s_nop 7")
    a("s_nop 7")
    a(f"""
    s_cmp_lg_u32 s30, 0
    s_cbranch_scc1 attn_fin
    v_max3_f32 v99, |v{O}|, |v{O+1}|, |v{O+2}|
    v_max3_f32 v99, v99, |v{O+3}|, |v{O+4}|
    v_max3_f32 v99, v99, |v{O+5}|, |v{O+6}|
    v_max3_f32 v99, v99, |v{O+7}|, v{O+8}
    v_add_f32 v100, v{O}, v{O+1}
    v_add_f32 v100, v100, v{O+2}
    v_add_f32 v100, v100, v{O+3}
    v_add_f32 v100, v100, v{O+4}
    v_add_f32 v100, v100, v{O+5}
    v_add_f32 v100, v100, v{O+6}
    v_add_f32 v100, v100, v{O+7}
    v_mul_f32 v100, 0, v100
    v_add_f32 v99, v99, v100
    s_mov_b32 s33, {f32(2.0**100)}
    v_cmp_gt_f32 vcc, s33, v99
    s_cmp_eq_u64 vcc, exec
    s_cbranch_scc1 attn_fin
    """)
    a("s_mov_b32 s30, 1")
    a("s_mov_b32 s31, 1000")
    a("s_waitcnt lgkmcnt(0)")
    a(f"v_mov_b32 v{ADDR}, v2")
    a(f"v_mov_b32 v99, {f32(-3.0e38)}")
    a("s_mov_b32 s27, 0")
    a.lab("attn_maxloop")
    a(f"ds_read_b128 {vr(KB[0],4)}, v{ADDR}")
    a("s_waitcnt lgkmcnt(0)")
    a(f"v_mfma_f32_32x32x16_bf16 {vr(S[0],16)}, {vr(KB[0],4)}, {vr(Q,4)}, 0")
    a("s_nop 7")
    a("s_nop 7")
    for r in range(0, 16, 2):
        a(f"v_max3_f32 v99, v99, v{S[0]+r}, v{S[0]+r+1}")
    a(f"v_add_u32 v{ADDR}, 2048, v{ADDR}")
    a("s_add_u32 s27, s27, 1")
    a("s_cmp_lt_u32 s27, 64")
    a("s_cbranch_scc1 attn_maxloop")
    a("s_branch attn_setmax")
    q = NIT // 4
    a.lab("attn_event")
    a("s_cmp_ge_u32 s27, 3")
    a("s_cbranch_scc1 attn_ev3")
    a("s_add_u32 s25, s25, 32768")
    a("s_mov_b32 m0, s25")
    a("s_add_u32 s31, s27, 1")
    a("buffer_load_dwordx4 v2, s[8:11], s25 offen lds")
    a("buffer_load_dwordx4 v2, s[8:11], s25 offen offset:1024 lds")
    a("s_branch attn_body")
    a.lab("attn_ev3")
    a("s_cmp_lg_u32 s27, 3")
    a("s_cbranch_scc1 attn_ev4")
    a("s_waitcnt vmcnt(0)")
    a("s_barrier")
    a(f"s_mov_b32 s31, {q if OPT['prio'] else 1000}")
    a("s_branch attn_body")
    a.lab("attn_ev4")
    a(f"s_add_u32 s31, s27, {q}")
    a(f"s_cmp_eq_u32 s27, {q}")
    a("s_cbranch_scc0 attn_ev5")
    a("s_setprio 2")
    a("s_branch attn_body")
    a.lab("attn_ev5")
    a(f"s_cmp_eq_u32 s27, {2*q}")
    a("s_cbranch_scc0 attn_ev6")
    a("s_setprio 1")
    a("s_branch attn_body")
    a.lab("attn_ev6")
    a("s_setprio 0")
    a("s_branch attn_body")
    a.lab("attn_fin")
    a(f"""
    v_rcp_f32 v99, v{O+8}
    v_sub_f32 v100, 1.0, v{G}
    s_cmp_eq_u32 s20, 0
    s_cselect_b64 vcc, -1, 0
    s_nop 1
    v_cndmask_b32 v100, v100, v{G}, vcc
    v_mul_f32 v99, v99, v100
    """)
    for r in range(8):
        a(f"v_mul_f32 v{O+r}, v{O+r}, v99")
    for r in range(4):
        a(f"v_cvt_pk_bf16_f32 v{O+r}, v{O+2*r}, v{O+2*r+1}")
    a(f"""
    s_lshl_b32 s23, s19, 6
    s_add_u32 s23, s23, s16
    s_lshl_b32 s23, s23, 10
    s_add_u32 s23, s23, {WS_O}
    buffer_store_dwordx4 {vr(O,4)}, v2, s[12:15], s23 offen
    """)
    stamp(a, 4)
    stamp_end(a, 1, 16, 18, 0)
    a.lab("attn_end")
    a("s_endpgm")
    return descriptor(name, 104, 100 if PROF else 40)

def gen_attn2(a):
    name = "attn_kernel"
    header(a, name)
    Q = [4, 8]; KB = [12, 16]; VB = [20, 28]; S = [36, 52]; O = [68, 84]; C = [100, 116]
    ADDR = 132; G = [133, 134]; T0 = 135; T1 = 136
    a("s_cmp_ge_u32 s2, 256")
    a("s_cbranch_scc1 attn_end")
    stamp_start(a)
    a(f"""
    s_load_dwordx2 s[4:5], s[0:1], 72
    v_lshrrev_b32 v1, 6, v0
    v_and_b32 v3, 63, v0
    s_and_b32 s21, s2, 7
    s_lshr_b32 s22, s2, 3
    v_readfirstlane_b32 s18, v1
    s_lshl_b32 s16, s21, 3
    s_lshr_b32 s23, s22, 2
    s_add_u32 s16, s16, s23
    s_and_b32 s17, s22, 3
    s_lshr_b32 s20, s16, 5
    s_lshl_b32 s19, s17, 4
    s_lshl_b32 s23, s18, 1
    s_add_u32 s19, s19, s23
    v_lshlrev_b32 v2, 4, v3
    s_lshl_b32 s25, s18, 12
    s_mov_b32 m0, s25
    s_lshl_b32 s23, s16, 6
    s_add_u32 s23, s23, s19
    s_lshl_b32 s23, s23, 10
    s_add_u32 s23, s23, {WS_Q}
    s_lshl_b32 s24, s19, 7
    s_add_u32 s24, s24, {WS_G}
    s_lshl_b32 s26, s16, 17
    s_add_u32 s26, s26, {WS_KV}
    s_mov_b32 s10, 131072
    s_mov_b32 s11, 0x20000
    s_mov_b32 s14, {WS_END}
    s_mov_b32 s15, 0x20000
    v_and_b32 v{T0}, 31, v3
    v_lshlrev_b32 v{T0}, 2, v{T0}
    s_waitcnt lgkmcnt(0)
    s_add_u32 s8, s4, s26
    s_addc_u32 s9, s5, 0
    s_mov_b32 s12, s4
    s_mov_b32 s13, s5
    buffer_load_dwordx4 v2, s[8:11], s25 offen lds
    buffer_load_dwordx4 {vr(Q[0],4)}, v2, s[12:15], s23 offen
    buffer_load_dwordx4 {vr(Q[1],4)}, v2, s[12:15], s23 offen offset:1024
    buffer_load_dwordx4 v2, s[8:11], s25 offen offset:1024 lds
    buffer_load_dwordx4 v2, s[8:11], s25 offen offset:2048 lds
    buffer_load_dwordx4 v2, s[8:11], s25 offen offset:3072 lds
    buffer_load_dword v{G[0]}, v{T0}, s[12:15], s24 offen
    buffer_load_dword v{G[1]}, v{T0}, s[12:15], s24 offen offset:128
    """)
    a(f"""
    v_and_b32 v{T0}, 27, v3
    v_cmp_eq_u32 vcc, 16, v{T0}
    v_mov_b32 v{T1}, 0x3f803f80
    s_nop 0
    v_cndmask_b32 v{T0}, 0, v{T1}, vcc
    """)
    for r in range(16):
        a(f"v_mov_b32 v{VB[0]+r}, v{T0}")
    a("s_mov_b32 s28, 0x0000ffff")
    a("s_mov_b32 s29, 0x0000ffff")
    a("s_mov_b32 s30, 0")
    if OPT["prio"]:
        a("s_setprio 3")
    stamp(a, 1)
    a("s_waitcnt vmcnt(0)")
    a("s_barrier")
    stamp(a, 2)
    a(f"ds_read_b128 {vr(KB[0],4)}, v2")
    a("s_waitcnt lgkmcnt(0)")
    for x in range(2):
        a(f"v_mfma_f32_32x32x16_bf16 {vr(S[x],16)}, {vr(KB[0],4)}, {vr(Q[x],4)}, 0")
    a("s_nop 7")
    a("s_nop 7")
    MX = [T0, T1]
    for x in range(2):
        a(f"v_max3_f32 v{MX[x]}, v{S[x]}, v{S[x]+1}, v{S[x]+2}")
        for r in range(3, 15, 2):
            a(f"v_max3_f32 v{MX[x]}, v{MX[x]}, v{S[x]+r}, v{S[x]+r+1}")
        a(f"v_max_f32 v{MX[x]}, v{MX[x]}, v{S[x]+15}")
    a("s_mov_b32 s31, 0")
    a.lab("attn_setmax")
    for x in range(2):
        a(f"""
        v_mov_b32 v137, v{MX[x]}
        s_nop 1
        v_permlane32_swap_b32 v{MX[x]}, v137
        s_nop 1
        v_max_f32 v{MX[x]}, v{MX[x]}, v137
        """)
        for r in range(16):
            a(f"v_sub_f32 v{C[x]+r}, 0, v{MX[x]}")
        for r in range(16):
            a(f"v_mov_b32 v{O[x]+r}, 0")
    a(f"v_mov_b32 v{ADDR}, v2")
    a(f"ds_read_b128 {vr(KB[0],4)}, v{ADDR}")
    a(f"ds_read_b128 {vr(KB[1],4)}, v{ADDR} offset:2048")
    a("s_mov_b64 exec, s[28:29]")
    a(f"ds_read_b128 {vr(VB[0],4)}, v{ADDR} offset:1024")
    a(f"ds_read_b128 {vr(VB[0]+4,4)}, v{ADDR} offset:1280")
    a("s_mov_b64 exec, -1")
    a("s_waitcnt lgkmcnt(0)")
    a(f"v_mfma_f32_32x32x16_bf16 {vr(S[0],16)}, {vr(KB[0],4)}, {vr(Q[0],4)}, {vr(C[0],16)}")
    a("s_mov_b32 s27, 0")
    a("s_nop 7")
    U = OPT["U"]
    NIT = 64 // U
    def ex(b, lo, hi):
        for r in range(lo, hi):
            a(f"v_exp_f32 v{b+r}, v{b+r}")
    def cv(b, h):
        for r in range(4):
            a(f"v_cvt_pk_bf16_f32 v{b+4*h+r}, v{b+8*h+2*r}, v{b+8*h+2*r+1}")
    def pv(x, vb, h):
        a(f"v_mfma_f32_32x32x16_bf16 {vr(O[x],16)}, {vr(vb+4*h,4)}, {vr(S[x]+4*h,4)}, {vr(O[x],16)}")
    a.lab("attn_loop")
    a("s_cmp_eq_u32 s27, s31")
    a("s_cbranch_scc1 attn_event")
    a.lab("attn_body")
    for u in range(U):
        vb = VB[u & 1]
        a(f"v_mfma_f32_32x32x16_bf16 {vr(S[1],16)}, {vr(KB[u&1],4)}, {vr(Q[1],4)}, {vr(C[1],16)}")
        ex(S[0], 0, 8)
        cv(S[0], 0)
        ex(S[0], 8, 16)
        a("s_waitcnt lgkmcnt(0)")
        pv(0, vb, 0)
        cv(S[0], 1)
        a(f"ds_read_b128 {vr(KB[u&1],4)}, v{ADDR} offset:{(u+2)*2048}")
        ex(S[1], 0, 2)
        pv(0, vb, 1)
        ex(S[1], 2, 8)
        a(f"v_mfma_f32_32x32x16_bf16 {vr(S[0],16)}, {vr(KB[(u+1)&1],4)}, {vr(Q[0],4)}, {vr(C[0],16)}")
        cv(S[1], 0)
        ex(S[1], 8, 16)
        pv(1, vb, 0)
        cv(S[1], 1)
        a("s_mov_b64 exec, s[28:29]")
        a(f"ds_read_b128 {vr(VB[(u+1)&1],4)}, v{ADDR} offset:{(u+1)*2048+1024}")
        a(f"ds_read_b128 {vr(VB[(u+1)&1]+4,4)}, v{ADDR} offset:{(u+1)*2048+1280}")
        a("s_mov_b64 exec, -1")
        if u == U-1:
            a(f"v_add_u32 v{ADDR}, {U*2048}, v{ADDR}")
            a("s_add_u32 s27, s27, 1")
        pv(1, vb, 1)
    a(f"s_cmp_lt_u32 s27, {NIT}")
    a("s_cbranch_scc1 attn_loop")
    stamp(a, 3)
    a("s_nop 7")
    a("s_nop 7")
    a("s_cmp_lg_u32 s30, 0")
    a("s_cbranch_scc1 attn_fin")
    a(f"v_mov_b32 v{T0}, 0")
    a(f"v_mov_b32 v{T1}, 0")
    for x in range(2):
        o = O[x]
        for r in range(0, 8, 2):
            a(f"v_max3_f32 v{T0}, v{T0}, |v{o+r}|, |v{o+r+1}|")
        a(f"v_max_f32 v{T0}, v{T0}, v{o+8}")
        for r in range(8):
            a(f"v_add_f32 v{T1}, v{T1}, v{o+r}")
    a(f"""
    v_mul_f32 v{T1}, 0, v{T1}
    v_add_f32 v{T0}, v{T0}, v{T1}
    s_mov_b32 s33, {f32(2.0**100)}
    v_cmp_gt_f32 vcc, s33, v{T0}
    s_cmp_eq_u64 vcc, exec
    s_cbranch_scc1 attn_fin
    """)
    a("s_mov_b32 s30, 1")
    a("s_mov_b32 s31, 1000")
    a("s_waitcnt lgkmcnt(0)")
    a(f"v_mov_b32 v{ADDR}, v2")
    a(f"v_mov_b32 v{T0}, {f32(-3.0e38)}")
    a(f"v_mov_b32 v{T1}, {f32(-3.0e38)}")
    a("s_mov_b32 s27, 0")
    a.lab("attn_maxloop")
    a(f"ds_read_b128 {vr(KB[0],4)}, v{ADDR}")
    a("s_waitcnt lgkmcnt(0)")
    for x in range(2):
        a(f"v_mfma_f32_32x32x16_bf16 {vr(S[x],16)}, {vr(KB[0],4)}, {vr(Q[x],4)}, 0")
    a("s_nop 7")
    a("s_nop 7")
    for x in range(2):
        for r in range(0, 16, 2):
            a(f"v_max3_f32 v{MX[x]}, v{MX[x]}, v{S[x]+r}, v{S[x]+r+1}")
    a(f"v_add_u32 v{ADDR}, 2048, v{ADDR}")
    a("s_add_u32 s27, s27, 1")
    a("s_cmp_lt_u32 s27, 64")
    a("s_cbranch_scc1 attn_maxloop")
    a("s_branch attn_setmax")
    q = NIT // 4
    a.lab("attn_event")
    a("s_cmp_ge_u32 s27, 3")
    a("s_cbranch_scc1 attn_ev3")
    a("s_add_u32 s25, s25, 32768")
    a("s_mov_b32 m0, s25")
    a("s_add_u32 s31, s27, 1")
    for k in range(4):
        a(f"buffer_load_dwordx4 v2, s[8:11], s25 offen offset:{k*1024} lds")
    a("s_branch attn_body")
    a.lab("attn_ev3")
    a("s_cmp_lg_u32 s27, 3")
    a("s_cbranch_scc1 attn_ev4")
    a("s_waitcnt vmcnt(0)")
    a("s_barrier")
    a(f"s_mov_b32 s31, {q if OPT['prio'] else 1000}")
    a("s_branch attn_body")
    a.lab("attn_ev4")
    a(f"s_add_u32 s31, s27, {q}")
    a(f"s_cmp_eq_u32 s27, {q}")
    a("s_cbranch_scc0 attn_ev5")
    a("s_setprio 2")
    a("s_branch attn_body")
    a.lab("attn_ev5")
    a(f"s_cmp_eq_u32 s27, {2*q}")
    a("s_cbranch_scc0 attn_ev6")
    a("s_setprio 1")
    a("s_branch attn_body")
    a.lab("attn_ev6")
    a("s_setprio 0")
    a("s_branch attn_body")
    a.lab("attn_fin")
    for x in range(2):
        o = O[x]
        a(f"""
        v_rcp_f32 v{T0}, v{o+8}
        v_sub_f32 v{T1}, 1.0, v{G[x]}
        s_cmp_eq_u32 s20, 0
        s_cselect_b64 vcc, -1, 0
        s_nop 1
        v_cndmask_b32 v{T1}, v{T1}, v{G[x]}, vcc
        v_mul_f32 v{T0}, v{T0}, v{T1}
        """)
        for r in range(8):
            a(f"v_mul_f32 v{o+r}, v{o+r}, v{T0}")
        for r in range(4):
            a(f"v_cvt_pk_bf16_f32 v{o+r}, v{o+2*r}, v{o+2*r+1}")
    a(f"""
    s_lshl_b32 s23, s19, 6
    s_add_u32 s23, s23, s16
    s_lshl_b32 s23, s23, 10
    s_add_u32 s23, s23, {WS_O}
    s_add_u32 s24, s23, 65536
    buffer_store_dwordx4 {vr(O[0],4)}, v2, s[12:15], s23 offen
    buffer_store_dwordx4 {vr(O[1],4)}, v2, s[12:15], s24 offen
    """)
    stamp(a, 4)
    stamp_end(a, 1, 8, 18, 0)
    a.lab("attn_end")
    a("s_endpgm")
    return descriptor(name, 140, 100 if PROF else 40)

def gen_proj(a):
    name = "proj_kernel"
    header(a, name)
    OF = 64
    ACC = 0 + 192
    a(f"""
    s_cmp_ge_u32 s2, 256
    s_cbranch_scc1 proj_end
    """)
    stamp_start(a)
    a(f"""
    s_load_dwordx2 s[4:5], s[0:1], 16
    s_load_dwordx2 s[6:7], s[0:1], 40
    s_load_dwordx4 s[8:11], s[0:1], 56
    s_load_dwordx2 s[12:13], s[0:1], 72
    v_lshrrev_b32 v1, 6, v0
    v_and_b32 v2, 63, v0
    s_and_b32 s34, s2, 7
    s_lshr_b32 s35, s2, 3
    v_readfirstlane_b32 s31, v1
    s_lshl_b32 s28, s34, 2
    s_lshr_b32 s36, s35, 3
    s_add_u32 s28, s28, s36
    s_and_b32 s29, s35, 7
    v_lshrrev_b32 v3, 3, v2
    v_and_b32 v4, 7, v2
    v_lshrrev_b32 v5, 4, v2
    v_and_b32 v8, 1, v5
    v_lshlrev_b32 v8, 2, v8
    v_xor_b32 v8, v4, v8
    v_lshlrev_b32 v8, 4, v8
    v_lshl_add_u32 v12, v3, 10, v8
    v_lshlrev_b32 v10, 4, v2
    s_waitcnt lgkmcnt(0)
    s_cmp_lt_u32 s31, 2
    s_cselect_b32 s16, s4, s6
    s_cselect_b32 s17, s5, s7
    s_and_b32 s36, s31, 1
    s_lshl_b32 s36, s36, 18
    s_lshl_b32 s37, s29, 7
    s_add_u32 s36, s36, s37
    s_add_u32 s16, s16, s36
    s_addc_u32 s17, s17, 0
    s_sub_u32 s18, 524288, s36
    s_mov_b32 s19, 0x20000
    s_mov_b32 s20, s12
    s_mov_b32 s21, s13
    s_mov_b32 s22, {WS_END}
    s_mov_b32 s23, 0x20000
    s_mov_b32 s24, s8
    s_mov_b32 s25, s9
    s_mov_b32 s26, 2097152
    s_mov_b32 s27, 0x20000
    s_lshl_b32 s38, s28, 7
    s_lshl_b32 s39, s31, 4
    s_add_u32 s38, s38, s39
    s_lshl_b32 s38, s38, 10
    s_add_u32 s38, s38, {WS_O}
    s_add_u32 s39, s38, 65536
    s_lshl_b32 s40, s31, 15
    s_mov_b32 s41, 0
    """)
    for i in range(16):
        for e in range(2):
            a(f"s_add_u32 m0, s40, {i*2048+e*1024}")
            a(f"s_add_u32 s42, s41, {(i*16+e*8)*1024}")
            a(f"buffer_load_dwordx4 v12, s[16:19], s42 offen lds")
        a(f"s_add_u32 s43, s38, {i*1024}")
        a(f"buffer_load_dwordx4 {vr(OF+8*i,4)}, v10, s[20:23], s43 offen")
        a(f"s_add_u32 s43, s39, {i*1024}")
        a(f"buffer_load_dwordx4 {vr(OF+8*i+4,4)}, v10, s[20:23], s43 offen")
    a("""
    v_lshrrev_b32 v21, 5, v2
    v_and_b32 v26, 15, v2
    v_lshrrev_b32 v27, 2, v26
    v_lshl_add_u32 v28, v21, 2, v27
    v_lshlrev_b32 v28, 7, v28
    v_and_b32 v29, 1, v5
    v_lshlrev_b32 v29, 1, v29
    v_bfe_u32 v30, v26, 1, 1
    v_add_u32 v29, v29, v30
    v_bfe_u32 v30, v27, 1, 1
    v_lshlrev_b32 v30, 2, v30
    v_xor_b32 v29, v29, v30
    v_lshl_add_u32 v28, v29, 4, v28
    v_and_b32 v30, 1, v26
    v_lshl_add_u32 v28, v30, 3, v28
    v_add_u32 v20, s40, v28
    v_xor_b32 v21, 64, v20
    """)
    for r in range(64):
        a(f"v_mov_b32 v{ACC+r}, 0")
    WFR = [32, 40]
    def rd(i):
        f = WFR[i & 1]
        for ct in range(2):
            for u in range(2):
                a(f"ds_read_b64_tr_b16 {vr(f+4*ct+2*u,2)}, v{20+ct} offset:{(16*i+8*u)*128}")
    stamp(a, 1)
    a("s_waitcnt vmcnt(60)")
    stamp(a, 2)
    rd(0)
    for i in range(16):
        if i < 15:
            a(f"s_waitcnt vmcnt({max(0,60-4*(i+1))})")
            rd(i+1)
            a("s_waitcnt lgkmcnt(4)")
        else:
            a("s_waitcnt lgkmcnt(0)")
        f = WFR[i & 1]
        for ct in range(2):
            for tt in range(2):
                d = vr(ACC+16*(ct*2+tt), 16)
                a(f"v_mfma_f32_32x32x16_bf16 {d}, {vr(f+4*ct,4)}, {vr(OF+8*i+4*tt,4)}, {d}")
    stamp(a, 3)
    a("s_barrier")
    a("""
    v_and_b32 v22, 31, v2
    v_lshrrev_b32 v23, 5, v2
    v_and_b32 v24, 7, v22
    v_lshlrev_b32 v25, 8, v22
    s_lshl_b32 s40, s31, 14
    v_add_u32 v25, s40, v25
    s_nop 7
    s_nop 7
    """)
    for ct in range(2):
        for q4 in range(4):
            a(f"v_add_u32 v26, {ct*8+2*q4}, v23")
            a(f"v_xor_b32 v26, v26, v24")
            a(f"v_lshl_add_u32 v26, v26, 4, v25")
            for tt in range(2):
                a(f"ds_write_b128 v26, {vr(ACC+16*(ct*2+tt)+4*q4,4)} offset:{tt*8192}")
    a("s_waitcnt lgkmcnt(0)")
    a("s_barrier")
    a("""
    v_lshrrev_b32 v22, 2, v0
    v_and_b32 v23, 3, v0
    v_and_b32 v24, 7, v22
    v_lshlrev_b32 v25, 8, v22
    v_lshlrev_b32 v27, 2, v23
    """)
    for c in range(4):
        a(f"v_add_u32 v26, {c}, v27")
        a(f"v_xor_b32 v26, v26, v24")
        a(f"v_lshl_add_u32 v26, v26, 4, v25")
        for w in range(4):
            a(f"ds_read_b128 {vr(64+w*16+c*4,4)}, v26 offset:{w*16384}")
    a("s_waitcnt lgkmcnt(0)")
    for r in range(16):
        a(f"v_add_f32 v{64+r}, v{64+r}, v{80+r}")
        a(f"v_add_f32 v{96+r}, v{96+r}, v{112+r}")
    for r in range(16):
        a(f"v_add_f32 v{64+r}, v{64+r}, v{96+r}")
    for r in range(8):
        a(f"v_cvt_pk_bf16_f32 v{64+r}, v{64+2*r}, v{64+2*r+1}")
    a("""
    v_lshlrev_b32 v22, 10, v22
    v_lshl_add_u32 v22, v23, 5, v22
    s_lshl_b32 s40, s28, 16
    s_lshl_b32 s41, s29, 7
    s_add_u32 s40, s40, s41
    buffer_store_dwordx4 v[64:67], v22, s[24:27], s40 offen
    buffer_store_dwordx4 v[68:71], v22, s[24:27], s40 offen offset:16
    """)
    stamp(a, 4)
    stamp_end(a, 2, 4, 31, 0)
    a.lab("proj_end")
    a("s_endpgm")
    return descriptor(name, 256, 100 if PROF else 48)

HEAD = open("cdna_kernels/%s.s.ref" % NAME).read().split("; Override")[0]

def main(out):
    a = A()
    descs = []
    descs.append(gen_qkv(a))
    descs.append(gen_attn2(a) if OPT.get("nq",1) == 2 else gen_attn(a))
    descs.append(gen_proj(a))
    s = HEAD
    s += "; @launch kernel=qkv_kernel grid=(256,1,1) block=(512,1,1) lds=163840\n"
    s += "; @launch kernel=attn_kernel grid=(256,1,1) block=(%d,1,1) lds=135168\n" % (512 if OPT.get("nq",1) == 2 else 1024)
    s += "; @launch kernel=proj_kernel grid=(256,1,1) block=(256,1,1) lds=131072\n"
    s += '.amdgcn_target "amdgcn-amd-amdhsa--gfx950"\n'
    s += a.text()
    s += "".join(descs)
    open(out, "w").write(s)

if __name__ == "__main__":
    if "--prof" in sys.argv:
        PROF = True
        sys.argv.remove("--prof")
    for x in list(sys.argv):
        if x.startswith("--") and "=" in x:
            k, v = x[2:].split("=")
            OPT[k] = int(v)
            sys.argv.remove(x)
    main(sys.argv[1] if len(sys.argv) > 1 else "cdna_kernels/%s.s" % NAME)
```

```python
import sys, struct

NAME = "gated_mix__mha_block__mha_block__prompt"
KNAME = NAME + "_kernel"
WS_KV = 4 << 20
WS_O = 12 << 20
WS_F = 16 << 20
WS_END = WS_F + 4096
RELAY = 160000
NONCE = 68
WS_T = 32 << 20
QSCALE = 0.25 * 1.4426950408889634
LOG2E = 1.4426950408889634
PROF = False
OPT = dict(prio=1, rot=1, pfu=0)
NST = 12
SB = 70

def f32(x):
    return "0x%08x" % struct.unpack("<I", struct.pack("<f", x))[0]

class A:
    def __init__(self):
        self.l = []
    def __call__(self, s):
        for x in s.strip().split("\n"):
            if x.strip():
                self.l.append("  " + x.strip())
    def lab(self, s):
        self.l.append(s + ":")
    def raw(self, s):
        self.l.append(s)
    def text(self):
        return "\n".join(self.l) + "\n"

def vr(b, n):
    return f"v[{b}:{b+n-1}]"
def u32(x):
    return x & 0xffffffff

def stamp(a, k):
    if PROF:
        a(f"s_memtime s[{SB+2*k}:{SB+2*k+1}]")

WV = 3
XCD, SLOT_ = 24, 25
CG, MT, BB, HG = 26, 27, 28, 29
SRDW = 36
DBG = 20
WS = 22
WSRD = f"s[{SRDW}:{SRDW+3}]"

def gen(a):
    a.raw(".text")
    a.raw(f".globl {KNAME}")
    a.raw(".p2align 8")
    a.raw(f".type {KNAME},@function")
    a.lab(KNAME)
    a("s_cmp_ge_u32 s2, 256")
    a("s_cbranch_scc1 L_end")
    if PROF:
        a(f"s_memrealtime s[{SB+2*NST}:{SB+2*NST+1}]")
        stamp(a, 0)
    a(f"""
    s_load_dwordx4 s[4:7], s[0:1], 0
    s_load_dwordx2 s[8:9], s[0:1], 16
    s_load_dwordx4 s[12:15], s[0:1], 32
    s_load_dwordx4 s[16:19], s[0:1], 48
    s_load_dwordx4 s[20:23], s[0:1], 64
    v_lshrrev_b32 v2, 6, v0
    v_and_b32 v1, 63, v0
    s_and_b32 s{XCD}, s2, 7
    s_lshr_b32 s{SLOT_}, s2, 3
    v_readfirstlane_b32 s{WV}, v2
    v_lshlrev_b32 v2, 4, v1
    s_lshr_b32 s40, s{XCD}, 1
    s_lshl_b32 s40, s40, 2
    s_and_b32 s41, s{SLOT_}, 3
    s_add_u32 s{CG}, s40, s41
    s_lshr_b32 s{BB}, s{CG}, 3
    s_and_b32 s{HG}, s{CG}, 7
    s_and_b32 s{MT}, s{XCD}, 1
    s_lshl_b32 s{MT}, s{MT}, 3
    s_lshr_b32 s41, s{SLOT_}, 2
    s_add_u32 s{MT}, s{MT}, s41
    """)
    phase_a(a)
    phase_b(a)
    phase_c(a)
    if PROF:
        a("s_waitcnt vmcnt(0)")
        a(f"s_memrealtime s[{SB+2*NST+2}:{SB+2*NST+3}]")
        stamp(a, NST-1)
        a("s_waitcnt lgkmcnt(0)")
        a(f"""
        s_lshl_b32 s40, s2, 4
        s_add_u32 s40, s40, s{WV}
        s_lshl_b32 s40, s40, 7
        s_add_u32 s40, s40, {WS_T}
        s_add_u32 s40, s{WS}, s40
        s_addc_u32 s41, s{WS+1}, 0
        s_mov_b64 exec, 1
        v_mov_b32 v4, 0
        """)
        for k in range(NST+2):
            a(f"v_mov_b32 v6, s{SB+2*k}")
            a(f"v_mov_b32 v7, s{SB+2*k+1}")
            a(f"global_store_dwordx2 v4, v[6:7], s[40:41] offset:{8*k}")
            a("s_nop 1")
    a.lab("L_end")
    a("s_endpgm")

SLOT = 40960
NSLOT = 3
GIMG = NSLOT * SLOT
QX, KVX, GX = 0, 16384, 49152

def phase_a(a):
    a(f"""
    v_lshrrev_b32 v5, 4, v1
    s_cmp_ge_u32 s{WV}, 4
    s_cbranch_scc0 A_compute
    """)
    LW = 30
    a(f"""
    s_sub_u32 s{LW}, s{WV}, 4
    s_setprio 3
    v_lshrrev_b32 v3, 3, v1
    v_and_b32 v4, 7, v1
    v_xor_b32 v6, v4, v5
    v_lshlrev_b32 v6, 4, v6
    v_lshl_add_u32 v10, v3, 10, v6
    v_add_u32 v7, 4, v5
    v_xor_b32 v7, v4, v7
    v_lshlrev_b32 v7, 4, v7
    v_lshl_add_u32 v11, v3, 10, v7
    v_and_b32 v8, 1, v5
    v_lshlrev_b32 v8, 2, v8
    v_xor_b32 v8, v4, v8
    v_lshlrev_b32 v8, 4, v8
    v_mul_u32_u24 v9, 3072, v3
    v_add_u32 v12, v9, v8
    s_lshl_b32 s54, s{LW}, 15
    """)
    for u in range(4):
        a(f"s_add_u32 s{44+u}, s54, {u*8192}")
    a(f"s_mul_i32 s54, s{LW}, 49152")
    for g3 in range(3):
        for e in range(2):
            a(f"s_add_u32 s{48+g3*2+e}, s54, {g3*1024 + e*8*3072}")
    a(f"""
    s_lshl_b32 s55, s{LW}, 12
    s_lshl_b32 s56, s{LW}, 11
    s_add_u32 s56, s56, 16384
    s_lshl_b32 s40, s{MT}, 17
    s_lshl_b32 s41, s{HG}, 7
    s_mov_b32 s62, 131072
    s_mov_b32 s63, 0x20000
    s_sub_u32 s34, 1572864, s41
    s_mov_b32 s35, 0x20000
    """)
    if OPT["rot"]:
        a(f"s_mov_b32 s57, s{XCD}")
    else:
        a("s_mov_b32 s57, 0")
    a(f"""
    s_lshl_b32 s42, s57, 7
    v_add_u32 v10, s42, v10
    v_add_u32 v11, s42, v11
    s_mul_i32 s42, s57, 196608
    v_add_u32 v12, s42, v12
    s_mov_b32 s64, {u32(-896)}
    s_mov_b32 s65, 128
    s_mov_b32 s66, {u32(-7*196608)}
    s_mov_b32 s67, 196608
    s_waitcnt lgkmcnt(0)
    s_cmp_eq_u32 s{BB}, 0
    s_cselect_b32 s32, s6, s12
    s_cselect_b32 s33, s7, s13
    s_add_u32 s60, s4, s40
    s_addc_u32 s61, s5, 0
    s_add_u32 s32, s32, s41
    s_addc_u32 s33, s33, 0
    """)
    def issue_stage():
        seq = [("w",0,0),("x",0,0),("w",0,1),("x",1,0),("w",1,0),("x",2,0),("w",1,1),("x",3,0),("w",2,0),("w",2,1)]
        for n, (kind, i, e) in enumerate(seq):
            if kind == "x":
                a(f"s_add_u32 m0, s55, {i*1024}")
                a("s_add_u32 s57, s57, 1" if n == 1 else ("s_and_b32 s57, s57, 7" if n == 3 else "s_nop 0"))
                a(f"buffer_load_dwordx4 v{10+(i&1)}, s[60:63], s{44+i} offen lds")
            else:
                a(f"s_add_u32 m0, s56, {i*8192+e*1024}")
                a("s_cmp_eq_u32 s57, 0" if n == 4 else "s_nop 0")
                a(f"buffer_load_dwordx4 v12, s[32:35], s{48+i*2+e} offen lds")
                if n == 4:
                    a("s_cselect_b32 s42, s64, s65")
                    a("s_cselect_b32 s43, s66, s67")
        a("v_add_u32 v10, s42, v10")
        a("v_add_u32 v11, s42, v11")
        a("v_add_u32 v12, s43, v12")
        a(f"s_add_u32 s55, s55, {SLOT}")
        a(f"s_add_u32 s56, s56, {SLOT}")
        a(f"s_cmp_ge_u32 s56, {NSLOT*SLOT}")
        a(f"s_cselect_b32 s54, {NSLOT*SLOT}, 0")
        a("s_sub_u32 s55, s55, s54")
        a("s_sub_u32 s56, s56, s54")
    a(f"""
    s_mov_b32 s{SRDW}, s16
    s_mov_b32 s{SRDW+1}, s17
    s_mov_b32 s{SRDW+2}, 1024
    s_mov_b32 s{SRDW+3}, 0x20000
    s_lshl_b32 s43, s{LW}, 8
    s_add_u32 m0, s43, {GIMG}
    s_mov_b64 exec, 0xffff
    buffer_load_dwordx4 v2, {WSRD}, s43 offen lds
    s_mov_b64 exec, -1
    """)
    a(f"""
    v_and_b32 v20, 31, v1
    v_lshrrev_b32 v21, 5, v1
    v_lshrrev_b32 v22, 1, v1
    v_and_b32 v22, 7, v22
    s_lshl_b32 s40, s{LW}, 12
    v_lshlrev_b32 v23, 7, v20
    v_add_u32 v23, s40, v23
    """)
    for ks in range(4):
        a(f"v_add_u32 v24, {2*ks}, v21")
        a(f"v_xor_b32 v24, v24, v22")
        a(f"v_lshl_add_u32 v{16+ks}, v24, 4, v23")
    a(f"""
    v_lshlrev_b32 v15, 4, v21
    v_add_u32 v15, {GIMG}, v15
    v_mov_b32 v64, 0
    s_mov_b32 s59, 0
    """)
    if OPT["rot"]:
        a(f"s_mov_b32 s31, s{XCD}")
    else:
        a("s_mov_b32 s31, 0")
    issue_stage()
    issue_stage()
    def gate_reads():
        a("s_lshl_b32 s40, s31, 7")
        a("v_add_u32 v14, s40, v15")
        for ks in range(4):
            a(f"v_add_u32 v24, s59, v{16+ks}")
            a(f"ds_read_b128 {vr(28+8*ks,4)}, v24")
            a(f"ds_read_b128 {vr(32+8*ks,4)}, v14 offset:{ks*32}")
        a("s_add_u32 s31, s31, 1")
        a("s_and_b32 s31, s31, 7")
        a(f"s_add_u32 s59, s59, {SLOT}")
        a(f"s_cmp_ge_u32 s59, {NSLOT*SLOT}")
        a(f"s_cselect_b32 s40, {NSLOT*SLOT}, 0")
        a("s_sub_u32 s59, s59, s40")
    def gate_dots():
        a("s_waitcnt lgkmcnt(0)")
        for ks in range(4):
            for q in range(4):
                a(f"v_dot2c_f32_bf16 v64, v{28+8*ks+q}, v{32+8*ks+q}")
    a("s_mov_b32 s58, 0")
    a.lab("A_ld_loop")
    a("s_waitcnt vmcnt(10)")
    a("s_barrier")
    gate_reads()
    issue_stage()
    gate_dots()
    a("s_add_u32 s58, s58, 1")
    a("s_cmp_lt_u32 s58, 6")
    a("s_cbranch_scc1 A_ld_loop")
    a("s_waitcnt vmcnt(10)")
    a("s_barrier")
    gate_reads()
    gate_dots()
    a("s_waitcnt vmcnt(0)")
    a("s_barrier")
    gate_reads()
    gate_dots()
    a("s_setprio 0")
    a(f"""
    s_mov_b32 s{SRDW}, s{WS}
    s_mov_b32 s{SRDW+1}, s{WS+1}
    s_mov_b32 s{SRDW+2}, {WS_END}
    s_mov_b32 s{SRDW+3}, 0x20000
    s_nop 3
    v_mov_b32 v20, v64
    s_nop 1
    v_permlane32_swap_b32 v64, v20
    s_nop 1
    v_add_f32 v64, v64, v20
    v_mul_f32 v64, {f32(-LOG2E)}, v64
    v_exp_f32 v64, v64
    s_nop 0
    v_add_f32 v64, 1.0, v64
    v_rcp_f32 v64, v64
    s_nop 0
    v_sub_f32 v20, 1.0, v64
    s_cmp_eq_u32 s{BB}, 0
    s_cselect_b64 vcc, -1, 0
    s_nop 1
    v_cndmask_b32 v20, v20, v64, vcc
    v_and_b32 v19, 31, v1
    v_lshlrev_b32 v19, 2, v19
    s_lshl_b32 s41, s{LW}, 7
    v_add_u32 v19, s41, v19
    s_barrier
    ds_write_b32 v19, v20 offset:{GX}
    s_branch A_join
    """)
    a.lab("A_compute")
    WM, WN = 30, 31
    a(f"""
    s_and_b32 s{WM}, s{WV}, 1
    s_lshr_b32 s{WN}, s{WV}, 1
    v_and_b32 v20, 31, v1
    v_lshrrev_b32 v21, 5, v1
    v_lshrrev_b32 v22, 1, v1
    v_and_b32 v22, 7, v22
    s_lshl_b32 s40, s{WM}, 13
    v_lshlrev_b32 v23, 7, v20
    v_add_u32 v23, s40, v23
    """)
    for ks in range(4):
        a(f"v_add_u32 v24, {2*ks}, v21")
        a(f"v_xor_b32 v24, v24, v22")
        a(f"v_lshl_add_u32 v{16+ks}, v24, 4, v23")
    a(f"""
    v_and_b32 v26, 15, v1
    v_lshrrev_b32 v27, 2, v26
    v_lshl_add_u32 v28, v21, 3, v27
    v_lshlrev_b32 v28, 7, v28
    v_and_b32 v29, 1, v5
    v_lshlrev_b32 v29, 1, v29
    v_bfe_u32 v30, v26, 1, 1
    v_add_u32 v29, v29, v30
    s_lshl_b32 s40, s{WN}, 2
    v_add_u32 v29, s40, v29
    v_bfe_u32 v30, v27, 1, 1
    v_lshlrev_b32 v30, 2, v30
    v_xor_b32 v29, v29, v30
    v_lshl_add_u32 v28, v29, 4, v28
    v_and_b32 v30, 1, v26
    v_lshl_add_u32 v25, v30, 3, v28
    """)
    ACC = 64
    XF = [32, 160]
    WF = [40, 168]
    GF = [52, 180]
    GA = [184, 185]
    for r in range(96):
        a(f"v_mov_b32 v{ACC+r}, 0")
    a(f"""
    s_lshl_b32 s40, s{CG}, 2
    s_lshl_b32 s41, s{WN}, 1
    s_add_u32 s40, s40, s41
    s_lshl_b32 s40, s40, 6
    s_lshl_b32 s41, s{MT}, 2
    s_add_u32 s40, s40, s41
    s_lshl_b32 s41, s{WM}, 1
    s_add_u32 s40, s40, s41
    s_lshl_b32 s46, s40, 11
    s_add_u32 s46, s46, {WS_KV}
    s_mov_b32 s48, {f32(QSCALE)}
    v_and_b32 v11, 15, v1
    v_lshlrev_b32 v11, 4, v11
    v_lshl_add_u32 v11, v21, 9, v11
    v_bfe_u32 v12, v1, 4, 1
    v_lshl_add_u32 v13, v12, 13, v11
    v_lshl_add_u32 v11, v12, 17, v11
    v_add_u32 v11, 1024, v11
    s_add_u32 s47, s46, 131072
    s_mov_b32 s{SRDW+2}, {WS_END}
    s_mov_b32 s{SRDW+3}, 0x20000
    s_mov_b32 s57, 0
    s_mov_b32 s58, 0
    """)
    def set_addr():
        for ks in range(4):
            a(f"v_add_u32 v{20+ks}, s57, v{16+ks}")
        a("v_add_u32 v24, s57, v25")
    set_addr()
    a("s_waitcnt lgkmcnt(0)")
    a(f"s_mov_b32 s{SRDW}, s{WS}")
    a(f"s_mov_b32 s{SRDW+1}, s{WS+1}")
    a(f"""
    s_cmp_lg_u32 s{WV}, 0
    s_cbranch_scc1 A_nononce
    s_memrealtime s[40:41]
    s_waitcnt lgkmcnt(0)
    s_or_b32 s40, s40, 1
    v_mov_b32 v186, s40
    v_mov_b32 v187, 0
    v_mov_b32 v188, 0
    s_mov_b64 exec, 1
    global_atomic_cmpswap v189, v188, v[186:187], s[{DBG}:{DBG+1}] sc0
    s_mov_b64 exec, -1
    """)
    a.lab("A_nononce")
    def read_list(ks, f):
        r = []
        r.append(f"ds_read_b64_tr_b16 {vr(WF[f]+0,2)}, v24 offset:{16384+(16*ks+0)*128}")
        r.append(f"ds_read_b64_tr_b16 {vr(WF[f]+2,2)}, v24 offset:{16384+(16*ks+4)*128}")
        r.append(f"ds_read_b128 {vr(XF[f],4)}, v{20+ks} offset:0")
        r.append(f"ds_read_b128 {vr(XF[f]+4,4)}, v{20+ks} offset:4096")
        for g3 in (1, 2):
            for u in range(2):
                r.append(f"ds_read_b64_tr_b16 {vr(WF[f]+4*g3+2*u,2)}, v24 offset:{16384+g3*8192+(16*ks+4*u)*128}")
        return r
    def group(f, rl, barrier=False):
        order = [(0,0),(0,1),(1,0),(1,1),(2,0),(2,1)]
        rl = list(rl)
        for i, (g3, tt) in enumerate(order):
            x = vr(XF[f]+4*tt, 4); w = vr(WF[f]+4*g3, 4); d = vr(ACC+16*(tt*3+g3), 16)
            if g3 < 2:
                a(f"v_mfma_f32_32x32x16_bf16 {d}, {w}, {x}, {d}")
            else:
                a(f"v_mfma_f32_32x32x16_bf16 {d}, {x}, {w}, {d}")
            if i == 0 and barrier:
                a("s_barrier")
            for _ in range(2):
                if rl:
                    a(rl.pop(0))
    a("s_barrier")
    stamp(a, 1)
    for x in read_list(0, 0):
        a(x)
    a.lab("A_loop")
    for ks in range(3):
        a("s_waitcnt lgkmcnt(0)")
        group(ks & 1, read_list(ks+1, (ks+1) & 1))
    a("s_cmp_eq_u32 s58, 7")
    a("s_cbranch_scc1 A_last")
    a(f"""
    s_add_u32 s57, s57, {SLOT}
    s_cmp_ge_u32 s57, {NSLOT*SLOT}
    s_cselect_b32 s40, {NSLOT*SLOT}, 0
    s_sub_u32 s57, s57, s40
    """)
    set_addr()
    a("s_waitcnt lgkmcnt(0)")
    group(1, read_list(0, 0), barrier=True)
    a("s_add_u32 s58, s58, 1")
    a("s_branch A_loop")
    a.lab("A_last")
    a("s_waitcnt lgkmcnt(0)")
    group(1, [])
    stamp(a, 2)
    a("s_barrier")
    a(f"""
    s_lshl_b32 s40, s{WN}, 3
    s_lshl_b32 s41, s{WM}, 1
    s_add_u32 s40, s40, s41
    s_lshl_b32 s41, s40, 10
    v_add_u32 v16, s41, v2
    s_lshl_b32 s41, s40, 11
    v_add_u32 v17, s41, v2
    v_add_u32 v18, s41, v13
    s_nop 3
    """)
    a(f"""
    s_cmp_lg_u32 s{WV}, 0
    s_cbranch_scc1 A_nononce2
    s_waitcnt vmcnt(0)
    v_cmp_eq_u32 vcc, 0, v189
    s_nop 1
    v_cndmask_b32 v186, v189, v186, vcc
    v_mov_b32 v188, {RELAY}
    s_mov_b64 exec, 1
    ds_write_b64 v188, v[186:187]
    s_mov_b64 exec, -1
    """)
    a.lab("A_nononce2")
    for tt in range(2):
        d = ACC + 16*(tt*3+1)
        for r in range(8):
            a(f"v_cvt_pk_bf16_f32 v{d+r}, v{d+2*r}, v{d+2*r+1}")
        a(f"buffer_store_dwordx4 {vr(d,4)}, v2, {WSRD}, s46 offen offset:{tt*2048} sc1")
        a(f"buffer_store_dwordx4 {vr(d+4,4)}, v2, {WSRD}, s47 offen offset:{tt*2048} sc1")
        a(f"ds_write_b128 v17, {vr(d,4)} offset:{KVX+tt*2048}")
        a(f"ds_write_b128 v17, {vr(d+4,4)} offset:{KVX+tt*2048+8192}")
        d = ACC + 16*(tt*3+2)
        for r in range(8):
            a(f"v_cvt_pk_bf16_f32 v{d+r}, v{d+2*r}, v{d+2*r+1}")
        a(f"buffer_store_dwordx4 {vr(d,4)}, v11, {WSRD}, s46 offen offset:{tt*2048} sc1")
        a(f"buffer_store_dwordx4 {vr(d+4,4)}, v11, {WSRD}, s46 offen offset:{tt*2048+256} sc1")
        a(f"ds_write_b128 v18, {vr(d,4)} offset:{KVX+tt*2048+1024}")
        a(f"ds_write_b128 v18, {vr(d+4,4)} offset:{KVX+tt*2048+1280}")
    for tt in range(2):
        d = ACC + 16*(tt*3+0)
        for r in range(16):
            a(f"v_mul_f32 v{d+r}, s48, v{d+r}")
        for r in range(8):
            a(f"v_cvt_pk_bf16_f32 v{d+r}, v{d+2*r}, v{d+2*r+1}")
        a(f"ds_write_b128 v16, {vr(d,4)} offset:{QX+tt*1024}")
        a(f"ds_write_b128 v16, {vr(d+4,4)} offset:{QX+tt*1024+4096}")
    a.lab("A_join")
    a("s_waitcnt lgkmcnt(0)")
    a("s_barrier")
    stamp(a, 3)

def spin(a, lab, addr_v, val_v, cond):
    a("s_mov_b32 s69, 0")
    a.lab(lab)
    a(f"global_load_dword v{val_v}, v{addr_v}, s[{DBG}:{DBG+1}] sc1")
    a("s_add_u32 s69, s69, 1")
    a("s_waitcnt vmcnt(0)")
    cond()
    a(f"s_cbranch_scc1 {lab}_ok")
    a("s_cmp_lt_u32 s69, 200000")
    a(f"s_cbranch_scc1 {lab}")
    a.lab(lab + "_ok")

def phase_b(a):
    Q = [4, 8]; S = [12, 28]; O = [44, 60]; C = [76, 92]
    KB = lambda s, u: 108 + s*16 + u*4
    VB = lambda s, u: 140 + s*32 + u*8
    G = [204, 205]; T0 = 206; T1 = 207; T2 = 208
    H4, QH, PAIR, QT = 30, 31, 32, 33
    a(f"""
    s_lshr_b32 s{H4}, s{WV}, 1
    s_and_b32 s{QH}, s{WV}, 1
    s_lshl_b32 s{PAIR}, s{CG}, 2
    s_add_u32 s{PAIR}, s{PAIR}, s{H4}
    s_lshl_b32 s{QT}, s{MT}, 2
    s_lshl_b32 s40, s{QH}, 1
    s_add_u32 s{QT}, s{QT}, s40
    s_lshl_b32 s46, s{PAIR}, 17
    s_add_u32 s46, s46, {WS_KV}
    s_lshl_b32 s40, s{H4}, 12
    s_lshl_b32 s41, s{QH}, 11
    s_add_u32 s40, s40, s41
    v_add_u32 v{T0}, s40, v2
    ds_read_b128 {vr(Q[0],4)}, v{T0} offset:{QX}
    ds_read_b128 {vr(Q[1],4)}, v{T0} offset:{QX+1024}
    v_and_b32 v{T1}, 31, v1
    v_lshlrev_b32 v{T1}, 2, v{T1}
    s_lshl_b32 s41, s{QH}, 8
    v_add_u32 v{T1}, s41, v{T1}
    ds_read_b32 v{G[0]}, v{T1} offset:{GX}
    ds_read_b32 v{G[1]}, v{T1} offset:{GX+128}
    v_and_b32 v{T0}, 27, v1
    v_cmp_eq_u32 vcc, 16, v{T0}
    v_mov_b32 v{T1}, 0x3f803f80
    s_nop 0
    v_cndmask_b32 v{T0}, 0, v{T1}, vcc
    """)
    for r in range(64):
        a(f"v_mov_b32 v{VB(0,0)+r}, v{T0}")
    a(f"""
    s_mov_b32 s52, 0x0000ffff
    s_mov_b32 s53, 0x0000ffff
    s_lshl_b32 s40, s{H4}, 13
    v_add_u32 v{T0}, s40, v2
    """)
    for u in range(4):
        a(f"ds_read_b128 {vr(KB(0,u),4)}, v{T0} offset:{KVX+u*2048}")
    a("s_mov_b64 exec, s[52:53]")
    for u in range(4):
        a(f"ds_read_b128 {vr(VB(0,u),4)}, v{T0} offset:{KVX+u*2048+1024}")
        a(f"ds_read_b128 {vr(VB(0,u)+4,4)}, v{T0} offset:{KVX+u*2048+1280}")
    a("s_mov_b64 exec, -1")
    a(f"v_mov_b32 v{T2}, {RELAY}")
    a(f"ds_read_b32 v{T2+1}, v{T2}")
    a("s_waitcnt lgkmcnt(0)")
    a(f"v_readfirstlane_b32 s{NONCE}, v{T2+1}")
    a("s_barrier")
    stamp(a, 4)
    c_prefetch_setup(a)
    a("s_mov_b32 s49, 0")
    a("s_mov_b32 s50, 0")
    a("s_mov_b32 s54, 0")
    a(f"s_lshl_b32 s45, 1, s{MT}")
    if OPT["prio"]:
        a("s_setprio 3")
    for x in range(2):
        a(f"v_mfma_f32_32x32x16_bf16 {vr(S[x],16)}, {vr(KB(0,0),4)}, {vr(Q[x],4)}, 0")
    a("s_nop 7")
    a("s_nop 7")
    MX = [T0, T1]
    for x in range(2):
        a(f"v_max3_f32 v{MX[x]}, v{S[x]}, v{S[x]+1}, v{S[x]+2}")
        for r in range(3, 15, 2):
            a(f"v_max3_f32 v{MX[x]}, v{MX[x]}, v{S[x]+r}, v{S[x]+r+1}")
        a(f"v_max_f32 v{MX[x]}, v{MX[x]}, v{S[x]+15}")
    a.lab("B_setmax")
    for x in range(2):
        a(f"""
        v_mov_b32 v{T2}, v{MX[x]}
        s_nop 1
        v_permlane32_swap_b32 v{MX[x]}, v{T2}
        s_nop 1
        v_max_f32 v{MX[x]}, v{MX[x]}, v{T2}
        """)
        for r in range(16):
            a(f"v_sub_f32 v{C[x]+r}, 0, v{MX[x]}")
        for r in range(16):
            a(f"v_mov_b32 v{O[x]+r}, 0")
    a(f"v_mfma_f32_32x32x16_bf16 {vr(S[0],16)}, {vr(KB(0,0),4)}, {vr(Q[0],4)}, {vr(C[0],16)}")
    a(f"s_mov_b32 s44, s{MT}")
    a("s_mov_b32 s55, 0")
    a("s_nop 7")
    def ex(b, lo, hi):
        for r in range(lo, hi):
            a(f"v_exp_f32 v{b+r}, v{b+r}")
    def cv(b, h):
        for r in range(4):
            a(f"v_cvt_pk_bf16_f32 v{b+4*h+r}, v{b+8*h+2*r}, v{b+8*h+2*r+1}")
    def pv(x, vb, h):
        a(f"v_mfma_f32_32x32x16_bf16 {vr(O[x],16)}, {vr(vb+4*h,4)}, {vr(S[x]+4*h,4)}, {vr(O[x],16)}")
    def pf_head(tag):
        if tag == 0:
            a("s_cmp_eq_u32 s49, 0")
            a("s_cbranch_scc1 B_first")
            a.lab("B_first_ret")
        a(f"""
        s_add_u32 s44, s44, 1
        s_and_b32 s44, s44, 15
        s_bitcmp1_b32 s45, s44
        s_cbranch_scc0 B_poll{tag}
        """)
        a.lab(f"B_pf{tag}")
        a(f"""
        s_lshl_b32 s47, s44, 13
        s_add_u32 s47, s47, s46
        s_add_u32 s48, s47, 4096
        """)
    def ldk(s, u):
        so = 47 if u < 2 else 48
        a(f"buffer_load_dwordx4 {vr(KB(s,u),4)}, v2, {WSRD}, s{so} offen offset:{(u&1)*2048} sc1")
    def ldv(s, u):
        so = 47 if u < 2 else 48
        a("s_mov_b64 exec, s[52:53]")
        a(f"buffer_load_dwordx4 {vr(VB(s,u),4)}, v2, {WSRD}, s{so} offen offset:{(u&1)*2048+1024} sc1")
        a(f"buffer_load_dwordx4 {vr(VB(s,u)+4,4)}, v2, {WSRD}, s{so} offen offset:{(u&1)*2048+1280} sc1")
        a("s_mov_b64 exec, -1")
    a.lab("B_loop")
    SPREAD = OPT.get("spread", 1)
    for s in range(2):
        for u in range(4):
            vb = VB(s, u)
            kn = KB(s, u+1) if u < 3 else KB(1-s, 0)
            a(f"v_mfma_f32_32x32x16_bf16 {vr(S[1],16)}, {vr(KB(s,u),4)}, {vr(Q[1],4)}, {vr(C[1],16)}")
            if SPREAD:
                if u == 0:
                    pf_head(s)
                ldk(1-s, u)
            ex(S[0], 0, 8)
            cv(S[0], 0)
            ex(S[0], 8, 16)
            if SPREAD:
                a(f"s_waitcnt vmcnt({(3-u)*3 + u*3 + 1})")
            pv(0, vb, 0)
            cv(S[0], 1)
            ex(S[1], 0, 2)
            pv(0, vb, 1)
            ex(S[1], 2, 8)
            if SPREAD:
                if u < 3:
                    a(f"s_waitcnt vmcnt({2 + (2-u)*3 + u*3 + 1})")
                else:
                    a(f"s_waitcnt vmcnt({2 + 3*2 + 1})")
            elif u == 3:
                a("s_waitcnt vmcnt(0)")
            a(f"v_mfma_f32_32x32x16_bf16 {vr(S[0],16)}, {vr(kn,4)}, {vr(Q[0],4)}, {vr(C[0],16)}")
            cv(S[1], 0)
            ex(S[1], 8, 16)
            pv(1, vb, 0)
            cv(S[1], 1)
            if SPREAD:
                ldv(1-s, u)
                if u == 3 and s == 1:
                    a("s_cmp_lt_u32 s50, 4")
                    a("s_cbranch_scc1 B_wo")
                    a.lab("B_wo_ret")
            elif u == OPT["pfu"]:
                pf_head(s)
                for uu in range(4): ldk(1-s, uu)
                for uu in range(4): ldv(1-s, uu)
                if s == 1:
                    a("s_cmp_lt_u32 s50, 4")
                    a("s_cbranch_scc1 B_wo")
                    a.lab("B_wo_ret")
            else:
                a("s_nop 1")
            pv(1, vb, 1)
    a("s_add_u32 s55, s55, 1")
    if OPT["prio"]:
        a("""
        s_and_b32 s40, s55, 1
        s_cbranch_scc1 B_noprio
        s_cmp_eq_u32 s55, 2
        s_cbranch_scc0 B_p1
        s_setprio 2
        """)
        a.lab("B_p1")
        a("s_cmp_eq_u32 s55, 4")
        a("s_cbranch_scc0 B_p2")
        a("s_setprio 1")
        a.lab("B_p2")
        a("s_cmp_eq_u32 s55, 6")
        a("s_cbranch_scc0 B_noprio")
        a("s_setprio 0")
        a.lab("B_noprio")
    if PROF and OPT.get("lstamp", 0):
        a("s_cmp_eq_u32 s55, 1")
        a("s_cbranch_scc0 B_ls1")
        stamp(a, 9)
        a.lab("B_ls1")
        a("s_cmp_eq_u32 s55, 4")
        a("s_cbranch_scc0 B_ls2")
        stamp(a, 10)
        a.lab("B_ls2")
    a("s_cmp_lt_u32 s55, 8")
    a("s_cbranch_scc1 B_loop")
    stamp(a, 6)
    a("s_nop 7")
    a("s_nop 7")
    a("s_cmp_lg_u32 s54, 0")
    a("s_cbranch_scc1 B_fin")
    a(f"v_mov_b32 v{T0}, 0")
    a(f"v_mov_b32 v{T1}, 0")
    for x in range(2):
        o = O[x]
        for r in range(0, 8, 2):
            a(f"v_max3_f32 v{T0}, v{T0}, |v{o+r}|, |v{o+r+1}|")
        a(f"v_max_f32 v{T0}, v{T0}, v{o+8}")
        for r in range(8):
            a(f"v_add_f32 v{T1}, v{T1}, v{o+r}")
    a(f"""
    v_mul_f32 v{T1}, 0, v{T1}
    v_add_f32 v{T0}, v{T0}, v{T1}
    s_mov_b32 s57, {f32(2.0**100)}
    v_cmp_gt_f32 vcc, s57, v{T0}
    s_cmp_eq_u64 vcc, exec
    s_cbranch_scc1 B_fin
    """)
    a(f"""
    s_mov_b32 s54, 1
    v_mov_b32 v{T0}, {f32(-3.0e38)}
    v_mov_b32 v{T1}, {f32(-3.0e38)}
    s_mov_b32 s47, s46
    s_mov_b32 s55, 0
    s_waitcnt vmcnt(0)
    """)
    a.lab("B_maxloop")
    a(f"buffer_load_dwordx4 {vr(KB(1,0),4)}, v2, {WSRD}, s47 offen sc1")
    a("s_waitcnt vmcnt(0)")
    for x in range(2):
        a(f"v_mfma_f32_32x32x16_bf16 {vr(S[x],16)}, {vr(KB(1,0),4)}, {vr(Q[x],4)}, 0")
    a("s_nop 7")
    a("s_nop 7")
    for x in range(2):
        for r in range(0, 16, 2):
            a(f"v_max3_f32 v{MX[x]}, v{MX[x]}, v{S[x]+r}, v{S[x]+r+1}")
    a("s_add_u32 s47, s47, 2048")
    a("s_add_u32 s55, s55, 1")
    a("s_cmp_lt_u32 s55, 64")
    a("s_cbranch_scc1 B_maxloop")
    a("s_branch B_setmax")
    a.lab("B_first")
    a("s_waitcnt vmcnt(0)")
    a("s_barrier")
    stamp(a, 5)
    a("s_mov_b32 s49, 1")
    a(f"""
    s_cmp_lg_u32 s{WV}, 0
    s_cbranch_scc1 B_first_ret
    s_lshl_b32 s40, s{CG}, 7
    s_lshl_b32 s41, s{MT}, 2
    s_add_u32 s40, s40, s41
    s_add_u32 s40, s40, {WS_F}
    v_mov_b32 v{T2}, 0
    v_mov_b32 v{T2+1}, s{NONCE}
    s_mov_b64 exec, 1
    buffer_store_dword v{T2+1}, v{T2}, {WSRD}, s40 offen sc1
    s_mov_b64 exec, -1
    s_branch B_first_ret
    """)
    a.lab("B_wo")
    for i in range(4):
        a(f"s_add_u32 m0, s58, {i*1024}")
        a(f"s_add_u32 s51, s59, {i*8192}")
        a(f"buffer_load_dwordx4 v212, s[60:63], s51 offen lds")
    a("s_add_u32 s58, s58, 4096")
    a("s_add_u32 s59, s59, 32768")
    a("s_add_u32 s50, s50, 1")
    a("s_branch B_wo_ret")
    for sset in range(2):
        a.lab(f"B_poll{sset}")
        a("s_mov_b32 s69, 0")
        a(f"s_cmp_lg_u32 s{WV}, 0")
        a(f"s_cbranch_scc1 B_lp{sset}")
        a(f"""
        s_lshl_b32 s40, s{CG}, 7
        s_add_u32 s40, s40, {WS_F}
        v_lshlrev_b32 v{T2}, 2, v1
        """)
        a.lab(f"B_gp{sset}")
        a(f"""
        s_mov_b64 exec, 0xffff
        buffer_load_dword v{T2+1}, v{T2}, {WSRD}, s40 offen sc1
        s_add_u32 s69, s69, 1
        s_waitcnt vmcnt(0)
        v_cmp_eq_u32 vcc, s{NONCE}, v{T2+1}
        s_mov_b64 exec, -1
        s_or_b32 s45, s45, vcc_lo
        s_bitcmp1_b32 s45, s44
        s_cbranch_scc1 B_gok{sset}
        s_cmp_lt_u32 s69, 200000
        s_cbranch_scc1 B_gp{sset}
        """)
        a.lab(f"B_gok{sset}")
        a(f"""
        v_mov_b32 v{T2}, {RELAY+4}
        v_mov_b32 v{T2+1}, s45
        ds_write_b32 v{T2}, v{T2+1}
        s_branch B_pf{sset}
        """)
        a.lab(f"B_lp{sset}")
        a(f"v_mov_b32 v{T2}, {RELAY+4}")
        a.lab(f"B_lpl{sset}")
        a(f"""
        ds_read_b32 v{T2+1}, v{T2}
        s_add_u32 s69, s69, 1
        s_waitcnt lgkmcnt(0)
        v_readfirstlane_b32 s40, v{T2+1}
        s_nop 3
        s_or_b32 s45, s45, s40
        s_bitcmp1_b32 s45, s44
        s_cbranch_scc1 B_pf{sset}
        s_cmp_lt_u32 s69, 4000000
        s_cbranch_scc1 B_lpl{sset}
        s_branch B_pf{sset}
        """)
    a.lab("B_fin")
    for x in range(2):
        o = O[x]
        a(f"v_rcp_f32 v{T0}, v{o+8}")
        a("s_nop 0")
        a(f"v_mul_f32 v{T0}, v{T0}, v{G[x]}")
        for r in range(8):
            a(f"v_mul_f32 v{o+r}, v{o+r}, v{T0}")
        for r in range(4):
            a(f"v_cvt_pk_bf16_f32 v{o+r}, v{o+2*r}, v{o+2*r+1}")
    a(f"""
    s_lshl_b32 s40, s{QT}, 6
    s_add_u32 s40, s40, s{PAIR}
    s_lshl_b32 s40, s40, 10
    s_add_u32 s40, s40, {WS_O}
    s_add_u32 s41, s40, 65536
    buffer_store_dwordx4 {vr(O[0],4)}, v2, {WSRD}, s40 offen sc1
    buffer_store_dwordx4 {vr(O[1],4)}, v2, {WSRD}, s41 offen sc1
    s_waitcnt vmcnt(0)
    s_barrier
    """)
    stamp(a, 7)
    a(f"""
    s_cmp_lg_u32 s{WV}, 0
    s_cbranch_scc1 B_opub_done
    s_lshl_b32 s40, s{MT}, 7
    s_lshl_b32 s41, s{CG}, 2
    s_add_u32 s40, s40, s41
    s_add_u32 s40, s40, {WS_F+2048}
    v_mov_b32 v4, 0
    v_mov_b32 v5, s{NONCE}
    s_mov_b64 exec, 1
    buffer_store_dword v5, v4, {WSRD}, s40 offen sc1
    s_mov_b64 exec, -1
    """)
    a.lab("B_opub_done")

def c_prefetch_setup(a):
    a(f"""
    v_lshrrev_b32 v212, 3, v1
    v_and_b32 v213, 7, v1
    v_bfe_u32 v214, v1, 4, 1
    v_lshlrev_b32 v214, 2, v214
    v_xor_b32 v214, v213, v214
    v_lshlrev_b32 v214, 4, v214
    v_lshl_add_u32 v212, v212, 10, v214
    s_cmp_lt_u32 s{WV}, 4
    s_cselect_b32 s60, s8, s14
    s_cselect_b32 s61, s9, s15
    s_and_b32 s56, s{WV}, 3
    s_lshl_b32 s56, s56, 17
    s_and_b32 s57, s{CG}, 7
    s_lshl_b32 s57, s57, 7
    s_add_u32 s56, s56, s57
    s_add_u32 s60, s60, s56
    s_addc_u32 s61, s61, 0
    s_sub_u32 s62, 524288, s56
    s_mov_b32 s63, 0x20000
    s_lshl_b32 s58, s{WV}, 14
    s_mov_b32 s59, 0
    """)

def phase_c(a):
    MT64, NT, KQ, TT = 30, 31, 32, 33
    OF = 64
    ACC = 128
    a(f"""
    s_lshl_b32 s{MT64}, s{MT}, 1
    s_lshr_b32 s40, s{CG}, 3
    s_add_u32 s{MT64}, s{MT64}, s40
    s_and_b32 s{NT}, s{CG}, 7
    s_lshr_b32 s{KQ}, s{WV}, 1
    s_and_b32 s{TT}, s{WV}, 1
    v_lshrrev_b32 v5, 4, v1
    s_lshl_b32 s44, s{MT}, 7
    s_add_u32 s44, s44, {WS_F+2048}
    s_cmp_lg_u32 s{WV}, 0
    s_cbranch_scc1 C_wait_done
    v_lshlrev_b32 v6, 2, v1
    s_mov_b32 s69, 0
    """)
    a.lab("C_poll")
    a(f"""
    s_mov_b64 exec, 0xffff
    buffer_load_dword v7, v6, {WSRD}, s44 offen sc1
    s_add_u32 s69, s69, 1
    s_waitcnt vmcnt(0)
    v_cmp_eq_u32 vcc, s{NONCE}, v7
    s_mov_b64 exec, -1
    s_cmp_eq_u32 vcc_lo, 0xffff
    s_cbranch_scc1 C_wait_done
    s_cmp_lt_u32 s69, 200000
    s_cbranch_scc1 C_poll
    """)
    a.lab("C_wait_done")
    a("s_barrier")
    stamp(a, 8)
    a(f"""
    s_lshl_b32 s45, s{MT64}, 1
    s_add_u32 s45, s45, s{TT}
    s_lshl_b32 s45, s45, 6
    s_lshl_b32 s46, s{KQ}, 4
    s_add_u32 s45, s45, s46
    s_lshl_b32 s45, s45, 10
    s_add_u32 s45, s45, {WS_O}
    """)
    for i in range(16):
        if i and i % 4 == 0:
            a("s_add_u32 s45, s45, 4096")
        a(f"buffer_load_dwordx4 {vr(OF+4*i,4)}, v2, {WSRD}, s45 offen offset:{(i%4)*1024} sc1")
    a(f"""
    v_lshrrev_b32 v21, 5, v1
    v_and_b32 v26, 15, v1
    v_lshrrev_b32 v27, 2, v26
    v_lshl_add_u32 v28, v21, 2, v27
    v_lshlrev_b32 v28, 7, v28
    v_and_b32 v29, 1, v5
    v_lshlrev_b32 v29, 1, v29
    v_bfe_u32 v30, v26, 1, 1
    v_add_u32 v29, v29, v30
    v_bfe_u32 v30, v27, 1, 1
    v_lshlrev_b32 v30, 2, v30
    v_xor_b32 v29, v29, v30
    v_lshl_add_u32 v28, v29, 4, v28
    v_and_b32 v30, 1, v26
    v_lshl_add_u32 v28, v30, 3, v28
    s_lshl_b32 s40, s{KQ}, 15
    v_add_u32 v20, s40, v28
    v_xor_b32 v21, 64, v20
    """)
    WFR = [32, 40]
    def rd(i):
        f = WFR[i & 1]
        return [f"ds_read_b64_tr_b16 {vr(f+4*ct+2*u,2)}, v{20+ct} offset:{(16*i+8*u)*128}" for ct in range(2) for u in range(2)]
    for x in rd(0):
        a(x)
    for i in range(16):
        nxt = rd(i+1) if i < 15 else []
        a(f"s_waitcnt vmcnt({15-i}) lgkmcnt(0)")
        f = WFR[i & 1]
        for ct in range(2):
            d = vr(ACC+16*ct, 16)
            c = "0" if i == 0 else d
            a(f"v_mfma_f32_32x32x16_bf16 {d}, {vr(f+4*ct,4)}, {vr(OF+4*i,4)}, {c}")
            for x in nxt[2*ct:2*ct+2]:
                a(x)
    if not OPT.get('lstamp', 0): stamp(a, 9)
    a("s_barrier")
    a(f"""
    v_and_b32 v22, 31, v1
    v_lshrrev_b32 v23, 5, v1
    v_and_b32 v24, 7, v22
    v_lshlrev_b32 v25, 8, v22
    s_lshl_b32 s40, s{KQ}, 14
    s_lshl_b32 s41, s{TT}, 13
    s_add_u32 s40, s40, s41
    v_add_u32 v25, s40, v25
    s_nop 7
    s_nop 7
    """)
    for ct in range(2):
        for q4 in range(4):
            a(f"v_add_u32 v26, {ct*8+2*q4}, v23")
            a(f"v_xor_b32 v26, v26, v24")
            a(f"v_lshl_add_u32 v26, v26, 4, v25")
            a(f"ds_write_b128 v26, {vr(ACC+16*ct+4*q4,4)}")
    a("s_waitcnt lgkmcnt(0)")
    a("s_barrier")
    a("""
    v_lshrrev_b32 v22, 3, v0
    v_and_b32 v23, 7, v0
    v_and_b32 v24, 7, v22
    v_lshlrev_b32 v25, 8, v22
    v_lshlrev_b32 v27, 1, v23
    """)
    for c in range(2):
        a(f"v_add_u32 v26, {c}, v27")
        a(f"v_xor_b32 v26, v26, v24")
        a(f"v_lshl_add_u32 v26, v26, 4, v25")
        for k in range(4):
            a(f"ds_read_b128 {vr(64+k*8+c*4,4)}, v26 offset:{k*16384}")
    a(f"""
    s_mov_b32 s60, s18
    s_mov_b32 s61, s19
    s_mov_b32 s62, 2097152
    s_mov_b32 s63, 0x20000
    v_lshlrev_b32 v22, 10, v22
    v_lshl_add_u32 v22, v23, 4, v22
    s_lshl_b32 s40, s{MT64}, 16
    s_lshl_b32 s41, s{NT}, 7
    s_add_u32 s40, s40, s41
    s_waitcnt lgkmcnt(0)
    """)
    for r in range(8):
        a(f"v_add_f32 v{64+r}, v{64+r}, v{72+r}")
        a(f"v_add_f32 v{80+r}, v{80+r}, v{88+r}")
    for r in range(8):
        a(f"v_add_f32 v{64+r}, v{64+r}, v{80+r}")
    for r in range(4):
        a(f"v_cvt_pk_bf16_f32 v{64+r}, v{64+2*r}, v{64+2*r+1}")
    a("buffer_store_dwordx4 v[64:67], v22, s[60:63], s40 offen")
    if not OPT.get("lstamp", 0): stamp(a, 10)

HEAD = open("cdna_kernels/%s.s.ref" % NAME).read().split("; Override")[0]

def main(out):
    a = A()
    gen(a)
    s = HEAD
    s += "; @launch grid=(256,1,1) block=(512,1,1) lds=163840\n"
    s += '.amdgcn_target "amdgcn-amd-amdhsa--gfx950"\n'
    s += a.text()
    s += f""".section .rodata,"a"
.p2align 6
.amdhsa_kernel {KNAME}
  .amdhsa_next_free_vgpr 256
  .amdhsa_next_free_sgpr 102
  .amdhsa_accum_offset 256
  .amdhsa_group_segment_fixed_size 0
  .amdhsa_kernarg_size 80
  .amdhsa_user_sgpr_count 2
  .amdhsa_user_sgpr_kernarg_segment_ptr 1
  .amdhsa_system_sgpr_workgroup_id_x 1
.end_amdhsa_kernel
"""
    open(out, "w").write(s)

if __name__ == "__main__":
    if "--prof" in sys.argv:
        PROF = True
        sys.argv.remove("--prof")
    for x in list(sys.argv):
        if x.startswith("--") and "=" in x:
            k, v = x[2:].split("=")
            OPT[k] = int(v)
            sys.argv.remove(x)
    main(sys.argv[1] if len(sys.argv) > 1 else "fused3.s")
```

```python
import sys, struct

NAME = "gated_mix__mha_block__mha_block__prompt"
KNAME = NAME + "_kernel"
WS_KV = 4 << 20
WS_O = 12 << 20
WS_F = 16 << 20
WS_END = WS_F + 2048 + 8192
RELAY = 160000
NONCE = 68
WS_T = 32 << 20
QSCALE = 0.25 * 1.4426950408889634
LOG2E = 1.4426950408889634
PROF = False
OPT = dict(prio=1, rot=1, pfu=0)
NST = 12
SB = 70

def f32(x):
    return "0x%08x" % struct.unpack("<I", struct.pack("<f", x))[0]

class A:
    def __init__(self):
        self.l = []
    def __call__(self, s):
        for x in s.strip().split("\n"):
            if x.strip():
                self.l.append("  " + x.strip())
    def lab(self, s):
        self.l.append(s + ":")
    def raw(self, s):
        self.l.append(s)
    def text(self):
        return "\n".join(self.l) + "\n"

def vr(b, n):
    return f"v[{b}:{b+n-1}]"
def u32(x):
    return x & 0xffffffff

def stamp(a, k):
    if PROF:
        a(f"s_memtime s[{SB+2*k}:{SB+2*k+1}]")

WV = 3
XCD, SLOT_ = 24, 25
CG, MT, BB, HG = 26, 27, 28, 29
SRDW = 36
DBG = 20
WS = 22
WSRD = f"s[{SRDW}:{SRDW+3}]"

def gen(a):
    a.raw(".text")
    a.raw(f".globl {KNAME}")
    a.raw(".p2align 8")
    a.raw(f".type {KNAME},@function")
    a.lab(KNAME)
    a("s_cmp_ge_u32 s2, 256")
    a("s_cbranch_scc1 L_end")
    if PROF:
        a(f"s_memrealtime s[{SB+2*NST}:{SB+2*NST+1}]")
        stamp(a, 0)
    a(f"""
    s_load_dwordx4 s[4:7], s[0:1], 0
    s_load_dwordx2 s[8:9], s[0:1], 16
    s_load_dwordx4 s[12:15], s[0:1], 32
    s_load_dwordx4 s[16:19], s[0:1], 48
    s_load_dwordx4 s[20:23], s[0:1], 64
    v_lshrrev_b32 v2, 6, v0
    v_and_b32 v1, 63, v0
    s_and_b32 s{XCD}, s2, 7
    s_lshr_b32 s{SLOT_}, s2, 3
    v_readfirstlane_b32 s{WV}, v2
    v_lshlrev_b32 v2, 4, v1
    s_lshr_b32 s40, s{XCD}, 1
    s_lshl_b32 s40, s40, 2
    s_and_b32 s41, s{SLOT_}, 3
    s_add_u32 s{CG}, s40, s41
    s_lshr_b32 s{BB}, s{CG}, 3
    s_and_b32 s{HG}, s{CG}, 7
    s_and_b32 s{MT}, s{XCD}, 1
    s_lshl_b32 s{MT}, s{MT}, 3
    s_lshr_b32 s41, s{SLOT_}, 2
    s_add_u32 s{MT}, s{MT}, s41
    """)
    if OPT.get("diag", 0):
        a("s_memrealtime s[94:95]")
        a("s_memtime s[96:97]")
    phase_a(a)
    phase_b(a)
    phase_c(a)
    if OPT.get("diag", 0):
        a(f"""
        s_waitcnt vmcnt(0)
        s_memrealtime s[90:91]
        s_memtime s[92:93]
        s_waitcnt lgkmcnt(0)
        s_sub_u32 s92, s92, s96
        s_not_b32 s94, s94
        s_mov_b64 exec, 1
        v_mov_b32 v4, 16
        v_mov_b32 v5, s92
        global_atomic_umax v4, v5, s[{DBG}:{DBG+1}]
        v_mov_b32 v4, 20
        v_mov_b32 v5, s90
        global_atomic_umax v4, v5, s[{DBG}:{DBG+1}]
        v_mov_b32 v4, 24
        v_mov_b32 v5, s94
        global_atomic_umax v4, v5, s[{DBG}:{DBG+1}]
        s_mov_b64 exec, -1
        """)
    if PROF:
        a("s_waitcnt vmcnt(0)")
        a(f"s_memrealtime s[{SB+2*NST+2}:{SB+2*NST+3}]")
        stamp(a, NST-1)
        a("s_waitcnt lgkmcnt(0)")
        a(f"""
        s_lshl_b32 s40, s2, 4
        s_add_u32 s40, s40, s{WV}
        s_lshl_b32 s40, s40, 7
        s_add_u32 s40, s40, {WS_T}
        s_add_u32 s40, s{WS}, s40
        s_addc_u32 s41, s{WS+1}, 0
        s_mov_b64 exec, 1
        v_mov_b32 v4, 0
        """)
        for k in range(NST+2):
            a(f"v_mov_b32 v6, s{SB+2*k}")
            a(f"v_mov_b32 v7, s{SB+2*k+1}")
            a(f"global_store_dwordx2 v4, v[6:7], s[40:41] offset:{8*k}")
            a("s_nop 1")
    a.lab("L_end")
    a("s_endpgm")

SLOT = 40960
NSLOT = 3
GIMG = NSLOT * SLOT
def set_nslot(n):
    global NSLOT, GIMG
    NSLOT = n
    GIMG = 3 * SLOT
QX, KVX, GX = 0, 16384, 49152

def phase_a(a):
    a(f"""
    v_lshrrev_b32 v5, 4, v1
    s_cmp_ge_u32 s{WV}, 4
    s_cbranch_scc0 A_compute
    """)
    LW = 30
    a(f"""
    s_sub_u32 s{LW}, s{WV}, 4
    s_setprio 3
    v_lshrrev_b32 v3, 3, v1
    v_and_b32 v4, 7, v1
    v_xor_b32 v6, v4, v5
    v_lshlrev_b32 v6, 4, v6
    v_lshl_add_u32 v10, v3, 10, v6
    v_add_u32 v7, 4, v5
    v_xor_b32 v7, v4, v7
    v_lshlrev_b32 v7, 4, v7
    v_lshl_add_u32 v11, v3, 10, v7
    v_and_b32 v8, 1, v5
    v_lshlrev_b32 v8, 2, v8
    v_xor_b32 v8, v4, v8
    v_lshlrev_b32 v8, 4, v8
    v_mul_u32_u24 v9, 3072, v3
    v_add_u32 v12, v9, v8
    s_lshl_b32 s54, s{LW}, 15
    """)
    for u in range(4):
        a(f"s_add_u32 s{44+u}, s54, {u*8192}")
    a(f"s_mul_i32 s54, s{LW}, 49152")
    for g3 in range(3):
        for e in range(2):
            a(f"s_add_u32 s{48+g3*2+e}, s54, {g3*1024 + e*8*3072}")
    a(f"""
    s_lshl_b32 s55, s{LW}, 12
    s_lshl_b32 s56, s{LW}, 11
    s_add_u32 s56, s56, 16384
    s_lshl_b32 s40, s{MT}, 17
    s_lshl_b32 s41, s{HG}, 7
    s_mov_b32 s62, 131072
    s_mov_b32 s63, 0x20000
    s_sub_u32 s34, 1572864, s41
    s_mov_b32 s35, 0x20000
    """)
    if OPT["rot"]:
        a(f"s_mov_b32 s57, s{XCD}")
    else:
        a("s_mov_b32 s57, 0")
    a(f"""
    s_lshl_b32 s42, s57, 7
    v_add_u32 v10, s42, v10
    v_add_u32 v11, s42, v11
    s_mul_i32 s42, s57, 196608
    v_add_u32 v12, s42, v12
    s_mov_b32 s64, {u32(-896)}
    s_mov_b32 s65, 128
    s_mov_b32 s66, {u32(-7*196608)}
    s_mov_b32 s67, 196608
    s_waitcnt lgkmcnt(0)
    s_cmp_eq_u32 s{BB}, 0
    s_cselect_b32 s32, s6, s12
    s_cselect_b32 s33, s7, s13
    s_add_u32 s60, s4, s40
    s_addc_u32 s61, s5, 0
    s_add_u32 s32, s32, s41
    s_addc_u32 s33, s33, 0
    """)
    def issue_stage(extra=None):
        extra = list(extra or [])
        seq = [("w",0,0),("x",0,0),("w",0,1),("x",1,0),("w",1,0),("x",2,0),("w",1,1),("x",3,0),("w",2,0),("w",2,1)]
        for n, (kind, i, e) in enumerate(seq):
            if kind == "x":
                a(f"s_add_u32 m0, s55, {i*1024}")
                a("s_add_u32 s57, s57, 1" if n == 1 else ("s_and_b32 s57, s57, 7" if n == 3 else "s_nop 0"))
                a(f"buffer_load_dwordx4 v{10+(i&1)}, s[60:63], s{44+i} offen lds")
            else:
                a(f"s_add_u32 m0, s56, {i*8192+e*1024}")
                a("s_cmp_eq_u32 s57, 0" if n == 4 else "s_nop 0")
                a(f"buffer_load_dwordx4 v12, s[32:35], s{48+i*2+e} offen lds")
                if n == 4:
                    a("s_cselect_b32 s42, s64, s65")
                    a("s_cselect_b32 s43, s66, s67")
            if n >= 2 and extra:
                k = 1 if n == 2 else 3
                for _ in range(k):
                    if extra: a(extra.pop(0))
        for x in extra:
            a(x)
        a("v_add_u32 v10, s42, v10")
        a("v_add_u32 v11, s42, v11")
        a("v_add_u32 v12, s43, v12")
        a(f"s_add_u32 s55, s55, {SLOT}")
        a(f"s_add_u32 s56, s56, {SLOT}")
        a(f"s_cmp_ge_u32 s56, {NSLOT*SLOT}")
        a(f"s_cselect_b32 s54, {NSLOT*SLOT}, 0")
        a("s_sub_u32 s55, s55, s54")
        a("s_sub_u32 s56, s56, s54")
    a(f"""
    s_mov_b32 s{SRDW}, s16
    s_mov_b32 s{SRDW+1}, s17
    s_mov_b32 s{SRDW+2}, 1024
    s_mov_b32 s{SRDW+3}, 0x20000
    s_lshl_b32 s43, s{LW}, 8
    s_add_u32 m0, s43, {GIMG}
    """)
    if not OPT.get("nogate", 0):
        a(f"""
        s_mov_b64 exec, 0xffff
        buffer_load_dwordx4 v2, {WSRD}, s43 offen lds
        s_mov_b64 exec, -1
        """)
    a(f"""
    v_and_b32 v20, 31, v1
    v_lshrrev_b32 v21, 5, v1
    v_lshrrev_b32 v22, 1, v1
    v_and_b32 v22, 7, v22
    s_lshl_b32 s40, s{LW}, 12
    v_lshlrev_b32 v23, 7, v20
    v_add_u32 v23, s40, v23
    """)
    for ks in range(4):
        a(f"v_add_u32 v24, {2*ks}, v21")
        a(f"v_xor_b32 v24, v24, v22")
        a(f"v_lshl_add_u32 v{16+ks}, v24, 4, v23")
    a(f"""
    v_lshlrev_b32 v15, 4, v21
    v_add_u32 v15, {GIMG}, v15
    v_mov_b32 v64, 0
    s_mov_b32 s59, 0
    """)
    if OPT["rot"]:
        a(f"s_mov_b32 s31, s{XCD}")
    else:
        a("s_mov_b32 s31, 0")
    issue_stage()
    issue_stage()
    def gate_reads():
        if OPT.get("nogate", 0): return
        a("s_lshl_b32 s40, s31, 7")
        a("v_add_u32 v14, s40, v15")
        for ks in range(4):
            a(f"v_add_u32 v24, s59, v{16+ks}")
            a(f"ds_read_b128 {vr(28+8*ks,4)}, v24")
            a(f"ds_read_b128 {vr(32+8*ks,4)}, v14 offset:{ks*32}")
        a("s_add_u32 s31, s31, 1")
        a("s_and_b32 s31, s31, 7")
        a(f"s_add_u32 s59, s59, {SLOT}")
        a(f"s_cmp_ge_u32 s59, {NSLOT*SLOT}")
        a(f"s_cselect_b32 s40, {NSLOT*SLOT}, 0")
        a("s_sub_u32 s59, s59, s40")
    def gate_dots():
        if OPT.get("nogate", 0): return
        a("s_waitcnt lgkmcnt(0)")
        for ks in range(4):
            for q in range(4):
                a(f"v_dot2c_f32_bf16 v64, v{28+8*ks+q}, v{32+8*ks+q}")
    if OPT.get("ldprio", 0) == 0:
        a("s_setprio 0")
    a("s_mov_b32 s58, 0")
    a.lab("A_ld_loop")
    a("s_waitcnt vmcnt(10)")
    a("s_barrier")
    gate_reads()
    issue_stage(None if OPT.get("nogate", 0) else ["s_waitcnt lgkmcnt(0)"] + [f"v_dot2c_f32_bf16 v64, v{28+8*ks+q}, v{32+8*ks+q}" for ks in range(4) for q in range(4)])
    a("s_add_u32 s58, s58, 1")
    a("s_cmp_lt_u32 s58, 6")
    a("s_cbranch_scc1 A_ld_loop")
    a("s_waitcnt vmcnt(10)")
    a("s_barrier")
    gate_reads()
    gate_dots()
    a("s_waitcnt vmcnt(0)")
    a("s_barrier")
    gate_reads()
    gate_dots()
    a("s_setprio 0")
    a(f"""
    s_mov_b32 s{SRDW}, s{WS}
    s_mov_b32 s{SRDW+1}, s{WS+1}
    s_mov_b32 s{SRDW+2}, {WS_END}
    s_mov_b32 s{SRDW+3}, 0x20000
    s_nop 3
    v_mov_b32 v20, v64
    s_nop 1
    v_permlane32_swap_b32 v64, v20
    s_nop 1
    v_add_f32 v64, v64, v20
    v_mul_f32 v64, {f32(-LOG2E)}, v64
    v_exp_f32 v64, v64
    s_nop 0
    v_add_f32 v64, 1.0, v64
    v_rcp_f32 v64, v64
    s_nop 0
    v_sub_f32 v20, 1.0, v64
    s_cmp_eq_u32 s{BB}, 0
    s_cselect_b64 vcc, -1, 0
    s_nop 1
    v_cndmask_b32 v20, v20, v64, vcc
    v_and_b32 v19, 31, v1
    v_lshlrev_b32 v19, 2, v19
    s_lshl_b32 s41, s{LW}, 7
    v_add_u32 v19, s41, v19
    s_barrier
    ds_write_b32 v19, v20 offset:{GX}
    s_branch A_join
    """)
    a.lab("A_compute")
    WM, WN = 30, 31
    a(f"""
    s_and_b32 s{WM}, s{WV}, 1
    s_lshr_b32 s{WN}, s{WV}, 1
    v_and_b32 v20, 31, v1
    v_lshrrev_b32 v21, 5, v1
    v_lshrrev_b32 v22, 1, v1
    v_and_b32 v22, 7, v22
    s_lshl_b32 s40, s{WM}, 13
    v_lshlrev_b32 v23, 7, v20
    v_add_u32 v23, s40, v23
    """)
    for ks in range(4):
        a(f"v_add_u32 v24, {2*ks}, v21")
        a(f"v_xor_b32 v24, v24, v22")
        a(f"v_lshl_add_u32 v{16+ks}, v24, 4, v23")
    a(f"""
    v_and_b32 v26, 15, v1
    v_lshrrev_b32 v27, 2, v26
    v_lshl_add_u32 v28, v21, 3, v27
    v_lshlrev_b32 v28, 7, v28
    v_and_b32 v29, 1, v5
    v_lshlrev_b32 v29, 1, v29
    v_bfe_u32 v30, v26, 1, 1
    v_add_u32 v29, v29, v30
    s_lshl_b32 s40, s{WN}, 2
    v_add_u32 v29, s40, v29
    v_bfe_u32 v30, v27, 1, 1
    v_lshlrev_b32 v30, 2, v30
    v_xor_b32 v29, v29, v30
    v_lshl_add_u32 v28, v29, 4, v28
    v_and_b32 v30, 1, v26
    v_lshl_add_u32 v25, v30, 3, v28
    """)
    ACC = 64
    XF = [32, 160]
    WF = [40, 168]
    GF = [52, 180]
    GA = [184, 185]
    for r in range(96):
        a(f"v_mov_b32 v{ACC+r}, 0")
    a(f"""
    s_lshl_b32 s40, s{CG}, 2
    s_lshl_b32 s41, s{WN}, 1
    s_add_u32 s40, s40, s41
    s_lshl_b32 s40, s40, 6
    s_lshl_b32 s41, s{MT}, 2
    s_add_u32 s40, s40, s41
    s_lshl_b32 s41, s{WM}, 1
    s_add_u32 s40, s40, s41
    s_lshl_b32 s46, s40, 11
    s_add_u32 s46, s46, {WS_KV}
    s_mov_b32 s48, {f32(QSCALE)}
    v_and_b32 v11, 15, v1
    v_lshlrev_b32 v11, 4, v11
    v_lshl_add_u32 v11, v21, 9, v11
    v_bfe_u32 v12, v1, 4, 1
    v_lshl_add_u32 v13, v12, 13, v11
    v_lshl_add_u32 v11, v12, 17, v11
    v_add_u32 v11, 1024, v11
    s_add_u32 s47, s46, 131072
    s_mov_b32 s{SRDW+2}, {WS_END}
    s_mov_b32 s{SRDW+3}, 0x20000
    s_mov_b32 s57, 0
    s_mov_b32 s58, 0
    """)
    def set_addr():
        for ks in range(4):
            a(f"v_add_u32 v{20+ks}, s57, v{16+ks}")
        a("v_add_u32 v24, s57, v25")
    set_addr()
    a("s_waitcnt lgkmcnt(0)")
    a(f"s_mov_b32 s{SRDW}, s{WS}")
    a(f"s_mov_b32 s{SRDW+1}, s{WS+1}")
    if OPT.get("wpf", 0):
        a(f"""
        s_lshl_b32 s40, s2, 2
        s_add_u32 s40, s40, s{WV}
        s_and_b32 s41, s40, 511
        s_mul_i32 s41, s41, 3072
        s_cmp_lt_u32 s40, 512
        s_cselect_b32 s42, s6, s12
        s_cselect_b32 s43, s7, s13
        s_add_u32 s42, s42, s41
        s_addc_u32 s43, s43, 0
        global_load_dwordx4 v[180:183], v2, s[42:43]
        global_load_dwordx4 v[180:183], v2, s[42:43] offset:1024
        global_load_dwordx4 v[180:183], v2, s[42:43] offset:2048
        s_lshl_b32 s40, s2, 3
        s_lshl_b32 s41, s{WV}, 1
        s_add_u32 s40, s40, s41
        s_lshl_b32 s40, s40, 10
        s_add_u32 s42, s4, s40
        s_addc_u32 s43, s5, 0
        global_load_dwordx4 v[180:183], v2, s[42:43]
        global_load_dwordx4 v[180:183], v2, s[42:43] offset:1024
        """)
    a(f"""
    s_cmp_lg_u32 s{WV}, 0
    s_cbranch_scc1 A_nononce
    s_memrealtime s[40:41]
    s_waitcnt lgkmcnt(0)
    s_or_b32 s40, s40, 1
    v_mov_b32 v186, s40
    v_mov_b32 v187, 0
    v_mov_b32 v188, 0
    s_mov_b64 exec, 1
    global_atomic_cmpswap v189, v188, v[186:187], s[{DBG}:{DBG+1}] sc0
    s_mov_b64 exec, -1
    """)
    a.lab("A_nononce")
    def read_list(ks, f):
        r = []
        r.append(f"ds_read_b64_tr_b16 {vr(WF[f]+0,2)}, v24 offset:{16384+(16*ks+0)*128}")
        r.append(f"ds_read_b64_tr_b16 {vr(WF[f]+2,2)}, v24 offset:{16384+(16*ks+4)*128}")
        r.append(f"ds_read_b128 {vr(XF[f],4)}, v{20+ks} offset:0")
        r.append(f"ds_read_b128 {vr(XF[f]+4,4)}, v{20+ks} offset:4096")
        for g3 in (1, 2):
            for u in range(2):
                r.append(f"ds_read_b64_tr_b16 {vr(WF[f]+4*g3+2*u,2)}, v24 offset:{16384+g3*8192+(16*ks+4*u)*128}")
        return r
    def group(f, rl, barrier=False):
        order = [(0,0),(0,1),(1,0),(1,1),(2,0),(2,1)]
        rl = list(rl)
        for i, (g3, tt) in enumerate(order):
            x = vr(XF[f]+4*tt, 4); w = vr(WF[f]+4*g3, 4); d = vr(ACC+16*(tt*3+g3), 16)
            if g3 < 2:
                a(f"v_mfma_f32_32x32x16_bf16 {d}, {w}, {x}, {d}")
            else:
                a(f"v_mfma_f32_32x32x16_bf16 {d}, {x}, {w}, {d}")
            if i == 0 and barrier:
                a("s_barrier")
            for _ in range(2):
                if rl:
                    a(rl.pop(0))
    a("s_barrier")
    stamp(a, 1)
    for x in read_list(0, 0):
        a(x)
    a.lab("A_loop")
    for ks in range(3):
        a("s_waitcnt lgkmcnt(0)")
        group(ks & 1, read_list(ks+1, (ks+1) & 1))
    a("s_cmp_eq_u32 s58, 7")
    a("s_cbranch_scc1 A_last")
    a(f"""
    s_add_u32 s57, s57, {SLOT}
    s_cmp_ge_u32 s57, {NSLOT*SLOT}
    s_cselect_b32 s40, {NSLOT*SLOT}, 0
    s_sub_u32 s57, s57, s40
    """)
    set_addr()
    a("s_waitcnt lgkmcnt(0)")
    group(1, read_list(0, 0), barrier=True)
    a("s_add_u32 s58, s58, 1")
    a("s_branch A_loop")
    a.lab("A_last")
    a("s_waitcnt lgkmcnt(0)")
    group(1, [])
    stamp(a, 2)
    a("s_barrier")
    a(f"""
    s_lshl_b32 s40, s{WN}, 3
    s_lshl_b32 s41, s{WM}, 1
    s_add_u32 s40, s40, s41
    s_lshl_b32 s41, s40, 10
    v_add_u32 v16, s41, v2
    s_lshl_b32 s41, s40, 11
    v_add_u32 v17, s41, v2
    v_add_u32 v18, s41, v13
    s_nop 3
    """)
    a(f"""
    s_cmp_lg_u32 s{WV}, 0
    s_cbranch_scc1 A_nononce2
    s_waitcnt vmcnt(0)
    v_cmp_eq_u32 vcc, 0, v189
    s_nop 1
    v_cndmask_b32 v186, v189, v186, vcc
    v_mov_b32 v188, {RELAY}
    s_mov_b64 exec, 1
    ds_write_b64 v188, v[186:187]
    s_mov_b64 exec, -1
    """)
    a.lab("A_nononce2")
    for tt in range(2):
        d = ACC + 16*(tt*3+1)
        for r in range(8):
            a(f"v_cvt_pk_bf16_f32 v{d+r}, v{d+2*r}, v{d+2*r+1}")
        a(f"buffer_store_dwordx4 {vr(d,4)}, v2, {WSRD}, s46 offen offset:{tt*2048} sc1")
        a(f"buffer_store_dwordx4 {vr(d+4,4)}, v2, {WSRD}, s47 offen offset:{tt*2048} sc1")
        a(f"ds_write_b128 v17, {vr(d,4)} offset:{KVX+tt*2048}")
        a(f"ds_write_b128 v17, {vr(d+4,4)} offset:{KVX+tt*2048+8192}")
        d = ACC + 16*(tt*3+2)
        for r in range(8):
            a(f"v_cvt_pk_bf16_f32 v{d+r}, v{d+2*r}, v{d+2*r+1}")
        a(f"buffer_store_dwordx4 {vr(d,4)}, v11, {WSRD}, s46 offen offset:{tt*2048} sc1")
        a(f"buffer_store_dwordx4 {vr(d+4,4)}, v11, {WSRD}, s46 offen offset:{tt*2048+256} sc1")
        a(f"ds_write_b128 v18, {vr(d,4)} offset:{KVX+tt*2048+1024}")
        a(f"ds_write_b128 v18, {vr(d+4,4)} offset:{KVX+tt*2048+1280}")
    for tt in range(2):
        d = ACC + 16*(tt*3+0)
        for r in range(16):
            a(f"v_mul_f32 v{d+r}, s48, v{d+r}")
        for r in range(8):
            a(f"v_cvt_pk_bf16_f32 v{d+r}, v{d+2*r}, v{d+2*r+1}")
        a(f"ds_write_b128 v16, {vr(d,4)} offset:{QX+tt*1024}")
        a(f"ds_write_b128 v16, {vr(d+4,4)} offset:{QX+tt*1024+4096}")
    a.lab("A_join")
    a("s_waitcnt lgkmcnt(0)")
    a("s_barrier")
    stamp(a, 3)

def spin(a, lab, addr_v, val_v, cond):
    a("s_mov_b32 s69, 0")
    a.lab(lab)
    a(f"global_load_dword v{val_v}, v{addr_v}, s[{DBG}:{DBG+1}] sc1")
    a("s_add_u32 s69, s69, 1")
    a("s_waitcnt vmcnt(0)")
    cond()
    a(f"s_cbranch_scc1 {lab}_ok")
    a("s_cmp_lt_u32 s69, 200000")
    a(f"s_cbranch_scc1 {lab}")
    a.lab(lab + "_ok")

def phase_b(a):
    Q = [4, 8]; S = [12, 28]; O = [44, 60]; C = [76, 92]
    KB = lambda s, u: 108 + s*16 + u*4
    VB = lambda s, u: 140 + s*32 + u*8
    G = [204, 205]; T0 = 206; T1 = 207; T2 = 208
    H4, QH, PAIR, QT = 30, 31, 32, 33
    a(f"""
    s_lshr_b32 s{H4}, s{WV}, 1
    s_and_b32 s{QH}, s{WV}, 1
    s_lshl_b32 s{PAIR}, s{CG}, 2
    s_add_u32 s{PAIR}, s{PAIR}, s{H4}
    s_lshl_b32 s{QT}, s{MT}, 2
    s_lshl_b32 s40, s{QH}, 1
    s_add_u32 s{QT}, s{QT}, s40
    s_lshl_b32 s46, s{PAIR}, 17
    s_add_u32 s46, s46, {WS_KV}
    s_lshl_b32 s40, s{H4}, 12
    s_lshl_b32 s41, s{QH}, 11
    s_add_u32 s40, s40, s41
    v_add_u32 v{T0}, s40, v2
    ds_read_b128 {vr(Q[0],4)}, v{T0} offset:{QX}
    ds_read_b128 {vr(Q[1],4)}, v{T0} offset:{QX+1024}
    v_and_b32 v{T1}, 31, v1
    v_lshlrev_b32 v{T1}, 2, v{T1}
    s_lshl_b32 s41, s{QH}, 8
    v_add_u32 v{T1}, s41, v{T1}
    ds_read_b32 v{G[0]}, v{T1} offset:{GX}
    ds_read_b32 v{G[1]}, v{T1} offset:{GX+128}
    v_and_b32 v{T0}, 27, v1
    v_cmp_eq_u32 vcc, 16, v{T0}
    v_mov_b32 v{T1}, 0x3f803f80
    s_nop 0
    v_cndmask_b32 v{T0}, 0, v{T1}, vcc
    """)
    for r in range(64):
        a(f"v_mov_b32 v{VB(0,0)+r}, v{T0}")
    a(f"""
    s_mov_b32 s52, 0x0000ffff
    s_mov_b32 s53, 0x0000ffff
    s_lshl_b32 s40, s{H4}, 13
    v_add_u32 v{T0}, s40, v2
    """)
    for u in range(4):
        a(f"ds_read_b128 {vr(KB(0,u),4)}, v{T0} offset:{KVX+u*2048}")
    a("s_mov_b64 exec, s[52:53]")
    for u in range(4):
        a(f"ds_read_b128 {vr(VB(0,u),4)}, v{T0} offset:{KVX+u*2048+1024}")
        a(f"ds_read_b128 {vr(VB(0,u)+4,4)}, v{T0} offset:{KVX+u*2048+1280}")
    a("s_mov_b64 exec, -1")
    a(f"v_mov_b32 v{T2}, {RELAY}")
    a(f"ds_read_b32 v{T2+1}, v{T2}")
    a("s_waitcnt lgkmcnt(0)")
    a(f"v_readfirstlane_b32 s{NONCE}, v{T2+1}")
    a("s_barrier")
    stamp(a, 4)
    c_prefetch_setup(a)
    a("s_mov_b32 s49, 0")
    a("s_mov_b32 s50, 0")
    a("s_mov_b32 s54, 0")
    a(f"s_lshl_b32 s45, 1, s{MT}")
    if OPT["prio"]:
        a("s_setprio 3")
    for x in range(2):
        a(f"v_mfma_f32_32x32x16_bf16 {vr(S[x],16)}, {vr(KB(0,0),4)}, {vr(Q[x],4)}, 0")
    a("s_nop 7")
    a("s_nop 7")
    MX = [T0, T1]
    for x in range(2):
        a(f"v_max3_f32 v{MX[x]}, v{S[x]}, v{S[x]+1}, v{S[x]+2}")
        for r in range(3, 15, 2):
            a(f"v_max3_f32 v{MX[x]}, v{MX[x]}, v{S[x]+r}, v{S[x]+r+1}")
        a(f"v_max_f32 v{MX[x]}, v{MX[x]}, v{S[x]+15}")
    a.lab("B_setmax")
    for x in range(2):
        a(f"""
        v_mov_b32 v{T2}, v{MX[x]}
        s_nop 1
        v_permlane32_swap_b32 v{MX[x]}, v{T2}
        s_nop 1
        v_max_f32 v{MX[x]}, v{MX[x]}, v{T2}
        """)
        for r in range(16):
            a(f"v_sub_f32 v{C[x]+r}, 0, v{MX[x]}")
        for r in range(16):
            a(f"v_mov_b32 v{O[x]+r}, 0")
    a(f"v_mfma_f32_32x32x16_bf16 {vr(S[0],16)}, {vr(KB(0,0),4)}, {vr(Q[0],4)}, {vr(C[0],16)}")
    a(f"s_mov_b32 s44, s{MT}")
    a("s_mov_b32 s55, 0")
    a("s_nop 7")
    def ex(b, lo, hi):
        for r in range(lo, hi):
            a(f"v_exp_f32 v{b+r}, v{b+r}")
    def cv(b, h):
        for r in range(4):
            a(f"v_cvt_pk_bf16_f32 v{b+4*h+r}, v{b+8*h+2*r}, v{b+8*h+2*r+1}")
    def pv(x, vb, h):
        a(f"v_mfma_f32_32x32x16_bf16 {vr(O[x],16)}, {vr(vb+4*h,4)}, {vr(S[x]+4*h,4)}, {vr(O[x],16)}")
    def pf_head(tag):
        if tag == 0:
            a("s_cmp_eq_u32 s49, 0")
            a("s_cbranch_scc1 B_first")
            a.lab("B_first_ret")
        a(f"""
        s_add_u32 s44, s44, 1
        s_and_b32 s44, s44, 15
        s_bitcmp1_b32 s45, s44
        s_cbranch_scc0 B_poll{tag}
        """)
        a.lab(f"B_pf{tag}")
        a(f"""
        s_lshl_b32 s47, s44, 13
        s_add_u32 s47, s47, s46
        s_add_u32 s48, s47, 4096
        """)
    def ldk(s, u):
        so = 47 if u < 2 else 48
        a(f"buffer_load_dwordx4 {vr(KB(s,u),4)}, v2, {WSRD}, s{so} offen offset:{(u&1)*2048} sc1")
    def ldv(s, u):
        so = 47 if u < 2 else 48
        a("s_mov_b64 exec, s[52:53]")
        a(f"buffer_load_dwordx4 {vr(VB(s,u),4)}, v2, {WSRD}, s{so} offen offset:{(u&1)*2048+1024} sc1")
        a(f"buffer_load_dwordx4 {vr(VB(s,u)+4,4)}, v2, {WSRD}, s{so} offen offset:{(u&1)*2048+1280} sc1")
        a("s_mov_b64 exec, -1")
    a.lab("B_loop")
    D = OPT.get("D", 4)
    for s in range(2):
        for u in range(4):
            vb = VB(s, u)
            kn = KB(s, u+1) if u < 3 else KB(1-s, 0)
            qs, qu = (s, u + D) if u + D < 4 else (1 - s, u + D - 4)
            if OPT["prio"] == 2 and s == 1 and u == 0:
                a("s_cmp_lg_u32 s55, 7")
                a("s_cbranch_scc1 B_pm")
                a("s_setprio 0")
                a.lab("B_pm")
            a(f"v_mfma_f32_32x32x16_bf16 {vr(S[1],16)}, {vr(KB(s,u),4)}, {vr(Q[1],4)}, {vr(C[1],16)}")
            if qu == 0:
                pf_head(s)
            guard = (s == 0 and qs == s)
            if guard:
                a("s_cmp_eq_u32 s49, 0")
                a(f"s_cbranch_scc1 B_gk{u}")
            ldk(qs, qu)
            if guard:
                a.lab(f"B_gk{u}")
            ex(S[0], 0, 8)
            cv(S[0], 0)
            ex(S[0], 8, 16)
            a(f"s_waitcnt vmcnt({3*(D-1)+1})")
            pv(0, vb, 0)
            cv(S[0], 1)
            ex(S[1], 0, 2)
            pv(0, vb, 1)
            ex(S[1], 2, 8)
            a(f"s_waitcnt vmcnt({3*D-3})")
            a(f"v_mfma_f32_32x32x16_bf16 {vr(S[0],16)}, {vr(kn,4)}, {vr(Q[0],4)}, {vr(C[0],16)}")
            cv(S[1], 0)
            ex(S[1], 8, 16)
            pv(1, vb, 0)
            cv(S[1], 1)
            if guard:
                a("s_cmp_eq_u32 s49, 0")
                a(f"s_cbranch_scc1 B_gv{u}")
            ldv(qs, qu)
            if guard:
                a.lab(f"B_gv{u}")
            if u == 3 and s == 1:
                a("s_cmp_lt_u32 s50, 4")
                a("s_cbranch_scc1 B_wo")
                a.lab("B_wo_ret")
            pv(1, vb, 1)
    a("s_add_u32 s55, s55, 1")
    if OPT["prio"] == 1:
        a("""
        s_and_b32 s40, s55, 1
        s_cbranch_scc1 B_noprio
        s_cmp_eq_u32 s55, 2
        s_cbranch_scc0 B_p1
        s_setprio 2
        """)
        a.lab("B_p1")
        a("s_cmp_eq_u32 s55, 4")
        a("s_cbranch_scc0 B_p2")
        a("s_setprio 1")
        a.lab("B_p2")
        a("s_cmp_eq_u32 s55, 6")
        a("s_cbranch_scc0 B_noprio")
        a("s_setprio 0")
        a.lab("B_noprio")
    if OPT["prio"] == 2:
        a("s_cmp_lt_u32 s55, 6")
        a("s_cbranch_scc1 B_noprio")
        a("s_setprio 2")
        a("s_cmp_eq_u32 s55, 6")
        a("s_cbranch_scc1 B_noprio")
        a("s_setprio 1")
        a.lab("B_noprio")
    a("s_cmp_eq_u32 s55, 6")
    a("s_cbranch_scc1 B_wobar")
    a.lab("B_wobar_ret")
    if PROF and OPT.get("lstamp", 0):
        a("s_cmp_eq_u32 s55, 1")
        a("s_cbranch_scc0 B_ls1")
        stamp(a, 9)
        a.lab("B_ls1")
        a("s_cmp_eq_u32 s55, 4")
        a("s_cbranch_scc0 B_ls2")
        stamp(a, 10)
        a.lab("B_ls2")
    a("s_cmp_lt_u32 s55, 8")
    a("s_cbranch_scc1 B_loop")
    stamp(a, 6)
    a("s_nop 7")
    a("s_nop 7")
    a("s_cmp_lg_u32 s54, 0")
    a("s_cbranch_scc1 B_fin")
    a(f"v_mov_b32 v{T0}, 0")
    a(f"v_mov_b32 v{T1}, 0")
    for x in range(2):
        o = O[x]
        for r in range(0, 8, 2):
            a(f"v_max3_f32 v{T0}, v{T0}, |v{o+r}|, |v{o+r+1}|")
        a(f"v_max_f32 v{T0}, v{T0}, v{o+8}")
        for r in range(8):
            a(f"v_add_f32 v{T1}, v{T1}, v{o+r}")
    a(f"""
    v_mul_f32 v{T1}, 0, v{T1}
    v_add_f32 v{T0}, v{T0}, v{T1}
    s_mov_b32 s57, {f32(2.0**100)}
    v_cmp_gt_f32 vcc, s57, v{T0}
    s_cmp_eq_u64 vcc, exec
    s_cbranch_scc1 B_fin
    """)
    a(f"""
    s_mov_b32 s54, 1
    v_mov_b32 v{T0}, {f32(-3.0e38)}
    v_mov_b32 v{T1}, {f32(-3.0e38)}
    s_mov_b32 s47, s46
    s_mov_b32 s55, 0
    s_waitcnt vmcnt(0)
    """)
    a.lab("B_maxloop")
    a(f"buffer_load_dwordx4 {vr(KB(1,0),4)}, v2, {WSRD}, s47 offen sc1")
    a("s_waitcnt vmcnt(0)")
    for x in range(2):
        a(f"v_mfma_f32_32x32x16_bf16 {vr(S[x],16)}, {vr(KB(1,0),4)}, {vr(Q[x],4)}, 0")
    a("s_nop 7")
    a("s_nop 7")
    for x in range(2):
        for r in range(0, 16, 2):
            a(f"v_max3_f32 v{MX[x]}, v{MX[x]}, v{S[x]+r}, v{S[x]+r+1}")
    a("s_add_u32 s47, s47, 2048")
    a("s_add_u32 s55, s55, 1")
    a("s_cmp_lt_u32 s55, 64")
    a("s_cbranch_scc1 B_maxloop")
    a("s_branch B_setmax")
    a.lab("B_first")
    a("s_waitcnt vmcnt(0)")
    a("s_barrier")
    stamp(a, 5)
    a("s_mov_b32 s49, 1")
    a(f"""
    s_cmp_lg_u32 s{WV}, 0
    s_cbranch_scc1 B_first_ret
    s_lshl_b32 s40, s{CG}, 7
    s_lshl_b32 s41, s{MT}, 2
    s_add_u32 s40, s40, s41
    s_add_u32 s40, s40, {WS_F}
    v_mov_b32 v{T2}, 0
    v_mov_b32 v{T2+1}, s{NONCE}
    s_mov_b64 exec, 1
    buffer_store_dword v{T2+1}, v{T2}, {WSRD}, s40 offen sc1
    s_mov_b64 exec, -1
    s_branch B_first_ret
    """)
    a.lab("B_wobar")
    a("s_cmp_lg_u32 s54, 0")
    a("s_cbranch_scc1 B_wobar_ret")
    a("s_barrier")
    a("s_branch B_wobar_ret")
    a.lab("B_wo")
    for i in range(4):
        a(f"s_add_u32 m0, s58, {i*1024}")
        a(f"s_add_u32 s51, s59, {i*8192}")
        a(f"buffer_load_dwordx4 v212, s[60:63], s51 offen lds")
    a("s_add_u32 s58, s58, 4096")
    a("s_add_u32 s59, s59, 32768")
    a("s_add_u32 s50, s50, 1")
    a("s_branch B_wo_ret")
    for sset in range(2):
        a.lab(f"B_poll{sset}")
        a("s_mov_b32 s69, 0")
        a(f"s_cmp_lg_u32 s{WV}, 0")
        a(f"s_cbranch_scc1 B_lp{sset}")
        a(f"""
        s_lshl_b32 s40, s{CG}, 7
        s_add_u32 s40, s40, {WS_F}
        v_lshlrev_b32 v{T2}, 2, v1
        """)
        a.lab(f"B_gp{sset}")
        a(f"""
        s_mov_b64 exec, 0xffff
        buffer_load_dword v{T2+1}, v{T2}, {WSRD}, s40 offen sc1
        s_add_u32 s69, s69, 1
        s_waitcnt vmcnt(0)
        v_cmp_eq_u32 vcc, s{NONCE}, v{T2+1}
        s_mov_b64 exec, -1
        s_or_b32 s45, s45, vcc_lo
        s_bitcmp1_b32 s45, s44
        s_cbranch_scc1 B_gok{sset}
        s_cmp_lt_u32 s69, 200000
        s_cbranch_scc1 B_gp{sset}
        """)
        a.lab(f"B_gok{sset}")
        a(f"""
        v_mov_b32 v{T2}, {RELAY+4}
        v_mov_b32 v{T2+1}, s45
        ds_write_b32 v{T2}, v{T2+1}
        s_branch B_pf{sset}
        """)
        a.lab(f"B_lp{sset}")
        a(f"v_mov_b32 v{T2}, {RELAY+4}")
        a.lab(f"B_lpl{sset}")
        a(f"""
        ds_read_b32 v{T2+1}, v{T2}
        s_add_u32 s69, s69, 1
        s_waitcnt lgkmcnt(0)
        v_readfirstlane_b32 s40, v{T2+1}
        s_nop 3
        s_or_b32 s45, s45, s40
        s_bitcmp1_b32 s45, s44
        s_cbranch_scc1 B_pf{sset}
        s_cmp_lt_u32 s69, 4000000
        s_cbranch_scc1 B_lpl{sset}
        s_branch B_pf{sset}
        """)
    a.lab("B_fin")
    for x in range(2):
        o = O[x]
        a(f"v_rcp_f32 v{T0}, v{o+8}")
        a("s_nop 0")
        a(f"v_mul_f32 v{T0}, v{T0}, v{G[x]}")
        for r in range(8):
            a(f"v_mul_f32 v{o+r}, v{o+r}, v{T0}")
        for r in range(4):
            a(f"v_cvt_pk_bf16_f32 v{o+r}, v{o+2*r}, v{o+2*r+1}")
    a(f"""
    s_lshl_b32 s40, s{QT}, 6
    s_add_u32 s40, s40, s{PAIR}
    s_lshl_b32 s40, s40, 10
    s_add_u32 s40, s40, {WS_O}
    s_add_u32 s41, s40, 65536
    buffer_store_dwordx4 {vr(O[0],4)}, v2, {WSRD}, s40 offen sc1
    buffer_store_dwordx4 {vr(O[1],4)}, v2, {WSRD}, s41 offen sc1
    s_lshl_b32 s40, s{MT}, 9
    s_lshl_b32 s41, s{QH}, 8
    s_add_u32 s40, s40, s41
    s_lshl_b32 s41, s{CG}, 4
    s_add_u32 s40, s40, s41
    s_lshl_b32 s41, s{H4}, 2
    s_add_u32 s40, s40, s41
    s_add_u32 s40, s40, {WS_F+2048}
    v_mov_b32 v4, 0
    v_mov_b32 v5, s{NONCE}
    s_waitcnt vmcnt(0)
    s_mov_b64 exec, 1
    buffer_store_dword v5, v4, {WSRD}, s40 offen sc1
    s_mov_b64 exec, -1
    """)
    stamp(a, 7)
    a.lab("B_opub_done")

def c_prefetch_setup(a):
    a(f"""
    v_lshrrev_b32 v212, 3, v1
    v_and_b32 v213, 7, v1
    v_bfe_u32 v214, v1, 4, 1
    v_lshlrev_b32 v214, 2, v214
    v_xor_b32 v214, v213, v214
    v_lshlrev_b32 v214, 4, v214
    v_lshl_add_u32 v212, v212, 10, v214
    s_cmp_lt_u32 s{WV}, 4
    s_cselect_b32 s60, s8, s14
    s_cselect_b32 s61, s9, s15
    s_and_b32 s56, s{WV}, 3
    s_lshl_b32 s56, s56, 17
    s_and_b32 s57, s{CG}, 7
    s_lshl_b32 s57, s57, 7
    s_add_u32 s56, s56, s57
    s_add_u32 s60, s60, s56
    s_addc_u32 s61, s61, 0
    s_sub_u32 s62, 524288, s56
    s_mov_b32 s63, 0x20000
    s_lshl_b32 s58, s{WV}, 14
    s_mov_b32 s59, 0
    """)

def phase_c(a):
    MT64, NT, KQ, TT = 30, 31, 32, 33
    OF = 64
    ACC = 128
    a(f"""
    s_lshl_b32 s{MT64}, s{MT}, 1
    s_lshr_b32 s40, s{CG}, 3
    s_add_u32 s{MT64}, s{MT64}, s40
    s_and_b32 s{NT}, s{CG}, 7
    s_lshr_b32 s{KQ}, s{WV}, 1
    s_and_b32 s{TT}, s{WV}, 1
    v_lshrrev_b32 v5, 4, v1
    s_lshl_b32 s44, s{MT}, 9
    s_lshr_b32 s40, s{CG}, 3
    s_lshl_b32 s40, s40, 8
    s_add_u32 s44, s44, s40
    s_lshl_b32 s40, s{KQ}, 6
    s_add_u32 s44, s44, s40
    s_add_u32 s44, s44, {WS_F+2048}
    v_lshlrev_b32 v6, 2, v1
    s_mov_b32 s47, 0
    s_lshl_b32 s45, s{MT64}, 1
    s_add_u32 s45, s45, s{TT}
    s_lshl_b32 s45, s45, 6
    s_lshl_b32 s46, s{KQ}, 4
    s_add_u32 s45, s45, s46
    s_lshl_b32 s45, s45, 10
    s_add_u32 s45, s45, {WS_O}
    """)
    for g in range(4):
        m = 0xf << (4*g)
        a(f"s_and_b32 s40, s47, {m}")
        a(f"s_cmp_eq_u32 s40, {m}")
        a(f"s_cbranch_scc1 C_rdy{g}")
        a("s_mov_b32 s69, 0")
        a.lab(f"C_poll{g}")
        a(f"""
        s_mov_b64 exec, 0xffff
        buffer_load_dword v7, v6, {WSRD}, s44 offen sc1
        s_add_u32 s69, s69, 1
        s_waitcnt vmcnt(0)
        v_cmp_eq_u32 vcc, s{NONCE}, v7
        s_mov_b64 exec, -1
        s_mov_b32 s47, vcc_lo
        s_and_b32 s40, s47, {m}
        s_cmp_eq_u32 s40, {m}
        s_cbranch_scc1 C_rdy{g}
        s_sleep {OPT.get("sleep", 4)}
        s_cmp_lt_u32 s69, 200000
        s_cbranch_scc1 C_poll{g}
        """)
        a.lab(f"C_rdy{g}")
        if g == 3:
            stamp(a, 8)
        for i in range(4*g, 4*g+4):
            a(f"buffer_load_dwordx4 {vr(OF+4*i,4)}, v2, {WSRD}, s45 offen offset:{(i%4)*1024} sc1")
        if g < 3:
            a("s_add_u32 s45, s45, 4096")
    a(f"""
    v_lshrrev_b32 v21, 5, v1
    v_and_b32 v26, 15, v1
    v_lshrrev_b32 v27, 2, v26
    v_lshl_add_u32 v28, v21, 2, v27
    v_lshlrev_b32 v28, 7, v28
    v_and_b32 v29, 1, v5
    v_lshlrev_b32 v29, 1, v29
    v_bfe_u32 v30, v26, 1, 1
    v_add_u32 v29, v29, v30
    v_bfe_u32 v30, v27, 1, 1
    v_lshlrev_b32 v30, 2, v30
    v_xor_b32 v29, v29, v30
    v_lshl_add_u32 v28, v29, 4, v28
    v_and_b32 v30, 1, v26
    v_lshl_add_u32 v28, v30, 3, v28
    s_lshl_b32 s40, s{KQ}, 15
    v_add_u32 v20, s40, v28
    v_xor_b32 v21, 64, v20
    """)
    WFR = [32, 40]
    def rd(i):
        f = WFR[i & 1]
        return [f"ds_read_b64_tr_b16 {vr(f+4*ct+2*u,2)}, v{20+ct} offset:{(16*i+8*u)*128}" for ct in range(2) for u in range(2)]
    for x in rd(0):
        a(x)
    for i in range(16):
        nxt = rd(i+1) if i < 15 else []
        a(f"s_waitcnt vmcnt({15-i}) lgkmcnt(0)")
        f = WFR[i & 1]
        for ct in range(2):
            d = vr(ACC+16*ct, 16)
            c = "0" if i == 0 else d
            a(f"v_mfma_f32_32x32x16_bf16 {d}, {vr(f+4*ct,4)}, {vr(OF+4*i,4)}, {c}")
            for x in nxt[2*ct:2*ct+2]:
                a(x)
    if not OPT.get('lstamp', 0): stamp(a, 9)
    a("s_barrier")
    a(f"""
    v_and_b32 v22, 31, v1
    v_lshrrev_b32 v23, 5, v1
    v_and_b32 v24, 7, v22
    v_lshlrev_b32 v25, 8, v22
    s_lshl_b32 s40, s{KQ}, 14
    s_lshl_b32 s41, s{TT}, 13
    s_add_u32 s40, s40, s41
    v_add_u32 v25, s40, v25
    s_nop 7
    s_nop 7
    """)
    for ct in range(2):
        for q4 in range(4):
            a(f"v_add_u32 v26, {ct*8+2*q4}, v23")
            a(f"v_xor_b32 v26, v26, v24")
            a(f"v_lshl_add_u32 v26, v26, 4, v25")
            a(f"ds_write_b128 v26, {vr(ACC+16*ct+4*q4,4)}")
    a("s_waitcnt lgkmcnt(0)")
    a("s_barrier")
    a("""
    v_lshrrev_b32 v22, 3, v0
    v_and_b32 v23, 7, v0
    v_and_b32 v24, 7, v22
    v_lshlrev_b32 v25, 8, v22
    v_lshlrev_b32 v27, 1, v23
    """)
    for c in range(2):
        a(f"v_add_u32 v26, {c}, v27")
        a(f"v_xor_b32 v26, v26, v24")
        a(f"v_lshl_add_u32 v26, v26, 4, v25")
        for k in range(4):
            a(f"ds_read_b128 {vr(64+k*8+c*4,4)}, v26 offset:{k*16384}")
    a(f"""
    s_mov_b32 s60, s18
    s_mov_b32 s61, s19
    s_mov_b32 s62, 2097152
    s_mov_b32 s63, 0x20000
    v_lshlrev_b32 v22, 10, v22
    v_lshl_add_u32 v22, v23, 4, v22
    s_lshl_b32 s40, s{MT64}, 16
    s_lshl_b32 s41, s{NT}, 7
    s_add_u32 s40, s40, s41
    s_waitcnt lgkmcnt(0)
    """)
    for r in range(8):
        a(f"v_add_f32 v{64+r}, v{64+r}, v{72+r}")
        a(f"v_add_f32 v{80+r}, v{80+r}, v{88+r}")
    for r in range(8):
        a(f"v_add_f32 v{64+r}, v{64+r}, v{80+r}")
    for r in range(4):
        a(f"v_cvt_pk_bf16_f32 v{64+r}, v{64+2*r}, v{64+2*r+1}")
    a("buffer_store_dwordx4 v[64:67], v22, s[60:63], s40 offen")
    if not OPT.get("lstamp", 0): stamp(a, 10)

HEAD = open("cdna_kernels/%s.s.ref" % NAME).read().split("; Override")[0]

def main(out):
    a = A()
    gen(a)
    s = HEAD
    s += "; @launch grid=(256,1,1) block=(512,1,1) lds=163840\n"
    s += '.amdgcn_target "amdgcn-amd-amdhsa--gfx950"\n'
    s += a.text()
    s += f""".section .rodata,"a"
.p2align 6
.amdhsa_kernel {KNAME}
  .amdhsa_next_free_vgpr 256
  .amdhsa_next_free_sgpr 102
  .amdhsa_accum_offset 256
  .amdhsa_group_segment_fixed_size 0
  .amdhsa_kernarg_size 80
  .amdhsa_user_sgpr_count 2
  .amdhsa_user_sgpr_kernarg_segment_ptr 1
  .amdhsa_system_sgpr_workgroup_id_x 1
.end_amdhsa_kernel
"""
    open(out, "w").write(s)

if __name__ == "__main__":
    if "--prof" in sys.argv:
        PROF = True
        sys.argv.remove("--prof")
    for x in list(sys.argv):
        if x.startswith("--") and "=" in x:
            k, v = x[2:].split("=")
            OPT[k] = int(v)
            sys.argv.remove(x)
    set_nslot(OPT.get("nslot", 3))
    main(sys.argv[1] if len(sys.argv) > 1 else "fused3.s")
```

```python
import sys, struct

NAME = "gated_mix__mha_block__mha_block__prompt"
KNAME = NAME + "_kernel"
WS_KV = 4 << 20
WS_O = 12 << 20
WS_F = 16 << 20
WS_END = WS_F + 2048 + 8192
RELAY = 160000
NONCE = 68
WS_T = 32 << 20
QSCALE = 0.25 * 1.4426950408889634
LOG2E = 1.4426950408889634
PROF = False
OPT = dict(prio=1, rot=1, pfu=0)
NST = 12
SB = 70

def f32(x):
    return "0x%08x" % struct.unpack("<I", struct.pack("<f", x))[0]

class A:
    def __init__(self):
        self.l = []
    def __call__(self, s):
        for x in s.strip().split("\n"):
            if x.strip():
                self.l.append("  " + x.strip())
    def lab(self, s):
        self.l.append(s + ":")
    def raw(self, s):
        self.l.append(s)
    def text(self):
        return "\n".join(self.l) + "\n"

def vr(b, n):
    return f"v[{b}:{b+n-1}]"
def u32(x):
    return x & 0xffffffff

def stamp(a, k):
    if PROF:
        a(f"s_memtime s[{SB+2*k}:{SB+2*k+1}]")

WV = 3
XCD, SLOT_ = 24, 25
CG, MT, BB, HG = 26, 27, 28, 29
SRDW = 36
DBG = 20
WS = 22
WSRD = f"s[{SRDW}:{SRDW+3}]"

def gen(a):
    a.raw(".text")
    a.raw(f".globl {KNAME}")
    a.raw(".p2align 8")
    a.raw(f".type {KNAME},@function")
    a.lab(KNAME)
    a("s_cmp_ge_u32 s2, 256")
    a("s_cbranch_scc1 L_end")
    if PROF:
        a(f"s_memrealtime s[{SB+2*NST}:{SB+2*NST+1}]")
        stamp(a, 0)
    a(f"""
    s_load_dwordx4 s[4:7], s[0:1], 0
    s_load_dwordx2 s[8:9], s[0:1], 16
    s_load_dwordx4 s[12:15], s[0:1], 32
    s_load_dwordx4 s[16:19], s[0:1], 48
    s_load_dwordx4 s[20:23], s[0:1], 64
    v_lshrrev_b32 v2, 6, v0
    v_and_b32 v1, 63, v0
    s_and_b32 s{XCD}, s2, 7
    s_lshr_b32 s{SLOT_}, s2, 3
    v_readfirstlane_b32 s{WV}, v2
    v_lshlrev_b32 v2, 4, v1
    s_lshr_b32 s40, s{XCD}, 1
    s_lshl_b32 s40, s40, 2
    s_and_b32 s41, s{SLOT_}, 3
    s_add_u32 s{CG}, s40, s41
    s_lshr_b32 s{BB}, s{CG}, 3
    s_and_b32 s{HG}, s{CG}, 7
    s_and_b32 s{MT}, s{XCD}, 1
    s_lshl_b32 s{MT}, s{MT}, 3
    s_lshr_b32 s41, s{SLOT_}, 2
    s_add_u32 s{MT}, s{MT}, s41
    """)
    if OPT.get("diag", 0):
        a("s_memrealtime s[94:95]")
        a("s_memtime s[96:97]")
    phase_a(a)
    phase_b(a)
    phase_c(a)
    if OPT.get("diag", 0):
        a(f"""
        s_waitcnt vmcnt(0)
        s_memrealtime s[90:91]
        s_memtime s[92:93]
        s_waitcnt lgkmcnt(0)
        s_sub_u32 s92, s92, s96
        s_not_b32 s94, s94
        s_and_b32 s91, s2, 15
        s_or_b32 s91, s91, s{WV}
        s_cmp_lg_u32 s91, 0
        s_cbranch_scc1 L_end
        s_mov_b64 exec, 1
        v_mov_b32 v4, 16
        v_mov_b32 v5, s92
        global_atomic_umax v4, v5, s[{DBG}:{DBG+1}]
        v_mov_b32 v4, 20
        v_mov_b32 v5, s90
        global_atomic_umax v4, v5, s[{DBG}:{DBG+1}]
        v_mov_b32 v4, 24
        v_mov_b32 v5, s94
        global_atomic_umax v4, v5, s[{DBG}:{DBG+1}]
        s_mov_b64 exec, -1
        """)
    if PROF:
        a("s_waitcnt vmcnt(0)")
        a(f"s_memrealtime s[{SB+2*NST+2}:{SB+2*NST+3}]")
        stamp(a, NST-1)
        a("s_waitcnt lgkmcnt(0)")
        a(f"""
        s_lshl_b32 s40, s2, 4
        s_add_u32 s40, s40, s{WV}
        s_lshl_b32 s40, s40, 7
        s_add_u32 s40, s40, {WS_T}
        s_add_u32 s40, s{WS}, s40
        s_addc_u32 s41, s{WS+1}, 0
        s_mov_b64 exec, 1
        v_mov_b32 v4, 0
        """)
        for k in range(NST+2):
            a(f"v_mov_b32 v6, s{SB+2*k}")
            a(f"v_mov_b32 v7, s{SB+2*k+1}")
            a(f"global_store_dwordx2 v4, v[6:7], s[40:41] offset:{8*k}")
            a("s_nop 1")
    a.lab("L_end")
    a("s_endpgm")

SLOT = 40960
NSLOT = 3
GIMG = NSLOT * SLOT
def set_nslot(n):
    global NSLOT, GIMG
    NSLOT = n
    GIMG = 3 * SLOT
QX, KVX, GX = 0, 16384, 49152

def phase_a(a):
    a(f"""
    v_lshrrev_b32 v5, 4, v1
    s_cmp_ge_u32 s{WV}, 4
    s_cbranch_scc0 A_compute
    """)
    LW = 30
    a(f"""
    s_sub_u32 s{LW}, s{WV}, 4
    s_setprio 3
    v_lshrrev_b32 v3, 3, v1
    v_and_b32 v4, 7, v1
    v_xor_b32 v6, v4, v5
    v_lshlrev_b32 v6, 4, v6
    v_lshl_add_u32 v10, v3, 10, v6
    v_add_u32 v7, 4, v5
    v_xor_b32 v7, v4, v7
    v_lshlrev_b32 v7, 4, v7
    v_lshl_add_u32 v11, v3, 10, v7
    v_and_b32 v8, 1, v5
    v_lshlrev_b32 v8, 2, v8
    v_xor_b32 v8, v4, v8
    v_lshlrev_b32 v8, 4, v8
    v_mul_u32_u24 v9, 3072, v3
    v_add_u32 v12, v9, v8
    s_lshl_b32 s54, s{LW}, 15
    """)
    for u in range(4):
        a(f"s_add_u32 s{44+u}, s54, {u*8192}")
    a(f"s_mul_i32 s54, s{LW}, 49152")
    for g3 in range(3):
        for e in range(2):
            a(f"s_add_u32 s{48+g3*2+e}, s54, {g3*1024 + e*8*3072}")
    a(f"""
    s_lshl_b32 s55, s{LW}, 12
    s_lshl_b32 s56, s{LW}, 11
    s_add_u32 s56, s56, 16384
    s_lshl_b32 s40, s{MT}, 17
    s_lshl_b32 s41, s{HG}, 7
    s_mov_b32 s62, 131072
    s_mov_b32 s63, 0x20000
    s_sub_u32 s34, 1572864, s41
    s_mov_b32 s35, 0x20000
    """)
    if OPT["rot"]:
        a(f"s_mov_b32 s57, s{XCD}")
    else:
        a("s_mov_b32 s57, 0")
    a(f"""
    s_lshl_b32 s42, s57, 7
    v_add_u32 v10, s42, v10
    v_add_u32 v11, s42, v11
    s_mul_i32 s42, s57, 196608
    v_add_u32 v12, s42, v12
    s_mov_b32 s64, {u32(-896)}
    s_mov_b32 s65, 128
    s_mov_b32 s66, {u32(-7*196608)}
    s_mov_b32 s67, 196608
    s_waitcnt lgkmcnt(0)
    s_cmp_eq_u32 s{BB}, 0
    s_cselect_b32 s32, s6, s12
    s_cselect_b32 s33, s7, s13
    s_add_u32 s60, s4, s40
    s_addc_u32 s61, s5, 0
    s_add_u32 s32, s32, s41
    s_addc_u32 s33, s33, 0
    """)
    def issue_stage(extra=None):
        extra = list(extra or [])
        seq = [("w",0,0),("x",0,0),("w",0,1),("x",1,0),("w",1,0),("x",2,0),("w",1,1),("x",3,0),("w",2,0),("w",2,1)]
        for n, (kind, i, e) in enumerate(seq):
            if kind == "x":
                a(f"s_add_u32 m0, s55, {i*1024}")
                a("s_add_u32 s57, s57, 1" if n == 1 else ("s_and_b32 s57, s57, 7" if n == 3 else "s_nop 0"))
                a(f"buffer_load_dwordx4 v{10+(i&1)}, s[60:63], s{44+i} offen lds")
            else:
                a(f"s_add_u32 m0, s56, {i*8192+e*1024}")
                a("s_cmp_eq_u32 s57, 0" if n == 4 else "s_nop 0")
                a(f"buffer_load_dwordx4 v12, s[32:35], s{48+i*2+e} offen lds")
                if n == 4:
                    a("s_cselect_b32 s42, s64, s65")
                    a("s_cselect_b32 s43, s66, s67")
            if n >= 2 and extra:
                k = 1 if n == 2 else 3
                for _ in range(k):
                    if extra: a(extra.pop(0))
        for x in extra:
            a(x)
        a("v_add_u32 v10, s42, v10")
        a("v_add_u32 v11, s42, v11")
        a("v_add_u32 v12, s43, v12")
        a(f"s_add_u32 s55, s55, {SLOT}")
        a(f"s_add_u32 s56, s56, {SLOT}")
        a(f"s_cmp_ge_u32 s56, {NSLOT*SLOT}")
        a(f"s_cselect_b32 s54, {NSLOT*SLOT}, 0")
        a("s_sub_u32 s55, s55, s54")
        a("s_sub_u32 s56, s56, s54")
    a(f"""
    s_mov_b32 s{SRDW}, s16
    s_mov_b32 s{SRDW+1}, s17
    s_mov_b32 s{SRDW+2}, 1024
    s_mov_b32 s{SRDW+3}, 0x20000
    s_lshl_b32 s43, s{LW}, 8
    s_add_u32 m0, s43, {GIMG}
    """)
    if not OPT.get("nogate", 0):
        a(f"""
        s_mov_b64 exec, 0xffff
        buffer_load_dwordx4 v2, {WSRD}, s43 offen lds
        s_mov_b64 exec, -1
        """)
    a(f"""
    v_and_b32 v20, 31, v1
    v_lshrrev_b32 v21, 5, v1
    v_lshrrev_b32 v22, 1, v1
    v_and_b32 v22, 7, v22
    s_lshl_b32 s40, s{LW}, 12
    v_lshlrev_b32 v23, 7, v20
    v_add_u32 v23, s40, v23
    """)
    for ks in range(4):
        a(f"v_add_u32 v24, {2*ks}, v21")
        a(f"v_xor_b32 v24, v24, v22")
        a(f"v_lshl_add_u32 v{16+ks}, v24, 4, v23")
    a(f"""
    v_lshlrev_b32 v15, 4, v21
    v_add_u32 v15, {GIMG}, v15
    v_mov_b32 v64, 0
    s_mov_b32 s59, 0
    """)
    if OPT["rot"]:
        a(f"s_mov_b32 s31, s{XCD}")
    else:
        a("s_mov_b32 s31, 0")
    issue_stage()
    issue_stage()
    def gate_reads():
        if OPT.get("nogate", 0): return
        a("s_lshl_b32 s40, s31, 7")
        a("v_add_u32 v14, s40, v15")
        for ks in range(4):
            a(f"v_add_u32 v24, s59, v{16+ks}")
            a(f"ds_read_b128 {vr(28+8*ks,4)}, v24")
            a(f"ds_read_b128 {vr(32+8*ks,4)}, v14 offset:{ks*32}")
        a("s_add_u32 s31, s31, 1")
        a("s_and_b32 s31, s31, 7")
        a(f"s_add_u32 s59, s59, {SLOT}")
        a(f"s_cmp_ge_u32 s59, {NSLOT*SLOT}")
        a(f"s_cselect_b32 s40, {NSLOT*SLOT}, 0")
        a("s_sub_u32 s59, s59, s40")
    def gate_dots():
        if OPT.get("nogate", 0): return
        a("s_waitcnt lgkmcnt(0)")
        for ks in range(4):
            for q in range(4):
                a(f"v_dot2c_f32_bf16 v64, v{28+8*ks+q}, v{32+8*ks+q}")
    if OPT.get("ldprio", 0) == 0:
        a("s_setprio 0")
    a("s_mov_b32 s58, 0")
    a.lab("A_ld_loop")
    a("s_waitcnt vmcnt(10)")
    a("s_barrier")
    gate_reads()
    issue_stage(None if OPT.get("nogate", 0) else ["s_waitcnt lgkmcnt(0)"] + [f"v_dot2c_f32_bf16 v64, v{28+8*ks+q}, v{32+8*ks+q}" for ks in range(4) for q in range(4)])
    a("s_add_u32 s58, s58, 1")
    a("s_cmp_lt_u32 s58, 6")
    a("s_cbranch_scc1 A_ld_loop")
    a("s_waitcnt vmcnt(10)")
    a("s_barrier")
    gate_reads()
    gate_dots()
    a("s_waitcnt vmcnt(0)")
    a("s_barrier")
    gate_reads()
    gate_dots()
    a("s_setprio 0")
    a(f"""
    s_mov_b32 s{SRDW}, s{WS}
    s_mov_b32 s{SRDW+1}, s{WS+1}
    s_mov_b32 s{SRDW+2}, {WS_END}
    s_mov_b32 s{SRDW+3}, 0x20000
    s_nop 3
    v_mov_b32 v20, v64
    s_nop 1
    v_permlane32_swap_b32 v64, v20
    s_nop 1
    v_add_f32 v64, v64, v20
    v_mul_f32 v64, {f32(-LOG2E)}, v64
    v_exp_f32 v64, v64
    s_nop 0
    v_add_f32 v64, 1.0, v64
    v_rcp_f32 v64, v64
    s_nop 0
    v_sub_f32 v20, 1.0, v64
    s_cmp_eq_u32 s{BB}, 0
    s_cselect_b64 vcc, -1, 0
    s_nop 1
    v_cndmask_b32 v20, v20, v64, vcc
    v_and_b32 v19, 31, v1
    v_lshlrev_b32 v19, 2, v19
    s_lshl_b32 s41, s{LW}, 7
    v_add_u32 v19, s41, v19
    s_barrier
    ds_write_b32 v19, v20 offset:{GX}
    s_branch A_join
    """)
    a.lab("A_compute")
    WM, WN = 30, 31
    a(f"""
    s_and_b32 s{WM}, s{WV}, 1
    s_lshr_b32 s{WN}, s{WV}, 1
    v_and_b32 v20, 31, v1
    v_lshrrev_b32 v21, 5, v1
    v_lshrrev_b32 v22, 1, v1
    v_and_b32 v22, 7, v22
    s_lshl_b32 s40, s{WM}, 13
    v_lshlrev_b32 v23, 7, v20
    v_add_u32 v23, s40, v23
    """)
    for ks in range(4):
        a(f"v_add_u32 v24, {2*ks}, v21")
        a(f"v_xor_b32 v24, v24, v22")
        a(f"v_lshl_add_u32 v{16+ks}, v24, 4, v23")
    a(f"""
    v_and_b32 v26, 15, v1
    v_lshrrev_b32 v27, 2, v26
    v_lshl_add_u32 v28, v21, 3, v27
    v_lshlrev_b32 v28, 7, v28
    v_and_b32 v29, 1, v5
    v_lshlrev_b32 v29, 1, v29
    v_bfe_u32 v30, v26, 1, 1
    v_add_u32 v29, v29, v30
    s_lshl_b32 s40, s{WN}, 2
    v_add_u32 v29, s40, v29
    v_bfe_u32 v30, v27, 1, 1
    v_lshlrev_b32 v30, 2, v30
    v_xor_b32 v29, v29, v30
    v_lshl_add_u32 v28, v29, 4, v28
    v_and_b32 v30, 1, v26
    v_lshl_add_u32 v25, v30, 3, v28
    """)
    ACC = 64
    XF = [32, 160]
    WF = [40, 168]
    GF = [52, 180]
    GA = [184, 185]
    for r in range(96):
        a(f"v_mov_b32 v{ACC+r}, 0")
    a(f"""
    s_lshl_b32 s40, s{CG}, 2
    s_lshl_b32 s41, s{WN}, 1
    s_add_u32 s40, s40, s41
    s_lshl_b32 s40, s40, 6
    s_lshl_b32 s41, s{MT}, 2
    s_add_u32 s40, s40, s41
    s_lshl_b32 s41, s{WM}, 1
    s_add_u32 s40, s40, s41
    s_lshl_b32 s46, s40, 11
    s_add_u32 s46, s46, {WS_KV}
    s_mov_b32 s48, {f32(QSCALE)}
    v_and_b32 v11, 15, v1
    v_lshlrev_b32 v11, 4, v11
    v_lshl_add_u32 v11, v21, 9, v11
    v_bfe_u32 v12, v1, 4, 1
    v_lshl_add_u32 v13, v12, 13, v11
    v_lshl_add_u32 v11, v12, 17, v11
    v_add_u32 v11, 1024, v11
    s_add_u32 s47, s46, 131072
    s_mov_b32 s{SRDW+2}, {WS_END}
    s_mov_b32 s{SRDW+3}, 0x20000
    s_mov_b32 s57, 0
    s_mov_b32 s58, 0
    """)
    def set_addr():
        for ks in range(4):
            a(f"v_add_u32 v{20+ks}, s57, v{16+ks}")
        a("v_add_u32 v24, s57, v25")
    set_addr()
    a("s_waitcnt lgkmcnt(0)")
    a(f"s_mov_b32 s{SRDW}, s{WS}")
    a(f"s_mov_b32 s{SRDW+1}, s{WS+1}")
    if OPT.get("wpf", 0):
        a(f"""
        s_lshl_b32 s40, s2, 2
        s_add_u32 s40, s40, s{WV}
        s_and_b32 s41, s40, 511
        s_mul_i32 s41, s41, 3072
        s_cmp_lt_u32 s40, 512
        s_cselect_b32 s42, s6, s12
        s_cselect_b32 s43, s7, s13
        s_add_u32 s42, s42, s41
        s_addc_u32 s43, s43, 0
        global_load_dwordx4 v[180:183], v2, s[42:43]
        global_load_dwordx4 v[180:183], v2, s[42:43] offset:1024
        global_load_dwordx4 v[180:183], v2, s[42:43] offset:2048
        s_lshl_b32 s40, s2, 3
        s_lshl_b32 s41, s{WV}, 1
        s_add_u32 s40, s40, s41
        s_lshl_b32 s40, s40, 10
        s_add_u32 s42, s4, s40
        s_addc_u32 s43, s5, 0
        global_load_dwordx4 v[180:183], v2, s[42:43]
        global_load_dwordx4 v[180:183], v2, s[42:43] offset:1024
        """)
    a(f"""
    s_cmp_lg_u32 s{WV}, 0
    s_cbranch_scc1 A_nononce
    s_memrealtime s[40:41]
    s_waitcnt lgkmcnt(0)
    s_or_b32 s40, s40, 1
    v_mov_b32 v186, s40
    v_mov_b32 v187, 0
    v_mov_b32 v188, 0
    s_mov_b64 exec, 1
    global_atomic_cmpswap v189, v188, v[186:187], s[{DBG}:{DBG+1}] sc0
    s_mov_b64 exec, -1
    """)
    a.lab("A_nononce")
    def read_list(ks, f):
        r = []
        r.append(f"ds_read_b64_tr_b16 {vr(WF[f]+0,2)}, v24 offset:{16384+(16*ks+0)*128}")
        r.append(f"ds_read_b64_tr_b16 {vr(WF[f]+2,2)}, v24 offset:{16384+(16*ks+4)*128}")
        r.append(f"ds_read_b128 {vr(XF[f],4)}, v{20+ks} offset:0")
        r.append(f"ds_read_b128 {vr(XF[f]+4,4)}, v{20+ks} offset:4096")
        for g3 in (1, 2):
            for u in range(2):
                r.append(f"ds_read_b64_tr_b16 {vr(WF[f]+4*g3+2*u,2)}, v24 offset:{16384+g3*8192+(16*ks+4*u)*128}")
        return r
    def group(f, rl, barrier=False):
        order = [(0,0),(0,1),(1,0),(1,1),(2,0),(2,1)]
        rl = list(rl)
        for i, (g3, tt) in enumerate(order):
            x = vr(XF[f]+4*tt, 4); w = vr(WF[f]+4*g3, 4); d = vr(ACC+16*(tt*3+g3), 16)
            if g3 < 2:
                a(f"v_mfma_f32_32x32x16_bf16 {d}, {w}, {x}, {d}")
            else:
                a(f"v_mfma_f32_32x32x16_bf16 {d}, {x}, {w}, {d}")
            if i == 0 and barrier:
                a("s_barrier")
            for _ in range(2):
                if rl:
                    a(rl.pop(0))
    a("s_barrier")
    stamp(a, 1)
    for x in read_list(0, 0):
        a(x)
    a.lab("A_loop")
    for ks in range(3):
        a("s_waitcnt lgkmcnt(0)")
        group(ks & 1, read_list(ks+1, (ks+1) & 1))
    a("s_cmp_eq_u32 s58, 7")
    a("s_cbranch_scc1 A_last")
    a(f"""
    s_add_u32 s57, s57, {SLOT}
    s_cmp_ge_u32 s57, {NSLOT*SLOT}
    s_cselect_b32 s40, {NSLOT*SLOT}, 0
    s_sub_u32 s57, s57, s40
    """)
    set_addr()
    a("s_waitcnt lgkmcnt(0)")
    group(1, read_list(0, 0), barrier=True)
    a("s_add_u32 s58, s58, 1")
    a("s_branch A_loop")
    a.lab("A_last")
    a("s_waitcnt lgkmcnt(0)")
    group(1, [])
    stamp(a, 2)
    a("s_barrier")
    a(f"""
    s_lshl_b32 s40, s{WN}, 3
    s_lshl_b32 s41, s{WM}, 1
    s_add_u32 s40, s40, s41
    s_lshl_b32 s41, s40, 10
    v_add_u32 v16, s41, v2
    s_lshl_b32 s41, s40, 11
    v_add_u32 v17, s41, v2
    v_add_u32 v18, s41, v13
    s_nop 3
    """)
    a(f"""
    s_cmp_lg_u32 s{WV}, 0
    s_cbranch_scc1 A_nononce2
    s_waitcnt vmcnt(0)
    v_cmp_eq_u32 vcc, 0, v189
    s_nop 1
    v_cndmask_b32 v186, v189, v186, vcc
    v_mov_b32 v188, {RELAY}
    s_mov_b64 exec, 1
    ds_write_b64 v188, v[186:187]
    s_mov_b64 exec, -1
    """)
    a.lab("A_nononce2")
    for tt in range(2):
        d = ACC + 16*(tt*3+1)
        for r in range(8):
            a(f"v_cvt_pk_bf16_f32 v{d+r}, v{d+2*r}, v{d+2*r+1}")
        a(f"buffer_store_dwordx4 {vr(d,4)}, v2, {WSRD}, s46 offen offset:{tt*2048} sc1")
        a(f"buffer_store_dwordx4 {vr(d+4,4)}, v2, {WSRD}, s47 offen offset:{tt*2048} sc1")
        a(f"ds_write_b128 v17, {vr(d,4)} offset:{KVX+tt*2048}")
        a(f"ds_write_b128 v17, {vr(d+4,4)} offset:{KVX+tt*2048+8192}")
        d = ACC + 16*(tt*3+2)
        for r in range(8):
            a(f"v_cvt_pk_bf16_f32 v{d+r}, v{d+2*r}, v{d+2*r+1}")
        a(f"buffer_store_dwordx4 {vr(d,4)}, v11, {WSRD}, s46 offen offset:{tt*2048} sc1")
        a(f"buffer_store_dwordx4 {vr(d+4,4)}, v11, {WSRD}, s46 offen offset:{tt*2048+256} sc1")
        a(f"ds_write_b128 v18, {vr(d,4)} offset:{KVX+tt*2048+1024}")
        a(f"ds_write_b128 v18, {vr(d+4,4)} offset:{KVX+tt*2048+1280}")
    for tt in range(2):
        d = ACC + 16*(tt*3+0)
        for r in range(16):
            a(f"v_mul_f32 v{d+r}, s48, v{d+r}")
        for r in range(8):
            a(f"v_cvt_pk_bf16_f32 v{d+r}, v{d+2*r}, v{d+2*r+1}")
        a(f"ds_write_b128 v16, {vr(d,4)} offset:{QX+tt*1024}")
        a(f"ds_write_b128 v16, {vr(d+4,4)} offset:{QX+tt*1024+4096}")
    a.lab("A_join")
    a("s_waitcnt lgkmcnt(0)")
    a("s_barrier")
    stamp(a, 3)

def spin(a, lab, addr_v, val_v, cond):
    a("s_mov_b32 s69, 0")
    a.lab(lab)
    a(f"global_load_dword v{val_v}, v{addr_v}, s[{DBG}:{DBG+1}] sc1")
    a("s_add_u32 s69, s69, 1")
    a("s_waitcnt vmcnt(0)")
    cond()
    a(f"s_cbranch_scc1 {lab}_ok")
    a("s_cmp_lt_u32 s69, 200000")
    a(f"s_cbranch_scc1 {lab}")
    a.lab(lab + "_ok")

def phase_b(a):
    Q = [4, 8]; S = [12, 28]; O = [44, 60]; C = [76, 92]
    KB = lambda s, u: 108 + s*16 + u*4
    VB = lambda s, u: 140 + s*32 + u*8
    G = [204, 205]; T0 = 206; T1 = 207; T2 = 208
    H4, QH, PAIR, QT = 30, 31, 32, 33
    a(f"""
    s_lshr_b32 s{H4}, s{WV}, 1
    s_and_b32 s{QH}, s{WV}, 1
    s_lshl_b32 s{PAIR}, s{CG}, 2
    s_add_u32 s{PAIR}, s{PAIR}, s{H4}
    s_lshl_b32 s{QT}, s{MT}, 2
    s_lshl_b32 s40, s{QH}, 1
    s_add_u32 s{QT}, s{QT}, s40
    s_lshl_b32 s46, s{PAIR}, 17
    s_add_u32 s46, s46, {WS_KV}
    s_lshl_b32 s40, s{H4}, 12
    s_lshl_b32 s41, s{QH}, 11
    s_add_u32 s40, s40, s41
    v_add_u32 v{T0}, s40, v2
    ds_read_b128 {vr(Q[0],4)}, v{T0} offset:{QX}
    ds_read_b128 {vr(Q[1],4)}, v{T0} offset:{QX+1024}
    v_and_b32 v{T1}, 31, v1
    v_lshlrev_b32 v{T1}, 2, v{T1}
    s_lshl_b32 s41, s{QH}, 8
    v_add_u32 v{T1}, s41, v{T1}
    ds_read_b32 v{G[0]}, v{T1} offset:{GX}
    ds_read_b32 v{G[1]}, v{T1} offset:{GX+128}
    v_and_b32 v{T0}, 27, v1
    v_cmp_eq_u32 vcc, 16, v{T0}
    v_mov_b32 v{T1}, 0x3f803f80
    s_nop 0
    v_cndmask_b32 v{T0}, 0, v{T1}, vcc
    """)
    for r in range(64):
        a(f"v_mov_b32 v{VB(0,0)+r}, v{T0}")
    a(f"""
    s_mov_b32 s52, 0x0000ffff
    s_mov_b32 s53, 0x0000ffff
    s_lshl_b32 s40, s{H4}, 13
    v_add_u32 v{T0}, s40, v2
    """)
    for u in range(4):
        a(f"ds_read_b128 {vr(KB(0,u),4)}, v{T0} offset:{KVX+u*2048}")
    a("s_mov_b64 exec, s[52:53]")
    for u in range(4):
        a(f"ds_read_b128 {vr(VB(0,u),4)}, v{T0} offset:{KVX+u*2048+1024}")
        a(f"ds_read_b128 {vr(VB(0,u)+4,4)}, v{T0} offset:{KVX+u*2048+1280}")
    a("s_mov_b64 exec, -1")
    a(f"v_mov_b32 v{T2}, {RELAY}")
    a(f"ds_read_b32 v{T2+1}, v{T2}")
    a("s_waitcnt lgkmcnt(0)")
    a(f"v_readfirstlane_b32 s{NONCE}, v{T2+1}")
    a("s_barrier")
    stamp(a, 4)
    c_prefetch_setup(a)
    a("s_mov_b32 s49, 0")
    a("s_mov_b32 s50, 0")
    a("s_mov_b32 s54, 0")
    a(f"s_lshl_b32 s45, 1, s{MT}")
    if OPT["prio"]:
        a("s_setprio 3")
    for x in range(2):
        a(f"v_mfma_f32_32x32x16_bf16 {vr(S[x],16)}, {vr(KB(0,0),4)}, {vr(Q[x],4)}, 0")
    a("s_nop 7")
    a("s_nop 7")
    MX = [T0, T1]
    for x in range(2):
        a(f"v_max3_f32 v{MX[x]}, v{S[x]}, v{S[x]+1}, v{S[x]+2}")
        for r in range(3, 15, 2):
            a(f"v_max3_f32 v{MX[x]}, v{MX[x]}, v{S[x]+r}, v{S[x]+r+1}")
        a(f"v_max_f32 v{MX[x]}, v{MX[x]}, v{S[x]+15}")
    a.lab("B_setmax")
    for x in range(2):
        a(f"""
        v_mov_b32 v{T2}, v{MX[x]}
        s_nop 1
        v_permlane32_swap_b32 v{MX[x]}, v{T2}
        s_nop 1
        v_max_f32 v{MX[x]}, v{MX[x]}, v{T2}
        """)
        for r in range(16):
            a(f"v_sub_f32 v{C[x]+r}, 0, v{MX[x]}")
        for r in range(16):
            a(f"v_mov_b32 v{O[x]+r}, 0")
    a(f"v_mfma_f32_32x32x16_bf16 {vr(S[0],16)}, {vr(KB(0,0),4)}, {vr(Q[0],4)}, {vr(C[0],16)}")
    a(f"s_mov_b32 s44, s{MT}")
    a("s_mov_b32 s55, 0")
    a("s_nop 7")
    def ex(b, lo, hi):
        for r in range(lo, hi):
            a(f"v_exp_f32 v{b+r}, v{b+r}")
    def cv(b, h):
        for r in range(4):
            a(f"v_cvt_pk_bf16_f32 v{b+4*h+r}, v{b+8*h+2*r}, v{b+8*h+2*r+1}")
    def pv(x, vb, h):
        a(f"v_mfma_f32_32x32x16_bf16 {vr(O[x],16)}, {vr(vb+4*h,4)}, {vr(S[x]+4*h,4)}, {vr(O[x],16)}")
    def pf_head(tag):
        if tag == 0:
            a("s_cmp_eq_u32 s49, 0")
            a("s_cbranch_scc1 B_first")
            a.lab("B_first_ret")
        a(f"""
        s_add_u32 s44, s44, 1
        s_and_b32 s44, s44, 15
        s_bitcmp1_b32 s45, s44
        s_cbranch_scc0 B_poll{tag}
        """)
        a.lab(f"B_pf{tag}")
        a(f"""
        s_lshl_b32 s47, s44, 13
        s_add_u32 s47, s47, s46
        s_add_u32 s48, s47, 4096
        """)
    def ldk(s, u):
        so = 47 if u < 2 else 48
        a(f"buffer_load_dwordx4 {vr(KB(s,u),4)}, v2, {WSRD}, s{so} offen offset:{(u&1)*2048} sc1")
    def ldv(s, u):
        so = 47 if u < 2 else 48
        a("s_mov_b64 exec, s[52:53]")
        a(f"buffer_load_dwordx4 {vr(VB(s,u),4)}, v2, {WSRD}, s{so} offen offset:{(u&1)*2048+1024} sc1")
        a(f"buffer_load_dwordx4 {vr(VB(s,u)+4,4)}, v2, {WSRD}, s{so} offen offset:{(u&1)*2048+1280} sc1")
        a("s_mov_b64 exec, -1")
    a.lab("B_loop")
    D = OPT.get("D", 4)
    for s in range(2):
        for u in range(4):
            vb = VB(s, u)
            kn = KB(s, u+1) if u < 3 else KB(1-s, 0)
            qs, qu = (s, u + D) if u + D < 4 else (1 - s, u + D - 4)
            if OPT["prio"] == 2 and s == 1 and u == 0:
                a("s_cmp_lg_u32 s55, 7")
                a("s_cbranch_scc1 B_pm")
                a("s_setprio 0")
                a.lab("B_pm")
            a(f"v_mfma_f32_32x32x16_bf16 {vr(S[1],16)}, {vr(KB(s,u),4)}, {vr(Q[1],4)}, {vr(C[1],16)}")
            if qu == 0:
                pf_head(s)
            guard = (s == 0 and qs == s)
            if guard:
                a("s_cmp_eq_u32 s49, 0")
                a(f"s_cbranch_scc1 B_gk{u}")
            ldk(qs, qu)
            if guard:
                a.lab(f"B_gk{u}")
            ex(S[0], 0, 8)
            cv(S[0], 0)
            ex(S[0], 8, 16)
            a(f"s_waitcnt vmcnt({3*(D-1)+1})")
            pv(0, vb, 0)
            cv(S[0], 1)
            ex(S[1], 0, 2)
            pv(0, vb, 1)
            ex(S[1], 2, 8)
            a(f"s_waitcnt vmcnt({3*D-3})")
            a(f"v_mfma_f32_32x32x16_bf16 {vr(S[0],16)}, {vr(kn,4)}, {vr(Q[0],4)}, {vr(C[0],16)}")
            cv(S[1], 0)
            ex(S[1], 8, 16)
            pv(1, vb, 0)
            cv(S[1], 1)
            if guard:
                a("s_cmp_eq_u32 s49, 0")
                a(f"s_cbranch_scc1 B_gv{u}")
            ldv(qs, qu)
            if guard:
                a.lab(f"B_gv{u}")
            if u == 3 and s == 1:
                a("s_cmp_lt_u32 s50, 4")
                a("s_cbranch_scc1 B_wo")
                a.lab("B_wo_ret")
            pv(1, vb, 1)
    a("s_add_u32 s55, s55, 1")
    if OPT["prio"] == 1:
        a("""
        s_and_b32 s40, s55, 1
        s_cbranch_scc1 B_noprio
        s_cmp_eq_u32 s55, 2
        s_cbranch_scc0 B_p1
        s_setprio 2
        """)
        a.lab("B_p1")
        a("s_cmp_eq_u32 s55, 4")
        a("s_cbranch_scc0 B_p2")
        a("s_setprio 1")
        a.lab("B_p2")
        a("s_cmp_eq_u32 s55, 6")
        a("s_cbranch_scc0 B_noprio")
        a("s_setprio 0")
        a.lab("B_noprio")
    if OPT["prio"] == 2:
        a("s_cmp_lt_u32 s55, 6")
        a("s_cbranch_scc1 B_noprio")
        a("s_setprio 2")
        a("s_cmp_eq_u32 s55, 6")
        a("s_cbranch_scc1 B_noprio")
        a("s_setprio 1")
        a.lab("B_noprio")
    a("s_cmp_eq_u32 s55, 6")
    a("s_cbranch_scc1 B_wobar")
    a.lab("B_wobar_ret")
    if PROF and OPT.get("lstamp", 0):
        a("s_cmp_eq_u32 s55, 1")
        a("s_cbranch_scc0 B_ls1")
        stamp(a, 9)
        a.lab("B_ls1")
        a("s_cmp_eq_u32 s55, 4")
        a("s_cbranch_scc0 B_ls2")
        stamp(a, 10)
        a.lab("B_ls2")
    a("s_cmp_lt_u32 s55, 8")
    a("s_cbranch_scc1 B_loop")
    stamp(a, 6)
    a("s_nop 7")
    a("s_nop 7")
    a("s_cmp_lg_u32 s54, 0")
    a("s_cbranch_scc1 B_fin")
    a(f"v_mov_b32 v{T0}, 0")
    a(f"v_mov_b32 v{T1}, 0")
    for x in range(2):
        o = O[x]
        for r in range(0, 8, 2):
            a(f"v_max3_f32 v{T0}, v{T0}, |v{o+r}|, |v{o+r+1}|")
        a(f"v_max_f32 v{T0}, v{T0}, v{o+8}")
        for r in range(8):
            a(f"v_add_f32 v{T1}, v{T1}, v{o+r}")
    a(f"""
    v_mul_f32 v{T1}, 0, v{T1}
    v_add_f32 v{T0}, v{T0}, v{T1}
    s_mov_b32 s57, {f32(2.0**100)}
    v_cmp_gt_f32 vcc, s57, v{T0}
    s_cmp_eq_u64 vcc, exec
    s_cbranch_scc1 B_fin
    """)
    a(f"""
    s_mov_b32 s54, 1
    v_mov_b32 v{T0}, {f32(-3.0e38)}
    v_mov_b32 v{T1}, {f32(-3.0e38)}
    s_mov_b32 s47, s46
    s_mov_b32 s55, 0
    s_waitcnt vmcnt(0)
    """)
    a.lab("B_maxloop")
    a(f"buffer_load_dwordx4 {vr(KB(1,0),4)}, v2, {WSRD}, s47 offen sc1")
    a("s_waitcnt vmcnt(0)")
    for x in range(2):
        a(f"v_mfma_f32_32x32x16_bf16 {vr(S[x],16)}, {vr(KB(1,0),4)}, {vr(Q[x],4)}, 0")
    a("s_nop 7")
    a("s_nop 7")
    for x in range(2):
        for r in range(0, 16, 2):
            a(f"v_max3_f32 v{MX[x]}, v{MX[x]}, v{S[x]+r}, v{S[x]+r+1}")
    a("s_add_u32 s47, s47, 2048")
    a("s_add_u32 s55, s55, 1")
    a("s_cmp_lt_u32 s55, 64")
    a("s_cbranch_scc1 B_maxloop")
    a("s_branch B_setmax")
    a.lab("B_first")
    a("s_waitcnt vmcnt(0)")
    a("s_barrier")
    stamp(a, 5)
    a("s_mov_b32 s49, 1")
    a(f"""
    s_cmp_lg_u32 s{WV}, 0
    s_cbranch_scc1 B_first_ret
    s_lshl_b32 s40, s{CG}, 7
    s_lshl_b32 s41, s{MT}, 2
    s_add_u32 s40, s40, s41
    s_add_u32 s40, s40, {WS_F}
    v_mov_b32 v{T2}, 0
    v_mov_b32 v{T2+1}, s{NONCE}
    s_mov_b64 exec, 1
    buffer_store_dword v{T2+1}, v{T2}, {WSRD}, s40 offen sc1
    s_mov_b64 exec, -1
    s_branch B_first_ret
    """)
    a.lab("B_wobar")
    a("s_cmp_lg_u32 s54, 0")
    a("s_cbranch_scc1 B_wobar_ret")
    a("s_barrier")
    a("s_branch B_wobar_ret")
    a.lab("B_wo")
    for i in range(4):
        a(f"s_add_u32 m0, s58, {i*1024}")
        a(f"s_add_u32 s51, s59, {i*8192}")
        a(f"buffer_load_dwordx4 v212, s[60:63], s51 offen lds")
    a("s_add_u32 s58, s58, 4096")
    a("s_add_u32 s59, s59, 32768")
    a("s_add_u32 s50, s50, 1")
    a("s_branch B_wo_ret")
    for sset in range(2):
        a.lab(f"B_poll{sset}")
        a("s_mov_b32 s69, 0")
        a(f"s_cmp_lg_u32 s{WV}, 0")
        a(f"s_cbranch_scc1 B_lp{sset}")
        a(f"""
        s_lshl_b32 s40, s{CG}, 7
        s_add_u32 s40, s40, {WS_F}
        v_lshlrev_b32 v{T2}, 2, v1
        """)
        a.lab(f"B_gp{sset}")
        a(f"""
        s_mov_b64 exec, 0xffff
        buffer_load_dword v{T2+1}, v{T2}, {WSRD}, s40 offen sc1
        s_add_u32 s69, s69, 1
        s_waitcnt vmcnt(0)
        v_cmp_eq_u32 vcc, s{NONCE}, v{T2+1}
        s_mov_b64 exec, -1
        s_or_b32 s45, s45, vcc_lo
        s_bitcmp1_b32 s45, s44
        s_cbranch_scc1 B_gok{sset}
        s_cmp_lt_u32 s69, 200000
        s_cbranch_scc1 B_gp{sset}
        """)
        a.lab(f"B_gok{sset}")
        a(f"""
        v_mov_b32 v{T2}, {RELAY+4}
        v_mov_b32 v{T2+1}, s45
        ds_write_b32 v{T2}, v{T2+1}
        s_branch B_pf{sset}
        """)
        a.lab(f"B_lp{sset}")
        a(f"v_mov_b32 v{T2}, {RELAY+4}")
        a.lab(f"B_lpl{sset}")
        a(f"""
        ds_read_b32 v{T2+1}, v{T2}
        s_add_u32 s69, s69, 1
        s_waitcnt lgkmcnt(0)
        v_readfirstlane_b32 s40, v{T2+1}
        s_nop 3
        s_or_b32 s45, s45, s40
        s_bitcmp1_b32 s45, s44
        s_cbranch_scc1 B_pf{sset}
        s_cmp_lt_u32 s69, 4000000
        s_cbranch_scc1 B_lpl{sset}
        s_branch B_pf{sset}
        """)
    a.lab("B_fin")
    for x in range(2):
        o = O[x]
        a(f"v_rcp_f32 v{T0}, v{o+8}")
        a("s_nop 0")
        a(f"v_mul_f32 v{T0}, v{T0}, v{G[x]}")
        for r in range(8):
            a(f"v_mul_f32 v{o+r}, v{o+r}, v{T0}")
        for r in range(4):
            a(f"v_cvt_pk_bf16_f32 v{o+r}, v{o+2*r}, v{o+2*r+1}")
    a(f"""
    s_lshl_b32 s40, s{QT}, 6
    s_add_u32 s40, s40, s{PAIR}
    s_lshl_b32 s40, s40, 10
    s_add_u32 s40, s40, {WS_O}
    s_add_u32 s41, s40, 65536
    buffer_store_dwordx4 {vr(O[0],4)}, v2, {WSRD}, s40 offen sc1
    buffer_store_dwordx4 {vr(O[1],4)}, v2, {WSRD}, s41 offen sc1
    s_lshl_b32 s40, s{MT}, 9
    s_lshl_b32 s41, s{QH}, 8
    s_add_u32 s40, s40, s41
    s_lshl_b32 s41, s{CG}, 4
    s_add_u32 s40, s40, s41
    s_lshl_b32 s41, s{H4}, 2
    s_add_u32 s40, s40, s41
    s_add_u32 s40, s40, {WS_F+2048}
    v_mov_b32 v4, 0
    v_mov_b32 v5, s{NONCE}
    s_waitcnt vmcnt(0)
    s_mov_b64 exec, 1
    buffer_store_dword v5, v4, {WSRD}, s40 offen sc1
    s_mov_b64 exec, -1
    """)
    stamp(a, 7)
    a.lab("B_opub_done")

def c_prefetch_setup(a):
    a(f"""
    v_lshrrev_b32 v212, 3, v1
    v_and_b32 v213, 7, v1
    v_bfe_u32 v214, v1, 4, 1
    v_lshlrev_b32 v214, 2, v214
    v_xor_b32 v214, v213, v214
    v_lshlrev_b32 v214, 4, v214
    v_lshl_add_u32 v212, v212, 10, v214
    s_cmp_lt_u32 s{WV}, 4
    s_cselect_b32 s60, s8, s14
    s_cselect_b32 s61, s9, s15
    s_and_b32 s56, s{WV}, 3
    s_lshl_b32 s56, s56, 17
    s_and_b32 s57, s{CG}, 7
    s_lshl_b32 s57, s57, 7
    s_add_u32 s56, s56, s57
    s_add_u32 s60, s60, s56
    s_addc_u32 s61, s61, 0
    s_sub_u32 s62, 524288, s56
    s_mov_b32 s63, 0x20000
    s_lshl_b32 s58, s{WV}, 14
    s_mov_b32 s59, 0
    """)

def phase_c(a):
    MT64, NT, KQ, TT = 30, 31, 32, 33
    OF = 64
    ACC = 128
    a(f"""
    s_lshl_b32 s{MT64}, s{MT}, 1
    s_lshr_b32 s40, s{CG}, 3
    s_add_u32 s{MT64}, s{MT64}, s40
    s_and_b32 s{NT}, s{CG}, 7
    s_lshr_b32 s{KQ}, s{WV}, 1
    s_and_b32 s{TT}, s{WV}, 1
    v_lshrrev_b32 v5, 4, v1
    s_lshl_b32 s44, s{MT}, 9
    s_lshr_b32 s40, s{CG}, 3
    s_lshl_b32 s40, s40, 8
    s_add_u32 s44, s44, s40
    s_lshl_b32 s40, s{KQ}, 6
    s_add_u32 s44, s44, s40
    s_add_u32 s44, s44, {WS_F+2048}
    v_lshlrev_b32 v6, 2, v1
    s_mov_b32 s47, 0
    s_lshl_b32 s45, s{MT64}, 1
    s_add_u32 s45, s45, s{TT}
    s_lshl_b32 s45, s45, 6
    s_lshl_b32 s46, s{KQ}, 4
    s_add_u32 s45, s45, s46
    s_lshl_b32 s45, s45, 10
    s_add_u32 s45, s45, {WS_O}
    """)
    for g in range(4):
        m = 0xf << (4*g)
        a(f"s_and_b32 s40, s47, {m}")
        a(f"s_cmp_eq_u32 s40, {m}")
        a(f"s_cbranch_scc1 C_rdy{g}")
        a("s_mov_b32 s69, 0")
        a.lab(f"C_poll{g}")
        a(f"""
        s_mov_b64 exec, 0xffff
        buffer_load_dword v7, v6, {WSRD}, s44 offen sc1
        s_add_u32 s69, s69, 1
        s_waitcnt vmcnt(0)
        v_cmp_eq_u32 vcc, s{NONCE}, v7
        s_mov_b64 exec, -1
        s_mov_b32 s47, vcc_lo
        s_and_b32 s40, s47, {m}
        s_cmp_eq_u32 s40, {m}
        s_cbranch_scc1 C_rdy{g}
        s_sleep {OPT.get("sleep", 4)}
        s_cmp_lt_u32 s69, 200000
        s_cbranch_scc1 C_poll{g}
        """)
        a.lab(f"C_rdy{g}")
        if g == 3:
            stamp(a, 8)
        for i in range(4*g, 4*g+4):
            a(f"buffer_load_dwordx4 {vr(OF+4*i,4)}, v2, {WSRD}, s45 offen offset:{(i%4)*1024} sc1")
        if g < 3:
            a("s_add_u32 s45, s45, 4096")
    a(f"""
    v_lshrrev_b32 v21, 5, v1
    v_and_b32 v26, 15, v1
    v_lshrrev_b32 v27, 2, v26
    v_lshl_add_u32 v28, v21, 2, v27
    v_lshlrev_b32 v28, 7, v28
    v_and_b32 v29, 1, v5
    v_lshlrev_b32 v29, 1, v29
    v_bfe_u32 v30, v26, 1, 1
    v_add_u32 v29, v29, v30
    v_bfe_u32 v30, v27, 1, 1
    v_lshlrev_b32 v30, 2, v30
    v_xor_b32 v29, v29, v30
    v_lshl_add_u32 v28, v29, 4, v28
    v_and_b32 v30, 1, v26
    v_lshl_add_u32 v28, v30, 3, v28
    s_lshl_b32 s40, s{KQ}, 15
    v_add_u32 v20, s40, v28
    v_xor_b32 v21, 64, v20
    """)
    WFR = [32, 40]
    def rd(i):
        f = WFR[i & 1]
        return [f"ds_read_b64_tr_b16 {vr(f+4*ct+2*u,2)}, v{20+ct} offset:{(16*i+8*u)*128}" for ct in range(2) for u in range(2)]
    for x in rd(0):
        a(x)
    for i in range(16):
        nxt = rd(i+1) if i < 15 else []
        a(f"s_waitcnt vmcnt({15-i}) lgkmcnt(0)")
        f = WFR[i & 1]
        for ct in range(2):
            d = vr(ACC+16*ct, 16)
            c = "0" if i == 0 else d
            a(f"v_mfma_f32_32x32x16_bf16 {d}, {vr(f+4*ct,4)}, {vr(OF+4*i,4)}, {c}")
            for x in nxt[2*ct:2*ct+2]:
                a(x)
    if not OPT.get('lstamp', 0): stamp(a, 9)
    a("s_barrier")
    a(f"""
    v_and_b32 v22, 31, v1
    v_lshrrev_b32 v23, 5, v1
    v_and_b32 v24, 7, v22
    v_lshlrev_b32 v25, 8, v22
    s_lshl_b32 s40, s{KQ}, 14
    s_lshl_b32 s41, s{TT}, 13
    s_add_u32 s40, s40, s41
    v_add_u32 v25, s40, v25
    s_nop 7
    s_nop 7
    """)
    for ct in range(2):
        for q4 in range(4):
            a(f"v_add_u32 v26, {ct*8+2*q4}, v23")
            a(f"v_xor_b32 v26, v26, v24")
            a(f"v_lshl_add_u32 v26, v26, 4, v25")
            a(f"ds_write_b128 v26, {vr(ACC+16*ct+4*q4,4)}")
    a("s_waitcnt lgkmcnt(0)")
    a("s_barrier")
    a("""
    v_lshrrev_b32 v22, 3, v0
    v_and_b32 v23, 7, v0
    v_and_b32 v24, 7, v22
    v_lshlrev_b32 v25, 8, v22
    v_lshlrev_b32 v27, 1, v23
    """)
    for c in range(2):
        a(f"v_add_u32 v26, {c}, v27")
        a(f"v_xor_b32 v26, v26, v24")
        a(f"v_lshl_add_u32 v26, v26, 4, v25")
        for k in range(4):
            a(f"ds_read_b128 {vr(64+k*8+c*4,4)}, v26 offset:{k*16384}")
    a(f"""
    s_mov_b32 s60, s18
    s_mov_b32 s61, s19
    s_mov_b32 s62, 2097152
    s_mov_b32 s63, 0x20000
    v_lshlrev_b32 v22, 10, v22
    v_lshl_add_u32 v22, v23, 4, v22
    s_lshl_b32 s40, s{MT64}, 16
    s_lshl_b32 s41, s{NT}, 7
    s_add_u32 s40, s40, s41
    s_waitcnt lgkmcnt(0)
    """)
    for r in range(8):
        a(f"v_add_f32 v{64+r}, v{64+r}, v{72+r}")
        a(f"v_add_f32 v{80+r}, v{80+r}, v{88+r}")
    for r in range(8):
        a(f"v_add_f32 v{64+r}, v{64+r}, v{80+r}")
    for r in range(4):
        a(f"v_cvt_pk_bf16_f32 v{64+r}, v{64+2*r}, v{64+2*r+1}")
    a("buffer_store_dwordx4 v[64:67], v22, s[60:63], s40 offen")
    if not OPT.get("lstamp", 0): stamp(a, 10)

HEAD = open("cdna_kernels/%s.s.ref" % NAME).read().split("; Override")[0]

def main(out):
    a = A()
    gen(a)
    s = HEAD
    s += "; @launch grid=(256,1,1) block=(512,1,1) lds=163840\n"
    s += '.amdgcn_target "amdgcn-amd-amdhsa--gfx950"\n'
    s += a.text()
    s += f""".section .rodata,"a"
.p2align 6
.amdhsa_kernel {KNAME}
  .amdhsa_next_free_vgpr 256
  .amdhsa_next_free_sgpr 102
  .amdhsa_accum_offset 256
  .amdhsa_group_segment_fixed_size 0
  .amdhsa_kernarg_size 80
  .amdhsa_user_sgpr_count 2
  .amdhsa_user_sgpr_kernarg_segment_ptr 1
  .amdhsa_system_sgpr_workgroup_id_x 1
.end_amdhsa_kernel
"""
    open(out, "w").write(s)

if __name__ == "__main__":
    if "--prof" in sys.argv:
        PROF = True
        sys.argv.remove("--prof")
    for x in list(sys.argv):
        if x.startswith("--") and "=" in x:
            k, v = x[2:].split("=")
            OPT[k] = int(v)
            sys.argv.remove(x)
    set_nslot(OPT.get("nslot", 3))
    main(sys.argv[1] if len(sys.argv) > 1 else "fused3.s")
```

```python
import sys, struct

NAME = "gated_mix__mha_block__mha_block__prompt"
KNAME = NAME + "_kernel"
WS_KV = 4 << 20
WS_O = 12 << 20
WS_F = 16 << 20
WS_GF = WS_F + 2048 + 8192
WS_G = WS_GF + 2048
WS_END = WS_G + 8192
RELAY = 160000
NONCE = 68
WS_T = 32 << 20
QSCALE = 0.25 * 1.4426950408889634
LOG2E = 1.4426950408889634
PROF = False
OPT = dict(prio=1, rot=1, pfu=0)
NST = 12
SB = 70

def f32(x):
    return "0x%08x" % struct.unpack("<I", struct.pack("<f", x))[0]

class A:
    def __init__(self):
        self.l = []
    def __call__(self, s):
        for x in s.strip().split("\n"):
            if x.strip():
                self.l.append("  " + x.strip())
    def lab(self, s):
        self.l.append(s + ":")
    def raw(self, s):
        self.l.append(s)
    def text(self):
        return "\n".join(self.l) + "\n"

def vr(b, n):
    return f"v[{b}:{b+n-1}]"
def u32(x):
    return x & 0xffffffff

def GM():
    return OPT.get('gm', 2)
def GMF():
    return GM() == 1
def stamp(a, k):
    if PROF:
        a(f"s_memtime s[{SB+2*k}:{SB+2*k+1}]")

WV = 3
XCD, SLOT_ = 24, 25
CG, MT, BB, HG = 26, 27, 28, 29
SRDW = 36
DBG = 20
WS = 22
WSRD = f"s[{SRDW}:{SRDW+3}]"

def gen(a):
    a.raw(".text")
    a.raw(f".globl {KNAME}")
    a.raw(".p2align 8")
    a.raw(f".type {KNAME},@function")
    a.lab(KNAME)
    a("s_cmp_ge_u32 s2, 256")
    a("s_cbranch_scc1 L_end")
    if PROF:
        a(f"s_memrealtime s[{SB+2*NST}:{SB+2*NST+1}]")
        stamp(a, 0)
    a(f"""
    s_load_dwordx4 s[4:7], s[0:1], 0
    s_load_dwordx2 s[8:9], s[0:1], 16
    s_load_dwordx4 s[12:15], s[0:1], 32
    s_load_dwordx4 s[16:19], s[0:1], 48
    s_load_dwordx4 s[20:23], s[0:1], 64
    v_lshrrev_b32 v2, 6, v0
    v_and_b32 v1, 63, v0
    s_and_b32 s{XCD}, s2, 7
    s_lshr_b32 s{SLOT_}, s2, 3
    v_readfirstlane_b32 s{WV}, v2
    v_lshlrev_b32 v2, 4, v1
    s_lshr_b32 s40, s{XCD}, 1
    s_lshl_b32 s40, s40, 2
    s_and_b32 s41, s{SLOT_}, 3
    s_add_u32 s{CG}, s40, s41
    s_lshr_b32 s{BB}, s{CG}, 3
    s_and_b32 s{HG}, s{CG}, 7
    s_and_b32 s{MT}, s{XCD}, 1
    s_lshl_b32 s{MT}, s{MT}, 3
    s_lshr_b32 s41, s{SLOT_}, 2
    s_add_u32 s{MT}, s{MT}, s41
    """)
    if OPT.get("diag", 0):
        a("s_memrealtime s[94:95]")
        a("s_memtime s[96:97]")
    phase_a(a)
    phase_b(a)
    phase_c(a)
    if OPT.get("diag", 0):
        a(f"""
        s_waitcnt vmcnt(0)
        s_memrealtime s[90:91]
        s_memtime s[92:93]
        s_waitcnt lgkmcnt(0)
        s_sub_u32 s92, s92, s96
        s_not_b32 s94, s94
        s_and_b32 s91, s2, 15
        s_or_b32 s91, s91, s{WV}
        s_cmp_lg_u32 s91, 0
        s_cbranch_scc1 L_end
        s_mov_b64 exec, 1
        v_mov_b32 v4, 16
        v_mov_b32 v5, s92
        global_atomic_umax v4, v5, s[{DBG}:{DBG+1}]
        v_mov_b32 v4, 20
        v_mov_b32 v5, s90
        global_atomic_umax v4, v5, s[{DBG}:{DBG+1}]
        v_mov_b32 v4, 24
        v_mov_b32 v5, s94
        global_atomic_umax v4, v5, s[{DBG}:{DBG+1}]
        s_mov_b64 exec, -1
        """)
    if PROF:
        a("s_waitcnt vmcnt(0)")
        a(f"s_memrealtime s[{SB+2*NST+2}:{SB+2*NST+3}]")
        stamp(a, NST-1)
        a("s_waitcnt lgkmcnt(0)")
        if OPT.get("lprof", 0):
            for k, r in ((8, 98), (9, 99), (10, 100)):
                a(f"s_add_u32 s{SB+2*k}, s{SB}, s{r}")
                a(f"s_addc_u32 s{SB+2*k+1}, s{SB+1}, 0")
            a.lab("L_nolp")
        a(f"""
        s_lshl_b32 s40, s2, 4
        s_add_u32 s40, s40, s{WV}
        s_lshl_b32 s40, s40, 7
        s_add_u32 s40, s40, {WS_T}
        s_add_u32 s40, s{WS}, s40
        s_addc_u32 s41, s{WS+1}, 0
        s_mov_b64 exec, 1
        v_mov_b32 v4, 0
        """)
        for k in range(NST+2):
            a(f"v_mov_b32 v6, s{SB+2*k}")
            a(f"v_mov_b32 v7, s{SB+2*k+1}")
            a(f"global_store_dwordx2 v4, v[6:7], s[40:41] offset:{8*k}")
            a("s_nop 1")
    a.lab("L_end")
    a("s_endpgm")

SLOT = 40960
NSLOT = 3
GIMG = NSLOT * SLOT
def set_nslot(n):
    global NSLOT, GIMG
    NSLOT = n
    GIMG = 3 * SLOT
QX, KVX, GX = 0, 16384, 49152

def phase_a(a):
    a(f"""
    v_lshrrev_b32 v5, 4, v1
    s_cmp_ge_u32 s{WV}, 4
    s_cbranch_scc0 A_compute
    """)
    LW = 30
    a(f"""
    s_sub_u32 s{LW}, s{WV}, 4
    s_setprio 3
    v_lshrrev_b32 v3, 3, v1
    v_and_b32 v4, 7, v1
    v_xor_b32 v6, v4, v5
    v_lshlrev_b32 v6, 4, v6
    v_lshl_add_u32 v10, v3, 10, v6
    v_add_u32 v7, 4, v5
    v_xor_b32 v7, v4, v7
    v_lshlrev_b32 v7, 4, v7
    v_lshl_add_u32 v11, v3, 10, v7
    v_and_b32 v8, 1, v5
    v_lshlrev_b32 v8, 2, v8
    v_xor_b32 v8, v4, v8
    v_lshlrev_b32 v8, 4, v8
    v_mul_u32_u24 v9, 3072, v3
    v_add_u32 v12, v9, v8
    s_lshl_b32 s54, s{LW}, 15
    """)
    for u in range(4):
        a(f"s_add_u32 s{44+u}, s54, {u*8192}")
    a(f"s_mul_i32 s54, s{LW}, 49152")
    for g3 in range(3):
        for e in range(2):
            a(f"s_add_u32 s{48+g3*2+e}, s54, {g3*1024 + e*8*3072}")
    a(f"""
    s_lshl_b32 s55, s{LW}, 12
    s_lshl_b32 s56, s{LW}, 11
    s_add_u32 s56, s56, 16384
    s_lshl_b32 s40, s{MT}, 17
    s_lshl_b32 s41, s{HG}, 7
    s_mov_b32 s62, 131072
    s_mov_b32 s63, 0x20000
    s_sub_u32 s34, 1572864, s41
    s_mov_b32 s35, 0x20000
    """)
    if OPT["rot"]:
        a(f"s_mov_b32 s57, s{XCD}")
    else:
        a("s_mov_b32 s57, 0")
    a(f"""
    s_lshl_b32 s42, s57, 7
    v_add_u32 v10, s42, v10
    v_add_u32 v11, s42, v11
    s_mul_i32 s42, s57, 196608
    v_add_u32 v12, s42, v12
    s_mov_b32 s64, {u32(-896)}
    s_mov_b32 s65, 128
    s_mov_b32 s66, {u32(-7*196608)}
    s_mov_b32 s67, 196608
    s_waitcnt lgkmcnt(0)
    s_cmp_eq_u32 s{BB}, 0
    s_cselect_b32 s32, s6, s12
    s_cselect_b32 s33, s7, s13
    s_add_u32 s60, s4, s40
    s_addc_u32 s61, s5, 0
    s_add_u32 s32, s32, s41
    s_addc_u32 s33, s33, 0
    """)
    def issue_stage(extra=None):
        extra = list(extra or [])
        seq = [("w",0,0),("x",0,0),("w",0,1),("x",1,0),("w",1,0),("x",2,0),("w",1,1),("x",3,0),("w",2,0),("w",2,1)]
        for n, (kind, i, e) in enumerate(seq):
            if kind == "x":
                a(f"s_add_u32 m0, s55, {i*1024}")
                a("s_add_u32 s57, s57, 1" if n == 1 else ("s_and_b32 s57, s57, 7" if n == 3 else "s_nop 0"))
                a(f"buffer_load_dwordx4 v{10+(i&1)}, s[60:63], s{44+i} offen lds")
            else:
                a(f"s_add_u32 m0, s56, {i*8192+e*1024}")
                a("s_cmp_eq_u32 s57, 0" if n == 4 else "s_nop 0")
                a(f"buffer_load_dwordx4 v12, s[32:35], s{48+i*2+e} offen lds")
                if n == 4:
                    a("s_cselect_b32 s42, s64, s65")
                    a("s_cselect_b32 s43, s66, s67")
            if n >= 2 and extra:
                k = 1 if n == 2 else 3
                for _ in range(k):
                    if extra: a(extra.pop(0))
        for x in extra:
            a(x)
        a("v_add_u32 v10, s42, v10")
        a("v_add_u32 v11, s42, v11")
        a("v_add_u32 v12, s43, v12")
        a(f"s_add_u32 s55, s55, {SLOT}")
        a(f"s_add_u32 s56, s56, {SLOT}")
        a(f"s_cmp_ge_u32 s56, {NSLOT*SLOT}")
        a(f"s_cselect_b32 s54, {NSLOT*SLOT}, 0")
        a("s_sub_u32 s55, s55, s54")
        a("s_sub_u32 s56, s56, s54")
    a(f"""
    s_mov_b32 s{SRDW}, s16
    s_mov_b32 s{SRDW+1}, s17
    s_mov_b32 s{SRDW+2}, 1024
    s_mov_b32 s{SRDW+3}, 0x20000
    s_lshl_b32 s43, s{LW}, 8
    s_add_u32 m0, s43, {GIMG}
    """)
    if GM() == 2:
        pass
    elif not OPT.get("nogate", 0):
        a(f"""
        s_mov_b64 exec, 0xffff
        buffer_load_dwordx4 v2, {WSRD}, s43 offen lds
        s_mov_b64 exec, -1
        """)
    if GM() == 0:
        a(f"""
        v_and_b32 v20, 31, v1
        v_lshrrev_b32 v21, 5, v1
        v_lshrrev_b32 v22, 1, v1
        v_and_b32 v22, 7, v22
        s_lshl_b32 s40, s{LW}, 12
        v_lshlrev_b32 v23, 7, v20
        v_add_u32 v23, s40, v23
        """)
        for ks in range(4):
            a(f"v_add_u32 v24, {2*ks}, v21")
            a(f"v_xor_b32 v24, v24, v22")
            a(f"v_lshl_add_u32 v{16+ks}, v24, 4, v23")
        a(f"""
        v_lshlrev_b32 v15, 4, v21
        v_add_u32 v15, {GIMG}, v15
        v_mov_b32 v64, 0
        s_mov_b32 s59, 0
        """)
        if OPT["rot"]:
            a(f"s_mov_b32 s31, s{XCD}")
        else:
            a("s_mov_b32 s31, 0")
    LK = OPT.get("look", 2)
    for _ in range(LK):
        issue_stage()
    def gate_reads():
        if OPT.get("nogate", 0) or GM() != 0: return
        a("s_lshl_b32 s40, s31, 7")
        a("v_add_u32 v14, s40, v15")
        for ks in range(4):
            a(f"v_add_u32 v24, s59, v{16+ks}")
            a(f"ds_read_b128 {vr(28+8*ks,4)}, v24")
            a(f"ds_read_b128 {vr(32+8*ks,4)}, v14 offset:{ks*32}")
        a("s_add_u32 s31, s31, 1")
        a("s_and_b32 s31, s31, 7")
        a(f"s_add_u32 s59, s59, {SLOT}")
        a(f"s_cmp_ge_u32 s59, {NSLOT*SLOT}")
        a(f"s_cselect_b32 s40, {NSLOT*SLOT}, 0")
        a("s_sub_u32 s59, s59, s40")
    def gate_dots():
        if OPT.get("nogate", 0) or GM() != 0: return
        a("s_waitcnt lgkmcnt(0)")
        for ks in range(4):
            for q in range(4):
                a(f"v_dot2c_f32_bf16 v64, v{28+8*ks+q}, v{32+8*ks+q}")
    if OPT.get("ldprio", 0) == 0:
        a("s_setprio 0")
    a("s_mov_b32 s58, 0")
    LP = PROF and OPT.get("lprof", 0)
    def tick(acc):
        if LP:
            a("s_memtime s[88:89]")
            a("s_waitcnt lgkmcnt(0)")
            a("s_sub_u32 s87, s88, s86")
            a(f"s_add_u32 s{acc}, s{acc}, s87")
            a("s_mov_b32 s86, s88")
    if LP:
        a("s_memtime s[88:89]")
        a("s_waitcnt lgkmcnt(0)")
        a("s_mov_b32 s86, s88")
        a("s_mov_b32 s80, 0"); a("s_mov_b32 s81, 0"); a("s_mov_b32 s82, 0"); a("s_mov_b32 s83, 0"); a("s_mov_b32 s84, 0"); a("s_mov_b32 s85, 0")
    a.lab("A_ld_loop")
    a(f"s_waitcnt vmcnt({10*(LK-1)})")
    tick(80)
    a("s_barrier")
    tick(82)
    gate_reads()
    issue_stage(None if (OPT.get("nogate", 0) or GM() != 0) else ["s_waitcnt lgkmcnt(0)"] + [f"v_dot2c_f32_bf16 v64, v{28+8*ks+q}, v{32+8*ks+q}" for ks in range(4) for q in range(4)])
    tick(84)
    a("s_add_u32 s58, s58, 1")
    a(f"s_cmp_lt_u32 s58, {8-LK}")
    a("s_cbranch_scc1 A_ld_loop")
    if GM() == 2:
        a(f"""
        s_mov_b32 s{SRDW}, s16
        s_mov_b32 s{SRDW+1}, s17
        s_mov_b32 s{SRDW+2}, 1024
        s_mov_b32 s{SRDW+3}, 0x20000
        v_and_b32 v13, 15, v1
        v_lshlrev_b32 v13, 4, v13
        v_lshl_add_u32 v14, v5, 10, v13
        s_lshl_b32 s40, s{CG}, 3
        s_and_b32 s41, s{LW}, 1
        s_lshl_b32 s41, s41, 2
        s_add_u32 s29, s40, s41
        s_lshl_b32 s41, s29, 10
        s_cmp_ge_u32 s{LW}, 2
        s_cbranch_scc1 A_nogl
        """)
        for i in range(4):
            a(f"buffer_load_dwordx4 {vr(16+4*i,4)}, v14, s[60:63], s41 offen offset:{256*i}")
        for i in range(4):
            a(f"buffer_load_dwordx4 {vr(32+4*i,4)}, v13, {WSRD}, 0 offen offset:{256*i}")
        a.lab("A_nogl")
    for k in range(LK):
        a(f"s_waitcnt vmcnt({10*(LK-1-k)})")
        a("s_barrier")
        gate_reads()
        gate_dots()
    if LP:
        a("s_mov_b32 s98, s80"); a("s_mov_b32 s99, s82"); a("s_mov_b32 s100, s84")
    a("s_setprio 0")
    a(f"""
    s_mov_b32 s{SRDW}, s{WS}
    s_mov_b32 s{SRDW+1}, s{WS+1}
    s_mov_b32 s{SRDW+2}, {WS_END}
    s_mov_b32 s{SRDW+3}, 0x20000
    """)
    if GM() == 1:
        a("s_barrier")
    elif GM() == 2:
        a("s_barrier")
        a(f"s_cmp_ge_u32 s{LW}, 2")
        a("s_cbranch_scc1 A_join")
        a("v_mov_b32 v48, 0")
        a("s_waitcnt vmcnt(0)")
        for i in range(16):
            a(f"v_dot2c_f32_bf16 v48, v{16+i}, v{32+i}")
        a("s_nop 3")
        for rot in (8, 4, 2, 1):
            a(f"v_add_f32_dpp v48, v48, v48 row_ror:{rot} row_mask:0xf bank_mask:0xf")
            a("s_nop 1")
        a(f"""
        v_mul_f32 v48, {f32(-LOG2E)}, v48
        v_exp_f32 v48, v48
        s_nop 0
        v_add_f32 v48, 1.0, v48
        v_rcp_f32 v48, v48
        s_lshl_b32 s41, s{MT}, 7
        s_add_u32 s41, s41, s29
        s_lshl_b32 s41, s41, 2
        s_add_u32 s41, s41, {WS_G}
        v_lshlrev_b32 v49, 2, v5
        v_and_b32 v50, 15, v1
        v_cmp_eq_u32 vcc, 0, v50
        s_and_saveexec_b64 s[58:59], vcc
        buffer_store_dword v48, v49, {WSRD}, s41 offen sc1
        s_mov_b64 exec, s[58:59]
        """)
    else:
        a(f"""
        s_nop 3
        v_mov_b32 v20, v64
        s_nop 1
        v_permlane32_swap_b32 v64, v20
        s_nop 1
        v_add_f32 v64, v64, v20
        v_mul_f32 v64, {f32(-LOG2E)}, v64
        v_exp_f32 v64, v64
        s_nop 0
        v_add_f32 v64, 1.0, v64
        v_rcp_f32 v64, v64
        s_nop 0
        v_sub_f32 v20, 1.0, v64
        s_cmp_eq_u32 s{BB}, 0
        s_cselect_b64 vcc, -1, 0
        s_nop 1
        v_cndmask_b32 v20, v20, v64, vcc
        v_and_b32 v19, 31, v1
        v_lshlrev_b32 v19, 2, v19
        s_lshl_b32 s41, s{LW}, 7
        v_add_u32 v19, s41, v19
        s_barrier
        ds_write_b32 v19, v20 offset:{GX}
        """)
    a("""
    s_branch A_join
    """)
    a.lab("A_compute")
    WM, WN = 30, 31
    a(f"""
    s_and_b32 s{WM}, s{WV}, 1
    s_lshr_b32 s{WN}, s{WV}, 1
    v_and_b32 v20, 31, v1
    v_lshrrev_b32 v21, 5, v1
    v_lshrrev_b32 v22, 1, v1
    v_and_b32 v22, 7, v22
    s_lshl_b32 s40, s{WM}, 13
    v_lshlrev_b32 v23, 7, v20
    v_add_u32 v23, s40, v23
    """)
    for ks in range(4):
        a(f"v_add_u32 v24, {2*ks}, v21")
        a(f"v_xor_b32 v24, v24, v22")
        a(f"v_lshl_add_u32 v{16+ks}, v24, 4, v23")
    a(f"""
    v_and_b32 v26, 15, v1
    v_lshrrev_b32 v27, 2, v26
    v_lshl_add_u32 v28, v21, 3, v27
    v_lshlrev_b32 v28, 7, v28
    v_and_b32 v29, 1, v5
    v_lshlrev_b32 v29, 1, v29
    v_bfe_u32 v30, v26, 1, 1
    v_add_u32 v29, v29, v30
    s_lshl_b32 s40, s{WN}, 2
    v_add_u32 v29, s40, v29
    v_bfe_u32 v30, v27, 1, 1
    v_lshlrev_b32 v30, 2, v30
    v_xor_b32 v29, v29, v30
    v_lshl_add_u32 v28, v29, 4, v28
    v_and_b32 v30, 1, v26
    v_lshl_add_u32 v25, v30, 3, v28
    """)
    ACC = 64
    XF = [32, 160]
    WF = [40, 168]
    GF = [52, 180]
    GACC = 192
    for r in range(96):
        a(f"v_mov_b32 v{ACC+r}, 0")
    if GMF():
        for r in range(16):
            a(f"v_mov_b32 v{GACC+r}, 0")
        a(f"s_mov_b32 s59, s{XCD}" if OPT["rot"] else "s_mov_b32 s59, 0")
        a(f"""
        s_lshl_b32 s40, s59, 7
        v_lshlrev_b32 v15, 4, v21
        v_add_u32 v15, {GIMG}, v15
        v_add_u32 v14, s40, v15
        s_cmp_eq_u32 s{WN}, 0
        s_cselect_b64 vcc, -1, 0
        """)
    a(f"""
    s_lshl_b32 s40, s{CG}, 2
    s_lshl_b32 s41, s{WN}, 1
    s_add_u32 s40, s40, s41
    s_lshl_b32 s40, s40, 6
    s_lshl_b32 s41, s{MT}, 2
    s_add_u32 s40, s40, s41
    s_lshl_b32 s41, s{WM}, 1
    s_add_u32 s40, s40, s41
    s_lshl_b32 s46, s40, 11
    s_add_u32 s46, s46, {WS_KV}
    s_mov_b32 s48, {f32(QSCALE)}
    v_and_b32 v11, 15, v1
    v_lshlrev_b32 v11, 4, v11
    v_lshl_add_u32 v11, v21, 9, v11
    v_bfe_u32 v12, v1, 4, 1
    v_lshl_add_u32 v13, v12, 13, v11
    v_lshl_add_u32 v11, v12, 17, v11
    v_add_u32 v11, 1024, v11
    s_add_u32 s47, s46, 131072
    s_mov_b32 s{SRDW+2}, {WS_END}
    s_mov_b32 s{SRDW+3}, 0x20000
    s_mov_b32 s57, 0
    s_mov_b32 s58, 0
    """)
    def set_addr():
        for ks in range(4):
            a(f"v_add_u32 v{20+ks}, s57, v{16+ks}")
        a("v_add_u32 v24, s57, v25")
    set_addr()
    a("s_waitcnt lgkmcnt(0)")
    a(f"s_mov_b32 s{SRDW}, s{WS}")
    a(f"s_mov_b32 s{SRDW+1}, s{WS+1}")
    if OPT.get("wpf", 0):
        a(f"""
        s_lshl_b32 s40, s2, 2
        s_add_u32 s40, s40, s{WV}
        s_and_b32 s41, s40, 511
        s_mul_i32 s41, s41, 3072
        s_cmp_lt_u32 s40, 512
        s_cselect_b32 s42, s6, s12
        s_cselect_b32 s43, s7, s13
        s_add_u32 s42, s42, s41
        s_addc_u32 s43, s43, 0
        global_load_dwordx4 v[208:211], v2, s[42:43]
        global_load_dwordx4 v[208:211], v2, s[42:43] offset:1024
        global_load_dwordx4 v[208:211], v2, s[42:43] offset:2048
        s_lshl_b32 s40, s2, 3
        s_lshl_b32 s41, s{WV}, 1
        s_add_u32 s40, s40, s41
        s_lshl_b32 s40, s40, 10
        s_add_u32 s42, s4, s40
        s_addc_u32 s43, s5, 0
        global_load_dwordx4 v[208:211], v2, s[42:43]
        global_load_dwordx4 v[208:211], v2, s[42:43] offset:1024
        """)
    a(f"""
    s_cmp_lg_u32 s{WV}, 0
    s_cbranch_scc1 A_nononce
    s_memrealtime s[40:41]
    s_waitcnt lgkmcnt(0)
    s_or_b32 s40, s40, 1
    v_mov_b32 v186, s40
    v_mov_b32 v187, 0
    v_mov_b32 v188, 0
    s_mov_b64 exec, 1
    global_atomic_cmpswap v189, v188, v[186:187], s[{DBG}:{DBG+1}] sc0
    s_mov_b64 exec, -1
    """)
    a.lab("A_nononce")
    def read_list(ks, f):
        r = []
        r.append(f"ds_read_b64_tr_b16 {vr(WF[f]+0,2)}, v24 offset:{16384+(16*ks+0)*128}")
        r.append(f"ds_read_b64_tr_b16 {vr(WF[f]+2,2)}, v24 offset:{16384+(16*ks+4)*128}")
        r.append(f"ds_read_b128 {vr(XF[f],4)}, v{20+ks} offset:0")
        r.append(f"ds_read_b128 {vr(XF[f]+4,4)}, v{20+ks} offset:4096")
        for g3 in (1, 2):
            for u in range(2):
                r.append(f"ds_read_b64_tr_b16 {vr(WF[f]+4*g3+2*u,2)}, v24 offset:{16384+g3*8192+(16*ks+4*u)*128}")
        if GMF():
            r.append(f"ds_read_b128 {vr(GF[f],4)}, v14 offset:{ks*32}")
        return r
    gl = [0]
    FW = OPT.get("finewait", 1)
    def group(f, rl, barrier=False):
        order = [(0,0),(0,1),(1,0),(1,1),(2,0),(2,1)]
        nold = 9 if GMF() else 8
        need = {0: 3, 1: 4, 2: 6, 4: 8}
        rl = list(rl)
        issued = 0
        per = OPT.get("rpg", 2)
        for i, (g3, tt) in enumerate(order):
            if FW and i in need:
                a(f"s_waitcnt lgkmcnt({min(15, nold - need[i] + issued)})")
            x = vr(XF[f]+4*tt, 4); w = vr(WF[f]+4*g3, 4); d = vr(ACC+16*(tt*3+g3), 16)
            if g3 < 2:
                a(f"v_mfma_f32_32x32x16_bf16 {d}, {w}, {x}, {d}")
            else:
                a(f"v_mfma_f32_32x32x16_bf16 {d}, {x}, {w}, {d}")
            if i == 0 and barrier:
                if PROF and OPT.get("lprof", 0):
                    a("s_memtime s[88:89]")
                a(f"s_waitcnt lgkmcnt(0)")
                a("s_barrier")
                if PROF and OPT.get("lprof", 0):
                    a("s_memtime s[86:87]")
                    a("s_waitcnt lgkmcnt(0)")
                    a("s_sub_u32 s86, s86, s88")
                    a("s_add_u32 s98, s98, s86")
            for _ in range(per):
                if rl:
                    a(rl.pop(0)); issued += 1
        if GMF():
            if FW:
                a(f"s_waitcnt lgkmcnt({min(15, issued)})")
            n = gl[0]; gl[0] += 1
            d = vr(GACC, 16)
            a(f"s_cbranch_vccz A_g{n}a")
            a(f"v_mfma_f32_32x32x16_bf16 {d}, {vr(GF[f],4)}, {vr(XF[f],4)}, {d}")
            a(f"s_branch A_g{n}b")
            a.lab(f"A_g{n}a")
            a(f"v_mfma_f32_32x32x16_bf16 {d}, {vr(GF[f],4)}, {vr(XF[f]+4,4)}, {d}")
            a.lab(f"A_g{n}b")
        for x in rl:
            a(x)
    a("s_barrier")
    stamp(a, 1)
    for x in read_list(0, 0):
        a(x)
    if PROF and OPT.get("lprof", 0):
        a("s_mov_b32 s98, 0"); a("s_mov_b32 s99, 0"); a("s_mov_b32 s100, 0")
    a.lab("A_loop")
    for ks in range(3):
        if not FW: a("s_waitcnt lgkmcnt(0)")
        group(ks & 1, read_list(ks+1, (ks+1) & 1))
    a("s_cmp_eq_u32 s58, 7")
    a("s_cbranch_scc1 A_last")
    a(f"""
    s_add_u32 s57, s57, {SLOT}
    s_cmp_ge_u32 s57, {NSLOT*SLOT}
    s_cselect_b32 s40, {NSLOT*SLOT}, 0
    s_sub_u32 s57, s57, s40
    """)
    if GMF():
        a("""
        s_add_u32 s59, s59, 1
        s_and_b32 s59, s59, 7
        s_lshl_b32 s40, s59, 7
        v_add_u32 v14, s40, v15
        """)
    set_addr()
    if not FW: a("s_waitcnt lgkmcnt(0)")
    group(1, read_list(0, 0), barrier=True)
    a("s_add_u32 s58, s58, 1")
    a("s_branch A_loop")
    a.lab("A_last")
    if not FW: a("s_waitcnt lgkmcnt(0)")
    group(1, [])
    stamp(a, 2)
    a("s_barrier")
    a(f"""
    s_lshl_b32 s40, s{WN}, 3
    s_lshl_b32 s41, s{WM}, 1
    s_add_u32 s40, s40, s41
    s_lshl_b32 s41, s40, 10
    v_add_u32 v16, s41, v2
    s_lshl_b32 s41, s40, 11
    v_add_u32 v17, s41, v2
    v_add_u32 v18, s41, v13
    s_nop 3
    """)
    a(f"""
    s_cmp_lg_u32 s{WV}, 0
    s_cbranch_scc1 A_nononce2
    s_waitcnt vmcnt(0)
    v_cmp_eq_u32 vcc, 0, v189
    s_nop 1
    v_cndmask_b32 v186, v189, v186, vcc
    v_mov_b32 v188, {RELAY}
    s_mov_b64 exec, 1
    ds_write_b64 v188, v[186:187]
    s_mov_b64 exec, -1
    """)
    a.lab("A_nononce2")
    STF = {0: ' sc1', 1: ' sc0 sc1', 2: ' sc1 nt', 3: ' sc0 sc1 nt'}[OPT.get('stf', 0)]
    for tt in range(2):
        d = ACC + 16*(tt*3+1)
        for r in range(8):
            a(f"v_cvt_pk_bf16_f32 v{d+r}, v{d+2*r}, v{d+2*r+1}")
        a(f"buffer_store_dwordx4 {vr(d,4)}, v2, {WSRD}, s46 offen offset:{tt*2048}{STF}")
        a(f"buffer_store_dwordx4 {vr(d+4,4)}, v2, {WSRD}, s47 offen offset:{tt*2048}{STF}")
        a(f"ds_write_b128 v17, {vr(d,4)} offset:{KVX+tt*2048}")
        a(f"ds_write_b128 v17, {vr(d+4,4)} offset:{KVX+tt*2048+8192}")
        d = ACC + 16*(tt*3+2)
        for r in range(8):
            a(f"v_cvt_pk_bf16_f32 v{d+r}, v{d+2*r}, v{d+2*r+1}")
        a(f"buffer_store_dwordx4 {vr(d,4)}, v11, {WSRD}, s46 offen offset:{tt*2048}{STF}")
        a(f"buffer_store_dwordx4 {vr(d+4,4)}, v11, {WSRD}, s46 offen offset:{tt*2048+256}{STF}")
        a(f"ds_write_b128 v18, {vr(d,4)} offset:{KVX+tt*2048+1024}")
        a(f"ds_write_b128 v18, {vr(d+4,4)} offset:{KVX+tt*2048+1280}")
    for tt in range(2):
        d = ACC + 16*(tt*3+0)
        for r in range(16):
            a(f"v_mul_f32 v{d+r}, s48, v{d+r}")
        for r in range(8):
            a(f"v_cvt_pk_bf16_f32 v{d+r}, v{d+2*r}, v{d+2*r+1}")
        a(f"ds_write_b128 v16, {vr(d,4)} offset:{QX+tt*1024}")
        a(f"ds_write_b128 v16, {vr(d+4,4)} offset:{QX+tt*1024+4096}")
    if GMF():
        g = GACC
        a(f"""
        v_mul_f32 v{g}, {f32(-LOG2E)}, v{g}
        v_exp_f32 v{g}, v{g}
        s_nop 0
        v_add_f32 v{g}, 1.0, v{g}
        v_rcp_f32 v{g}, v{g}
        s_nop 0
        v_sub_f32 v20, 1.0, v{g}
        s_cmp_eq_u32 s{BB}, 0
        s_cselect_b64 vcc, -1, 0
        v_and_b32 v19, 31, v1
        v_lshlrev_b32 v19, 2, v19
        v_cndmask_b32 v20, v20, v{g}, vcc
        s_lshl_b32 s41, s{WM}, 8
        s_lshl_b32 s40, s{WN}, 7
        s_add_u32 s41, s41, s40
        v_add_u32 v19, s41, v19
        ds_write_b32 v19, v20 offset:{GX}
        """)
    a.lab("A_join")
    a("s_waitcnt lgkmcnt(0)")
    a("s_barrier")
    stamp(a, 3)

def spin(a, lab, addr_v, val_v, cond):
    a("s_mov_b32 s69, 0")
    a.lab(lab)
    a(f"global_load_dword v{val_v}, v{addr_v}, s[{DBG}:{DBG+1}] sc1")
    a("s_add_u32 s69, s69, 1")
    a("s_waitcnt vmcnt(0)")
    cond()
    a(f"s_cbranch_scc1 {lab}_ok")
    a("s_cmp_lt_u32 s69, 200000")
    a(f"s_cbranch_scc1 {lab}")
    a.lab(lab + "_ok")

def phase_b(a):
    Q = [4, 8]; S = [12, 28]; O = [44, 60]; C = [76, 92]
    KB = lambda s, u: 108 + s*16 + u*4
    VB = lambda s, u: 140 + s*32 + u*8
    G = [204, 205]; T0 = 206; T1 = 207; T2 = 208
    H4, QH, PAIR, QT = 30, 31, 32, 33
    a(f"""
    s_lshr_b32 s{H4}, s{WV}, 1
    s_and_b32 s{QH}, s{WV}, 1
    s_lshl_b32 s{PAIR}, s{CG}, 2
    s_add_u32 s{PAIR}, s{PAIR}, s{H4}
    s_lshl_b32 s{QT}, s{MT}, 2
    s_lshl_b32 s40, s{QH}, 1
    s_add_u32 s{QT}, s{QT}, s40
    s_lshl_b32 s46, s{PAIR}, 17
    s_add_u32 s46, s46, {WS_KV}
    s_lshl_b32 s40, s{H4}, 12
    s_lshl_b32 s41, s{QH}, 11
    s_add_u32 s40, s40, s41
    v_add_u32 v{T0}, s40, v2
    ds_read_b128 {vr(Q[0],4)}, v{T0} offset:{QX}
    ds_read_b128 {vr(Q[1],4)}, v{T0} offset:{QX+1024}
    v_and_b32 v{T1}, 31, v1
    v_lshlrev_b32 v{T1}, 2, v{T1}
    s_lshl_b32 s41, s{QH}, 8
    v_add_u32 v{T1}, s41, v{T1}
    """)
    if GM() != 2:
        a(f"ds_read_b32 v{G[0]}, v{T1} offset:{GX}")
        a(f"ds_read_b32 v{G[1]}, v{T1} offset:{GX+128}")
    a(f"""
    v_and_b32 v{T0}, 27, v1
    v_cmp_eq_u32 vcc, 16, v{T0}
    v_mov_b32 v{T1}, 0x3f803f80
    s_nop 0
    v_cndmask_b32 v{T0}, 0, v{T1}, vcc
    """)
    for r in range(64):
        a(f"v_mov_b32 v{VB(0,0)+r}, v{T0}")
    a(f"""
    s_mov_b32 s52, 0x0000ffff
    s_mov_b32 s53, 0x0000ffff
    s_lshl_b32 s40, s{H4}, 13
    v_add_u32 v{T0}, s40, v2
    """)
    for u in range(4):
        a(f"ds_read_b128 {vr(KB(0,u),4)}, v{T0} offset:{KVX+u*2048}")
    a("s_mov_b64 exec, s[52:53]")
    for u in range(4):
        a(f"ds_read_b128 {vr(VB(0,u),4)}, v{T0} offset:{KVX+u*2048+1024}")
        a(f"ds_read_b128 {vr(VB(0,u)+4,4)}, v{T0} offset:{KVX+u*2048+1280}")
    a("s_mov_b64 exec, -1")
    a(f"v_mov_b32 v{T2}, {RELAY}")
    a(f"ds_read_b32 v{T2+1}, v{T2}")
    a("s_waitcnt lgkmcnt(0)")
    a(f"v_readfirstlane_b32 s{NONCE}, v{T2+1}")
    a("s_barrier")
    stamp(a, 4)
    c_prefetch_setup(a)
    a("s_mov_b32 s49, 0")
    a("s_mov_b32 s50, 0")
    a("s_mov_b32 s54, 0")
    a(f"s_lshl_b32 s45, 1, s{MT}")
    if OPT.get("nodep", 0):
        a("s_mov_b32 s45, 0xffff")
        a("s_mov_b32 s49, 1")
    if OPT["prio"]:
        a("s_setprio 3")
    for x in range(2):
        a(f"v_mfma_f32_32x32x16_bf16 {vr(S[x],16)}, {vr(KB(0,0),4)}, {vr(Q[x],4)}, 0")
    a("s_nop 7")
    a("s_nop 7")
    MX = [T0, T1]
    for x in range(2):
        a(f"v_max3_f32 v{MX[x]}, v{S[x]}, v{S[x]+1}, v{S[x]+2}")
        for r in range(3, 15, 2):
            a(f"v_max3_f32 v{MX[x]}, v{MX[x]}, v{S[x]+r}, v{S[x]+r+1}")
        a(f"v_max_f32 v{MX[x]}, v{MX[x]}, v{S[x]+15}")
    a.lab("B_setmax")
    for x in range(2):
        a(f"""
        v_mov_b32 v{T2}, v{MX[x]}
        s_nop 1
        v_permlane32_swap_b32 v{MX[x]}, v{T2}
        s_nop 1
        v_max_f32 v{MX[x]}, v{MX[x]}, v{T2}
        """)
        for r in range(16):
            a(f"v_sub_f32 v{C[x]+r}, 0, v{MX[x]}")
        for r in range(16):
            a(f"v_mov_b32 v{O[x]+r}, 0")
    a(f"v_mfma_f32_32x32x16_bf16 {vr(S[0],16)}, {vr(KB(0,0),4)}, {vr(Q[0],4)}, {vr(C[0],16)}")
    a(f"s_mov_b32 s44, s{MT}")
    a("s_mov_b32 s55, 0")
    a("s_nop 7")
    def ex(b, lo, hi):
        for r in range(lo, hi):
            a(f"v_exp_f32 v{b+r}, v{b+r}")
    def cv(b, h):
        for r in range(4):
            a(f"v_cvt_pk_bf16_f32 v{b+4*h+r}, v{b+8*h+2*r}, v{b+8*h+2*r+1}")
    def pv(x, vb, h):
        a(f"v_mfma_f32_32x32x16_bf16 {vr(O[x],16)}, {vr(vb+4*h,4)}, {vr(S[x]+4*h,4)}, {vr(O[x],16)}")
    def pf_head(tag):
        if tag == 0:
            a("s_cmp_eq_u32 s49, 0")
            a("s_cbranch_scc1 B_first")
            a.lab("B_first_ret")
        a(f"""
        s_add_u32 s44, s44, 1
        s_and_b32 s44, s44, 15
        s_bitcmp1_b32 s45, s44
        s_cbranch_scc0 B_poll{tag}
        """)
        a.lab(f"B_pf{tag}")
        a(f"""
        s_lshl_b32 s47, s44, 13
        s_add_u32 s47, s47, s46
        s_add_u32 s48, s47, 4096
        """)
    def ldk(s, u):
        so = 47 if u < 2 else 48
        a(f"buffer_load_dwordx4 {vr(KB(s,u),4)}, v2, {WSRD}, s{so} offen offset:{(u&1)*2048} sc1")
    def ldv(s, u):
        so = 47 if u < 2 else 48
        a("s_mov_b64 exec, s[52:53]")
        a(f"buffer_load_dwordx4 {vr(VB(s,u),4)}, v2, {WSRD}, s{so} offen offset:{(u&1)*2048+1024} sc1")
        a(f"buffer_load_dwordx4 {vr(VB(s,u)+4,4)}, v2, {WSRD}, s{so} offen offset:{(u&1)*2048+1280} sc1")
        a("s_mov_b64 exec, -1")
    a.lab("B_loop")
    D = OPT.get("D", 4)
    for s in range(2):
        for u in range(4):
            vb = VB(s, u)
            kn = KB(s, u+1) if u < 3 else KB(1-s, 0)
            qs, qu = (s, u + D) if u + D < 4 else (1 - s, u + D - 4)
            if OPT["prio"] == 2 and s == 1 and u == 0:
                a("s_cmp_lg_u32 s55, 7")
                a("s_cbranch_scc1 B_pm")
                a("s_setprio 0")
                a.lab("B_pm")
            a(f"v_mfma_f32_32x32x16_bf16 {vr(S[1],16)}, {vr(KB(s,u),4)}, {vr(Q[1],4)}, {vr(C[1],16)}")
            if qu == 0:
                pf_head(s)
            guard = (s == 0 and qs == s)
            if guard:
                a("s_cmp_eq_u32 s49, 0")
                a(f"s_cbranch_scc1 B_gk{u}")
            ldk(qs, qu)
            if guard:
                a.lab(f"B_gk{u}")
            ex(S[0], 0, 8)
            cv(S[0], 0)
            ex(S[0], 8, 16)
            a(f"s_waitcnt vmcnt({3*(D-1)+1})")
            pv(0, vb, 0)
            cv(S[0], 1)
            ex(S[1], 0, 2)
            pv(0, vb, 1)
            ex(S[1], 2, 8)
            a(f"s_waitcnt vmcnt({3*D-3})")
            a(f"v_mfma_f32_32x32x16_bf16 {vr(S[0],16)}, {vr(kn,4)}, {vr(Q[0],4)}, {vr(C[0],16)}")
            cv(S[1], 0)
            ex(S[1], 8, 16)
            pv(1, vb, 0)
            cv(S[1], 1)
            if guard:
                a("s_cmp_eq_u32 s49, 0")
                a(f"s_cbranch_scc1 B_gv{u}")
            ldv(qs, qu)
            if guard:
                a.lab(f"B_gv{u}")
            if u == 3 and s == 1:
                a("s_cmp_lt_u32 s50, 4")
                a("s_cbranch_scc1 B_wo")
                a.lab("B_wo_ret")
            pv(1, vb, 1)
    a("s_add_u32 s55, s55, 1")
    if OPT["prio"] == 1:
        a("""
        s_and_b32 s40, s55, 1
        s_cbranch_scc1 B_noprio
        s_cmp_eq_u32 s55, 2
        s_cbranch_scc0 B_p1
        s_setprio 2
        """)
        a.lab("B_p1")
        a("s_cmp_eq_u32 s55, 4")
        a("s_cbranch_scc0 B_p2")
        a("s_setprio 1")
        a.lab("B_p2")
        a("s_cmp_eq_u32 s55, 6")
        a("s_cbranch_scc0 B_noprio")
        a("s_setprio 0")
        a.lab("B_noprio")
    if OPT["prio"] == 2:
        a("s_cmp_lt_u32 s55, 6")
        a("s_cbranch_scc1 B_noprio")
        a("s_setprio 2")
        a("s_cmp_eq_u32 s55, 6")
        a("s_cbranch_scc1 B_noprio")
        a("s_setprio 1")
        a.lab("B_noprio")
    a("s_cmp_ge_u32 s55, 5")
    a("s_cbranch_scc1 B_wobar")
    a.lab("B_wobar_ret")
    if PROF and OPT.get("lstamp", 0):
        a("s_cmp_eq_u32 s55, 1")
        a("s_cbranch_scc0 B_ls1")
        stamp(a, 9)
        a.lab("B_ls1")
        a(f"s_cmp_eq_u32 s55, {OPT.get('ls2', 4)}")
        a("s_cbranch_scc0 B_ls2")
        stamp(a, 10)
        a.lab("B_ls2")
    a("s_cmp_lt_u32 s55, 8")
    a("s_cbranch_scc1 B_loop")
    stamp(a, 6)
    a("s_nop 7")
    a("s_nop 7")
    a("s_cmp_lg_u32 s54, 0")
    a("s_cbranch_scc1 B_fin")
    a(f"v_mov_b32 v{T0}, 0")
    a(f"v_mov_b32 v{T1}, 0")
    for x in range(2):
        o = O[x]
        for r in range(0, 8, 2):
            a(f"v_max3_f32 v{T0}, v{T0}, |v{o+r}|, |v{o+r+1}|")
        a(f"v_max_f32 v{T0}, v{T0}, v{o+8}")
        for r in range(8):
            a(f"v_add_f32 v{T1}, v{T1}, v{o+r}")
    a(f"""
    v_mul_f32 v{T1}, 0, v{T1}
    v_add_f32 v{T0}, v{T0}, v{T1}
    s_mov_b32 s57, {f32(2.0**100)}
    v_cmp_gt_f32 vcc, s57, v{T0}
    s_cmp_eq_u64 vcc, exec
    s_cbranch_scc1 B_fin
    """)
    a(f"""
    s_mov_b32 s54, 1
    v_mov_b32 v{T0}, {f32(-3.0e38)}
    v_mov_b32 v{T1}, {f32(-3.0e38)}
    s_mov_b32 s47, s46
    s_mov_b32 s55, 0
    s_waitcnt vmcnt(0)
    """)
    a.lab("B_maxloop")
    a(f"buffer_load_dwordx4 {vr(KB(1,0),4)}, v2, {WSRD}, s47 offen sc1")
    a("s_waitcnt vmcnt(0)")
    for x in range(2):
        a(f"v_mfma_f32_32x32x16_bf16 {vr(S[x],16)}, {vr(KB(1,0),4)}, {vr(Q[x],4)}, 0")
    a("s_nop 7")
    a("s_nop 7")
    for x in range(2):
        for r in range(0, 16, 2):
            a(f"v_max3_f32 v{MX[x]}, v{MX[x]}, v{S[x]+r}, v{S[x]+r+1}")
    a("s_add_u32 s47, s47, 2048")
    a("s_add_u32 s55, s55, 1")
    a("s_cmp_lt_u32 s55, 64")
    a("s_cbranch_scc1 B_maxloop")
    a("s_branch B_setmax")
    a.lab("B_first")
    a("s_waitcnt vmcnt(0)")
    a("s_barrier")
    stamp(a, 5)
    a("s_mov_b32 s49, 1")
    a(f"""
    s_cmp_lg_u32 s{WV}, 0
    s_cbranch_scc1 B_first_ret
    s_lshl_b32 s40, s{CG}, 7
    s_lshl_b32 s41, s{MT}, 2
    s_add_u32 s40, s40, s41
    s_add_u32 s40, s40, {WS_F}
    v_mov_b32 v{T2}, 0
    v_mov_b32 v{T2+1}, s{NONCE}
    s_mov_b64 exec, 1
    buffer_store_dword v{T2+1}, v{T2}, {WSRD}, s40 offen sc1
    s_lshl_b32 s40, s{MT}, 7
    s_lshl_b32 s41, s{CG}, 2
    s_add_u32 s40, s40, s41
    s_add_u32 s40, s40, {WS_GF}
    buffer_store_dword v{T2+1}, v{T2}, {WSRD}, s40 offen sc1
    s_mov_b64 exec, -1
    s_branch B_first_ret
    """)
    a.lab("B_wobar")
    a("s_cmp_lg_u32 s54, 0")
    a("s_cbranch_scc1 B_wobar_ret")
    a("s_cmp_eq_u32 s55, 6")
    a("s_cbranch_scc1 B_wobar6")
    if GM() == 2:
        a("s_cmp_lg_u32 s55, 5")
        a("s_cbranch_scc1 B_wobar_ret")
        a(f"s_cmp_lg_u32 s{WV}, 0")
        a("s_cbranch_scc1 B_wobar_ret")
        a(f"""
        s_lshl_b32 s40, s{MT}, 7
        s_add_u32 s40, s40, {WS_GF}
        v_lshlrev_b32 v{T2}, 2, v1
        s_mov_b32 s69, 0
        """)
        a.lab("B_gpoll")
        a(f"""
        s_mov_b64 exec, 0xffff
        buffer_load_dword v{T2+1}, v{T2}, {WSRD}, s40 offen sc1
        s_add_u32 s69, s69, 1
        s_waitcnt vmcnt(0)
        v_cmp_eq_u32 vcc, s{NONCE}, v{T2+1}
        s_mov_b64 exec, -1
        s_cmp_eq_u32 vcc_lo, 0xffff
        s_cbranch_scc1 B_wobar_ret
        s_cmp_lt_u32 s69, 200000
        s_cbranch_scc1 B_gpoll
        """)
    a("s_branch B_wobar_ret")
    a.lab("B_wobar6")
    a("s_barrier")
    if GM() == 2:
        a(f"""
        s_lshl_b32 s40, s{QT}, 7
        s_add_u32 s40, s40, {WS_G}
        v_and_b32 v{T2}, 31, v1
        v_lshlrev_b32 v{T2}, 2, v{T2}
        buffer_load_dword v{G[0]}, v{T2}, {WSRD}, s40 offen sc1
        buffer_load_dword v{G[1]}, v{T2}, {WSRD}, s40 offen offset:128 sc1
        """)
    a("s_branch B_wobar_ret")
    a.lab("B_wo")
    for i in range(4):
        a(f"s_add_u32 m0, s58, {i*1024}")
        a(f"s_add_u32 s51, s59, {i*8192}")
        a(f"buffer_load_dwordx4 v212, s[60:63], s51 offen lds")
    a("s_add_u32 s58, s58, 4096")
    a("s_add_u32 s59, s59, 32768")
    a("s_add_u32 s50, s50, 1")
    a("s_branch B_wo_ret")
    for sset in range(2):
        a.lab(f"B_poll{sset}")
        a("s_mov_b32 s69, 0")
        a(f"s_cmp_lg_u32 s{WV}, 0")
        a(f"s_cbranch_scc1 B_lp{sset}")
        a(f"""
        s_lshl_b32 s40, s{CG}, 7
        s_add_u32 s40, s40, {WS_F}
        v_lshlrev_b32 v{T2}, 2, v1
        """)
        a.lab(f"B_gp{sset}")
        a(f"""
        s_mov_b64 exec, 0xffff
        buffer_load_dword v{T2+1}, v{T2}, {WSRD}, s40 offen sc1
        s_add_u32 s69, s69, 1
        s_waitcnt vmcnt(0)
        v_cmp_eq_u32 vcc, s{NONCE}, v{T2+1}
        s_mov_b64 exec, -1
        s_or_b32 s45, s45, vcc_lo
        s_bitcmp1_b32 s45, s44
        s_cbranch_scc1 B_gok{sset}
        s_cmp_lt_u32 s69, 200000
        s_cbranch_scc1 B_gp{sset}
        """)
        a.lab(f"B_gok{sset}")
        a(f"""
        v_mov_b32 v{T2}, {RELAY+4}
        v_mov_b32 v{T2+1}, s45
        ds_write_b32 v{T2}, v{T2+1}
        s_branch B_pf{sset}
        """)
        a.lab(f"B_lp{sset}")
        a(f"v_mov_b32 v{T2}, {RELAY+4}")
        a.lab(f"B_lpl{sset}")
        a(f"""
        ds_read_b32 v{T2+1}, v{T2}
        s_add_u32 s69, s69, 1
        s_waitcnt lgkmcnt(0)
        v_readfirstlane_b32 s40, v{T2+1}
        s_nop 3
        s_or_b32 s45, s45, s40
        s_bitcmp1_b32 s45, s44
        s_cbranch_scc1 B_pf{sset}
        s_cmp_lt_u32 s69, 4000000
        s_cbranch_scc1 B_lpl{sset}
        s_branch B_pf{sset}
        """)
    a.lab("B_fin")
    if GM() == 2:
        a("s_waitcnt vmcnt(0)")
        a(f"s_cmp_eq_u32 s{BB}, 0")
        a("s_cbranch_scc1 B_fin2")
        a(f"v_sub_f32 v{G[0]}, 1.0, v{G[0]}")
        a(f"v_sub_f32 v{G[1]}, 1.0, v{G[1]}")
        a.lab("B_fin2")
    for x in range(2):
        o = O[x]
        a(f"v_rcp_f32 v{T0}, v{o+8}")
        a("s_nop 0")
        a(f"v_mul_f32 v{T0}, v{T0}, v{G[x]}")
        for r in range(8):
            a(f"v_mul_f32 v{o+r}, v{o+r}, v{T0}")
        for r in range(4):
            a(f"v_cvt_pk_bf16_f32 v{o+r}, v{o+2*r}, v{o+2*r+1}")
    a(f"""
    s_lshl_b32 s40, s{QT}, 6
    s_add_u32 s40, s40, s{PAIR}
    s_lshl_b32 s40, s40, 10
    s_add_u32 s40, s40, {WS_O}
    s_add_u32 s41, s40, 65536
    buffer_store_dwordx4 {vr(O[0],4)}, v2, {WSRD}, s40 offen sc1
    buffer_store_dwordx4 {vr(O[1],4)}, v2, {WSRD}, s41 offen sc1
    """)
    if OPT.get("oflag", 0):
        a(f"""
        s_lshl_b32 s40, s{MT}, 9
        s_lshl_b32 s41, s{QH}, 8
        s_add_u32 s40, s40, s41
        s_lshl_b32 s41, s{CG}, 4
        s_add_u32 s40, s40, s41
        s_lshl_b32 s41, s{H4}, 2
        s_add_u32 s40, s40, s41
        s_add_u32 s40, s40, {WS_F+2048}
        v_mov_b32 v4, 0
        v_mov_b32 v5, s{NONCE}
        s_waitcnt vmcnt(0)
        s_mov_b64 exec, 1
        buffer_store_dword v5, v4, {WSRD}, s40 offen sc1
        s_mov_b64 exec, -1
        """)
        stamp(a, 7)
    else:
        a("s_waitcnt vmcnt(0)")
        a("s_barrier")
        stamp(a, 7)
        a(f"""
        s_cmp_lg_u32 s{WV}, 0
        s_cbranch_scc1 B_opub_done
        s_lshl_b32 s40, s{MT}, 9
        s_lshl_b32 s41, s{CG}, 2
        s_add_u32 s40, s40, s41
        s_add_u32 s40, s40, {WS_F+2048}
        v_mov_b32 v4, 0
        v_mov_b32 v5, s{NONCE}
        s_mov_b64 exec, 1
        buffer_store_dword v5, v4, {WSRD}, s40 offen sc1
        s_mov_b64 exec, -1
        """)
    a.lab("B_opub_done")

def c_prefetch_setup(a):
    a(f"""
    v_lshrrev_b32 v212, 3, v1
    v_and_b32 v213, 7, v1
    v_bfe_u32 v214, v1, 4, 1
    v_lshlrev_b32 v214, 2, v214
    v_xor_b32 v214, v213, v214
    v_lshlrev_b32 v214, 4, v214
    v_lshl_add_u32 v212, v212, 10, v214
    s_cmp_lt_u32 s{WV}, 4
    s_cselect_b32 s60, s8, s14
    s_cselect_b32 s61, s9, s15
    s_and_b32 s56, s{WV}, 3
    s_lshl_b32 s56, s56, 17
    s_and_b32 s57, s{CG}, 7
    s_lshl_b32 s57, s57, 7
    s_add_u32 s56, s56, s57
    s_add_u32 s60, s60, s56
    s_addc_u32 s61, s61, 0
    s_sub_u32 s62, 524288, s56
    s_mov_b32 s63, 0x20000
    s_lshl_b32 s58, s{WV}, 14
    s_mov_b32 s59, 0
    """)

def phase_c(a):
    MT64, NT, KQ, TT = 30, 31, 32, 33
    OF = 64
    ACC = 128
    a(f"""
    s_lshl_b32 s{MT64}, s{MT}, 1
    s_lshr_b32 s40, s{CG}, 3
    s_add_u32 s{MT64}, s{MT64}, s40
    s_and_b32 s{NT}, s{CG}, 7
    s_lshr_b32 s{KQ}, s{WV}, 1
    s_and_b32 s{TT}, s{WV}, 1
    v_lshrrev_b32 v5, 4, v1
    s_lshl_b32 s44, s{MT}, 9
    s_lshr_b32 s40, s{CG}, 3
    s_lshl_b32 s40, s40, 8
    s_add_u32 s44, s44, s40
    s_lshl_b32 s40, s{KQ}, 6
    s_add_u32 s44, s44, s40
    s_add_u32 s44, s44, {WS_F+2048}
    v_lshlrev_b32 v6, 2, v1
    s_mov_b32 s47, 0
    s_lshl_b32 s45, s{MT64}, 1
    s_add_u32 s45, s45, s{TT}
    s_lshl_b32 s45, s45, 6
    s_lshl_b32 s46, s{KQ}, 4
    s_add_u32 s45, s45, s46
    s_lshl_b32 s45, s45, 10
    s_add_u32 s45, s45, {WS_O}
    """)
    if OPT.get("oflag", 0):
        for g in range(4):
            m = 0xf << (4*g)
            a(f"s_and_b32 s40, s47, {m}")
            a(f"s_cmp_eq_u32 s40, {m}")
            a(f"s_cbranch_scc1 C_rdy{g}")
            a("s_mov_b32 s69, 0")
            a.lab(f"C_poll{g}")
            a(f"""
            s_mov_b64 exec, 0xffff
            buffer_load_dword v7, v6, {WSRD}, s44 offen sc1
            s_add_u32 s69, s69, 1
            s_waitcnt vmcnt(0)
            v_cmp_eq_u32 vcc, s{NONCE}, v7
            s_mov_b64 exec, -1
            s_mov_b32 s47, vcc_lo
            s_and_b32 s40, s47, {m}
            s_cmp_eq_u32 s40, {m}
            s_cbranch_scc1 C_rdy{g}
            s_sleep {OPT.get("sleep", 4)}
            s_cmp_lt_u32 s69, 200000
            s_cbranch_scc1 C_poll{g}
            """)
            a.lab(f"C_rdy{g}")
            if g == 3:
                stamp(a, 8)
            for i in range(4*g, 4*g+4):
                a(f"buffer_load_dwordx4 {vr(OF+4*i,4)}, v2, {WSRD}, s45 offen offset:{(i%4)*1024} sc1")
            if g < 3:
                a("s_add_u32 s45, s45, 4096")
    else:
        a(f"""
        s_lshl_b32 s44, s{MT}, 9
        s_add_u32 s44, s44, {WS_F+2048}
        s_cmp_lg_u32 s{WV}, 0
        s_cbranch_scc1 C_wait_done
        s_mov_b32 s69, 0
        """)
        a.lab("C_poll")
        a(f"""
        s_mov_b64 exec, 0xffff
        buffer_load_dword v7, v6, {WSRD}, s44 offen sc1
        s_add_u32 s69, s69, 1
        s_waitcnt vmcnt(0)
        v_cmp_eq_u32 vcc, s{NONCE}, v7
        s_mov_b64 exec, -1
        s_cmp_eq_u32 vcc_lo, 0xffff
        s_cbranch_scc1 C_wait_done
        s_cmp_lt_u32 s69, 200000
        s_cbranch_scc1 C_poll
        """)
        a.lab("C_wait_done")
        a("s_barrier")
        stamp(a, 8)
        for i in range(16):
            if i and i % 4 == 0:
                a("s_add_u32 s45, s45, 4096")
            a(f"buffer_load_dwordx4 {vr(OF+4*i,4)}, v2, {WSRD}, s45 offen offset:{(i%4)*1024} sc1")
    a(f"""
    v_lshrrev_b32 v21, 5, v1
    v_and_b32 v26, 15, v1
    v_lshrrev_b32 v27, 2, v26
    v_lshl_add_u32 v28, v21, 2, v27
    v_lshlrev_b32 v28, 7, v28
    v_and_b32 v29, 1, v5
    v_lshlrev_b32 v29, 1, v29
    v_bfe_u32 v30, v26, 1, 1
    v_add_u32 v29, v29, v30
    v_bfe_u32 v30, v27, 1, 1
    v_lshlrev_b32 v30, 2, v30
    v_xor_b32 v29, v29, v30
    v_lshl_add_u32 v28, v29, 4, v28
    v_and_b32 v30, 1, v26
    v_lshl_add_u32 v28, v30, 3, v28
    s_lshl_b32 s40, s{KQ}, 15
    v_add_u32 v20, s40, v28
    v_xor_b32 v21, 64, v20
    """)
    WFR = [32, 40]
    def rd(i):
        f = WFR[i & 1]
        return [f"ds_read_b64_tr_b16 {vr(f+4*ct+2*u,2)}, v{20+ct} offset:{(16*i+8*u)*128}" for ct in range(2) for u in range(2)]
    for x in rd(0):
        a(x)
    for i in range(16):
        nxt = rd(i+1) if i < 15 else []
        a(f"s_waitcnt vmcnt({15-i}) lgkmcnt(0)")
        f = WFR[i & 1]
        for ct in range(2):
            d = vr(ACC+16*ct, 16)
            c = "0" if i == 0 else d
            a(f"v_mfma_f32_32x32x16_bf16 {d}, {vr(f+4*ct,4)}, {vr(OF+4*i,4)}, {c}")
            for x in nxt[2*ct:2*ct+2]:
                a(x)
    if not OPT.get('lstamp', 0): stamp(a, 9)
    a("s_barrier")
    a(f"""
    v_and_b32 v22, 31, v1
    v_lshrrev_b32 v23, 5, v1
    v_and_b32 v24, 7, v22
    v_lshlrev_b32 v25, 8, v22
    s_lshl_b32 s40, s{KQ}, 14
    s_lshl_b32 s41, s{TT}, 13
    s_add_u32 s40, s40, s41
    v_add_u32 v25, s40, v25
    s_nop 7
    s_nop 7
    """)
    for ct in range(2):
        for q4 in range(4):
            a(f"v_add_u32 v26, {ct*8+2*q4}, v23")
            a(f"v_xor_b32 v26, v26, v24")
            a(f"v_lshl_add_u32 v26, v26, 4, v25")
            a(f"ds_write_b128 v26, {vr(ACC+16*ct+4*q4,4)}")
    a("s_waitcnt lgkmcnt(0)")
    a("s_barrier")
    a("""
    v_lshrrev_b32 v22, 3, v0
    v_and_b32 v23, 7, v0
    v_and_b32 v24, 7, v22
    v_lshlrev_b32 v25, 8, v22
    v_lshlrev_b32 v27, 1, v23
    """)
    for c in range(2):
        a(f"v_add_u32 v26, {c}, v27")
        a(f"v_xor_b32 v26, v26, v24")
        a(f"v_lshl_add_u32 v26, v26, 4, v25")
        for k in range(4):
            a(f"ds_read_b128 {vr(64+k*8+c*4,4)}, v26 offset:{k*16384}")
    a(f"""
    s_mov_b32 s60, s18
    s_mov_b32 s61, s19
    s_mov_b32 s62, 2097152
    s_mov_b32 s63, 0x20000
    v_lshlrev_b32 v22, 10, v22
    v_lshl_add_u32 v22, v23, 4, v22
    s_lshl_b32 s40, s{MT64}, 16
    s_lshl_b32 s41, s{NT}, 7
    s_add_u32 s40, s40, s41
    s_waitcnt lgkmcnt(0)
    """)
    for r in range(8):
        a(f"v_add_f32 v{64+r}, v{64+r}, v{72+r}")
        a(f"v_add_f32 v{80+r}, v{80+r}, v{88+r}")
    for r in range(8):
        a(f"v_add_f32 v{64+r}, v{64+r}, v{80+r}")
    for r in range(4):
        a(f"v_cvt_pk_bf16_f32 v{64+r}, v{64+2*r}, v{64+2*r+1}")
    a("buffer_store_dwordx4 v[64:67], v22, s[60:63], s40 offen")
    if not OPT.get("lstamp", 0): stamp(a, 10)

HEAD = open("cdna_kernels/%s.s.ref" % NAME).read().split("; Override")[0]

def main(out):
    a = A()
    gen(a)
    s = HEAD
    s += "; @launch grid=(256,1,1) block=(512,1,1) lds=163840\n"
    s += '.amdgcn_target "amdgcn-amd-amdhsa--gfx950"\n'
    s += a.text()
    s += f""".section .rodata,"a"
.p2align 6
.amdhsa_kernel {KNAME}
  .amdhsa_next_free_vgpr 256
  .amdhsa_next_free_sgpr 102
  .amdhsa_accum_offset 256
  .amdhsa_group_segment_fixed_size 0
  .amdhsa_kernarg_size 80
  .amdhsa_user_sgpr_count 2
  .amdhsa_user_sgpr_kernarg_segment_ptr 1
  .amdhsa_system_sgpr_workgroup_id_x 1
.end_amdhsa_kernel
"""
    open(out, "w").write(s)

if __name__ == "__main__":
    if "--prof" in sys.argv:
        PROF = True
        sys.argv.remove("--prof")
    for x in list(sys.argv):
        if x.startswith("--") and "=" in x:
            k, v = x[2:].split("=")
            OPT[k] = int(v)
            sys.argv.remove(x)
    set_nslot(OPT.get("nslot", 3))
    main(sys.argv[1] if len(sys.argv) > 1 else "fused3.s")
```

```python
import sys, struct

NAME = "gated_mix__mha_block__mha_block__prompt"
KNAME = NAME + "_kernel"
WS_KV = 4 << 20
WS_O = 12 << 20
WS_F = 16 << 20
WS_GF = WS_F + 2048 + 8192
WS_G = WS_GF + 2048
WS_END = WS_G + 8192
RELAY = 160000
NONCE = 68
WS_T = 32 << 20
QSCALE = 0.25 * 1.4426950408889634
LOG2E = 1.4426950408889634
PROF = False
OPT = dict(prio=1, rot=1, pfu=0)
NST = 12
SB = 70

def f32(x):
    return "0x%08x" % struct.unpack("<I", struct.pack("<f", x))[0]

class A:
    def __init__(self):
        self.l = []
    def __call__(self, s):
        for x in s.strip().split("\n"):
            if x.strip():
                self.l.append("  " + x.strip())
    def lab(self, s):
        self.l.append(s + ":")
    def raw(self, s):
        self.l.append(s)
    def text(self):
        return "\n".join(self.l) + "\n"

def vr(b, n):
    return f"v[{b}:{b+n-1}]"
def u32(x):
    return x & 0xffffffff

def GM():
    return OPT.get('gm', 2)
def GMF():
    return GM() == 1
def stamp(a, k):
    if PROF:
        a(f"s_memtime s[{SB+2*k}:{SB+2*k+1}]")

WV = 3
XCD, SLOT_ = 24, 25
CG, MT, BB, HG = 26, 27, 28, 29
SRDW = 36
DBG = 20
WS = 22
WSRD = f"s[{SRDW}:{SRDW+3}]"

def gen(a):
    a.raw(".text")
    a.raw(f".globl {KNAME}")
    a.raw(".p2align 8")
    a.raw(f".type {KNAME},@function")
    a.lab(KNAME)
    a("s_cmp_ge_u32 s2, 256")
    a("s_cbranch_scc1 L_end")
    if PROF:
        a(f"s_memrealtime s[{SB+2*NST}:{SB+2*NST+1}]")
        stamp(a, 0)
    a(f"""
    s_load_dwordx4 s[4:7], s[0:1], 0
    s_load_dwordx2 s[8:9], s[0:1], 16
    s_load_dwordx4 s[12:15], s[0:1], 32
    s_load_dwordx4 s[16:19], s[0:1], 48
    s_load_dwordx4 s[20:23], s[0:1], 64
    v_lshrrev_b32 v2, 6, v0
    v_and_b32 v1, 63, v0
    s_and_b32 s{XCD}, s2, 7
    s_lshr_b32 s{SLOT_}, s2, 3
    v_readfirstlane_b32 s{WV}, v2
    v_lshlrev_b32 v2, 4, v1
    s_lshr_b32 s40, s{XCD}, 1
    s_lshl_b32 s40, s40, 2
    s_and_b32 s41, s{SLOT_}, 3
    s_add_u32 s{CG}, s40, s41
    s_lshr_b32 s{BB}, s{CG}, 3
    s_and_b32 s{HG}, s{CG}, 7
    s_and_b32 s{MT}, s{XCD}, 1
    s_lshl_b32 s{MT}, s{MT}, 3
    s_lshr_b32 s41, s{SLOT_}, 2
    s_add_u32 s{MT}, s{MT}, s41
    """)
    if OPT.get("diag", 0):
        a("s_memrealtime s[94:95]")
        a("s_memtime s[96:97]")
    phase_a(a)
    phase_b(a)
    phase_c(a)
    if OPT.get("diag", 0):
        a(f"""
        s_waitcnt vmcnt(0)
        s_memrealtime s[90:91]
        s_memtime s[92:93]
        s_waitcnt lgkmcnt(0)
        s_sub_u32 s92, s92, s96
        s_not_b32 s94, s94
        s_and_b32 s91, s2, 15
        s_or_b32 s91, s91, s{WV}
        s_cmp_lg_u32 s91, 0
        s_cbranch_scc1 L_end
        s_mov_b64 exec, 1
        v_mov_b32 v4, 16
        v_mov_b32 v5, s92
        global_atomic_umax v4, v5, s[{DBG}:{DBG+1}]
        v_mov_b32 v4, 20
        v_mov_b32 v5, s90
        global_atomic_umax v4, v5, s[{DBG}:{DBG+1}]
        v_mov_b32 v4, 24
        v_mov_b32 v5, s94
        global_atomic_umax v4, v5, s[{DBG}:{DBG+1}]
        s_mov_b64 exec, -1
        """)
    if PROF:
        a("s_waitcnt vmcnt(0)")
        a(f"s_memrealtime s[{SB+2*NST+2}:{SB+2*NST+3}]")
        stamp(a, NST-1)
        a("s_waitcnt lgkmcnt(0)")
        if OPT.get("lprof", 0):
            for k, r in ((8, 98), (9, 99), (10, 100)):
                a(f"s_add_u32 s{SB+2*k}, s{SB}, s{r}")
                a(f"s_addc_u32 s{SB+2*k+1}, s{SB+1}, 0")
            a.lab("L_nolp")
        a(f"""
        s_lshl_b32 s40, s2, 4
        s_add_u32 s40, s40, s{WV}
        s_lshl_b32 s40, s40, 7
        s_add_u32 s40, s40, {WS_T}
        s_add_u32 s40, s{WS}, s40
        s_addc_u32 s41, s{WS+1}, 0
        s_mov_b64 exec, 1
        v_mov_b32 v4, 0
        """)
        for k in range(NST+2):
            a(f"v_mov_b32 v6, s{SB+2*k}")
            a(f"v_mov_b32 v7, s{SB+2*k+1}")
            a(f"global_store_dwordx2 v4, v[6:7], s[40:41] offset:{8*k}")
            a("s_nop 1")
    a.lab("L_end")
    a("s_endpgm")
    a.lab("L_codeend")

SLOT = 40960
NSLOT = 3
GIMG = NSLOT * SLOT
def set_nslot(n):
    global NSLOT, GIMG
    NSLOT = n
    GIMG = 3 * SLOT
QX, KVX, GX = 0, 16384, 49152

def phase_a(a):
    a(f"""
    v_lshrrev_b32 v5, 4, v1
    s_cmp_ge_u32 s{WV}, 4
    s_cbranch_scc0 A_compute
    """)
    LW = 30
    a(f"""
    s_sub_u32 s{LW}, s{WV}, 4
    s_setprio 3
    v_lshrrev_b32 v3, 3, v1
    v_and_b32 v4, 7, v1
    v_xor_b32 v6, v4, v5
    v_lshlrev_b32 v6, 4, v6
    v_lshl_add_u32 v10, v3, 10, v6
    v_add_u32 v7, 4, v5
    v_xor_b32 v7, v4, v7
    v_lshlrev_b32 v7, 4, v7
    v_lshl_add_u32 v11, v3, 10, v7
    v_and_b32 v8, 1, v5
    v_lshlrev_b32 v8, 2, v8
    v_xor_b32 v8, v4, v8
    v_lshlrev_b32 v8, 4, v8
    v_mul_u32_u24 v9, 3072, v3
    v_add_u32 v12, v9, v8
    s_lshl_b32 s54, s{LW}, 15
    """)
    for u in range(4):
        a(f"s_add_u32 s{44+u}, s54, {u*8192}")
    a(f"s_mul_i32 s54, s{LW}, 49152")
    for g3 in range(3):
        for e in range(2):
            a(f"s_add_u32 s{48+g3*2+e}, s54, {g3*1024 + e*8*3072}")
    a(f"""
    s_lshl_b32 s55, s{LW}, 12
    s_lshl_b32 s56, s{LW}, 11
    s_add_u32 s56, s56, 16384
    s_lshl_b32 s40, s{MT}, 17
    s_lshl_b32 s41, s{HG}, 7
    s_mov_b32 s62, 131072
    s_mov_b32 s63, 0x20000
    s_sub_u32 s34, 1572864, s41
    s_mov_b32 s35, 0x20000
    """)
    if OPT["rot"]:
        a(f"s_mov_b32 s57, s{XCD}")
    else:
        a("s_mov_b32 s57, 0")
    a(f"""
    s_lshl_b32 s42, s57, 7
    v_add_u32 v10, s42, v10
    v_add_u32 v11, s42, v11
    s_mul_i32 s42, s57, 196608
    v_add_u32 v12, s42, v12
    s_mov_b32 s64, {u32(-896)}
    s_mov_b32 s65, 128
    s_mov_b32 s66, {u32(-7*196608)}
    s_mov_b32 s67, 196608
    s_waitcnt lgkmcnt(0)
    s_cmp_eq_u32 s{BB}, 0
    s_cselect_b32 s32, s6, s12
    s_cselect_b32 s33, s7, s13
    s_add_u32 s60, s4, s40
    s_addc_u32 s61, s5, 0
    s_add_u32 s32, s32, s41
    s_addc_u32 s33, s33, 0
    """)
    def issue_stage(extra=None):
        extra = list(extra or [])
        seq = [("w",0,0),("x",0,0),("w",0,1),("x",1,0),("w",1,0),("x",2,0),("w",1,1),("x",3,0),("w",2,0),("w",2,1)]
        for n, (kind, i, e) in enumerate(seq):
            if kind == "x":
                a(f"s_add_u32 m0, s55, {i*1024}")
                a("s_add_u32 s57, s57, 1" if n == 1 else ("s_and_b32 s57, s57, 7" if n == 3 else "s_nop 0"))
                a(f"buffer_load_dwordx4 v{10+(i&1)}, s[60:63], s{44+i} offen lds")
            else:
                a(f"s_add_u32 m0, s56, {i*8192+e*1024}")
                a("s_cmp_eq_u32 s57, 0" if n == 4 else "s_nop 0")
                a(f"buffer_load_dwordx4 v12, s[32:35], s{48+i*2+e} offen lds")
                if n == 4:
                    a("s_cselect_b32 s42, s64, s65")
                    a("s_cselect_b32 s43, s66, s67")
            if n >= 2 and extra:
                k = 1 if n == 2 else 3
                for _ in range(k):
                    if extra: a(extra.pop(0))
        for x in extra:
            a(x)
        a("v_add_u32 v10, s42, v10")
        a("v_add_u32 v11, s42, v11")
        a("v_add_u32 v12, s43, v12")
        a(f"s_add_u32 s55, s55, {SLOT}")
        a(f"s_add_u32 s56, s56, {SLOT}")
        a(f"s_cmp_ge_u32 s56, {NSLOT*SLOT}")
        a(f"s_cselect_b32 s54, {NSLOT*SLOT}, 0")
        a("s_sub_u32 s55, s55, s54")
        a("s_sub_u32 s56, s56, s54")
    a(f"""
    s_mov_b32 s{SRDW}, s16
    s_mov_b32 s{SRDW+1}, s17
    s_mov_b32 s{SRDW+2}, 1024
    s_mov_b32 s{SRDW+3}, 0x20000
    s_lshl_b32 s43, s{LW}, 8
    s_add_u32 m0, s43, {GIMG}
    """)
    if GM() == 2:
        pass
    elif not OPT.get("nogate", 0):
        a(f"""
        s_mov_b64 exec, 0xffff
        buffer_load_dwordx4 v2, {WSRD}, s43 offen lds
        s_mov_b64 exec, -1
        """)
    if GM() == 0:
        a(f"""
        v_and_b32 v20, 31, v1
        v_lshrrev_b32 v21, 5, v1
        v_lshrrev_b32 v22, 1, v1
        v_and_b32 v22, 7, v22
        s_lshl_b32 s40, s{LW}, 12
        v_lshlrev_b32 v23, 7, v20
        v_add_u32 v23, s40, v23
        """)
        for ks in range(4):
            a(f"v_add_u32 v24, {2*ks}, v21")
            a(f"v_xor_b32 v24, v24, v22")
            a(f"v_lshl_add_u32 v{16+ks}, v24, 4, v23")
        a(f"""
        v_lshlrev_b32 v15, 4, v21
        v_add_u32 v15, {GIMG}, v15
        v_mov_b32 v64, 0
        s_mov_b32 s59, 0
        """)
        if OPT["rot"]:
            a(f"s_mov_b32 s31, s{XCD}")
        else:
            a("s_mov_b32 s31, 0")
    LK = OPT.get("look", 2)
    for _ in range(LK):
        issue_stage()
    def gate_reads():
        if OPT.get("nogate", 0) or GM() != 0: return
        a("s_lshl_b32 s40, s31, 7")
        a("v_add_u32 v14, s40, v15")
        for ks in range(4):
            a(f"v_add_u32 v24, s59, v{16+ks}")
            a(f"ds_read_b128 {vr(28+8*ks,4)}, v24")
            a(f"ds_read_b128 {vr(32+8*ks,4)}, v14 offset:{ks*32}")
        a("s_add_u32 s31, s31, 1")
        a("s_and_b32 s31, s31, 7")
        a(f"s_add_u32 s59, s59, {SLOT}")
        a(f"s_cmp_ge_u32 s59, {NSLOT*SLOT}")
        a(f"s_cselect_b32 s40, {NSLOT*SLOT}, 0")
        a("s_sub_u32 s59, s59, s40")
    def gate_dots():
        if OPT.get("nogate", 0) or GM() != 0: return
        a("s_waitcnt lgkmcnt(0)")
        for ks in range(4):
            for q in range(4):
                a(f"v_dot2c_f32_bf16 v64, v{28+8*ks+q}, v{32+8*ks+q}")
    if OPT.get("ldprio", 0) == 0:
        a("s_setprio 0")
    a("s_mov_b32 s58, 0")
    LP = PROF and OPT.get("lprof", 0)
    def tick(acc):
        if LP:
            a("s_memtime s[88:89]")
            a("s_waitcnt lgkmcnt(0)")
            a("s_sub_u32 s87, s88, s86")
            a(f"s_add_u32 s{acc}, s{acc}, s87")
            a("s_mov_b32 s86, s88")
    if LP:
        a("s_memtime s[88:89]")
        a("s_waitcnt lgkmcnt(0)")
        a("s_mov_b32 s86, s88")
        a("s_mov_b32 s80, 0"); a("s_mov_b32 s81, 0"); a("s_mov_b32 s82, 0"); a("s_mov_b32 s83, 0"); a("s_mov_b32 s84, 0"); a("s_mov_b32 s85, 0")
    a.lab("A_ld_loop")
    a(f"s_waitcnt vmcnt({10*(LK-1)})")
    tick(80)
    a("s_barrier")
    tick(82)
    gate_reads()
    issue_stage(None if (OPT.get("nogate", 0) or GM() != 0) else ["s_waitcnt lgkmcnt(0)"] + [f"v_dot2c_f32_bf16 v64, v{28+8*ks+q}, v{32+8*ks+q}" for ks in range(4) for q in range(4)])
    tick(84)
    a("s_add_u32 s58, s58, 1")
    a(f"s_cmp_lt_u32 s58, {8-LK}")
    a("s_cbranch_scc1 A_ld_loop")
    if GM() == 2:
        a(f"""
        s_mov_b32 s{SRDW}, s16
        s_mov_b32 s{SRDW+1}, s17
        s_mov_b32 s{SRDW+2}, 1024
        s_mov_b32 s{SRDW+3}, 0x20000
        v_and_b32 v13, 15, v1
        v_lshlrev_b32 v13, 4, v13
        v_lshl_add_u32 v14, v5, 10, v13
        s_lshl_b32 s40, s{CG}, 3
        s_and_b32 s41, s{LW}, 1
        s_lshl_b32 s41, s41, 2
        s_add_u32 s29, s40, s41
        s_lshl_b32 s41, s29, 10
        s_cmp_ge_u32 s{LW}, 2
        s_cbranch_scc1 A_nogl
        """)
        for i in range(4):
            a(f"buffer_load_dwordx4 {vr(16+4*i,4)}, v14, s[60:63], s41 offen offset:{256*i}")
        for i in range(4):
            a(f"buffer_load_dwordx4 {vr(32+4*i,4)}, v13, {WSRD}, 0 offen offset:{256*i}")
        a.lab("A_nogl")
    for k in range(LK):
        a(f"s_waitcnt vmcnt({10*(LK-1-k)})")
        a("s_barrier")
        gate_reads()
        gate_dots()
    if LP:
        a("s_mov_b32 s98, s80"); a("s_mov_b32 s99, s82"); a("s_mov_b32 s100, s84")
    a("s_setprio 0")
    a(f"""
    s_mov_b32 s{SRDW}, s{WS}
    s_mov_b32 s{SRDW+1}, s{WS+1}
    s_mov_b32 s{SRDW+2}, {WS_END}
    s_mov_b32 s{SRDW+3}, 0x20000
    """)
    if GM() == 1:
        a("s_barrier")
    elif GM() == 2:
        a("s_barrier")
        a(f"s_cmp_ge_u32 s{LW}, 2")
        a("s_cbranch_scc1 A_join")
        a("v_mov_b32 v48, 0")
        a("s_waitcnt vmcnt(0)")
        for i in range(16):
            a(f"v_dot2c_f32_bf16 v48, v{16+i}, v{32+i}")
        a("s_nop 3")
        for rot in (8, 4, 2, 1):
            a(f"v_add_f32_dpp v48, v48, v48 row_ror:{rot} row_mask:0xf bank_mask:0xf")
            a("s_nop 1")
        a(f"""
        v_mul_f32 v48, {f32(-LOG2E)}, v48
        v_exp_f32 v48, v48
        s_nop 0
        v_add_f32 v48, 1.0, v48
        v_rcp_f32 v48, v48
        s_lshl_b32 s41, s{MT}, 7
        s_add_u32 s41, s41, s29
        s_lshl_b32 s41, s41, 2
        s_add_u32 s41, s41, {WS_G}
        v_lshlrev_b32 v49, 2, v5
        v_and_b32 v50, 15, v1
        v_cmp_eq_u32 vcc, 0, v50
        s_and_saveexec_b64 s[58:59], vcc
        buffer_store_dword v48, v49, {WSRD}, s41 offen sc1
        s_mov_b64 exec, s[58:59]
        """)
    else:
        a(f"""
        s_nop 3
        v_mov_b32 v20, v64
        s_nop 1
        v_permlane32_swap_b32 v64, v20
        s_nop 1
        v_add_f32 v64, v64, v20
        v_mul_f32 v64, {f32(-LOG2E)}, v64
        v_exp_f32 v64, v64
        s_nop 0
        v_add_f32 v64, 1.0, v64
        v_rcp_f32 v64, v64
        s_nop 0
        v_sub_f32 v20, 1.0, v64
        s_cmp_eq_u32 s{BB}, 0
        s_cselect_b64 vcc, -1, 0
        s_nop 1
        v_cndmask_b32 v20, v20, v64, vcc
        v_and_b32 v19, 31, v1
        v_lshlrev_b32 v19, 2, v19
        s_lshl_b32 s41, s{LW}, 7
        v_add_u32 v19, s41, v19
        s_barrier
        ds_write_b32 v19, v20 offset:{GX}
        """)
    a("""
    s_branch A_join
    """)
    a.lab("A_compute")
    WM, WN = 30, 31
    a(f"""
    s_and_b32 s{WM}, s{WV}, 1
    s_lshr_b32 s{WN}, s{WV}, 1
    v_and_b32 v20, 31, v1
    v_lshrrev_b32 v21, 5, v1
    v_lshrrev_b32 v22, 1, v1
    v_and_b32 v22, 7, v22
    s_lshl_b32 s40, s{WM}, 13
    v_lshlrev_b32 v23, 7, v20
    v_add_u32 v23, s40, v23
    """)
    for ks in range(4):
        a(f"v_add_u32 v24, {2*ks}, v21")
        a(f"v_xor_b32 v24, v24, v22")
        a(f"v_lshl_add_u32 v{16+ks}, v24, 4, v23")
    a(f"""
    v_and_b32 v26, 15, v1
    v_lshrrev_b32 v27, 2, v26
    v_lshl_add_u32 v28, v21, 3, v27
    v_lshlrev_b32 v28, 7, v28
    v_and_b32 v29, 1, v5
    v_lshlrev_b32 v29, 1, v29
    v_bfe_u32 v30, v26, 1, 1
    v_add_u32 v29, v29, v30
    s_lshl_b32 s40, s{WN}, 2
    v_add_u32 v29, s40, v29
    v_bfe_u32 v30, v27, 1, 1
    v_lshlrev_b32 v30, 2, v30
    v_xor_b32 v29, v29, v30
    v_lshl_add_u32 v28, v29, 4, v28
    v_and_b32 v30, 1, v26
    v_lshl_add_u32 v25, v30, 3, v28
    """)
    ACC = 64
    XF = [32, 160]
    WF = [40, 168]
    GF = [52, 180]
    GACC = 192
    for r in range(96):
        a(f"v_mov_b32 v{ACC+r}, 0")
    if GMF():
        for r in range(16):
            a(f"v_mov_b32 v{GACC+r}, 0")
        a(f"s_mov_b32 s59, s{XCD}" if OPT["rot"] else "s_mov_b32 s59, 0")
        a(f"""
        s_lshl_b32 s40, s59, 7
        v_lshlrev_b32 v15, 4, v21
        v_add_u32 v15, {GIMG}, v15
        v_add_u32 v14, s40, v15
        s_cmp_eq_u32 s{WN}, 0
        s_cselect_b64 vcc, -1, 0
        """)
    a(f"""
    s_lshl_b32 s40, s{CG}, 2
    s_lshl_b32 s41, s{WN}, 1
    s_add_u32 s40, s40, s41
    s_lshl_b32 s40, s40, 6
    s_lshl_b32 s41, s{MT}, 2
    s_add_u32 s40, s40, s41
    s_lshl_b32 s41, s{WM}, 1
    s_add_u32 s40, s40, s41
    s_lshl_b32 s46, s40, 11
    s_add_u32 s46, s46, {WS_KV}
    s_mov_b32 s48, {f32(QSCALE)}
    v_and_b32 v11, 15, v1
    v_lshlrev_b32 v11, 4, v11
    v_lshl_add_u32 v11, v21, 9, v11
    v_bfe_u32 v12, v1, 4, 1
    v_lshl_add_u32 v13, v12, 13, v11
    v_lshl_add_u32 v11, v12, 17, v11
    v_add_u32 v11, 1024, v11
    s_add_u32 s47, s46, 131072
    s_mov_b32 s{SRDW+2}, {WS_END}
    s_mov_b32 s{SRDW+3}, 0x20000
    s_mov_b32 s57, 0
    s_mov_b32 s58, 0
    """)
    def set_addr():
        for ks in range(4):
            a(f"v_add_u32 v{20+ks}, s57, v{16+ks}")
        a("v_add_u32 v24, s57, v25")
    set_addr()
    a("s_waitcnt lgkmcnt(0)")
    a(f"s_mov_b32 s{SRDW}, s{WS}")
    a(f"s_mov_b32 s{SRDW+1}, s{WS+1}")
    if OPT.get("wpf", 0):
        a(f"""
        s_lshl_b32 s40, s2, 2
        s_add_u32 s40, s40, s{WV}
        s_and_b32 s41, s40, 511
        s_mul_i32 s41, s41, 3072
        s_cmp_lt_u32 s40, 512
        s_cselect_b32 s42, s6, s12
        s_cselect_b32 s43, s7, s13
        s_add_u32 s42, s42, s41
        s_addc_u32 s43, s43, 0
        global_load_dwordx4 v[208:211], v2, s[42:43]
        global_load_dwordx4 v[208:211], v2, s[42:43] offset:1024
        global_load_dwordx4 v[208:211], v2, s[42:43] offset:2048
        s_lshl_b32 s40, s2, 3
        s_lshl_b32 s41, s{WV}, 1
        s_add_u32 s40, s40, s41
        s_lshl_b32 s40, s40, 10
        s_add_u32 s42, s4, s40
        s_addc_u32 s43, s5, 0
        global_load_dwordx4 v[208:211], v2, s[42:43]
        global_load_dwordx4 v[208:211], v2, s[42:43] offset:1024
        """)
    if OPT.get("cpf", 0):
        a(f"""
        s_cmp_lg_u32 s{WV}, 3
        s_cbranch_scc1 A_nocpf
        s_cmp_ge_u32 s{SLOT_}, (L_codeend-{KNAME})>>10
        s_cbranch_scc1 A_nocpf
        s_getpc_b64 s[42:43]
        """)
        a.lab("A_pc")
        a(f"""
        s_sub_u32 s42, s42, A_pc-{KNAME}
        s_subb_u32 s43, s43, 0
        s_lshl_b32 s40, s{SLOT_}, 10
        s_add_u32 s42, s42, s40
        s_addc_u32 s43, s43, 0
        global_load_dwordx4 v[208:211], v2, s[42:43]
        """)
        a.lab("A_nocpf")
    if OPT.get("pt", 0):
        a(f"""
        s_cmp_lg_u32 s{WV}, 1
        s_cbranch_scc1 A_nopt1
        s_lshl_b32 s40, s{CG}, 19
        s_add_u32 s40, s40, {WS_KV}
        v_lshlrev_b32 v212, 13, v1
        buffer_load_dword v208, v212, {WSRD}, s40 offen
        """)
        a.lab("A_nopt1")
        a(f"""
        s_cmp_lg_u32 s{WV}, 2
        s_cbranch_scc1 A_nopt2
        v_lshlrev_b32 v212, 16, v1
        s_mov_b32 s40, {WS_O}
        buffer_load_dword v208, v212, {WSRD}, s40 offen
        v_mov_b32 v213, 0
        s_mov_b32 s40, {WS_F}
        buffer_load_dword v209, v213, {WSRD}, s40 offen
        v_lshlrev_b32 v213, 15, v1
        global_load_dword v210, v213, s[18:19]
        v_lshlrev_b32 v214, 13, v1
        global_load_dword v211, v214, s[8:9]
        global_load_dword v211, v214, s[14:15]
        """)
        a.lab("A_nopt2")
    a(f"""
    s_cmp_lg_u32 s{WV}, 0
    s_cbranch_scc1 A_nononce
    s_memrealtime s[40:41]
    s_waitcnt lgkmcnt(0)
    s_or_b32 s40, s40, 1
    v_mov_b32 v186, s40
    v_mov_b32 v187, 0
    v_mov_b32 v188, 0
    s_mov_b64 exec, 1
    global_atomic_cmpswap v189, v188, v[186:187], s[{DBG}:{DBG+1}] sc0
    s_mov_b64 exec, -1
    """)
    a.lab("A_nononce")
    def read_list(ks, f):
        r = []
        r.append(f"ds_read_b64_tr_b16 {vr(WF[f]+0,2)}, v24 offset:{16384+(16*ks+0)*128}")
        r.append(f"ds_read_b64_tr_b16 {vr(WF[f]+2,2)}, v24 offset:{16384+(16*ks+4)*128}")
        r.append(f"ds_read_b128 {vr(XF[f],4)}, v{20+ks} offset:0")
        r.append(f"ds_read_b128 {vr(XF[f]+4,4)}, v{20+ks} offset:4096")
        for g3 in (1, 2):
            for u in range(2):
                r.append(f"ds_read_b64_tr_b16 {vr(WF[f]+4*g3+2*u,2)}, v24 offset:{16384+g3*8192+(16*ks+4*u)*128}")
        if GMF():
            r.append(f"ds_read_b128 {vr(GF[f],4)}, v14 offset:{ks*32}")
        return r
    gl = [0]
    FW = OPT.get("finewait", 1)
    def group(f, rl, barrier=False):
        order = [(0,0),(0,1),(1,0),(1,1),(2,0),(2,1)]
        nold = 9 if GMF() else 8
        need = {0: 3, 1: 4, 2: 6, 4: 8}
        rl = list(rl)
        issued = 0
        per = OPT.get("rpg", 2)
        for i, (g3, tt) in enumerate(order):
            if FW and i in need:
                a(f"s_waitcnt lgkmcnt({min(15, nold - need[i] + issued)})")
            x = vr(XF[f]+4*tt, 4); w = vr(WF[f]+4*g3, 4); d = vr(ACC+16*(tt*3+g3), 16)
            if g3 < 2:
                a(f"v_mfma_f32_32x32x16_bf16 {d}, {w}, {x}, {d}")
            else:
                a(f"v_mfma_f32_32x32x16_bf16 {d}, {x}, {w}, {d}")
            if i == 0 and barrier:
                if PROF and OPT.get("lprof", 0):
                    a("s_memtime s[88:89]")
                a(f"s_waitcnt lgkmcnt(0)")
                a("s_barrier")
                if PROF and OPT.get("lprof", 0):
                    a("s_memtime s[86:87]")
                    a("s_waitcnt lgkmcnt(0)")
                    a("s_sub_u32 s86, s86, s88")
                    a("s_add_u32 s98, s98, s86")
            for _ in range(per):
                if rl:
                    a(rl.pop(0)); issued += 1
        if GMF():
            if FW:
                a(f"s_waitcnt lgkmcnt({min(15, issued)})")
            n = gl[0]; gl[0] += 1
            d = vr(GACC, 16)
            a(f"s_cbranch_vccz A_g{n}a")
            a(f"v_mfma_f32_32x32x16_bf16 {d}, {vr(GF[f],4)}, {vr(XF[f],4)}, {d}")
            a(f"s_branch A_g{n}b")
            a.lab(f"A_g{n}a")
            a(f"v_mfma_f32_32x32x16_bf16 {d}, {vr(GF[f],4)}, {vr(XF[f]+4,4)}, {d}")
            a.lab(f"A_g{n}b")
        for x in rl:
            a(x)
    a("s_barrier")
    stamp(a, 1)
    for x in read_list(0, 0):
        a(x)
    if PROF and OPT.get("lprof", 0):
        a("s_mov_b32 s98, 0"); a("s_mov_b32 s99, 0"); a("s_mov_b32 s100, 0")
    a.lab("A_loop")
    for ks in range(3):
        if not FW: a("s_waitcnt lgkmcnt(0)")
        group(ks & 1, read_list(ks+1, (ks+1) & 1))
    a("s_cmp_eq_u32 s58, 7")
    a("s_cbranch_scc1 A_last")
    a(f"""
    s_add_u32 s57, s57, {SLOT}
    s_cmp_ge_u32 s57, {NSLOT*SLOT}
    s_cselect_b32 s40, {NSLOT*SLOT}, 0
    s_sub_u32 s57, s57, s40
    """)
    if GMF():
        a("""
        s_add_u32 s59, s59, 1
        s_and_b32 s59, s59, 7
        s_lshl_b32 s40, s59, 7
        v_add_u32 v14, s40, v15
        """)
    set_addr()
    if not FW: a("s_waitcnt lgkmcnt(0)")
    group(1, read_list(0, 0), barrier=True)
    a("s_add_u32 s58, s58, 1")
    a("s_branch A_loop")
    a.lab("A_last")
    if not FW: a("s_waitcnt lgkmcnt(0)")
    group(1, [])
    stamp(a, 2)
    a("s_barrier")
    a(f"""
    s_lshl_b32 s40, s{WN}, 3
    s_lshl_b32 s41, s{WM}, 1
    s_add_u32 s40, s40, s41
    s_lshl_b32 s41, s40, 10
    v_add_u32 v16, s41, v2
    s_lshl_b32 s41, s40, 11
    v_add_u32 v17, s41, v2
    v_add_u32 v18, s41, v13
    s_nop 3
    """)
    a(f"""
    s_cmp_lg_u32 s{WV}, 0
    s_cbranch_scc1 A_nononce2
    s_waitcnt vmcnt(0)
    v_cmp_eq_u32 vcc, 0, v189
    s_nop 1
    v_cndmask_b32 v186, v189, v186, vcc
    v_mov_b32 v188, {RELAY}
    s_mov_b64 exec, 1
    ds_write_b64 v188, v[186:187]
    s_mov_b64 exec, -1
    """)
    a.lab("A_nononce2")
    STF = {0: ' sc1', 1: ' sc0 sc1', 2: ' sc1 nt', 3: ' sc0 sc1 nt'}[OPT.get('stf', 0)]
    for tt in range(2):
        d = ACC + 16*(tt*3+1)
        for r in range(8):
            a(f"v_cvt_pk_bf16_f32 v{d+r}, v{d+2*r}, v{d+2*r+1}")
        a(f"buffer_store_dwordx4 {vr(d,4)}, v2, {WSRD}, s46 offen offset:{tt*2048}{STF}")
        a(f"buffer_store_dwordx4 {vr(d+4,4)}, v2, {WSRD}, s47 offen offset:{tt*2048}{STF}")
        a(f"ds_write_b128 v17, {vr(d,4)} offset:{KVX+tt*2048}")
        a(f"ds_write_b128 v17, {vr(d+4,4)} offset:{KVX+tt*2048+8192}")
        d = ACC + 16*(tt*3+2)
        for r in range(8):
            a(f"v_cvt_pk_bf16_f32 v{d+r}, v{d+2*r}, v{d+2*r+1}")
        a(f"buffer_store_dwordx4 {vr(d,4)}, v11, {WSRD}, s46 offen offset:{tt*2048}{STF}")
        a(f"buffer_store_dwordx4 {vr(d+4,4)}, v11, {WSRD}, s46 offen offset:{tt*2048+256}{STF}")
        a(f"ds_write_b128 v18, {vr(d,4)} offset:{KVX+tt*2048+1024}")
        a(f"ds_write_b128 v18, {vr(d+4,4)} offset:{KVX+tt*2048+1280}")
    for tt in range(2):
        d = ACC + 16*(tt*3+0)
        for r in range(16):
            a(f"v_mul_f32 v{d+r}, s48, v{d+r}")
        for r in range(8):
            a(f"v_cvt_pk_bf16_f32 v{d+r}, v{d+2*r}, v{d+2*r+1}")
        a(f"ds_write_b128 v16, {vr(d,4)} offset:{QX+tt*1024}")
        a(f"ds_write_b128 v16, {vr(d+4,4)} offset:{QX+tt*1024+4096}")
    if GMF():
        g = GACC
        a(f"""
        v_mul_f32 v{g}, {f32(-LOG2E)}, v{g}
        v_exp_f32 v{g}, v{g}
        s_nop 0
        v_add_f32 v{g}, 1.0, v{g}
        v_rcp_f32 v{g}, v{g}
        s_nop 0
        v_sub_f32 v20, 1.0, v{g}
        s_cmp_eq_u32 s{BB}, 0
        s_cselect_b64 vcc, -1, 0
        v_and_b32 v19, 31, v1
        v_lshlrev_b32 v19, 2, v19
        v_cndmask_b32 v20, v20, v{g}, vcc
        s_lshl_b32 s41, s{WM}, 8
        s_lshl_b32 s40, s{WN}, 7
        s_add_u32 s41, s41, s40
        v_add_u32 v19, s41, v19
        ds_write_b32 v19, v20 offset:{GX}
        """)
    a.lab("A_join")
    a("s_waitcnt lgkmcnt(0)")
    a("s_barrier")
    stamp(a, 3)

def spin(a, lab, addr_v, val_v, cond):
    a("s_mov_b32 s69, 0")
    a.lab(lab)
    a(f"global_load_dword v{val_v}, v{addr_v}, s[{DBG}:{DBG+1}] sc1")
    a("s_add_u32 s69, s69, 1")
    a("s_waitcnt vmcnt(0)")
    cond()
    a(f"s_cbranch_scc1 {lab}_ok")
    a("s_cmp_lt_u32 s69, 200000")
    a(f"s_cbranch_scc1 {lab}")
    a.lab(lab + "_ok")

def phase_b(a):
    Q = [4, 8]; S = [12, 28]; O = [44, 60]; C = [76, 92]
    KB = lambda s, u: 108 + s*16 + u*4
    VB = lambda s, u: 140 + s*32 + u*8
    G = [204, 205]; T0 = 206; T1 = 207; T2 = 208
    H4, QH, PAIR, QT = 30, 31, 32, 33
    a(f"""
    s_lshr_b32 s{H4}, s{WV}, 1
    s_and_b32 s{QH}, s{WV}, 1
    s_lshl_b32 s{PAIR}, s{CG}, 2
    s_add_u32 s{PAIR}, s{PAIR}, s{H4}
    s_lshl_b32 s{QT}, s{MT}, 2
    s_lshl_b32 s40, s{QH}, 1
    s_add_u32 s{QT}, s{QT}, s40
    s_lshl_b32 s46, s{PAIR}, 17
    s_add_u32 s46, s46, {WS_KV}
    s_lshl_b32 s40, s{H4}, 12
    s_lshl_b32 s41, s{QH}, 11
    s_add_u32 s40, s40, s41
    v_add_u32 v{T0}, s40, v2
    ds_read_b128 {vr(Q[0],4)}, v{T0} offset:{QX}
    ds_read_b128 {vr(Q[1],4)}, v{T0} offset:{QX+1024}
    v_and_b32 v{T1}, 31, v1
    v_lshlrev_b32 v{T1}, 2, v{T1}
    s_lshl_b32 s41, s{QH}, 8
    v_add_u32 v{T1}, s41, v{T1}
    """)
    if GM() != 2:
        a(f"ds_read_b32 v{G[0]}, v{T1} offset:{GX}")
        a(f"ds_read_b32 v{G[1]}, v{T1} offset:{GX+128}")
    a(f"""
    v_and_b32 v{T0}, 27, v1
    v_cmp_eq_u32 vcc, 16, v{T0}
    v_mov_b32 v{T1}, 0x3f803f80
    s_nop 0
    v_cndmask_b32 v{T0}, 0, v{T1}, vcc
    """)
    for r in range(64):
        a(f"v_mov_b32 v{VB(0,0)+r}, v{T0}")
    a(f"""
    s_mov_b32 s52, 0x0000ffff
    s_mov_b32 s53, 0x0000ffff
    s_lshl_b32 s40, s{H4}, 13
    v_add_u32 v{T0}, s40, v2
    """)
    for u in range(4):
        a(f"ds_read_b128 {vr(KB(0,u),4)}, v{T0} offset:{KVX+u*2048}")
    a("s_mov_b64 exec, s[52:53]")
    for u in range(4):
        a(f"ds_read_b128 {vr(VB(0,u),4)}, v{T0} offset:{KVX+u*2048+1024}")
        a(f"ds_read_b128 {vr(VB(0,u)+4,4)}, v{T0} offset:{KVX+u*2048+1280}")
    a("s_mov_b64 exec, -1")
    a(f"v_mov_b32 v{T2}, {RELAY}")
    a(f"ds_read_b32 v{T2+1}, v{T2}")
    a("s_waitcnt lgkmcnt(0)")
    a(f"v_readfirstlane_b32 s{NONCE}, v{T2+1}")
    a("s_barrier")
    stamp(a, 4)
    c_prefetch_setup(a)
    a("s_mov_b32 s49, 0")
    a("s_mov_b32 s50, 0")
    a("s_mov_b32 s54, 0")
    a(f"s_lshl_b32 s45, 1, s{MT}")
    if OPT.get("nodep", 0):
        a("s_mov_b32 s45, 0xffff")
        a("s_mov_b32 s49, 1")
    if OPT["prio"]:
        a("s_setprio 3")
    for x in range(2):
        a(f"v_mfma_f32_32x32x16_bf16 {vr(S[x],16)}, {vr(KB(0,0),4)}, {vr(Q[x],4)}, 0")
    a("s_nop 7")
    a("s_nop 7")
    MX = [T0, T1]
    for x in range(2):
        a(f"v_max3_f32 v{MX[x]}, v{S[x]}, v{S[x]+1}, v{S[x]+2}")
        for r in range(3, 15, 2):
            a(f"v_max3_f32 v{MX[x]}, v{MX[x]}, v{S[x]+r}, v{S[x]+r+1}")
        a(f"v_max_f32 v{MX[x]}, v{MX[x]}, v{S[x]+15}")
    a.lab("B_setmax")
    for x in range(2):
        a(f"""
        v_mov_b32 v{T2}, v{MX[x]}
        s_nop 1
        v_permlane32_swap_b32 v{MX[x]}, v{T2}
        s_nop 1
        v_max_f32 v{MX[x]}, v{MX[x]}, v{T2}
        """)
        for r in range(16):
            a(f"v_sub_f32 v{C[x]+r}, 0, v{MX[x]}")
        for r in range(16):
            a(f"v_mov_b32 v{O[x]+r}, 0")
    a(f"v_mfma_f32_32x32x16_bf16 {vr(S[0],16)}, {vr(KB(0,0),4)}, {vr(Q[0],4)}, {vr(C[0],16)}")
    a(f"s_mov_b32 s44, s{MT}")
    a("s_mov_b32 s55, 0")
    a("s_nop 7")
    def ex(b, lo, hi):
        for r in range(lo, hi):
            a(f"v_exp_f32 v{b+r}, v{b+r}")
    def cv(b, h):
        for r in range(4):
            a(f"v_cvt_pk_bf16_f32 v{b+4*h+r}, v{b+8*h+2*r}, v{b+8*h+2*r+1}")
    def pv(x, vb, h):
        a(f"v_mfma_f32_32x32x16_bf16 {vr(O[x],16)}, {vr(vb+4*h,4)}, {vr(S[x]+4*h,4)}, {vr(O[x],16)}")
    def pf_head(tag):
        if tag == 0:
            a("s_cmp_eq_u32 s49, 0")
            a("s_cbranch_scc1 B_first")
            a.lab("B_first_ret")
        a(f"""
        s_add_u32 s44, s44, 1
        s_and_b32 s44, s44, 15
        s_bitcmp1_b32 s45, s44
        s_cbranch_scc0 B_poll{tag}
        """)
        a.lab(f"B_pf{tag}")
        a(f"""
        s_lshl_b32 s47, s44, 13
        s_add_u32 s47, s47, s46
        s_add_u32 s48, s47, 4096
        """)
    def ldk(s, u):
        so = 47 if u < 2 else 48
        a(f"buffer_load_dwordx4 {vr(KB(s,u),4)}, v2, {WSRD}, s{so} offen offset:{(u&1)*2048} sc1")
    def ldv(s, u):
        so = 47 if u < 2 else 48
        a("s_mov_b64 exec, s[52:53]")
        a(f"buffer_load_dwordx4 {vr(VB(s,u),4)}, v2, {WSRD}, s{so} offen offset:{(u&1)*2048+1024} sc1")
        a(f"buffer_load_dwordx4 {vr(VB(s,u)+4,4)}, v2, {WSRD}, s{so} offen offset:{(u&1)*2048+1280} sc1")
        a("s_mov_b64 exec, -1")
    a.lab("B_loop")
    D = OPT.get("D", 4)
    for s in range(2):
        for u in range(4):
            vb = VB(s, u)
            kn = KB(s, u+1) if u < 3 else KB(1-s, 0)
            qs, qu = (s, u + D) if u + D < 4 else (1 - s, u + D - 4)
            if OPT["prio"] == 2 and s == 1 and u == 0:
                a("s_cmp_lg_u32 s55, 7")
                a("s_cbranch_scc1 B_pm")
                a("s_setprio 0")
                a.lab("B_pm")
            a(f"v_mfma_f32_32x32x16_bf16 {vr(S[1],16)}, {vr(KB(s,u),4)}, {vr(Q[1],4)}, {vr(C[1],16)}")
            if qu == 0:
                pf_head(s)
            guard = (s == 0 and qs == s)
            if guard:
                a("s_cmp_eq_u32 s49, 0")
                a(f"s_cbranch_scc1 B_gk{u}")
            ldk(qs, qu)
            if guard:
                a.lab(f"B_gk{u}")
            ex(S[0], 0, 8)
            cv(S[0], 0)
            ex(S[0], 8, 16)
            a(f"s_waitcnt vmcnt({3*(D-1)+1})")
            pv(0, vb, 0)
            cv(S[0], 1)
            ex(S[1], 0, 2)
            pv(0, vb, 1)
            ex(S[1], 2, 8)
            a(f"s_waitcnt vmcnt({3*D-3})")
            a(f"v_mfma_f32_32x32x16_bf16 {vr(S[0],16)}, {vr(kn,4)}, {vr(Q[0],4)}, {vr(C[0],16)}")
            cv(S[1], 0)
            ex(S[1], 8, 16)
            pv(1, vb, 0)
            cv(S[1], 1)
            if guard:
                a("s_cmp_eq_u32 s49, 0")
                a(f"s_cbranch_scc1 B_gv{u}")
            ldv(qs, qu)
            if guard:
                a.lab(f"B_gv{u}")
            if u == 3 and s == 1:
                a("s_cmp_lt_u32 s50, 4")
                a("s_cbranch_scc1 B_wo")
                a.lab("B_wo_ret")
            pv(1, vb, 1)
    a("s_add_u32 s55, s55, 1")
    if OPT["prio"] == 1:
        a("""
        s_and_b32 s40, s55, 1
        s_cbranch_scc1 B_noprio
        s_cmp_eq_u32 s55, 2
        s_cbranch_scc0 B_p1
        s_setprio 2
        """)
        a.lab("B_p1")
        a("s_cmp_eq_u32 s55, 4")
        a("s_cbranch_scc0 B_p2")
        a("s_setprio 1")
        a.lab("B_p2")
        a("s_cmp_eq_u32 s55, 6")
        a("s_cbranch_scc0 B_noprio")
        a("s_setprio 0")
        a.lab("B_noprio")
    if OPT["prio"] == 2:
        a("s_cmp_lt_u32 s55, 6")
        a("s_cbranch_scc1 B_noprio")
        a("s_setprio 2")
        a("s_cmp_eq_u32 s55, 6")
        a("s_cbranch_scc1 B_noprio")
        a("s_setprio 1")
        a.lab("B_noprio")
    a("s_cmp_ge_u32 s55, 5")
    a("s_cbranch_scc1 B_wobar")
    a.lab("B_wobar_ret")
    if PROF and OPT.get("lstamp", 0):
        a("s_cmp_eq_u32 s55, 1")
        a("s_cbranch_scc0 B_ls1")
        stamp(a, 9)
        a.lab("B_ls1")
        a(f"s_cmp_eq_u32 s55, {OPT.get('ls2', 4)}")
        a("s_cbranch_scc0 B_ls2")
        stamp(a, 10)
        a.lab("B_ls2")
    a("s_cmp_lt_u32 s55, 8")
    a("s_cbranch_scc1 B_loop")
    stamp(a, 6)
    a("s_nop 7")
    a("s_nop 7")
    a("s_cmp_lg_u32 s54, 0")
    a("s_cbranch_scc1 B_fin")
    a(f"v_mov_b32 v{T0}, 0")
    a(f"v_mov_b32 v{T1}, 0")
    for x in range(2):
        o = O[x]
        for r in range(0, 8, 2):
            a(f"v_max3_f32 v{T0}, v{T0}, |v{o+r}|, |v{o+r+1}|")
        a(f"v_max_f32 v{T0}, v{T0}, v{o+8}")
        for r in range(8):
            a(f"v_add_f32 v{T1}, v{T1}, v{o+r}")
    a(f"""
    v_mul_f32 v{T1}, 0, v{T1}
    v_add_f32 v{T0}, v{T0}, v{T1}
    s_mov_b32 s57, {f32(2.0**100)}
    v_cmp_gt_f32 vcc, s57, v{T0}
    s_cmp_eq_u64 vcc, exec
    s_cbranch_scc1 B_fin
    """)
    a(f"""
    s_mov_b32 s54, 1
    v_mov_b32 v{T0}, {f32(-3.0e38)}
    v_mov_b32 v{T1}, {f32(-3.0e38)}
    s_mov_b32 s47, s46
    s_mov_b32 s55, 0
    s_waitcnt vmcnt(0)
    """)
    a.lab("B_maxloop")
    a(f"buffer_load_dwordx4 {vr(KB(1,0),4)}, v2, {WSRD}, s47 offen sc1")
    a("s_waitcnt vmcnt(0)")
    for x in range(2):
        a(f"v_mfma_f32_32x32x16_bf16 {vr(S[x],16)}, {vr(KB(1,0),4)}, {vr(Q[x],4)}, 0")
    a("s_nop 7")
    a("s_nop 7")
    for x in range(2):
        for r in range(0, 16, 2):
            a(f"v_max3_f32 v{MX[x]}, v{MX[x]}, v{S[x]+r}, v{S[x]+r+1}")
    a("s_add_u32 s47, s47, 2048")
    a("s_add_u32 s55, s55, 1")
    a("s_cmp_lt_u32 s55, 64")
    a("s_cbranch_scc1 B_maxloop")
    a("s_branch B_setmax")
    a.lab("B_first")
    a("s_waitcnt vmcnt(0)")
    a("s_barrier")
    stamp(a, 5)
    a("s_mov_b32 s49, 1")
    a(f"""
    s_cmp_lg_u32 s{WV}, 0
    s_cbranch_scc1 B_first_ret
    s_lshl_b32 s40, s{CG}, 7
    s_lshl_b32 s41, s{MT}, 2
    s_add_u32 s40, s40, s41
    s_add_u32 s40, s40, {WS_F}
    v_mov_b32 v{T2}, 0
    v_mov_b32 v{T2+1}, s{NONCE}
    s_mov_b64 exec, 1
    buffer_store_dword v{T2+1}, v{T2}, {WSRD}, s40 offen sc1
    s_lshl_b32 s40, s{MT}, 7
    s_lshl_b32 s41, s{CG}, 2
    s_add_u32 s40, s40, s41
    s_add_u32 s40, s40, {WS_GF}
    buffer_store_dword v{T2+1}, v{T2}, {WSRD}, s40 offen sc1
    s_mov_b64 exec, -1
    s_branch B_first_ret
    """)
    a.lab("B_wobar")
    a("s_cmp_lg_u32 s54, 0")
    a("s_cbranch_scc1 B_wobar_ret")
    a("s_cmp_eq_u32 s55, 6")
    a("s_cbranch_scc1 B_wobar6")
    if GM() == 2:
        a("s_cmp_lg_u32 s55, 5")
        a("s_cbranch_scc1 B_wobar_ret")
        a(f"s_cmp_lg_u32 s{WV}, 0")
        a("s_cbranch_scc1 B_wobar_ret")
        a(f"""
        s_lshl_b32 s40, s{MT}, 7
        s_add_u32 s40, s40, {WS_GF}
        v_lshlrev_b32 v{T2}, 2, v1
        s_mov_b32 s69, 0
        """)
        a.lab("B_gpoll")
        a(f"""
        s_mov_b64 exec, 0xffff
        buffer_load_dword v{T2+1}, v{T2}, {WSRD}, s40 offen sc1
        s_add_u32 s69, s69, 1
        s_waitcnt vmcnt(0)
        v_cmp_eq_u32 vcc, s{NONCE}, v{T2+1}
        s_mov_b64 exec, -1
        s_cmp_eq_u32 vcc_lo, 0xffff
        s_cbranch_scc1 B_wobar_ret
        s_cmp_lt_u32 s69, 200000
        s_cbranch_scc1 B_gpoll
        """)
    a("s_branch B_wobar_ret")
    a.lab("B_wobar6")
    a("s_barrier")
    if GM() == 2:
        a(f"""
        s_lshl_b32 s40, s{QT}, 7
        s_add_u32 s40, s40, {WS_G}
        v_and_b32 v{T2}, 31, v1
        v_lshlrev_b32 v{T2}, 2, v{T2}
        buffer_load_dword v{G[0]}, v{T2}, {WSRD}, s40 offen sc1
        buffer_load_dword v{G[1]}, v{T2}, {WSRD}, s40 offen offset:128 sc1
        """)
    a("s_branch B_wobar_ret")
    a.lab("B_wo")
    for i in range(4):
        a(f"s_add_u32 m0, s58, {i*1024}")
        a(f"s_add_u32 s51, s59, {i*8192}")
        a(f"buffer_load_dwordx4 v212, s[60:63], s51 offen lds")
    a("s_add_u32 s58, s58, 4096")
    a("s_add_u32 s59, s59, 32768")
    a("s_add_u32 s50, s50, 1")
    a("s_branch B_wo_ret")
    for sset in range(2):
        a.lab(f"B_poll{sset}")
        a("s_mov_b32 s69, 0")
        a(f"s_cmp_lg_u32 s{WV}, 0")
        a(f"s_cbranch_scc1 B_lp{sset}")
        a(f"""
        s_lshl_b32 s40, s{CG}, 7
        s_add_u32 s40, s40, {WS_F}
        v_lshlrev_b32 v{T2}, 2, v1
        """)
        a.lab(f"B_gp{sset}")
        a(f"""
        s_mov_b64 exec, 0xffff
        buffer_load_dword v{T2+1}, v{T2}, {WSRD}, s40 offen sc1
        s_add_u32 s69, s69, 1
        s_waitcnt vmcnt(0)
        v_cmp_eq_u32 vcc, s{NONCE}, v{T2+1}
        s_mov_b64 exec, -1
        s_or_b32 s45, s45, vcc_lo
        s_bitcmp1_b32 s45, s44
        s_cbranch_scc1 B_gok{sset}
        s_cmp_lt_u32 s69, 200000
        s_cbranch_scc1 B_gp{sset}
        """)
        a.lab(f"B_gok{sset}")
        a(f"""
        v_mov_b32 v{T2}, {RELAY+4}
        v_mov_b32 v{T2+1}, s45
        ds_write_b32 v{T2}, v{T2+1}
        s_branch B_pf{sset}
        """)
        a.lab(f"B_lp{sset}")
        a(f"v_mov_b32 v{T2}, {RELAY+4}")
        a.lab(f"B_lpl{sset}")
        a(f"""
        ds_read_b32 v{T2+1}, v{T2}
        s_add_u32 s69, s69, 1
        s_waitcnt lgkmcnt(0)
        v_readfirstlane_b32 s40, v{T2+1}
        s_nop 3
        s_or_b32 s45, s45, s40
        s_bitcmp1_b32 s45, s44
        s_cbranch_scc1 B_pf{sset}
        s_cmp_lt_u32 s69, 4000000
        s_cbranch_scc1 B_lpl{sset}
        s_branch B_pf{sset}
        """)
    a.lab("B_fin")
    if GM() == 2:
        a("s_waitcnt vmcnt(0)")
        a(f"s_cmp_eq_u32 s{BB}, 0")
        a("s_cbranch_scc1 B_fin2")
        a(f"v_sub_f32 v{G[0]}, 1.0, v{G[0]}")
        a(f"v_sub_f32 v{G[1]}, 1.0, v{G[1]}")
        a.lab("B_fin2")
    for x in range(2):
        o = O[x]
        a(f"v_rcp_f32 v{T0}, v{o+8}")
        a("s_nop 0")
        a(f"v_mul_f32 v{T0}, v{T0}, v{G[x]}")
        for r in range(8):
            a(f"v_mul_f32 v{o+r}, v{o+r}, v{T0}")
        for r in range(4):
            a(f"v_cvt_pk_bf16_f32 v{o+r}, v{o+2*r}, v{o+2*r+1}")
    a(f"""
    s_lshl_b32 s40, s{QT}, 6
    s_add_u32 s40, s40, s{PAIR}
    s_lshl_b32 s40, s40, 10
    s_add_u32 s40, s40, {WS_O}
    s_add_u32 s41, s40, 65536
    buffer_store_dwordx4 {vr(O[0],4)}, v2, {WSRD}, s40 offen sc1
    buffer_store_dwordx4 {vr(O[1],4)}, v2, {WSRD}, s41 offen sc1
    """)
    if OPT.get("oflag", 0):
        a(f"""
        s_lshl_b32 s40, s{MT}, 9
        s_lshl_b32 s41, s{QH}, 8
        s_add_u32 s40, s40, s41
        s_lshl_b32 s41, s{CG}, 4
        s_add_u32 s40, s40, s41
        s_lshl_b32 s41, s{H4}, 2
        s_add_u32 s40, s40, s41
        s_add_u32 s40, s40, {WS_F+2048}
        v_mov_b32 v4, 0
        v_mov_b32 v5, s{NONCE}
        s_waitcnt vmcnt(0)
        s_mov_b64 exec, 1
        buffer_store_dword v5, v4, {WSRD}, s40 offen sc1
        s_mov_b64 exec, -1
        """)
        stamp(a, 7)
    else:
        a("s_waitcnt vmcnt(0)")
        a("s_barrier")
        stamp(a, 7)
        a(f"""
        s_cmp_lg_u32 s{WV}, 0
        s_cbranch_scc1 B_opub_done
        s_lshl_b32 s40, s{MT}, 9
        s_lshl_b32 s41, s{CG}, 2
        s_add_u32 s40, s40, s41
        s_add_u32 s40, s40, {WS_F+2048}
        v_mov_b32 v4, 0
        v_mov_b32 v5, s{NONCE}
        s_mov_b64 exec, 1
        buffer_store_dword v5, v4, {WSRD}, s40 offen sc1
        s_mov_b64 exec, -1
        """)
    a.lab("B_opub_done")

def c_prefetch_setup(a):
    a(f"""
    v_lshrrev_b32 v212, 3, v1
    v_and_b32 v213, 7, v1
    v_bfe_u32 v214, v1, 4, 1
    v_lshlrev_b32 v214, 2, v214
    v_xor_b32 v214, v213, v214
    v_lshlrev_b32 v214, 4, v214
    v_lshl_add_u32 v212, v212, 10, v214
    s_cmp_lt_u32 s{WV}, 4
    s_cselect_b32 s60, s8, s14
    s_cselect_b32 s61, s9, s15
    s_and_b32 s56, s{WV}, 3
    s_lshl_b32 s56, s56, 17
    s_and_b32 s57, s{CG}, 7
    s_lshl_b32 s57, s57, 7
    s_add_u32 s56, s56, s57
    s_add_u32 s60, s60, s56
    s_addc_u32 s61, s61, 0
    s_sub_u32 s62, 524288, s56
    s_mov_b32 s63, 0x20000
    s_lshl_b32 s58, s{WV}, 14
    s_mov_b32 s59, 0
    """)

def phase_c(a):
    MT64, NT, KQ, TT = 30, 31, 32, 33
    OF = 64
    ACC = 128
    a(f"""
    s_lshl_b32 s{MT64}, s{MT}, 1
    s_lshr_b32 s40, s{CG}, 3
    s_add_u32 s{MT64}, s{MT64}, s40
    s_and_b32 s{NT}, s{CG}, 7
    s_lshr_b32 s{KQ}, s{WV}, 1
    s_and_b32 s{TT}, s{WV}, 1
    v_lshrrev_b32 v5, 4, v1
    s_lshl_b32 s44, s{MT}, 9
    s_lshr_b32 s40, s{CG}, 3
    s_lshl_b32 s40, s40, 8
    s_add_u32 s44, s44, s40
    s_lshl_b32 s40, s{KQ}, 6
    s_add_u32 s44, s44, s40
    s_add_u32 s44, s44, {WS_F+2048}
    v_lshlrev_b32 v6, 2, v1
    s_mov_b32 s47, 0
    s_lshl_b32 s45, s{MT64}, 1
    s_add_u32 s45, s45, s{TT}
    s_lshl_b32 s45, s45, 6
    s_lshl_b32 s46, s{KQ}, 4
    s_add_u32 s45, s45, s46
    s_lshl_b32 s45, s45, 10
    s_add_u32 s45, s45, {WS_O}
    """)
    if OPT.get("oflag", 0):
        for g in range(4):
            m = 0xf << (4*g)
            a(f"s_and_b32 s40, s47, {m}")
            a(f"s_cmp_eq_u32 s40, {m}")
            a(f"s_cbranch_scc1 C_rdy{g}")
            a("s_mov_b32 s69, 0")
            a.lab(f"C_poll{g}")
            a(f"""
            s_mov_b64 exec, 0xffff
            buffer_load_dword v7, v6, {WSRD}, s44 offen sc1
            s_add_u32 s69, s69, 1
            s_waitcnt vmcnt(0)
            v_cmp_eq_u32 vcc, s{NONCE}, v7
            s_mov_b64 exec, -1
            s_mov_b32 s47, vcc_lo
            s_and_b32 s40, s47, {m}
            s_cmp_eq_u32 s40, {m}
            s_cbranch_scc1 C_rdy{g}
            s_sleep {OPT.get("sleep", 4)}
            s_cmp_lt_u32 s69, 200000
            s_cbranch_scc1 C_poll{g}
            """)
            a.lab(f"C_rdy{g}")
            if g == 3:
                stamp(a, 8)
            for i in range(4*g, 4*g+4):
                a(f"buffer_load_dwordx4 {vr(OF+4*i,4)}, v2, {WSRD}, s45 offen offset:{(i%4)*1024} sc1")
            if g < 3:
                a("s_add_u32 s45, s45, 4096")
    else:
        a(f"""
        s_lshl_b32 s44, s{MT}, 9
        s_add_u32 s44, s44, {WS_F+2048}
        s_cmp_lg_u32 s{WV}, 0
        s_cbranch_scc1 C_wait_done
        s_mov_b32 s69, 0
        """)
        a.lab("C_poll")
        a(f"""
        s_mov_b64 exec, 0xffff
        buffer_load_dword v7, v6, {WSRD}, s44 offen sc1
        s_add_u32 s69, s69, 1
        s_waitcnt vmcnt(0)
        v_cmp_eq_u32 vcc, s{NONCE}, v7
        s_mov_b64 exec, -1
        s_cmp_eq_u32 vcc_lo, 0xffff
        s_cbranch_scc1 C_wait_done
        s_cmp_lt_u32 s69, 200000
        s_cbranch_scc1 C_poll
        """)
        a.lab("C_wait_done")
        a("s_barrier")
        stamp(a, 8)
        for i in range(16):
            if i and i % 4 == 0:
                a("s_add_u32 s45, s45, 4096")
            a(f"buffer_load_dwordx4 {vr(OF+4*i,4)}, v2, {WSRD}, s45 offen offset:{(i%4)*1024} sc1")
    a(f"""
    v_lshrrev_b32 v21, 5, v1
    v_and_b32 v26, 15, v1
    v_lshrrev_b32 v27, 2, v26
    v_lshl_add_u32 v28, v21, 2, v27
    v_lshlrev_b32 v28, 7, v28
    v_and_b32 v29, 1, v5
    v_lshlrev_b32 v29, 1, v29
    v_bfe_u32 v30, v26, 1, 1
    v_add_u32 v29, v29, v30
    v_bfe_u32 v30, v27, 1, 1
    v_lshlrev_b32 v30, 2, v30
    v_xor_b32 v29, v29, v30
    v_lshl_add_u32 v28, v29, 4, v28
    v_and_b32 v30, 1, v26
    v_lshl_add_u32 v28, v30, 3, v28
    s_lshl_b32 s40, s{KQ}, 15
    v_add_u32 v20, s40, v28
    v_xor_b32 v21, 64, v20
    """)
    WFR = [32, 40]
    def rd(i):
        f = WFR[i & 1]
        return [f"ds_read_b64_tr_b16 {vr(f+4*ct+2*u,2)}, v{20+ct} offset:{(16*i+8*u)*128}" for ct in range(2) for u in range(2)]
    for x in rd(0):
        a(x)
    for i in range(16):
        nxt = rd(i+1) if i < 15 else []
        a(f"s_waitcnt vmcnt({15-i}) lgkmcnt(0)")
        f = WFR[i & 1]
        for ct in range(2):
            d = vr(ACC+16*ct, 16)
            c = "0" if i == 0 else d
            a(f"v_mfma_f32_32x32x16_bf16 {d}, {vr(f+4*ct,4)}, {vr(OF+4*i,4)}, {c}")
            for x in nxt[2*ct:2*ct+2]:
                a(x)
    if not OPT.get('lstamp', 0): stamp(a, 9)
    a("s_barrier")
    a(f"""
    v_and_b32 v22, 31, v1
    v_lshrrev_b32 v23, 5, v1
    v_and_b32 v24, 7, v22
    v_lshlrev_b32 v25, 8, v22
    s_lshl_b32 s40, s{KQ}, 14
    s_lshl_b32 s41, s{TT}, 13
    s_add_u32 s40, s40, s41
    v_add_u32 v25, s40, v25
    s_nop 7
    s_nop 7
    """)
    for ct in range(2):
        for q4 in range(4):
            a(f"v_add_u32 v26, {ct*8+2*q4}, v23")
            a(f"v_xor_b32 v26, v26, v24")
            a(f"v_lshl_add_u32 v26, v26, 4, v25")
            a(f"ds_write_b128 v26, {vr(ACC+16*ct+4*q4,4)}")
    a("s_waitcnt lgkmcnt(0)")
    a("s_barrier")
    a("""
    v_lshrrev_b32 v22, 3, v0
    v_and_b32 v23, 7, v0
    v_and_b32 v24, 7, v22
    v_lshlrev_b32 v25, 8, v22
    v_lshlrev_b32 v27, 1, v23
    """)
    for c in range(2):
        a(f"v_add_u32 v26, {c}, v27")
        a(f"v_xor_b32 v26, v26, v24")
        a(f"v_lshl_add_u32 v26, v26, 4, v25")
        for k in range(4):
            a(f"ds_read_b128 {vr(64+k*8+c*4,4)}, v26 offset:{k*16384}")
    a(f"""
    s_mov_b32 s60, s18
    s_mov_b32 s61, s19
    s_mov_b32 s62, 2097152
    s_mov_b32 s63, 0x20000
    v_lshlrev_b32 v22, 10, v22
    v_lshl_add_u32 v22, v23, 4, v22
    s_lshl_b32 s40, s{MT64}, 16
    s_lshl_b32 s41, s{NT}, 7
    s_add_u32 s40, s40, s41
    s_waitcnt lgkmcnt(0)
    """)
    for r in range(8):
        a(f"v_add_f32 v{64+r}, v{64+r}, v{72+r}")
        a(f"v_add_f32 v{80+r}, v{80+r}, v{88+r}")
    for r in range(8):
        a(f"v_add_f32 v{64+r}, v{64+r}, v{80+r}")
    for r in range(4):
        a(f"v_cvt_pk_bf16_f32 v{64+r}, v{64+2*r}, v{64+2*r+1}")
    a("buffer_store_dwordx4 v[64:67], v22, s[60:63], s40 offen")
    if not OPT.get("lstamp", 0): stamp(a, 10)

HEAD = open("cdna_kernels/%s.s.ref" % NAME).read().split("; Override")[0]

def main(out):
    a = A()
    gen(a)
    s = HEAD
    s += "; @launch grid=(256,1,1) block=(512,1,1) lds=163840\n"
    s += '.amdgcn_target "amdgcn-amd-amdhsa--gfx950"\n'
    s += a.text()
    s += f""".section .rodata,"a"
.p2align 6
.amdhsa_kernel {KNAME}
  .amdhsa_next_free_vgpr 256
  .amdhsa_next_free_sgpr 102
  .amdhsa_accum_offset 256
  .amdhsa_group_segment_fixed_size 0
  .amdhsa_kernarg_size 80
  .amdhsa_user_sgpr_count 2
  .amdhsa_user_sgpr_kernarg_segment_ptr 1
  .amdhsa_system_sgpr_workgroup_id_x 1
.end_amdhsa_kernel
"""
    open(out, "w").write(s)

if __name__ == "__main__":
    if "--prof" in sys.argv:
        PROF = True
        sys.argv.remove("--prof")
    for x in list(sys.argv):
        if x.startswith("--") and "=" in x:
            k, v = x[2:].split("=")
            OPT[k] = int(v)
            sys.argv.remove(x)
    set_nslot(OPT.get("nslot", 3))
    main(sys.argv[1] if len(sys.argv) > 1 else "fused3.s")
```

```python
import sys, struct

NAME = "gated_mix__mha_block__mha_block__prompt"
KNAME = NAME + "_kernel"
WS_KV = 4 << 20
WS_O = 12 << 20
WS_F = 16 << 20
WS_GF = WS_F + 2048 + 8192
WS_G = WS_GF + 2048
WS_END = WS_G + 8192
RELAY = 160000
NONCE = 68
WS_T = 32 << 20
QSCALE = 0.25 * 1.4426950408889634
LOG2E = 1.4426950408889634
PROF = False
OPT = dict(prio=1, rot=1, pfu=0)
NST = 12
SB = 70

def f32(x):
    return "0x%08x" % struct.unpack("<I", struct.pack("<f", x))[0]

class A:
    def __init__(self):
        self.l = []
    def __call__(self, s):
        for x in s.strip().split("\n"):
            if x.strip():
                self.l.append("  " + x.strip())
    def lab(self, s):
        self.l.append(s + ":")
    def raw(self, s):
        self.l.append(s)
    def text(self):
        return "\n".join(self.l) + "\n"

def vr(b, n):
    return f"v[{b}:{b+n-1}]"
def u32(x):
    return x & 0xffffffff

def GM():
    return OPT.get('gm', 2)
def GMF():
    return GM() == 1
def stamp(a, k):
    if PROF:
        a(f"s_memtime s[{SB+2*k}:{SB+2*k+1}]")

WV = 3
XCD, SLOT_ = 24, 25
CG, MT, BB, HG = 26, 27, 28, 29
SRDW = 36
DBG = 20
WS = 22
WSRD = f"s[{SRDW}:{SRDW+3}]"

def gen(a):
    a.raw(".text")
    a.raw(f".globl {KNAME}")
    a.raw(".p2align 8")
    a.raw(f".type {KNAME},@function")
    a.lab(KNAME)
    a("s_cmp_ge_u32 s2, 256")
    a("s_cbranch_scc1 L_end")
    if PROF:
        a(f"s_memrealtime s[{SB+2*NST}:{SB+2*NST+1}]")
        stamp(a, 0)
    a(f"""
    s_load_dwordx4 s[4:7], s[0:1], 0
    s_load_dwordx2 s[8:9], s[0:1], 16
    s_load_dwordx4 s[12:15], s[0:1], 32
    s_load_dwordx4 s[16:19], s[0:1], 48
    s_load_dwordx4 s[20:23], s[0:1], 64
    v_lshrrev_b32 v2, 6, v0
    v_and_b32 v1, 63, v0
    s_and_b32 s{XCD}, s2, 7
    s_lshr_b32 s{SLOT_}, s2, 3
    v_readfirstlane_b32 s{WV}, v2
    v_lshlrev_b32 v2, 4, v1
    s_lshr_b32 s40, s{XCD}, 1
    s_lshl_b32 s40, s40, 2
    s_and_b32 s41, s{SLOT_}, 3
    s_add_u32 s{CG}, s40, s41
    s_lshr_b32 s{BB}, s{CG}, 3
    s_and_b32 s{HG}, s{CG}, 7
    s_and_b32 s{MT}, s{XCD}, 1
    s_lshl_b32 s{MT}, s{MT}, 3
    s_lshr_b32 s41, s{SLOT_}, 2
    s_add_u32 s{MT}, s{MT}, s41
    """)
    if OPT.get("diag", 0):
        a("s_memrealtime s[94:95]")
        a("s_memtime s[96:97]")
    phase_a(a)
    phase_b(a)
    phase_c(a)
    if OPT.get("diag", 0):
        a(f"""
        s_waitcnt vmcnt(0)
        s_memrealtime s[90:91]
        s_memtime s[92:93]
        s_waitcnt lgkmcnt(0)
        s_sub_u32 s92, s92, s96
        s_not_b32 s94, s94
        s_and_b32 s91, s2, 15
        s_or_b32 s91, s91, s{WV}
        s_cmp_lg_u32 s91, 0
        s_cbranch_scc1 L_end
        s_mov_b64 exec, 1
        v_mov_b32 v4, 16
        v_mov_b32 v5, s92
        global_atomic_umax v4, v5, s[{DBG}:{DBG+1}]
        v_mov_b32 v4, 20
        v_mov_b32 v5, s90
        global_atomic_umax v4, v5, s[{DBG}:{DBG+1}]
        v_mov_b32 v4, 24
        v_mov_b32 v5, s94
        global_atomic_umax v4, v5, s[{DBG}:{DBG+1}]
        s_mov_b64 exec, -1
        """)
    if PROF:
        a("s_waitcnt vmcnt(0)")
        a(f"s_memrealtime s[{SB+2*NST+2}:{SB+2*NST+3}]")
        stamp(a, NST-1)
        a("s_waitcnt lgkmcnt(0)")
        if OPT.get("lprof", 0):
            for k, r in ((8, 98), (9, 99), (10, 100)):
                a(f"s_add_u32 s{SB+2*k}, s{SB}, s{r}")
                a(f"s_addc_u32 s{SB+2*k+1}, s{SB+1}, 0")
            a.lab("L_nolp")
        a(f"""
        s_lshl_b32 s40, s2, 4
        s_add_u32 s40, s40, s{WV}
        s_lshl_b32 s40, s40, 7
        s_add_u32 s40, s40, {WS_T}
        s_add_u32 s40, s{WS}, s40
        s_addc_u32 s41, s{WS+1}, 0
        s_mov_b64 exec, 1
        v_mov_b32 v4, 0
        """)
        for k in range(NST+2):
            a(f"v_mov_b32 v6, s{SB+2*k}")
            a(f"v_mov_b32 v7, s{SB+2*k+1}")
            a(f"global_store_dwordx2 v4, v[6:7], s[40:41] offset:{8*k}")
            a("s_nop 1")
    a.lab("L_end")
    a("s_endpgm")
    a.lab("L_codeend")

SLOT = 40960
NSLOT = 3
GIMG = NSLOT * SLOT
def set_nslot(n):
    global NSLOT, GIMG
    NSLOT = n
    GIMG = 3 * SLOT
QX, KVX, GX = 0, 16384, 49152

def phase_a(a):
    a(f"""
    v_lshrrev_b32 v5, 4, v1
    s_cmp_ge_u32 s{WV}, 4
    s_cbranch_scc0 A_compute
    """)
    LW = 30
    a(f"""
    s_sub_u32 s{LW}, s{WV}, 4
    s_setprio 3
    v_lshrrev_b32 v3, 3, v1
    v_and_b32 v4, 7, v1
    v_xor_b32 v6, v4, v5
    v_lshlrev_b32 v6, 4, v6
    v_lshl_add_u32 v10, v3, 10, v6
    v_add_u32 v7, 4, v5
    v_xor_b32 v7, v4, v7
    v_lshlrev_b32 v7, 4, v7
    v_lshl_add_u32 v11, v3, 10, v7
    v_and_b32 v8, 1, v5
    v_lshlrev_b32 v8, 2, v8
    v_xor_b32 v8, v4, v8
    v_lshlrev_b32 v8, 4, v8
    v_mul_u32_u24 v9, 3072, v3
    v_add_u32 v12, v9, v8
    s_lshl_b32 s54, s{LW}, 15
    """)
    for u in range(4):
        a(f"s_add_u32 s{44+u}, s54, {u*8192}")
    a(f"s_mul_i32 s54, s{LW}, 49152")
    for g3 in range(3):
        for e in range(2):
            a(f"s_add_u32 s{48+g3*2+e}, s54, {g3*1024 + e*8*3072}")
    a(f"""
    s_lshl_b32 s55, s{LW}, 12
    s_lshl_b32 s56, s{LW}, 11
    s_add_u32 s56, s56, 16384
    s_lshl_b32 s40, s{MT}, 17
    s_lshl_b32 s41, s{HG}, 7
    s_mov_b32 s62, 131072
    s_mov_b32 s63, 0x20000
    s_sub_u32 s34, 1572864, s41
    s_mov_b32 s35, 0x20000
    """)
    if OPT["rot"]:
        a(f"s_mov_b32 s57, s{XCD}")
    else:
        a("s_mov_b32 s57, 0")
    a(f"""
    s_lshl_b32 s42, s57, 7
    v_add_u32 v10, s42, v10
    v_add_u32 v11, s42, v11
    s_mul_i32 s42, s57, 196608
    v_add_u32 v12, s42, v12
    s_mov_b32 s64, {u32(-896)}
    s_mov_b32 s65, 128
    s_mov_b32 s66, {u32(-7*196608)}
    s_mov_b32 s67, 196608
    s_waitcnt lgkmcnt(0)
    s_cmp_eq_u32 s{BB}, 0
    s_cselect_b32 s32, s6, s12
    s_cselect_b32 s33, s7, s13
    s_add_u32 s60, s4, s40
    s_addc_u32 s61, s5, 0
    s_add_u32 s32, s32, s41
    s_addc_u32 s33, s33, 0
    """)
    def issue_stage(extra=None):
        extra = list(extra or [])
        seq = [("w",0,0),("x",0,0),("w",0,1),("x",1,0),("w",1,0),("x",2,0),("w",1,1),("x",3,0),("w",2,0),("w",2,1)]
        for n, (kind, i, e) in enumerate(seq):
            if kind == "x":
                a(f"s_add_u32 m0, s55, {i*1024}")
                a("s_add_u32 s57, s57, 1" if n == 1 else ("s_and_b32 s57, s57, 7" if n == 3 else "s_nop 0"))
                a(f"buffer_load_dwordx4 v{10+(i&1)}, s[60:63], s{44+i} offen lds")
            else:
                a(f"s_add_u32 m0, s56, {i*8192+e*1024}")
                a("s_cmp_eq_u32 s57, 0" if n == 4 else "s_nop 0")
                a(f"buffer_load_dwordx4 v12, s[32:35], s{48+i*2+e} offen lds")
                if n == 4:
                    a("s_cselect_b32 s42, s64, s65")
                    a("s_cselect_b32 s43, s66, s67")
            if n >= 2 and extra:
                k = 1 if n == 2 else 3
                for _ in range(k):
                    if extra: a(extra.pop(0))
        for x in extra:
            a(x)
        a("v_add_u32 v10, s42, v10")
        a("v_add_u32 v11, s42, v11")
        a("v_add_u32 v12, s43, v12")
        a(f"s_add_u32 s55, s55, {SLOT}")
        a(f"s_add_u32 s56, s56, {SLOT}")
        a(f"s_cmp_ge_u32 s56, {NSLOT*SLOT}")
        a(f"s_cselect_b32 s54, {NSLOT*SLOT}, 0")
        a("s_sub_u32 s55, s55, s54")
        a("s_sub_u32 s56, s56, s54")
    a(f"""
    s_mov_b32 s{SRDW}, s16
    s_mov_b32 s{SRDW+1}, s17
    s_mov_b32 s{SRDW+2}, 1024
    s_mov_b32 s{SRDW+3}, 0x20000
    s_lshl_b32 s43, s{LW}, 8
    s_add_u32 m0, s43, {GIMG}
    """)
    if GM() == 2:
        pass
    elif not OPT.get("nogate", 0):
        a(f"""
        s_mov_b64 exec, 0xffff
        buffer_load_dwordx4 v2, {WSRD}, s43 offen lds
        s_mov_b64 exec, -1
        """)
    if GM() == 0:
        a(f"""
        v_and_b32 v20, 31, v1
        v_lshrrev_b32 v21, 5, v1
        v_lshrrev_b32 v22, 1, v1
        v_and_b32 v22, 7, v22
        s_lshl_b32 s40, s{LW}, 12
        v_lshlrev_b32 v23, 7, v20
        v_add_u32 v23, s40, v23
        """)
        for ks in range(4):
            a(f"v_add_u32 v24, {2*ks}, v21")
            a(f"v_xor_b32 v24, v24, v22")
            a(f"v_lshl_add_u32 v{16+ks}, v24, 4, v23")
        a(f"""
        v_lshlrev_b32 v15, 4, v21
        v_add_u32 v15, {GIMG}, v15
        v_mov_b32 v64, 0
        s_mov_b32 s59, 0
        """)
        if OPT["rot"]:
            a(f"s_mov_b32 s31, s{XCD}")
        else:
            a("s_mov_b32 s31, 0")
    LK = OPT.get("look", 2)
    if OPT.get("pfwait", 0):
        a("s_barrier")
    for _ in range(LK):
        issue_stage()
    def gate_reads():
        if OPT.get("nogate", 0) or GM() != 0: return
        a("s_lshl_b32 s40, s31, 7")
        a("v_add_u32 v14, s40, v15")
        for ks in range(4):
            a(f"v_add_u32 v24, s59, v{16+ks}")
            a(f"ds_read_b128 {vr(28+8*ks,4)}, v24")
            a(f"ds_read_b128 {vr(32+8*ks,4)}, v14 offset:{ks*32}")
        a("s_add_u32 s31, s31, 1")
        a("s_and_b32 s31, s31, 7")
        a(f"s_add_u32 s59, s59, {SLOT}")
        a(f"s_cmp_ge_u32 s59, {NSLOT*SLOT}")
        a(f"s_cselect_b32 s40, {NSLOT*SLOT}, 0")
        a("s_sub_u32 s59, s59, s40")
    def gate_dots():
        if OPT.get("nogate", 0) or GM() != 0: return
        a("s_waitcnt lgkmcnt(0)")
        for ks in range(4):
            for q in range(4):
                a(f"v_dot2c_f32_bf16 v64, v{28+8*ks+q}, v{32+8*ks+q}")
    if OPT.get("ldprio", 0) == 0:
        a("s_setprio 0")
    a("s_mov_b32 s58, 0")
    LP = PROF and OPT.get("lprof", 0)
    def tick(acc):
        if LP:
            a("s_memtime s[88:89]")
            a("s_waitcnt lgkmcnt(0)")
            a("s_sub_u32 s87, s88, s86")
            a(f"s_add_u32 s{acc}, s{acc}, s87")
            a("s_mov_b32 s86, s88")
    if LP:
        a("s_memtime s[88:89]")
        a("s_waitcnt lgkmcnt(0)")
        a("s_mov_b32 s86, s88")
        a("s_mov_b32 s80, 0"); a("s_mov_b32 s81, 0"); a("s_mov_b32 s82, 0"); a("s_mov_b32 s83, 0"); a("s_mov_b32 s84, 0"); a("s_mov_b32 s85, 0")
    a.lab("A_ld_loop")
    a(f"s_waitcnt vmcnt({10*(LK-1)})")
    tick(80)
    a("s_barrier")
    tick(82)
    gate_reads()
    issue_stage(None if (OPT.get("nogate", 0) or GM() != 0) else ["s_waitcnt lgkmcnt(0)"] + [f"v_dot2c_f32_bf16 v64, v{28+8*ks+q}, v{32+8*ks+q}" for ks in range(4) for q in range(4)])
    tick(84)
    a("s_add_u32 s58, s58, 1")
    a(f"s_cmp_lt_u32 s58, {8-LK}")
    a("s_cbranch_scc1 A_ld_loop")
    if GM() == 2:
        a(f"""
        s_mov_b32 s{SRDW}, s16
        s_mov_b32 s{SRDW+1}, s17
        s_mov_b32 s{SRDW+2}, 1024
        s_mov_b32 s{SRDW+3}, 0x20000
        v_and_b32 v13, 15, v1
        v_lshlrev_b32 v13, 4, v13
        v_lshl_add_u32 v14, v5, 10, v13
        s_lshl_b32 s40, s{CG}, 3
        s_and_b32 s41, s{LW}, 1
        s_lshl_b32 s41, s41, 2
        s_add_u32 s29, s40, s41
        s_lshl_b32 s41, s29, 10
        s_cmp_ge_u32 s{LW}, 2
        s_cbranch_scc1 A_nogl
        """)
        for i in range(4):
            a(f"buffer_load_dwordx4 {vr(16+4*i,4)}, v14, s[60:63], s41 offen offset:{256*i}")
        for i in range(4):
            a(f"buffer_load_dwordx4 {vr(32+4*i,4)}, v13, {WSRD}, 0 offen offset:{256*i}")
        a.lab("A_nogl")
    for k in range(LK):
        a(f"s_waitcnt vmcnt({10*(LK-1-k)})")
        a("s_barrier")
        gate_reads()
        gate_dots()
    if LP:
        a("s_mov_b32 s98, s80"); a("s_mov_b32 s99, s82"); a("s_mov_b32 s100, s84")
    a("s_setprio 0")
    a(f"""
    s_mov_b32 s{SRDW}, s{WS}
    s_mov_b32 s{SRDW+1}, s{WS+1}
    s_mov_b32 s{SRDW+2}, {WS_END}
    s_mov_b32 s{SRDW+3}, 0x20000
    """)
    if GM() == 1:
        a("s_barrier")
    elif GM() == 2:
        a("s_barrier")
        a(f"s_cmp_ge_u32 s{LW}, 2")
        a("s_cbranch_scc1 A_join")
        a("v_mov_b32 v48, 0")
        a("s_waitcnt vmcnt(0)")
        for i in range(16):
            a(f"v_dot2c_f32_bf16 v48, v{16+i}, v{32+i}")
        a("s_nop 3")
        for rot in (8, 4, 2, 1):
            a(f"v_add_f32_dpp v48, v48, v48 row_ror:{rot} row_mask:0xf bank_mask:0xf")
            a("s_nop 1")
        a(f"""
        v_mul_f32 v48, {f32(-LOG2E)}, v48
        v_exp_f32 v48, v48
        s_nop 0
        v_add_f32 v48, 1.0, v48
        v_rcp_f32 v48, v48
        s_lshl_b32 s41, s{MT}, 7
        s_add_u32 s41, s41, s29
        s_lshl_b32 s41, s41, 2
        s_add_u32 s41, s41, {WS_G}
        v_lshlrev_b32 v49, 2, v5
        v_and_b32 v50, 15, v1
        v_cmp_eq_u32 vcc, 0, v50
        s_and_saveexec_b64 s[58:59], vcc
        buffer_store_dword v48, v49, {WSRD}, s41 offen sc1
        s_mov_b64 exec, s[58:59]
        """)
    else:
        a(f"""
        s_nop 3
        v_mov_b32 v20, v64
        s_nop 1
        v_permlane32_swap_b32 v64, v20
        s_nop 1
        v_add_f32 v64, v64, v20
        v_mul_f32 v64, {f32(-LOG2E)}, v64
        v_exp_f32 v64, v64
        s_nop 0
        v_add_f32 v64, 1.0, v64
        v_rcp_f32 v64, v64
        s_nop 0
        v_sub_f32 v20, 1.0, v64
        s_cmp_eq_u32 s{BB}, 0
        s_cselect_b64 vcc, -1, 0
        s_nop 1
        v_cndmask_b32 v20, v20, v64, vcc
        v_and_b32 v19, 31, v1
        v_lshlrev_b32 v19, 2, v19
        s_lshl_b32 s41, s{LW}, 7
        v_add_u32 v19, s41, v19
        s_barrier
        ds_write_b32 v19, v20 offset:{GX}
        """)
    a("""
    s_branch A_join
    """)
    a.lab("A_compute")
    WM, WN = 30, 31
    a(f"""
    s_and_b32 s{WM}, s{WV}, 1
    s_lshr_b32 s{WN}, s{WV}, 1
    v_and_b32 v20, 31, v1
    v_lshrrev_b32 v21, 5, v1
    v_lshrrev_b32 v22, 1, v1
    v_and_b32 v22, 7, v22
    s_lshl_b32 s40, s{WM}, 13
    v_lshlrev_b32 v23, 7, v20
    v_add_u32 v23, s40, v23
    """)
    for ks in range(4):
        a(f"v_add_u32 v24, {2*ks}, v21")
        a(f"v_xor_b32 v24, v24, v22")
        a(f"v_lshl_add_u32 v{16+ks}, v24, 4, v23")
    a(f"""
    v_and_b32 v26, 15, v1
    v_lshrrev_b32 v27, 2, v26
    v_lshl_add_u32 v28, v21, 3, v27
    v_lshlrev_b32 v28, 7, v28
    v_and_b32 v29, 1, v5
    v_lshlrev_b32 v29, 1, v29
    v_bfe_u32 v30, v26, 1, 1
    v_add_u32 v29, v29, v30
    s_lshl_b32 s40, s{WN}, 2
    v_add_u32 v29, s40, v29
    v_bfe_u32 v30, v27, 1, 1
    v_lshlrev_b32 v30, 2, v30
    v_xor_b32 v29, v29, v30
    v_lshl_add_u32 v28, v29, 4, v28
    v_and_b32 v30, 1, v26
    v_lshl_add_u32 v25, v30, 3, v28
    """)
    ACC = 64
    XF = [32, 160]
    WF = [40, 168]
    GF = [52, 180]
    GACC = 192
    for r in range(96):
        a(f"v_mov_b32 v{ACC+r}, 0")
    if GMF():
        for r in range(16):
            a(f"v_mov_b32 v{GACC+r}, 0")
        a(f"s_mov_b32 s59, s{XCD}" if OPT["rot"] else "s_mov_b32 s59, 0")
        a(f"""
        s_lshl_b32 s40, s59, 7
        v_lshlrev_b32 v15, 4, v21
        v_add_u32 v15, {GIMG}, v15
        v_add_u32 v14, s40, v15
        s_cmp_eq_u32 s{WN}, 0
        s_cselect_b64 vcc, -1, 0
        """)
    a(f"""
    s_lshl_b32 s40, s{CG}, 2
    s_lshl_b32 s41, s{WN}, 1
    s_add_u32 s40, s40, s41
    s_lshl_b32 s40, s40, 6
    s_lshl_b32 s41, s{MT}, 2
    s_add_u32 s40, s40, s41
    s_lshl_b32 s41, s{WM}, 1
    s_add_u32 s40, s40, s41
    s_lshl_b32 s46, s40, 11
    s_add_u32 s46, s46, {WS_KV}
    s_mov_b32 s48, {f32(QSCALE)}
    v_and_b32 v11, 15, v1
    v_lshlrev_b32 v11, 4, v11
    v_lshl_add_u32 v11, v21, 9, v11
    v_bfe_u32 v12, v1, 4, 1
    v_lshl_add_u32 v13, v12, 13, v11
    v_lshl_add_u32 v11, v12, 17, v11
    v_add_u32 v11, 1024, v11
    s_add_u32 s47, s46, 131072
    s_mov_b32 s{SRDW+2}, {WS_END}
    s_mov_b32 s{SRDW+3}, 0x20000
    s_mov_b32 s57, 0
    s_mov_b32 s58, 0
    """)
    def set_addr():
        for ks in range(4):
            a(f"v_add_u32 v{20+ks}, s57, v{16+ks}")
        a("v_add_u32 v24, s57, v25")
    set_addr()
    a("s_waitcnt lgkmcnt(0)")
    a(f"s_mov_b32 s{SRDW}, s{WS}")
    a(f"s_mov_b32 s{SRDW+1}, s{WS+1}")
    if OPT.get("wpf", 0):
        a(f"""
        s_lshl_b32 s40, s2, 2
        s_add_u32 s40, s40, s{WV}
        s_and_b32 s41, s40, 511
        s_mul_i32 s41, s41, 3072
        s_cmp_lt_u32 s40, 512
        s_cselect_b32 s42, s6, s12
        s_cselect_b32 s43, s7, s13
        s_add_u32 s42, s42, s41
        s_addc_u32 s43, s43, 0
        global_load_dwordx4 v[208:211], v2, s[42:43]
        global_load_dwordx4 v[208:211], v2, s[42:43] offset:1024
        global_load_dwordx4 v[208:211], v2, s[42:43] offset:2048
        s_lshl_b32 s40, s2, 3
        s_lshl_b32 s41, s{WV}, 1
        s_add_u32 s40, s40, s41
        s_lshl_b32 s40, s40, 10
        s_add_u32 s42, s4, s40
        s_addc_u32 s43, s5, 0
        global_load_dwordx4 v[208:211], v2, s[42:43]
        global_load_dwordx4 v[208:211], v2, s[42:43] offset:1024
        """)
    if OPT.get("pfwait", 0):
        a("s_waitcnt vmcnt(0)")
        a("s_barrier")
    if OPT.get("cpf", 0):
        a(f"""
        s_cmp_lg_u32 s{WV}, 3
        s_cbranch_scc1 A_nocpf
        s_cmp_ge_u32 s{SLOT_}, (L_codeend-{KNAME})>>10
        s_cbranch_scc1 A_nocpf
        s_getpc_b64 s[42:43]
        """)
        a.lab("A_pc")
        a(f"""
        s_sub_u32 s42, s42, A_pc-{KNAME}
        s_subb_u32 s43, s43, 0
        s_lshl_b32 s40, s{SLOT_}, 10
        s_add_u32 s42, s42, s40
        s_addc_u32 s43, s43, 0
        global_load_dwordx4 v[208:211], v2, s[42:43]
        """)
        a.lab("A_nocpf")
    if OPT.get("pt", 0):
        a(f"""
        s_cmp_lg_u32 s{WV}, 1
        s_cbranch_scc1 A_nopt1
        s_lshl_b32 s40, s{CG}, 19
        s_add_u32 s40, s40, {WS_KV}
        v_lshlrev_b32 v212, 13, v1
        buffer_load_dword v208, v212, {WSRD}, s40 offen
        """)
        a.lab("A_nopt1")
        a(f"""
        s_cmp_lg_u32 s{WV}, 2
        s_cbranch_scc1 A_nopt2
        v_lshlrev_b32 v212, 16, v1
        s_mov_b32 s40, {WS_O}
        buffer_load_dword v208, v212, {WSRD}, s40 offen
        v_mov_b32 v213, 0
        s_mov_b32 s40, {WS_F}
        buffer_load_dword v209, v213, {WSRD}, s40 offen
        v_lshlrev_b32 v213, 15, v1
        global_load_dword v210, v213, s[18:19]
        v_lshlrev_b32 v214, 13, v1
        global_load_dword v211, v214, s[8:9]
        global_load_dword v211, v214, s[14:15]
        """)
        a.lab("A_nopt2")
    a(f"""
    s_cmp_lg_u32 s{WV}, 0
    s_cbranch_scc1 A_nononce
    s_memrealtime s[40:41]
    s_waitcnt lgkmcnt(0)
    s_or_b32 s40, s40, 1
    v_mov_b32 v186, s40
    v_mov_b32 v187, 0
    v_mov_b32 v188, 0
    s_mov_b64 exec, 1
    global_atomic_cmpswap v189, v188, v[186:187], s[{DBG}:{DBG+1}] sc0
    s_mov_b64 exec, -1
    """)
    a.lab("A_nononce")
    def read_list(ks, f):
        r = []
        r.append(f"ds_read_b64_tr_b16 {vr(WF[f]+0,2)}, v24 offset:{16384+(16*ks+0)*128}")
        r.append(f"ds_read_b64_tr_b16 {vr(WF[f]+2,2)}, v24 offset:{16384+(16*ks+4)*128}")
        r.append(f"ds_read_b128 {vr(XF[f],4)}, v{20+ks} offset:0")
        r.append(f"ds_read_b128 {vr(XF[f]+4,4)}, v{20+ks} offset:4096")
        for g3 in (1, 2):
            for u in range(2):
                r.append(f"ds_read_b64_tr_b16 {vr(WF[f]+4*g3+2*u,2)}, v24 offset:{16384+g3*8192+(16*ks+4*u)*128}")
        if GMF():
            r.append(f"ds_read_b128 {vr(GF[f],4)}, v14 offset:{ks*32}")
        return r
    gl = [0]
    FW = OPT.get("finewait", 1)
    def group(f, rl, barrier=False):
        order = [(0,0),(0,1),(1,0),(1,1),(2,0),(2,1)]
        nold = 9 if GMF() else 8
        need = {0: 3, 1: 4, 2: 6, 4: 8}
        rl = list(rl)
        issued = 0
        per = OPT.get("rpg", 2)
        for i, (g3, tt) in enumerate(order):
            if FW and i in need:
                a(f"s_waitcnt lgkmcnt({min(15, nold - need[i] + issued)})")
            x = vr(XF[f]+4*tt, 4); w = vr(WF[f]+4*g3, 4); d = vr(ACC+16*(tt*3+g3), 16)
            if g3 < 2:
                a(f"v_mfma_f32_32x32x16_bf16 {d}, {w}, {x}, {d}")
            else:
                a(f"v_mfma_f32_32x32x16_bf16 {d}, {x}, {w}, {d}")
            if i == 0 and barrier:
                if PROF and OPT.get("lprof", 0):
                    a("s_memtime s[88:89]")
                a(f"s_waitcnt lgkmcnt(0)")
                a("s_barrier")
                if PROF and OPT.get("lprof", 0):
                    a("s_memtime s[86:87]")
                    a("s_waitcnt lgkmcnt(0)")
                    a("s_sub_u32 s86, s86, s88")
                    a("s_add_u32 s98, s98, s86")
            for _ in range(per):
                if rl:
                    a(rl.pop(0)); issued += 1
        if GMF():
            if FW:
                a(f"s_waitcnt lgkmcnt({min(15, issued)})")
            n = gl[0]; gl[0] += 1
            d = vr(GACC, 16)
            a(f"s_cbranch_vccz A_g{n}a")
            a(f"v_mfma_f32_32x32x16_bf16 {d}, {vr(GF[f],4)}, {vr(XF[f],4)}, {d}")
            a(f"s_branch A_g{n}b")
            a.lab(f"A_g{n}a")
            a(f"v_mfma_f32_32x32x16_bf16 {d}, {vr(GF[f],4)}, {vr(XF[f]+4,4)}, {d}")
            a.lab(f"A_g{n}b")
        for x in rl:
            a(x)
    a("s_barrier")
    stamp(a, 1)
    for x in read_list(0, 0):
        a(x)
    if PROF and OPT.get("lprof", 0):
        a("s_mov_b32 s98, 0"); a("s_mov_b32 s99, 0"); a("s_mov_b32 s100, 0")
    a.lab("A_loop")
    for ks in range(3):
        if not FW: a("s_waitcnt lgkmcnt(0)")
        group(ks & 1, read_list(ks+1, (ks+1) & 1))
    a("s_cmp_eq_u32 s58, 7")
    a("s_cbranch_scc1 A_last")
    a(f"""
    s_add_u32 s57, s57, {SLOT}
    s_cmp_ge_u32 s57, {NSLOT*SLOT}
    s_cselect_b32 s40, {NSLOT*SLOT}, 0
    s_sub_u32 s57, s57, s40
    """)
    if GMF():
        a("""
        s_add_u32 s59, s59, 1
        s_and_b32 s59, s59, 7
        s_lshl_b32 s40, s59, 7
        v_add_u32 v14, s40, v15
        """)
    set_addr()
    if not FW: a("s_waitcnt lgkmcnt(0)")
    group(1, read_list(0, 0), barrier=True)
    a("s_add_u32 s58, s58, 1")
    a("s_branch A_loop")
    a.lab("A_last")
    if not FW: a("s_waitcnt lgkmcnt(0)")
    group(1, [])
    stamp(a, 2)
    a("s_barrier")
    a(f"""
    s_lshl_b32 s40, s{WN}, 3
    s_lshl_b32 s41, s{WM}, 1
    s_add_u32 s40, s40, s41
    s_lshl_b32 s41, s40, 10
    v_add_u32 v16, s41, v2
    s_lshl_b32 s41, s40, 11
    v_add_u32 v17, s41, v2
    v_add_u32 v18, s41, v13
    s_nop 3
    """)
    a(f"""
    s_cmp_lg_u32 s{WV}, 0
    s_cbranch_scc1 A_nononce2
    s_waitcnt vmcnt(0)
    v_cmp_eq_u32 vcc, 0, v189
    s_nop 1
    v_cndmask_b32 v186, v189, v186, vcc
    v_mov_b32 v188, {RELAY}
    s_mov_b64 exec, 1
    ds_write_b64 v188, v[186:187]
    s_mov_b64 exec, -1
    """)
    a.lab("A_nononce2")
    STF = {0: ' sc1', 1: ' sc0 sc1', 2: ' sc1 nt', 3: ' sc0 sc1 nt'}[OPT.get('stf', 0)]
    for tt in range(2):
        d = ACC + 16*(tt*3+1)
        for r in range(8):
            a(f"v_cvt_pk_bf16_f32 v{d+r}, v{d+2*r}, v{d+2*r+1}")
        a(f"buffer_store_dwordx4 {vr(d,4)}, v2, {WSRD}, s46 offen offset:{tt*2048}{STF}")
        a(f"buffer_store_dwordx4 {vr(d+4,4)}, v2, {WSRD}, s47 offen offset:{tt*2048}{STF}")
        a(f"ds_write_b128 v17, {vr(d,4)} offset:{KVX+tt*2048}")
        a(f"ds_write_b128 v17, {vr(d+4,4)} offset:{KVX+tt*2048+8192}")
        d = ACC + 16*(tt*3+2)
        for r in range(8):
            a(f"v_cvt_pk_bf16_f32 v{d+r}, v{d+2*r}, v{d+2*r+1}")
        a(f"buffer_store_dwordx4 {vr(d,4)}, v11, {WSRD}, s46 offen offset:{tt*2048}{STF}")
        a(f"buffer_store_dwordx4 {vr(d+4,4)}, v11, {WSRD}, s46 offen offset:{tt*2048+256}{STF}")
        a(f"ds_write_b128 v18, {vr(d,4)} offset:{KVX+tt*2048+1024}")
        a(f"ds_write_b128 v18, {vr(d+4,4)} offset:{KVX+tt*2048+1280}")
    for tt in range(2):
        d = ACC + 16*(tt*3+0)
        for r in range(16):
            a(f"v_mul_f32 v{d+r}, s48, v{d+r}")
        for r in range(8):
            a(f"v_cvt_pk_bf16_f32 v{d+r}, v{d+2*r}, v{d+2*r+1}")
        a(f"ds_write_b128 v16, {vr(d,4)} offset:{QX+tt*1024}")
        a(f"ds_write_b128 v16, {vr(d+4,4)} offset:{QX+tt*1024+4096}")
    if GMF():
        g = GACC
        a(f"""
        v_mul_f32 v{g}, {f32(-LOG2E)}, v{g}
        v_exp_f32 v{g}, v{g}
        s_nop 0
        v_add_f32 v{g}, 1.0, v{g}
        v_rcp_f32 v{g}, v{g}
        s_nop 0
        v_sub_f32 v20, 1.0, v{g}
        s_cmp_eq_u32 s{BB}, 0
        s_cselect_b64 vcc, -1, 0
        v_and_b32 v19, 31, v1
        v_lshlrev_b32 v19, 2, v19
        v_cndmask_b32 v20, v20, v{g}, vcc
        s_lshl_b32 s41, s{WM}, 8
        s_lshl_b32 s40, s{WN}, 7
        s_add_u32 s41, s41, s40
        v_add_u32 v19, s41, v19
        ds_write_b32 v19, v20 offset:{GX}
        """)
    a.lab("A_join")
    a("s_waitcnt lgkmcnt(0)")
    a("s_barrier")
    stamp(a, 3)

def spin(a, lab, addr_v, val_v, cond):
    a("s_mov_b32 s69, 0")
    a.lab(lab)
    a(f"global_load_dword v{val_v}, v{addr_v}, s[{DBG}:{DBG+1}] sc1")
    a("s_add_u32 s69, s69, 1")
    a("s_waitcnt vmcnt(0)")
    cond()
    a(f"s_cbranch_scc1 {lab}_ok")
    a("s_cmp_lt_u32 s69, 200000")
    a(f"s_cbranch_scc1 {lab}")
    a.lab(lab + "_ok")

def phase_b(a):
    Q = [4, 8]; S = [12, 28]; O = [44, 60]; C = [76, 92]
    KB = lambda s, u: 108 + s*16 + u*4
    VB = lambda s, u: 140 + s*32 + u*8
    G = [204, 205]; T0 = 206; T1 = 207; T2 = 208
    H4, QH, PAIR, QT = 30, 31, 32, 33
    a(f"""
    s_lshr_b32 s{H4}, s{WV}, 1
    s_and_b32 s{QH}, s{WV}, 1
    s_lshl_b32 s{PAIR}, s{CG}, 2
    s_add_u32 s{PAIR}, s{PAIR}, s{H4}
    s_lshl_b32 s{QT}, s{MT}, 2
    s_lshl_b32 s40, s{QH}, 1
    s_add_u32 s{QT}, s{QT}, s40
    s_lshl_b32 s46, s{PAIR}, 17
    s_add_u32 s46, s46, {WS_KV}
    s_lshl_b32 s40, s{H4}, 12
    s_lshl_b32 s41, s{QH}, 11
    s_add_u32 s40, s40, s41
    v_add_u32 v{T0}, s40, v2
    ds_read_b128 {vr(Q[0],4)}, v{T0} offset:{QX}
    ds_read_b128 {vr(Q[1],4)}, v{T0} offset:{QX+1024}
    v_and_b32 v{T1}, 31, v1
    v_lshlrev_b32 v{T1}, 2, v{T1}
    s_lshl_b32 s41, s{QH}, 8
    v_add_u32 v{T1}, s41, v{T1}
    """)
    if GM() != 2:
        a(f"ds_read_b32 v{G[0]}, v{T1} offset:{GX}")
        a(f"ds_read_b32 v{G[1]}, v{T1} offset:{GX+128}")
    a(f"""
    v_and_b32 v{T0}, 27, v1
    v_cmp_eq_u32 vcc, 16, v{T0}
    v_mov_b32 v{T1}, 0x3f803f80
    s_nop 0
    v_cndmask_b32 v{T0}, 0, v{T1}, vcc
    """)
    for r in range(64):
        a(f"v_mov_b32 v{VB(0,0)+r}, v{T0}")
    a(f"""
    s_mov_b32 s52, 0x0000ffff
    s_mov_b32 s53, 0x0000ffff
    s_lshl_b32 s40, s{H4}, 13
    v_add_u32 v{T0}, s40, v2
    """)
    for u in range(4):
        a(f"ds_read_b128 {vr(KB(0,u),4)}, v{T0} offset:{KVX+u*2048}")
    a("s_mov_b64 exec, s[52:53]")
    for u in range(4):
        a(f"ds_read_b128 {vr(VB(0,u),4)}, v{T0} offset:{KVX+u*2048+1024}")
        a(f"ds_read_b128 {vr(VB(0,u)+4,4)}, v{T0} offset:{KVX+u*2048+1280}")
    a("s_mov_b64 exec, -1")
    a(f"v_mov_b32 v{T2}, {RELAY}")
    a(f"ds_read_b32 v{T2+1}, v{T2}")
    a("s_waitcnt lgkmcnt(0)")
    a(f"v_readfirstlane_b32 s{NONCE}, v{T2+1}")
    a("s_barrier")
    stamp(a, 4)
    c_prefetch_setup(a)
    a("s_mov_b32 s49, 0")
    a("s_mov_b32 s50, 0")
    a("s_mov_b32 s54, 0")
    a(f"s_lshl_b32 s45, 1, s{MT}")
    if OPT.get("nodep", 0):
        a("s_mov_b32 s45, 0xffff")
        a("s_mov_b32 s49, 1")
    if OPT["prio"]:
        a("s_setprio 3")
    for x in range(2):
        a(f"v_mfma_f32_32x32x16_bf16 {vr(S[x],16)}, {vr(KB(0,0),4)}, {vr(Q[x],4)}, 0")
    a("s_nop 7")
    a("s_nop 7")
    MX = [T0, T1]
    for x in range(2):
        a(f"v_max3_f32 v{MX[x]}, v{S[x]}, v{S[x]+1}, v{S[x]+2}")
        for r in range(3, 15, 2):
            a(f"v_max3_f32 v{MX[x]}, v{MX[x]}, v{S[x]+r}, v{S[x]+r+1}")
        a(f"v_max_f32 v{MX[x]}, v{MX[x]}, v{S[x]+15}")
    a.lab("B_setmax")
    for x in range(2):
        a(f"""
        v_mov_b32 v{T2}, v{MX[x]}
        s_nop 1
        v_permlane32_swap_b32 v{MX[x]}, v{T2}
        s_nop 1
        v_max_f32 v{MX[x]}, v{MX[x]}, v{T2}
        """)
        for r in range(16):
            a(f"v_sub_f32 v{C[x]+r}, 0, v{MX[x]}")
        for r in range(16):
            a(f"v_mov_b32 v{O[x]+r}, 0")
    a(f"v_mfma_f32_32x32x16_bf16 {vr(S[0],16)}, {vr(KB(0,0),4)}, {vr(Q[0],4)}, {vr(C[0],16)}")
    a(f"s_mov_b32 s44, s{MT}")
    a("s_mov_b32 s55, 0")
    a("s_nop 7")
    def ex(b, lo, hi):
        for r in range(lo, hi):
            a(f"v_exp_f32 v{b+r}, v{b+r}")
    def cv(b, h):
        for r in range(4):
            a(f"v_cvt_pk_bf16_f32 v{b+4*h+r}, v{b+8*h+2*r}, v{b+8*h+2*r+1}")
    def pv(x, vb, h):
        a(f"v_mfma_f32_32x32x16_bf16 {vr(O[x],16)}, {vr(vb+4*h,4)}, {vr(S[x]+4*h,4)}, {vr(O[x],16)}")
    def pf_head(tag):
        if tag == 0:
            a("s_cmp_eq_u32 s49, 0")
            a("s_cbranch_scc1 B_first")
            a.lab("B_first_ret")
        a(f"""
        s_add_u32 s44, s44, 1
        s_and_b32 s44, s44, 15
        s_bitcmp1_b32 s45, s44
        s_cbranch_scc0 B_poll{tag}
        """)
        a.lab(f"B_pf{tag}")
        a(f"""
        s_lshl_b32 s47, s44, 13
        s_add_u32 s47, s47, s46
        s_add_u32 s48, s47, 4096
        """)
    def ldk(s, u):
        so = 47 if u < 2 else 48
        a(f"buffer_load_dwordx4 {vr(KB(s,u),4)}, v2, {WSRD}, s{so} offen offset:{(u&1)*2048} sc1")
    def ldv(s, u):
        so = 47 if u < 2 else 48
        a("s_mov_b64 exec, s[52:53]")
        a(f"buffer_load_dwordx4 {vr(VB(s,u),4)}, v2, {WSRD}, s{so} offen offset:{(u&1)*2048+1024} sc1")
        a(f"buffer_load_dwordx4 {vr(VB(s,u)+4,4)}, v2, {WSRD}, s{so} offen offset:{(u&1)*2048+1280} sc1")
        a("s_mov_b64 exec, -1")
    a.lab("B_loop")
    D = OPT.get("D", 4)
    for s in range(2):
        for u in range(4):
            vb = VB(s, u)
            kn = KB(s, u+1) if u < 3 else KB(1-s, 0)
            qs, qu = (s, u + D) if u + D < 4 else (1 - s, u + D - 4)
            if OPT["prio"] == 2 and s == 1 and u == 0:
                a("s_cmp_lg_u32 s55, 7")
                a("s_cbranch_scc1 B_pm")
                a("s_setprio 0")
                a.lab("B_pm")
            a(f"v_mfma_f32_32x32x16_bf16 {vr(S[1],16)}, {vr(KB(s,u),4)}, {vr(Q[1],4)}, {vr(C[1],16)}")
            if qu == 0:
                pf_head(s)
            guard = (s == 0 and qs == s)
            if guard:
                a("s_cmp_eq_u32 s49, 0")
                a(f"s_cbranch_scc1 B_gk{u}")
            ldk(qs, qu)
            if guard:
                a.lab(f"B_gk{u}")
            ex(S[0], 0, 8)
            cv(S[0], 0)
            ex(S[0], 8, 16)
            a(f"s_waitcnt vmcnt({3*(D-1)+1})")
            pv(0, vb, 0)
            cv(S[0], 1)
            ex(S[1], 0, 2)
            pv(0, vb, 1)
            ex(S[1], 2, 8)
            a(f"s_waitcnt vmcnt({3*D-3})")
            a(f"v_mfma_f32_32x32x16_bf16 {vr(S[0],16)}, {vr(kn,4)}, {vr(Q[0],4)}, {vr(C[0],16)}")
            cv(S[1], 0)
            ex(S[1], 8, 16)
            pv(1, vb, 0)
            cv(S[1], 1)
            if guard:
                a("s_cmp_eq_u32 s49, 0")
                a(f"s_cbranch_scc1 B_gv{u}")
            ldv(qs, qu)
            if guard:
                a.lab(f"B_gv{u}")
            if u == 3 and s == 1:
                a("s_cmp_lt_u32 s50, 4")
                a("s_cbranch_scc1 B_wo")
                a.lab("B_wo_ret")
            pv(1, vb, 1)
    a("s_add_u32 s55, s55, 1")
    if OPT["prio"] == 1:
        a("""
        s_and_b32 s40, s55, 1
        s_cbranch_scc1 B_noprio
        s_cmp_eq_u32 s55, 2
        s_cbranch_scc0 B_p1
        s_setprio 2
        """)
        a.lab("B_p1")
        a("s_cmp_eq_u32 s55, 4")
        a("s_cbranch_scc0 B_p2")
        a("s_setprio 1")
        a.lab("B_p2")
        a("s_cmp_eq_u32 s55, 6")
        a("s_cbranch_scc0 B_noprio")
        a("s_setprio 0")
        a.lab("B_noprio")
    if OPT["prio"] == 2:
        a("s_cmp_lt_u32 s55, 6")
        a("s_cbranch_scc1 B_noprio")
        a("s_setprio 2")
        a("s_cmp_eq_u32 s55, 6")
        a("s_cbranch_scc1 B_noprio")
        a("s_setprio 1")
        a.lab("B_noprio")
    a("s_cmp_ge_u32 s55, 5")
    a("s_cbranch_scc1 B_wobar")
    a.lab("B_wobar_ret")
    if PROF and OPT.get("lstamp", 0):
        a("s_cmp_eq_u32 s55, 1")
        a("s_cbranch_scc0 B_ls1")
        stamp(a, 9)
        a.lab("B_ls1")
        a(f"s_cmp_eq_u32 s55, {OPT.get('ls2', 4)}")
        a("s_cbranch_scc0 B_ls2")
        stamp(a, 10)
        a.lab("B_ls2")
    a("s_cmp_lt_u32 s55, 8")
    a("s_cbranch_scc1 B_loop")
    stamp(a, 6)
    a("s_nop 7")
    a("s_nop 7")
    a("s_cmp_lg_u32 s54, 0")
    a("s_cbranch_scc1 B_fin")
    a(f"v_mov_b32 v{T0}, 0")
    a(f"v_mov_b32 v{T1}, 0")
    for x in range(2):
        o = O[x]
        for r in range(0, 8, 2):
            a(f"v_max3_f32 v{T0}, v{T0}, |v{o+r}|, |v{o+r+1}|")
        a(f"v_max_f32 v{T0}, v{T0}, v{o+8}")
        for r in range(8):
            a(f"v_add_f32 v{T1}, v{T1}, v{o+r}")
    a(f"""
    v_mul_f32 v{T1}, 0, v{T1}
    v_add_f32 v{T0}, v{T0}, v{T1}
    s_mov_b32 s57, {f32(2.0**100)}
    v_cmp_gt_f32 vcc, s57, v{T0}
    s_cmp_eq_u64 vcc, exec
    s_cbranch_scc1 B_fin
    """)
    a(f"""
    s_mov_b32 s54, 1
    v_mov_b32 v{T0}, {f32(-3.0e38)}
    v_mov_b32 v{T1}, {f32(-3.0e38)}
    s_mov_b32 s47, s46
    s_mov_b32 s55, 0
    s_waitcnt vmcnt(0)
    """)
    a.lab("B_maxloop")
    a(f"buffer_load_dwordx4 {vr(KB(1,0),4)}, v2, {WSRD}, s47 offen sc1")
    a("s_waitcnt vmcnt(0)")
    for x in range(2):
        a(f"v_mfma_f32_32x32x16_bf16 {vr(S[x],16)}, {vr(KB(1,0),4)}, {vr(Q[x],4)}, 0")
    a("s_nop 7")
    a("s_nop 7")
    for x in range(2):
        for r in range(0, 16, 2):
            a(f"v_max3_f32 v{MX[x]}, v{MX[x]}, v{S[x]+r}, v{S[x]+r+1}")
    a("s_add_u32 s47, s47, 2048")
    a("s_add_u32 s55, s55, 1")
    a("s_cmp_lt_u32 s55, 64")
    a("s_cbranch_scc1 B_maxloop")
    a("s_branch B_setmax")
    a.lab("B_first")
    a("s_waitcnt vmcnt(0)")
    a("s_barrier")
    stamp(a, 5)
    a("s_mov_b32 s49, 1")
    a(f"""
    s_cmp_lg_u32 s{WV}, 0
    s_cbranch_scc1 B_first_ret
    s_lshl_b32 s40, s{CG}, 7
    s_lshl_b32 s41, s{MT}, 2
    s_add_u32 s40, s40, s41
    s_add_u32 s40, s40, {WS_F}
    v_mov_b32 v{T2}, 0
    v_mov_b32 v{T2+1}, s{NONCE}
    s_mov_b64 exec, 1
    buffer_store_dword v{T2+1}, v{T2}, {WSRD}, s40 offen sc1
    s_lshl_b32 s40, s{MT}, 7
    s_lshl_b32 s41, s{CG}, 2
    s_add_u32 s40, s40, s41
    s_add_u32 s40, s40, {WS_GF}
    buffer_store_dword v{T2+1}, v{T2}, {WSRD}, s40 offen sc1
    s_mov_b64 exec, -1
    s_branch B_first_ret
    """)
    a.lab("B_wobar")
    a("s_cmp_lg_u32 s54, 0")
    a("s_cbranch_scc1 B_wobar_ret")
    a("s_cmp_eq_u32 s55, 6")
    a("s_cbranch_scc1 B_wobar6")
    if GM() == 2:
        a("s_cmp_lg_u32 s55, 5")
        a("s_cbranch_scc1 B_wobar_ret")
        a(f"s_cmp_lg_u32 s{WV}, 0")
        a("s_cbranch_scc1 B_wobar_ret")
        a(f"""
        s_lshl_b32 s40, s{MT}, 7
        s_add_u32 s40, s40, {WS_GF}
        v_lshlrev_b32 v{T2}, 2, v1
        s_mov_b32 s69, 0
        """)
        a.lab("B_gpoll")
        a(f"""
        s_mov_b64 exec, 0xffff
        buffer_load_dword v{T2+1}, v{T2}, {WSRD}, s40 offen sc1
        s_add_u32 s69, s69, 1
        s_waitcnt vmcnt(0)
        v_cmp_eq_u32 vcc, s{NONCE}, v{T2+1}
        s_mov_b64 exec, -1
        s_cmp_eq_u32 vcc_lo, 0xffff
        s_cbranch_scc1 B_wobar_ret
        s_cmp_lt_u32 s69, 200000
        s_cbranch_scc1 B_gpoll
        """)
    a("s_branch B_wobar_ret")
    a.lab("B_wobar6")
    a("s_barrier")
    if GM() == 2:
        a(f"""
        s_lshl_b32 s40, s{QT}, 7
        s_add_u32 s40, s40, {WS_G}
        v_and_b32 v{T2}, 31, v1
        v_lshlrev_b32 v{T2}, 2, v{T2}
        buffer_load_dword v{G[0]}, v{T2}, {WSRD}, s40 offen sc1
        buffer_load_dword v{G[1]}, v{T2}, {WSRD}, s40 offen offset:128 sc1
        """)
    a("s_branch B_wobar_ret")
    a.lab("B_wo")
    for i in range(4):
        a(f"s_add_u32 m0, s58, {i*1024}")
        a(f"s_add_u32 s51, s59, {i*8192}")
        a(f"buffer_load_dwordx4 v212, s[60:63], s51 offen lds")
    a("s_add_u32 s58, s58, 4096")
    a("s_add_u32 s59, s59, 32768")
    a("s_add_u32 s50, s50, 1")
    a("s_branch B_wo_ret")
    for sset in range(2):
        a.lab(f"B_poll{sset}")
        a("s_mov_b32 s69, 0")
        a(f"s_cmp_lg_u32 s{WV}, 0")
        a(f"s_cbranch_scc1 B_lp{sset}")
        a(f"""
        s_lshl_b32 s40, s{CG}, 7
        s_add_u32 s40, s40, {WS_F}
        v_lshlrev_b32 v{T2}, 2, v1
        """)
        a.lab(f"B_gp{sset}")
        a(f"""
        s_mov_b64 exec, 0xffff
        buffer_load_dword v{T2+1}, v{T2}, {WSRD}, s40 offen sc1
        s_add_u32 s69, s69, 1
        s_waitcnt vmcnt(0)
        v_cmp_eq_u32 vcc, s{NONCE}, v{T2+1}
        s_mov_b64 exec, -1
        s_or_b32 s45, s45, vcc_lo
        s_bitcmp1_b32 s45, s44
        s_cbranch_scc1 B_gok{sset}
        s_cmp_lt_u32 s69, 200000
        s_cbranch_scc1 B_gp{sset}
        """)
        a.lab(f"B_gok{sset}")
        a(f"""
        v_mov_b32 v{T2}, {RELAY+4}
        v_mov_b32 v{T2+1}, s45
        ds_write_b32 v{T2}, v{T2+1}
        s_branch B_pf{sset}
        """)
        a.lab(f"B_lp{sset}")
        a(f"v_mov_b32 v{T2}, {RELAY+4}")
        a.lab(f"B_lpl{sset}")
        a(f"""
        ds_read_b32 v{T2+1}, v{T2}
        s_add_u32 s69, s69, 1
        s_waitcnt lgkmcnt(0)
        v_readfirstlane_b32 s40, v{T2+1}
        s_nop 3
        s_or_b32 s45, s45, s40
        s_bitcmp1_b32 s45, s44
        s_cbranch_scc1 B_pf{sset}
        s_cmp_lt_u32 s69, 4000000
        s_cbranch_scc1 B_lpl{sset}
        s_branch B_pf{sset}
        """)
    a.lab("B_fin")
    if GM() == 2:
        a("s_waitcnt vmcnt(0)")
        a(f"s_cmp_eq_u32 s{BB}, 0")
        a("s_cbranch_scc1 B_fin2")
        a(f"v_sub_f32 v{G[0]}, 1.0, v{G[0]}")
        a(f"v_sub_f32 v{G[1]}, 1.0, v{G[1]}")
        a.lab("B_fin2")
    for x in range(2):
        o = O[x]
        a(f"v_rcp_f32 v{T0}, v{o+8}")
        a("s_nop 0")
        a(f"v_mul_f32 v{T0}, v{T0}, v{G[x]}")
        for r in range(8):
            a(f"v_mul_f32 v{o+r}, v{o+r}, v{T0}")
        for r in range(4):
            a(f"v_cvt_pk_bf16_f32 v{o+r}, v{o+2*r}, v{o+2*r+1}")
    a(f"""
    s_lshl_b32 s40, s{QT}, 6
    s_add_u32 s40, s40, s{PAIR}
    s_lshl_b32 s40, s40, 10
    s_add_u32 s40, s40, {WS_O}
    s_add_u32 s41, s40, 65536
    buffer_store_dwordx4 {vr(O[0],4)}, v2, {WSRD}, s40 offen sc1
    buffer_store_dwordx4 {vr(O[1],4)}, v2, {WSRD}, s41 offen sc1
    """)
    if OPT.get("oflag", 0):
        a(f"""
        s_lshl_b32 s40, s{MT}, 9
        s_lshl_b32 s41, s{QH}, 8
        s_add_u32 s40, s40, s41
        s_lshl_b32 s41, s{CG}, 4
        s_add_u32 s40, s40, s41
        s_lshl_b32 s41, s{H4}, 2
        s_add_u32 s40, s40, s41
        s_add_u32 s40, s40, {WS_F+2048}
        v_mov_b32 v4, 0
        v_mov_b32 v5, s{NONCE}
        s_waitcnt vmcnt(0)
        s_mov_b64 exec, 1
        buffer_store_dword v5, v4, {WSRD}, s40 offen sc1
        s_mov_b64 exec, -1
        """)
        stamp(a, 7)
    else:
        a("s_waitcnt vmcnt(0)")
        a("s_barrier")
        stamp(a, 7)
        a(f"""
        s_cmp_lg_u32 s{WV}, 0
        s_cbranch_scc1 B_opub_done
        s_lshl_b32 s40, s{MT}, 9
        s_lshl_b32 s41, s{CG}, 2
        s_add_u32 s40, s40, s41
        s_add_u32 s40, s40, {WS_F+2048}
        v_mov_b32 v4, 0
        v_mov_b32 v5, s{NONCE}
        s_mov_b64 exec, 1
        buffer_store_dword v5, v4, {WSRD}, s40 offen sc1
        s_mov_b64 exec, -1
        """)
    a.lab("B_opub_done")

def c_prefetch_setup(a):
    a(f"""
    v_lshrrev_b32 v212, 3, v1
    v_and_b32 v213, 7, v1
    v_bfe_u32 v214, v1, 4, 1
    v_lshlrev_b32 v214, 2, v214
    v_xor_b32 v214, v213, v214
    v_lshlrev_b32 v214, 4, v214
    v_lshl_add_u32 v212, v212, 10, v214
    s_cmp_lt_u32 s{WV}, 4
    s_cselect_b32 s60, s8, s14
    s_cselect_b32 s61, s9, s15
    s_and_b32 s56, s{WV}, 3
    s_lshl_b32 s56, s56, 17
    s_and_b32 s57, s{CG}, 7
    s_lshl_b32 s57, s57, 7
    s_add_u32 s56, s56, s57
    s_add_u32 s60, s60, s56
    s_addc_u32 s61, s61, 0
    s_sub_u32 s62, 524288, s56
    s_mov_b32 s63, 0x20000
    s_lshl_b32 s58, s{WV}, 14
    s_mov_b32 s59, 0
    """)

def phase_c(a):
    MT64, NT, KQ, TT = 30, 31, 32, 33
    OF = 64
    ACC = 128
    a(f"""
    s_lshl_b32 s{MT64}, s{MT}, 1
    s_lshr_b32 s40, s{CG}, 3
    s_add_u32 s{MT64}, s{MT64}, s40
    s_and_b32 s{NT}, s{CG}, 7
    s_lshr_b32 s{KQ}, s{WV}, 1
    s_and_b32 s{TT}, s{WV}, 1
    v_lshrrev_b32 v5, 4, v1
    s_lshl_b32 s44, s{MT}, 9
    s_lshr_b32 s40, s{CG}, 3
    s_lshl_b32 s40, s40, 8
    s_add_u32 s44, s44, s40
    s_lshl_b32 s40, s{KQ}, 6
    s_add_u32 s44, s44, s40
    s_add_u32 s44, s44, {WS_F+2048}
    v_lshlrev_b32 v6, 2, v1
    s_mov_b32 s47, 0
    s_lshl_b32 s45, s{MT64}, 1
    s_add_u32 s45, s45, s{TT}
    s_lshl_b32 s45, s45, 6
    s_lshl_b32 s46, s{KQ}, 4
    s_add_u32 s45, s45, s46
    s_lshl_b32 s45, s45, 10
    s_add_u32 s45, s45, {WS_O}
    """)
    if OPT.get("oflag", 0):
        for g in range(4):
            m = 0xf << (4*g)
            a(f"s_and_b32 s40, s47, {m}")
            a(f"s_cmp_eq_u32 s40, {m}")
            a(f"s_cbranch_scc1 C_rdy{g}")
            a("s_mov_b32 s69, 0")
            a.lab(f"C_poll{g}")
            a(f"""
            s_mov_b64 exec, 0xffff
            buffer_load_dword v7, v6, {WSRD}, s44 offen sc1
            s_add_u32 s69, s69, 1
            s_waitcnt vmcnt(0)
            v_cmp_eq_u32 vcc, s{NONCE}, v7
            s_mov_b64 exec, -1
            s_mov_b32 s47, vcc_lo
            s_and_b32 s40, s47, {m}
            s_cmp_eq_u32 s40, {m}
            s_cbranch_scc1 C_rdy{g}
            s_sleep {OPT.get("sleep", 4)}
            s_cmp_lt_u32 s69, 200000
            s_cbranch_scc1 C_poll{g}
            """)
            a.lab(f"C_rdy{g}")
            if g == 3:
                stamp(a, 8)
            for i in range(4*g, 4*g+4):
                a(f"buffer_load_dwordx4 {vr(OF+4*i,4)}, v2, {WSRD}, s45 offen offset:{(i%4)*1024} sc1")
            if g < 3:
                a("s_add_u32 s45, s45, 4096")
    else:
        a(f"""
        s_lshl_b32 s44, s{MT}, 9
        s_add_u32 s44, s44, {WS_F+2048}
        s_cmp_lg_u32 s{WV}, 0
        s_cbranch_scc1 C_wait_done
        s_mov_b32 s69, 0
        """)
        a.lab("C_poll")
        a(f"""
        s_mov_b64 exec, 0xffff
        buffer_load_dword v7, v6, {WSRD}, s44 offen sc1
        s_add_u32 s69, s69, 1
        s_waitcnt vmcnt(0)
        v_cmp_eq_u32 vcc, s{NONCE}, v7
        s_mov_b64 exec, -1
        s_cmp_eq_u32 vcc_lo, 0xffff
        s_cbranch_scc1 C_wait_done
        s_cmp_lt_u32 s69, 200000
        s_cbranch_scc1 C_poll
        """)
        a.lab("C_wait_done")
        a("s_barrier")
        stamp(a, 8)
        for i in range(16):
            if i and i % 4 == 0:
                a("s_add_u32 s45, s45, 4096")
            a(f"buffer_load_dwordx4 {vr(OF+4*i,4)}, v2, {WSRD}, s45 offen offset:{(i%4)*1024} sc1")
    a(f"""
    v_lshrrev_b32 v21, 5, v1
    v_and_b32 v26, 15, v1
    v_lshrrev_b32 v27, 2, v26
    v_lshl_add_u32 v28, v21, 2, v27
    v_lshlrev_b32 v28, 7, v28
    v_and_b32 v29, 1, v5
    v_lshlrev_b32 v29, 1, v29
    v_bfe_u32 v30, v26, 1, 1
    v_add_u32 v29, v29, v30
    v_bfe_u32 v30, v27, 1, 1
    v_lshlrev_b32 v30, 2, v30
    v_xor_b32 v29, v29, v30
    v_lshl_add_u32 v28, v29, 4, v28
    v_and_b32 v30, 1, v26
    v_lshl_add_u32 v28, v30, 3, v28
    s_lshl_b32 s40, s{KQ}, 15
    v_add_u32 v20, s40, v28
    v_xor_b32 v21, 64, v20
    """)
    WFR = [32, 40]
    def rd(i):
        f = WFR[i & 1]
        return [f"ds_read_b64_tr_b16 {vr(f+4*ct+2*u,2)}, v{20+ct} offset:{(16*i+8*u)*128}" for ct in range(2) for u in range(2)]
    for x in rd(0):
        a(x)
    for i in range(16):
        nxt = rd(i+1) if i < 15 else []
        a(f"s_waitcnt vmcnt({15-i}) lgkmcnt(0)")
        f = WFR[i & 1]
        for ct in range(2):
            d = vr(ACC+16*ct, 16)
            c = "0" if i == 0 else d
            a(f"v_mfma_f32_32x32x16_bf16 {d}, {vr(f+4*ct,4)}, {vr(OF+4*i,4)}, {c}")
            for x in nxt[2*ct:2*ct+2]:
                a(x)
    if not OPT.get('lstamp', 0): stamp(a, 9)
    a("s_barrier")
    a(f"""
    v_and_b32 v22, 31, v1
    v_lshrrev_b32 v23, 5, v1
    v_and_b32 v24, 7, v22
    v_lshlrev_b32 v25, 8, v22
    s_lshl_b32 s40, s{KQ}, 14
    s_lshl_b32 s41, s{TT}, 13
    s_add_u32 s40, s40, s41
    v_add_u32 v25, s40, v25
    s_nop 7
    s_nop 7
    """)
    for ct in range(2):
        for q4 in range(4):
            a(f"v_add_u32 v26, {ct*8+2*q4}, v23")
            a(f"v_xor_b32 v26, v26, v24")
            a(f"v_lshl_add_u32 v26, v26, 4, v25")
            a(f"ds_write_b128 v26, {vr(ACC+16*ct+4*q4,4)}")
    a("s_waitcnt lgkmcnt(0)")
    a("s_barrier")
    a("""
    v_lshrrev_b32 v22, 3, v0
    v_and_b32 v23, 7, v0
    v_and_b32 v24, 7, v22
    v_lshlrev_b32 v25, 8, v22
    v_lshlrev_b32 v27, 1, v23
    """)
    for c in range(2):
        a(f"v_add_u32 v26, {c}, v27")
        a(f"v_xor_b32 v26, v26, v24")
        a(f"v_lshl_add_u32 v26, v26, 4, v25")
        for k in range(4):
            a(f"ds_read_b128 {vr(64+k*8+c*4,4)}, v26 offset:{k*16384}")
    a(f"""
    s_mov_b32 s60, s18
    s_mov_b32 s61, s19
    s_mov_b32 s62, 2097152
    s_mov_b32 s63, 0x20000
    v_lshlrev_b32 v22, 10, v22
    v_lshl_add_u32 v22, v23, 4, v22
    s_lshl_b32 s40, s{MT64}, 16
    s_lshl_b32 s41, s{NT}, 7
    s_add_u32 s40, s40, s41
    s_waitcnt lgkmcnt(0)
    """)
    for r in range(8):
        a(f"v_add_f32 v{64+r}, v{64+r}, v{72+r}")
        a(f"v_add_f32 v{80+r}, v{80+r}, v{88+r}")
    for r in range(8):
        a(f"v_add_f32 v{64+r}, v{64+r}, v{80+r}")
    for r in range(4):
        a(f"v_cvt_pk_bf16_f32 v{64+r}, v{64+2*r}, v{64+2*r+1}")
    a("buffer_store_dwordx4 v[64:67], v22, s[60:63], s40 offen")
    if not OPT.get("lstamp", 0): stamp(a, 10)

HEAD = open("cdna_kernels/%s.s.ref" % NAME).read().split("; Override")[0]

def main(out):
    a = A()
    gen(a)
    s = HEAD
    s += "; @launch grid=(256,1,1) block=(512,1,1) lds=163840\n"
    s += '.amdgcn_target "amdgcn-amd-amdhsa--gfx950"\n'
    s += a.text()
    s += f""".section .rodata,"a"
.p2align 6
.amdhsa_kernel {KNAME}
  .amdhsa_next_free_vgpr 256
  .amdhsa_next_free_sgpr 102
  .amdhsa_accum_offset 256
  .amdhsa_group_segment_fixed_size 0
  .amdhsa_kernarg_size 80
  .amdhsa_user_sgpr_count 2
  .amdhsa_user_sgpr_kernarg_segment_ptr 1
  .amdhsa_system_sgpr_workgroup_id_x 1
.end_amdhsa_kernel
"""
    open(out, "w").write(s)

if __name__ == "__main__":
    if "--prof" in sys.argv:
        PROF = True
        sys.argv.remove("--prof")
    for x in list(sys.argv):
        if x.startswith("--") and "=" in x:
            k, v = x[2:].split("=")
            OPT[k] = int(v)
            sys.argv.remove(x)
    set_nslot(OPT.get("nslot", 3))
    main(sys.argv[1] if len(sys.argv) > 1 else "fused3.s")
```

```python
import sys, struct

NAME = "gated_mix__mha_block__mha_block__prompt"
KNAME = NAME + "_kernel"
WS_KV = 4 << 20
WS_O = 12 << 20
WS_F = 16 << 20
WS_GF = WS_F + 2048 + 8192
WS_G = WS_GF + 2048
WS_END = WS_G + 8192
RELAY = 160000
NONCE = 68
WS_T = 32 << 20
QSCALE = 0.25 * 1.4426950408889634
LOG2E = 1.4426950408889634
PROF = False
OPT = dict(prio=3, rot=1, pfu=0, D=4, cpf=1, sch=2, wpf=1)
NST = 12
SB = 70

def f32(x):
    return "0x%08x" % struct.unpack("<I", struct.pack("<f", x))[0]

class A:
    def __init__(self):
        self.l = []
    def __call__(self, s):
        for x in s.strip().split("\n"):
            if x.strip():
                self.l.append("  " + x.strip())
    def lab(self, s):
        self.l.append(s + ":")
    def raw(self, s):
        self.l.append(s)
    def text(self):
        return "\n".join(self.l) + "\n"

def vr(b, n):
    return f"v[{b}:{b+n-1}]"
def u32(x):
    return x & 0xffffffff

def GM():
    return OPT.get('gm', 2)
def GMF():
    return GM() == 1
def stamp(a, k):
    if PROF:
        a(f"s_memtime s[{SB+2*k}:{SB+2*k+1}]")

WV = 3
XCD, SLOT_ = 24, 25
CG, MT, BB, HG = 26, 27, 28, 29
SRDW = 36
DBG = 20
WS = 22
WSRD = f"s[{SRDW}:{SRDW+3}]"

def gen(a):
    a.raw(".text")
    a.raw(f".globl {KNAME}")
    a.raw(".p2align 8")
    a.raw(f".type {KNAME},@function")
    a.lab(KNAME)
    a("s_cmp_ge_u32 s2, 256")
    a("s_cbranch_scc1 L_end")
    if PROF:
        a(f"s_memrealtime s[{SB+2*NST}:{SB+2*NST+1}]")
        stamp(a, 0)
    a(f"""
    s_load_dwordx4 s[4:7], s[0:1], 0
    s_load_dwordx2 s[8:9], s[0:1], 16
    s_load_dwordx4 s[12:15], s[0:1], 32
    s_load_dwordx4 s[16:19], s[0:1], 48
    s_load_dwordx4 s[20:23], s[0:1], 64
    v_lshrrev_b32 v2, 6, v0
    v_and_b32 v1, 63, v0
    s_and_b32 s{XCD}, s2, 7
    s_lshr_b32 s{SLOT_}, s2, 3
    v_readfirstlane_b32 s{WV}, v2
    v_lshlrev_b32 v2, 4, v1
    s_lshr_b32 s40, s{XCD}, 1
    s_lshl_b32 s40, s40, 2
    s_and_b32 s41, s{SLOT_}, 3
    s_add_u32 s{CG}, s40, s41
    s_lshr_b32 s{BB}, s{CG}, 3
    s_and_b32 s{HG}, s{CG}, 7
    s_and_b32 s{MT}, s{XCD}, 1
    s_lshl_b32 s{MT}, s{MT}, 3
    s_lshr_b32 s41, s{SLOT_}, 2
    s_add_u32 s{MT}, s{MT}, s41
    """)
    if OPT.get("diag", 0):
        a("s_memrealtime s[94:95]")
        a("s_memtime s[96:97]")
    phase_a(a)
    phase_b(a)
    phase_c(a)
    if OPT.get("diag", 0):
        a(f"""
        s_waitcnt vmcnt(0)
        s_memrealtime s[90:91]
        s_memtime s[92:93]
        s_waitcnt lgkmcnt(0)
        s_sub_u32 s92, s92, s96
        s_not_b32 s94, s94
        s_and_b32 s91, s2, 15
        s_or_b32 s91, s91, s{WV}
        s_cmp_lg_u32 s91, 0
        s_cbranch_scc1 L_end
        s_mov_b64 exec, 1
        v_mov_b32 v4, 16
        v_mov_b32 v5, s92
        global_atomic_umax v4, v5, s[{DBG}:{DBG+1}]
        v_mov_b32 v4, 20
        v_mov_b32 v5, s90
        global_atomic_umax v4, v5, s[{DBG}:{DBG+1}]
        v_mov_b32 v4, 24
        v_mov_b32 v5, s94
        global_atomic_umax v4, v5, s[{DBG}:{DBG+1}]
        s_mov_b64 exec, -1
        """)
    if PROF:
        a("s_waitcnt vmcnt(0)")
        a(f"s_memrealtime s[{SB+2*NST+2}:{SB+2*NST+3}]")
        stamp(a, NST-1)
        a("s_waitcnt lgkmcnt(0)")
        if OPT.get("lprof", 0):
            for k, r in ((8, 98), (9, 99), (10, 100)):
                a(f"s_add_u32 s{SB+2*k}, s{SB}, s{r}")
                a(f"s_addc_u32 s{SB+2*k+1}, s{SB+1}, 0")
            a.lab("L_nolp")
        a(f"""
        s_lshl_b32 s40, s2, 4
        s_add_u32 s40, s40, s{WV}
        s_lshl_b32 s40, s40, 7
        s_add_u32 s40, s40, {WS_T}
        s_add_u32 s40, s{WS}, s40
        s_addc_u32 s41, s{WS+1}, 0
        s_mov_b64 exec, 1
        v_mov_b32 v4, 0
        """)
        for k in range(NST+2):
            a(f"v_mov_b32 v6, s{SB+2*k}")
            a(f"v_mov_b32 v7, s{SB+2*k+1}")
            a(f"global_store_dwordx2 v4, v[6:7], s[40:41] offset:{8*k}")
            a("s_nop 1")
    a.lab("L_end")
    a("s_endpgm")
    a.lab("L_codeend")

SLOT = 40960
NSLOT = 3
GIMG = NSLOT * SLOT
def set_nslot(n):
    global NSLOT, GIMG
    NSLOT = n
    GIMG = 3 * SLOT
QX, KVX, GX = 0, 16384, 49152

def phase_a(a):
    a(f"""
    v_lshrrev_b32 v5, 4, v1
    s_cmp_ge_u32 s{WV}, 4
    s_cbranch_scc0 A_compute
    """)
    LW = 30
    a(f"""
    s_sub_u32 s{LW}, s{WV}, 4
    s_setprio 3
    v_lshrrev_b32 v3, 3, v1
    v_and_b32 v4, 7, v1
    v_xor_b32 v6, v4, v5
    v_lshlrev_b32 v6, 4, v6
    v_lshl_add_u32 v10, v3, 10, v6
    v_add_u32 v7, 4, v5
    v_xor_b32 v7, v4, v7
    v_lshlrev_b32 v7, 4, v7
    v_lshl_add_u32 v11, v3, 10, v7
    v_and_b32 v8, 1, v5
    v_lshlrev_b32 v8, 2, v8
    v_xor_b32 v8, v4, v8
    v_lshlrev_b32 v8, 4, v8
    v_mul_u32_u24 v9, 3072, v3
    v_add_u32 v12, v9, v8
    s_lshl_b32 s54, s{LW}, 15
    """)
    for u in range(4):
        a(f"s_add_u32 s{44+u}, s54, {u*8192}")
    a(f"s_mul_i32 s54, s{LW}, 49152")
    for g3 in range(3):
        for e in range(2):
            a(f"s_add_u32 s{48+g3*2+e}, s54, {g3*1024 + e*8*3072}")
    a(f"""
    s_lshl_b32 s55, s{LW}, 12
    s_lshl_b32 s56, s{LW}, 11
    s_add_u32 s56, s56, 16384
    s_lshl_b32 s40, s{MT}, 17
    s_lshl_b32 s41, s{HG}, 7
    s_mov_b32 s62, 131072
    s_mov_b32 s63, 0x20000
    s_sub_u32 s34, 1572864, s41
    s_mov_b32 s35, 0x20000
    """)
    if OPT["rot"]:
        a(f"s_mov_b32 s57, s{XCD}")
    else:
        a("s_mov_b32 s57, 0")
    a(f"""
    s_lshl_b32 s42, s57, 7
    v_add_u32 v10, s42, v10
    v_add_u32 v11, s42, v11
    s_mul_i32 s42, s57, 196608
    v_add_u32 v12, s42, v12
    s_mov_b32 s64, {u32(-896)}
    s_mov_b32 s65, 128
    s_mov_b32 s66, {u32(-7*196608)}
    s_mov_b32 s67, 196608
    s_waitcnt lgkmcnt(0)
    s_cmp_eq_u32 s{BB}, 0
    s_cselect_b32 s32, s6, s12
    s_cselect_b32 s33, s7, s13
    s_add_u32 s60, s4, s40
    s_addc_u32 s61, s5, 0
    s_add_u32 s32, s32, s41
    s_addc_u32 s33, s33, 0
    """)
    def issue_stage(extra=None):
        extra = list(extra or [])
        seq = [("w",0,0),("x",0,0),("w",0,1),("x",1,0),("w",1,0),("x",2,0),("w",1,1),("x",3,0),("w",2,0),("w",2,1)]
        for n, (kind, i, e) in enumerate(seq):
            if kind == "x":
                a(f"s_add_u32 m0, s55, {i*1024}")
                a("s_add_u32 s57, s57, 1" if n == 1 else ("s_and_b32 s57, s57, 7" if n == 3 else "s_nop 0"))
                a(f"buffer_load_dwordx4 v{10+(i&1)}, s[60:63], s{44+i} offen lds")
            else:
                a(f"s_add_u32 m0, s56, {i*8192+e*1024}")
                a("s_cmp_eq_u32 s57, 0" if n == 4 else "s_nop 0")
                a(f"buffer_load_dwordx4 v12, s[32:35], s{48+i*2+e} offen lds")
                if n == 4:
                    a("s_cselect_b32 s42, s64, s65")
                    a("s_cselect_b32 s43, s66, s67")
            if n >= 2 and extra:
                k = 1 if n == 2 else 3
                for _ in range(k):
                    if extra: a(extra.pop(0))
        for x in extra:
            a(x)
        a("v_add_u32 v10, s42, v10")
        a("v_add_u32 v11, s42, v11")
        a("v_add_u32 v12, s43, v12")
        a(f"s_add_u32 s55, s55, {SLOT}")
        a(f"s_add_u32 s56, s56, {SLOT}")
        a(f"s_cmp_ge_u32 s56, {NSLOT*SLOT}")
        a(f"s_cselect_b32 s54, {NSLOT*SLOT}, 0")
        a("s_sub_u32 s55, s55, s54")
        a("s_sub_u32 s56, s56, s54")
    a(f"""
    s_mov_b32 s{SRDW}, s16
    s_mov_b32 s{SRDW+1}, s17
    s_mov_b32 s{SRDW+2}, 1024
    s_mov_b32 s{SRDW+3}, 0x20000
    s_lshl_b32 s43, s{LW}, 8
    s_add_u32 m0, s43, {GIMG}
    """)
    if GM() == 2:
        pass
    elif not OPT.get("nogate", 0):
        a(f"""
        s_mov_b64 exec, 0xffff
        buffer_load_dwordx4 v2, {WSRD}, s43 offen lds
        s_mov_b64 exec, -1
        """)
    if GM() == 0:
        a(f"""
        v_and_b32 v20, 31, v1
        v_lshrrev_b32 v21, 5, v1
        v_lshrrev_b32 v22, 1, v1
        v_and_b32 v22, 7, v22
        s_lshl_b32 s40, s{LW}, 12
        v_lshlrev_b32 v23, 7, v20
        v_add_u32 v23, s40, v23
        """)
        for ks in range(4):
            a(f"v_add_u32 v24, {2*ks}, v21")
            a(f"v_xor_b32 v24, v24, v22")
            a(f"v_lshl_add_u32 v{16+ks}, v24, 4, v23")
        a(f"""
        v_lshlrev_b32 v15, 4, v21
        v_add_u32 v15, {GIMG}, v15
        v_mov_b32 v64, 0
        s_mov_b32 s59, 0
        """)
        if OPT["rot"]:
            a(f"s_mov_b32 s31, s{XCD}")
        else:
            a("s_mov_b32 s31, 0")
    LK = OPT.get("look", 2)
    if OPT.get("pfwait", 0):
        a("s_barrier")
    for _ in range(LK):
        issue_stage()
    def gate_reads():
        if OPT.get("nogate", 0) or GM() != 0: return
        a("s_lshl_b32 s40, s31, 7")
        a("v_add_u32 v14, s40, v15")
        for ks in range(4):
            a(f"v_add_u32 v24, s59, v{16+ks}")
            a(f"ds_read_b128 {vr(28+8*ks,4)}, v24")
            a(f"ds_read_b128 {vr(32+8*ks,4)}, v14 offset:{ks*32}")
        a("s_add_u32 s31, s31, 1")
        a("s_and_b32 s31, s31, 7")
        a(f"s_add_u32 s59, s59, {SLOT}")
        a(f"s_cmp_ge_u32 s59, {NSLOT*SLOT}")
        a(f"s_cselect_b32 s40, {NSLOT*SLOT}, 0")
        a("s_sub_u32 s59, s59, s40")
    def gate_dots():
        if OPT.get("nogate", 0) or GM() != 0: return
        a("s_waitcnt lgkmcnt(0)")
        for ks in range(4):
            for q in range(4):
                a(f"v_dot2c_f32_bf16 v64, v{28+8*ks+q}, v{32+8*ks+q}")
    if OPT.get("ldprio", 0) == 0:
        a("s_setprio 0")
    a("s_mov_b32 s58, 0")
    LP = PROF and OPT.get("lprof", 0)
    def tick(acc):
        if LP:
            a("s_memtime s[88:89]")
            a("s_waitcnt lgkmcnt(0)")
            a("s_sub_u32 s87, s88, s86")
            a(f"s_add_u32 s{acc}, s{acc}, s87")
            a("s_mov_b32 s86, s88")
    if LP:
        a("s_memtime s[88:89]")
        a("s_waitcnt lgkmcnt(0)")
        a("s_mov_b32 s86, s88")
        a("s_mov_b32 s80, 0"); a("s_mov_b32 s81, 0"); a("s_mov_b32 s82, 0"); a("s_mov_b32 s83, 0"); a("s_mov_b32 s84, 0"); a("s_mov_b32 s85, 0")
    a.lab("A_ld_loop")
    a(f"s_waitcnt vmcnt({10*(LK-1)})")
    tick(80)
    a("s_barrier")
    tick(82)
    gate_reads()
    issue_stage(None if (OPT.get("nogate", 0) or GM() != 0) else ["s_waitcnt lgkmcnt(0)"] + [f"v_dot2c_f32_bf16 v64, v{28+8*ks+q}, v{32+8*ks+q}" for ks in range(4) for q in range(4)])
    tick(84)
    a("s_add_u32 s58, s58, 1")
    a(f"s_cmp_lt_u32 s58, {8-LK}")
    a("s_cbranch_scc1 A_ld_loop")
    if GM() == 2:
        a(f"""
        s_mov_b32 s{SRDW}, s16
        s_mov_b32 s{SRDW+1}, s17
        s_mov_b32 s{SRDW+2}, 1024
        s_mov_b32 s{SRDW+3}, 0x20000
        v_and_b32 v13, 15, v1
        v_lshlrev_b32 v13, 4, v13
        v_lshl_add_u32 v14, v5, 10, v13
        s_lshl_b32 s40, s{CG}, 3
        s_and_b32 s41, s{LW}, 1
        s_lshl_b32 s41, s41, 2
        s_add_u32 s29, s40, s41
        s_lshl_b32 s41, s29, 10
        s_cmp_ge_u32 s{LW}, 2
        s_cbranch_scc1 A_nogl
        """)
        for i in range(4):
            a(f"buffer_load_dwordx4 {vr(16+4*i,4)}, v14, s[60:63], s41 offen offset:{256*i}")
        for i in range(4):
            a(f"buffer_load_dwordx4 {vr(32+4*i,4)}, v13, {WSRD}, 0 offen offset:{256*i}")
        a.lab("A_nogl")
    for k in range(LK):
        a(f"s_waitcnt vmcnt({10*(LK-1-k)})")
        a("s_barrier")
        gate_reads()
        gate_dots()
    if LP:
        a("s_mov_b32 s98, s80"); a("s_mov_b32 s99, s82"); a("s_mov_b32 s100, s84")
    a("s_setprio 0")
    a(f"""
    s_mov_b32 s{SRDW}, s{WS}
    s_mov_b32 s{SRDW+1}, s{WS+1}
    s_mov_b32 s{SRDW+2}, {WS_END}
    s_mov_b32 s{SRDW+3}, 0x20000
    """)
    if GM() == 1:
        a("s_barrier")
    elif GM() == 2:
        a("s_barrier")
        a(f"s_cmp_ge_u32 s{LW}, 2")
        a("s_cbranch_scc1 A_join")
        a("v_mov_b32 v48, 0")
        a("s_waitcnt vmcnt(0)")
        for i in range(16):
            a(f"v_dot2c_f32_bf16 v48, v{16+i}, v{32+i}")
        a("s_nop 3")
        for rot in (8, 4, 2, 1):
            a(f"v_add_f32_dpp v48, v48, v48 row_ror:{rot} row_mask:0xf bank_mask:0xf")
            a("s_nop 1")
        a(f"""
        v_mul_f32 v48, {f32(-LOG2E)}, v48
        v_exp_f32 v48, v48
        s_nop 0
        v_add_f32 v48, 1.0, v48
        v_rcp_f32 v48, v48
        s_lshl_b32 s41, s{MT}, 7
        s_add_u32 s41, s41, s29
        s_lshl_b32 s41, s41, 2
        s_add_u32 s41, s41, {WS_G}
        v_lshlrev_b32 v49, 2, v5
        v_and_b32 v50, 15, v1
        v_cmp_eq_u32 vcc, 0, v50
        s_and_saveexec_b64 s[58:59], vcc
        buffer_store_dword v48, v49, {WSRD}, s41 offen sc1
        s_mov_b64 exec, s[58:59]
        """)
    else:
        a(f"""
        s_nop 3
        v_mov_b32 v20, v64
        s_nop 1
        v_permlane32_swap_b32 v64, v20
        s_nop 1
        v_add_f32 v64, v64, v20
        v_mul_f32 v64, {f32(-LOG2E)}, v64
        v_exp_f32 v64, v64
        s_nop 0
        v_add_f32 v64, 1.0, v64
        v_rcp_f32 v64, v64
        s_nop 0
        v_sub_f32 v20, 1.0, v64
        s_cmp_eq_u32 s{BB}, 0
        s_cselect_b64 vcc, -1, 0
        s_nop 1
        v_cndmask_b32 v20, v20, v64, vcc
        v_and_b32 v19, 31, v1
        v_lshlrev_b32 v19, 2, v19
        s_lshl_b32 s41, s{LW}, 7
        v_add_u32 v19, s41, v19
        s_barrier
        ds_write_b32 v19, v20 offset:{GX}
        """)
    a("""
    s_branch A_join
    """)
    a.lab("A_compute")
    WM, WN = 30, 31
    a(f"""
    s_and_b32 s{WM}, s{WV}, 1
    s_lshr_b32 s{WN}, s{WV}, 1
    v_and_b32 v20, 31, v1
    v_lshrrev_b32 v21, 5, v1
    v_lshrrev_b32 v22, 1, v1
    v_and_b32 v22, 7, v22
    s_lshl_b32 s40, s{WM}, 13
    v_lshlrev_b32 v23, 7, v20
    v_add_u32 v23, s40, v23
    """)
    for ks in range(4):
        a(f"v_add_u32 v24, {2*ks}, v21")
        a(f"v_xor_b32 v24, v24, v22")
        a(f"v_lshl_add_u32 v{16+ks}, v24, 4, v23")
    a(f"""
    v_and_b32 v26, 15, v1
    v_lshrrev_b32 v27, 2, v26
    v_lshl_add_u32 v28, v21, 3, v27
    v_lshlrev_b32 v28, 7, v28
    v_and_b32 v29, 1, v5
    v_lshlrev_b32 v29, 1, v29
    v_bfe_u32 v30, v26, 1, 1
    v_add_u32 v29, v29, v30
    s_lshl_b32 s40, s{WN}, 2
    v_add_u32 v29, s40, v29
    v_bfe_u32 v30, v27, 1, 1
    v_lshlrev_b32 v30, 2, v30
    v_xor_b32 v29, v29, v30
    v_lshl_add_u32 v28, v29, 4, v28
    v_and_b32 v30, 1, v26
    v_lshl_add_u32 v25, v30, 3, v28
    """)
    ACC = 64
    XF = [32, 160]
    WF = [40, 168]
    GF = [52, 180]
    GACC = 192
    for r in range(96):
        a(f"v_mov_b32 v{ACC+r}, 0")
    if GMF():
        for r in range(16):
            a(f"v_mov_b32 v{GACC+r}, 0")
        a(f"s_mov_b32 s59, s{XCD}" if OPT["rot"] else "s_mov_b32 s59, 0")
        a(f"""
        s_lshl_b32 s40, s59, 7
        v_lshlrev_b32 v15, 4, v21
        v_add_u32 v15, {GIMG}, v15
        v_add_u32 v14, s40, v15
        s_cmp_eq_u32 s{WN}, 0
        s_cselect_b64 vcc, -1, 0
        """)
    a(f"""
    s_lshl_b32 s40, s{CG}, 2
    s_lshl_b32 s41, s{WN}, 1
    s_add_u32 s40, s40, s41
    s_lshl_b32 s40, s40, 6
    s_lshl_b32 s41, s{MT}, 2
    s_add_u32 s40, s40, s41
    s_lshl_b32 s41, s{WM}, 1
    s_add_u32 s40, s40, s41
    s_lshl_b32 s46, s40, 11
    s_add_u32 s46, s46, {WS_KV}
    s_mov_b32 s48, {f32(QSCALE)}
    v_and_b32 v11, 15, v1
    v_lshlrev_b32 v11, 4, v11
    v_lshl_add_u32 v11, v21, 9, v11
    v_bfe_u32 v12, v1, 4, 1
    v_lshl_add_u32 v13, v12, 13, v11
    v_lshl_add_u32 v11, v12, 17, v11
    v_add_u32 v11, 1024, v11
    s_add_u32 s47, s46, 131072
    s_mov_b32 s{SRDW+2}, {WS_END}
    s_mov_b32 s{SRDW+3}, 0x20000
    s_mov_b32 s57, 0
    s_mov_b32 s58, 0
    """)
    def set_addr():
        for ks in range(4):
            a(f"v_add_u32 v{20+ks}, s57, v{16+ks}")
        a("v_add_u32 v24, s57, v25")
    set_addr()
    a("s_waitcnt lgkmcnt(0)")
    a(f"s_mov_b32 s{SRDW}, s{WS}")
    a(f"s_mov_b32 s{SRDW+1}, s{WS+1}")
    if OPT.get("wpf", 0):
        a(f"""
        s_lshl_b32 s40, s2, 2
        s_add_u32 s40, s40, s{WV}
        s_and_b32 s41, s40, 511
        s_mul_i32 s41, s41, 3072
        s_cmp_lt_u32 s40, 512
        s_cselect_b32 s42, s6, s12
        s_cselect_b32 s43, s7, s13
        s_add_u32 s42, s42, s41
        s_addc_u32 s43, s43, 0
        global_load_dwordx4 v[208:211], v2, s[42:43]
        global_load_dwordx4 v[208:211], v2, s[42:43] offset:1024
        global_load_dwordx4 v[208:211], v2, s[42:43] offset:2048
        s_lshl_b32 s40, s2, 3
        s_lshl_b32 s41, s{WV}, 1
        s_add_u32 s40, s40, s41
        s_lshl_b32 s40, s40, 10
        s_add_u32 s42, s4, s40
        s_addc_u32 s43, s5, 0
        global_load_dwordx4 v[208:211], v2, s[42:43]
        global_load_dwordx4 v[208:211], v2, s[42:43] offset:1024
        """)
    if OPT.get("xpf", 0):
        a(f"""
        s_and_b32 s40, s{XCD}, 1
        s_lshl_b32 s40, s40, 10
        s_lshl_b32 s41, s{SLOT_}, 5
        s_add_u32 s40, s40, s41
        s_lshl_b32 s41, s{WV}, 3
        s_add_u32 s40, s40, s41
        s_lshl_b32 s40, s40, 10
        s_add_u32 s42, s4, s40
        s_addc_u32 s43, s5, 0
        v_mov_b32 v212, v2
        """)
        a(f"""
        s_cmp_eq_u32 s{BB}, 0
        s_cselect_b32 s44, s6, s12
        s_cselect_b32 s45, s7, s13
        s_lshl_b32 s40, s{SLOT_}, 4
        s_lshl_b32 s41, s{WV}, 2
        s_add_u32 s40, s40, s41
        s_mul_i32 s40, s40, 3072
        s_and_b32 s41, s{HG}, 4
        s_lshl_b32 s41, s41, 7
        s_add_u32 s40, s40, s41
        s_add_u32 s44, s44, s40
        s_addc_u32 s45, s45, 0
        v_lshrrev_b32 v213, 5, v1
        v_mul_u32_u24 v213, 3072, v213
        v_and_b32 v214, 31, v1
        v_lshl_add_u32 v213, v214, 4, v213
        v_add_u32 v214, 6144, v213
        """)
        for t in range(3):
            a(f"global_load_dwordx4 v[208:211], v213, s[44:45] offset:{t*1024}")
            a(f"global_load_dwordx4 v[208:211], v214, s[44:45] offset:{t*1024}")
        for i in range(8):
            a(f"global_load_dwordx4 v[208:211], v212, s[42:43]")
            if i < 7: a("v_add_u32 v212, 1024, v212")
    if OPT.get("pfwait", 0):
        a("s_waitcnt vmcnt(0)")
        a("s_barrier")
    if OPT.get("cpf", 0):
        a(f"""
        s_cmp_lg_u32 s{WV}, 3
        s_cbranch_scc1 A_nocpf
        s_cmp_ge_u32 s{SLOT_}, (L_codeend-{KNAME})>>10
        s_cbranch_scc1 A_nocpf
        s_getpc_b64 s[42:43]
        """)
        a.lab("A_pc")
        a(f"""
        s_sub_u32 s42, s42, A_pc-{KNAME}
        s_subb_u32 s43, s43, 0
        s_lshl_b32 s40, s{SLOT_}, 10
        s_add_u32 s42, s42, s40
        s_addc_u32 s43, s43, 0
        global_load_dwordx4 v[208:211], v2, s[42:43]
        """)
        a.lab("A_nocpf")
    if OPT.get("pt", 0):
        a(f"""
        s_cmp_lg_u32 s{WV}, 1
        s_cbranch_scc1 A_nopt1
        s_lshl_b32 s40, s{CG}, 19
        s_add_u32 s40, s40, {WS_KV}
        v_lshlrev_b32 v212, 13, v1
        buffer_load_dword v208, v212, {WSRD}, s40 offen
        """)
        a.lab("A_nopt1")
        a(f"""
        s_cmp_lg_u32 s{WV}, 2
        s_cbranch_scc1 A_nopt2
        v_lshlrev_b32 v212, 16, v1
        s_mov_b32 s40, {WS_O}
        buffer_load_dword v208, v212, {WSRD}, s40 offen
        v_mov_b32 v213, 0
        s_mov_b32 s40, {WS_F}
        buffer_load_dword v209, v213, {WSRD}, s40 offen
        v_lshlrev_b32 v213, 15, v1
        global_load_dword v210, v213, s[18:19]
        v_lshlrev_b32 v214, 13, v1
        global_load_dword v211, v214, s[8:9]
        global_load_dword v211, v214, s[14:15]
        """)
        a.lab("A_nopt2")
    a(f"""
    s_cmp_lg_u32 s{WV}, 0
    s_cbranch_scc1 A_nononce
    s_memrealtime s[40:41]
    s_waitcnt lgkmcnt(0)
    s_or_b32 s40, s40, 1
    v_mov_b32 v186, s40
    v_mov_b32 v187, 0
    v_mov_b32 v188, 0
    s_mov_b64 exec, 1
    global_atomic_cmpswap v189, v188, v[186:187], s[{DBG}:{DBG+1}] sc0
    s_mov_b64 exec, -1
    """)
    a.lab("A_nononce")
    def read_list(ks, f):
        r = []
        r.append(f"ds_read_b64_tr_b16 {vr(WF[f]+0,2)}, v24 offset:{16384+(16*ks+0)*128}")
        r.append(f"ds_read_b64_tr_b16 {vr(WF[f]+2,2)}, v24 offset:{16384+(16*ks+4)*128}")
        r.append(f"ds_read_b128 {vr(XF[f],4)}, v{20+ks} offset:0")
        r.append(f"ds_read_b128 {vr(XF[f]+4,4)}, v{20+ks} offset:4096")
        for g3 in (1, 2):
            for u in range(2):
                r.append(f"ds_read_b64_tr_b16 {vr(WF[f]+4*g3+2*u,2)}, v24 offset:{16384+g3*8192+(16*ks+4*u)*128}")
        if GMF():
            r.append(f"ds_read_b128 {vr(GF[f],4)}, v14 offset:{ks*32}")
        return r
    gl = [0]
    FW = OPT.get("finewait", 1)
    def group(f, rl, barrier=False):
        order = [(0,0),(0,1),(1,0),(1,1),(2,0),(2,1)]
        nold = 9 if GMF() else 8
        need = {0: 3, 1: 4, 2: 6, 4: 8}
        rl = list(rl)
        issued = 0
        per = OPT.get("rpg", 2)
        for i, (g3, tt) in enumerate(order):
            if FW and i in need:
                a(f"s_waitcnt lgkmcnt({min(15, nold - need[i] + issued)})")
            x = vr(XF[f]+4*tt, 4); w = vr(WF[f]+4*g3, 4); d = vr(ACC+16*(tt*3+g3), 16)
            if g3 < 2:
                a(f"v_mfma_f32_32x32x16_bf16 {d}, {w}, {x}, {d}")
            else:
                a(f"v_mfma_f32_32x32x16_bf16 {d}, {x}, {w}, {d}")
            if i == 0 and barrier:
                if PROF and OPT.get("lprof", 0):
                    a("s_memtime s[88:89]")
                a(f"s_waitcnt lgkmcnt(0)")
                a("s_barrier")
                if PROF and OPT.get("lprof", 0):
                    a("s_memtime s[86:87]")
                    a("s_waitcnt lgkmcnt(0)")
                    a("s_sub_u32 s86, s86, s88")
                    a("s_add_u32 s98, s98, s86")
            for _ in range(per):
                if rl:
                    a(rl.pop(0)); issued += 1
        if GMF():
            if FW:
                a(f"s_waitcnt lgkmcnt({min(15, issued)})")
            n = gl[0]; gl[0] += 1
            d = vr(GACC, 16)
            a(f"s_cbranch_vccz A_g{n}a")
            a(f"v_mfma_f32_32x32x16_bf16 {d}, {vr(GF[f],4)}, {vr(XF[f],4)}, {d}")
            a(f"s_branch A_g{n}b")
            a.lab(f"A_g{n}a")
            a(f"v_mfma_f32_32x32x16_bf16 {d}, {vr(GF[f],4)}, {vr(XF[f]+4,4)}, {d}")
            a.lab(f"A_g{n}b")
        for x in rl:
            a(x)
    a("s_barrier")
    stamp(a, 1)
    for x in read_list(0, 0):
        a(x)
    if PROF and OPT.get("lprof", 0):
        a("s_mov_b32 s98, 0"); a("s_mov_b32 s99, 0"); a("s_mov_b32 s100, 0")
    a.lab("A_loop")
    for ks in range(3):
        if not FW: a("s_waitcnt lgkmcnt(0)")
        group(ks & 1, read_list(ks+1, (ks+1) & 1))
    a("s_cmp_eq_u32 s58, 7")
    a("s_cbranch_scc1 A_last")
    a(f"""
    s_add_u32 s57, s57, {SLOT}
    s_cmp_ge_u32 s57, {NSLOT*SLOT}
    s_cselect_b32 s40, {NSLOT*SLOT}, 0
    s_sub_u32 s57, s57, s40
    """)
    if GMF():
        a("""
        s_add_u32 s59, s59, 1
        s_and_b32 s59, s59, 7
        s_lshl_b32 s40, s59, 7
        v_add_u32 v14, s40, v15
        """)
    set_addr()
    if not FW: a("s_waitcnt lgkmcnt(0)")
    group(1, read_list(0, 0), barrier=True)
    a("s_add_u32 s58, s58, 1")
    a("s_branch A_loop")
    a.lab("A_last")
    if not FW: a("s_waitcnt lgkmcnt(0)")
    group(1, [])
    stamp(a, 2)
    a("s_barrier")
    a(f"""
    s_lshl_b32 s40, s{WN}, 3
    s_lshl_b32 s41, s{WM}, 1
    s_add_u32 s40, s40, s41
    s_lshl_b32 s41, s40, 10
    v_add_u32 v16, s41, v2
    s_lshl_b32 s41, s40, 11
    v_add_u32 v17, s41, v2
    v_add_u32 v18, s41, v13
    s_nop 3
    """)
    a(f"""
    s_cmp_lg_u32 s{WV}, 0
    s_cbranch_scc1 A_nononce2
    s_waitcnt vmcnt(0)
    v_cmp_eq_u32 vcc, 0, v189
    s_nop 1
    v_cndmask_b32 v186, v189, v186, vcc
    v_mov_b32 v188, {RELAY}
    s_mov_b64 exec, 1
    ds_write_b64 v188, v[186:187]
    s_mov_b64 exec, -1
    """)
    a.lab("A_nononce2")
    STF = {0: ' sc1', 1: ' sc0 sc1', 2: ' sc1 nt', 3: ' sc0 sc1 nt'}[OPT.get('stf', 0)]
    for tt in range(2):
        d = ACC + 16*(tt*3+1)
        for r in range(8):
            a(f"v_cvt_pk_bf16_f32 v{d+r}, v{d+2*r}, v{d+2*r+1}")
        a(f"buffer_store_dwordx4 {vr(d,4)}, v2, {WSRD}, s46 offen offset:{tt*2048}{STF}")
        a(f"buffer_store_dwordx4 {vr(d+4,4)}, v2, {WSRD}, s47 offen offset:{tt*2048}{STF}")
        a(f"ds_write_b128 v17, {vr(d,4)} offset:{KVX+tt*2048}")
        a(f"ds_write_b128 v17, {vr(d+4,4)} offset:{KVX+tt*2048+8192}")
        d = ACC + 16*(tt*3+2)
        for r in range(8):
            a(f"v_cvt_pk_bf16_f32 v{d+r}, v{d+2*r}, v{d+2*r+1}")
        a(f"buffer_store_dwordx4 {vr(d,4)}, v11, {WSRD}, s46 offen offset:{tt*2048}{STF}")
        a(f"buffer_store_dwordx4 {vr(d+4,4)}, v11, {WSRD}, s46 offen offset:{tt*2048+256}{STF}")
        a(f"ds_write_b128 v18, {vr(d,4)} offset:{KVX+tt*2048+1024}")
        a(f"ds_write_b128 v18, {vr(d+4,4)} offset:{KVX+tt*2048+1280}")
    for tt in range(2):
        d = ACC + 16*(tt*3+0)
        for r in range(16):
            a(f"v_mul_f32 v{d+r}, s48, v{d+r}")
        for r in range(8):
            a(f"v_cvt_pk_bf16_f32 v{d+r}, v{d+2*r}, v{d+2*r+1}")
        a(f"ds_write_b128 v16, {vr(d,4)} offset:{QX+tt*1024}")
        a(f"ds_write_b128 v16, {vr(d+4,4)} offset:{QX+tt*1024+4096}")
    if GMF():
        g = GACC
        a(f"""
        v_mul_f32 v{g}, {f32(-LOG2E)}, v{g}
        v_exp_f32 v{g}, v{g}
        s_nop 0
        v_add_f32 v{g}, 1.0, v{g}
        v_rcp_f32 v{g}, v{g}
        s_nop 0
        v_sub_f32 v20, 1.0, v{g}
        s_cmp_eq_u32 s{BB}, 0
        s_cselect_b64 vcc, -1, 0
        v_and_b32 v19, 31, v1
        v_lshlrev_b32 v19, 2, v19
        v_cndmask_b32 v20, v20, v{g}, vcc
        s_lshl_b32 s41, s{WM}, 8
        s_lshl_b32 s40, s{WN}, 7
        s_add_u32 s41, s41, s40
        v_add_u32 v19, s41, v19
        ds_write_b32 v19, v20 offset:{GX}
        """)
    a.lab("A_join")
    a("s_waitcnt lgkmcnt(0)")
    a("s_barrier")
    stamp(a, 3)

def spin(a, lab, addr_v, val_v, cond):
    a("s_mov_b32 s69, 0")
    a.lab(lab)
    a(f"global_load_dword v{val_v}, v{addr_v}, s[{DBG}:{DBG+1}] sc1")
    a("s_add_u32 s69, s69, 1")
    a("s_waitcnt vmcnt(0)")
    cond()
    a(f"s_cbranch_scc1 {lab}_ok")
    a("s_cmp_lt_u32 s69, 200000")
    a(f"s_cbranch_scc1 {lab}")
    a.lab(lab + "_ok")

def phase_b(a):
    Q = [4, 8]; S = [12, 28]; O = [44, 60]; C = [76, 92]
    KB = lambda s, u: 108 + s*16 + u*4
    VB = lambda s, u: 140 + s*32 + u*8
    G = [204, 205]; T0 = 206; T1 = 207; T2 = 208
    H4, QH, PAIR, QT = 30, 31, 32, 33
    a(f"""
    s_lshr_b32 s{H4}, s{WV}, 1
    s_and_b32 s{QH}, s{WV}, 1
    s_lshl_b32 s{PAIR}, s{CG}, 2
    s_add_u32 s{PAIR}, s{PAIR}, s{H4}
    s_lshl_b32 s{QT}, s{MT}, 2
    s_lshl_b32 s40, s{QH}, 1
    s_add_u32 s{QT}, s{QT}, s40
    s_lshl_b32 s46, s{PAIR}, 17
    s_add_u32 s46, s46, {WS_KV}
    s_lshl_b32 s40, s{H4}, 12
    s_lshl_b32 s41, s{QH}, 11
    s_add_u32 s40, s40, s41
    v_add_u32 v{T0}, s40, v2
    ds_read_b128 {vr(Q[0],4)}, v{T0} offset:{QX}
    ds_read_b128 {vr(Q[1],4)}, v{T0} offset:{QX+1024}
    v_and_b32 v{T1}, 31, v1
    v_lshlrev_b32 v{T1}, 2, v{T1}
    s_lshl_b32 s41, s{QH}, 8
    v_add_u32 v{T1}, s41, v{T1}
    """)
    if GM() != 2:
        a(f"ds_read_b32 v{G[0]}, v{T1} offset:{GX}")
        a(f"ds_read_b32 v{G[1]}, v{T1} offset:{GX+128}")
    a(f"""
    v_and_b32 v{T0}, 27, v1
    v_cmp_eq_u32 vcc, 16, v{T0}
    v_mov_b32 v{T1}, 0x3f803f80
    s_nop 0
    v_cndmask_b32 v{T0}, 0, v{T1}, vcc
    """)
    for r in range(64):
        a(f"v_mov_b32 v{VB(0,0)+r}, v{T0}")
    a(f"""
    s_mov_b32 s52, 0x0000ffff
    s_mov_b32 s53, 0x0000ffff
    s_lshl_b32 s40, s{H4}, 13
    v_add_u32 v{T0}, s40, v2
    """)
    for u in range(4):
        a(f"ds_read_b128 {vr(KB(0,u),4)}, v{T0} offset:{KVX+u*2048}")
    a("s_mov_b64 exec, s[52:53]")
    for u in range(4):
        a(f"ds_read_b128 {vr(VB(0,u),4)}, v{T0} offset:{KVX+u*2048+1024}")
        a(f"ds_read_b128 {vr(VB(0,u)+4,4)}, v{T0} offset:{KVX+u*2048+1280}")
    a("s_mov_b64 exec, -1")
    a(f"v_mov_b32 v{T2}, {RELAY}")
    a(f"ds_read_b32 v{T2+1}, v{T2}")
    a("s_waitcnt lgkmcnt(0)")
    a(f"v_readfirstlane_b32 s{NONCE}, v{T2+1}")
    a("s_barrier")
    stamp(a, 4)
    c_prefetch_setup(a)
    a("s_mov_b32 s49, 0")
    a("s_mov_b32 s50, 0")
    a("s_mov_b32 s54, 0")
    a(f"s_lshl_b32 s45, 1, s{MT}")
    if OPT.get("nodep", 0):
        a("s_mov_b32 s45, 0xffff")
        a("s_mov_b32 s49, 1")
    if OPT["prio"]:
        a("s_setprio 3")
    for x in range(2):
        a(f"v_mfma_f32_32x32x16_bf16 {vr(S[x],16)}, {vr(KB(0,0),4)}, {vr(Q[x],4)}, 0")
    a("s_nop 7")
    a("s_nop 7")
    MX = [T0, T1]
    for x in range(2):
        a(f"v_max3_f32 v{MX[x]}, v{S[x]}, v{S[x]+1}, v{S[x]+2}")
        for r in range(3, 15, 2):
            a(f"v_max3_f32 v{MX[x]}, v{MX[x]}, v{S[x]+r}, v{S[x]+r+1}")
        a(f"v_max_f32 v{MX[x]}, v{MX[x]}, v{S[x]+15}")
    a.lab("B_setmax")
    for x in range(2):
        a(f"""
        v_mov_b32 v{T2}, v{MX[x]}
        s_nop 1
        v_permlane32_swap_b32 v{MX[x]}, v{T2}
        s_nop 1
        v_max_f32 v{MX[x]}, v{MX[x]}, v{T2}
        """)
        for r in range(16):
            a(f"v_sub_f32 v{C[x]+r}, 0, v{MX[x]}")
        for r in range(16):
            a(f"v_mov_b32 v{O[x]+r}, 0")
    a(f"v_mfma_f32_32x32x16_bf16 {vr(S[0],16)}, {vr(KB(0,0),4)}, {vr(Q[0],4)}, {vr(C[0],16)}")
    for r in range(4):
        a(f"v_mov_b32 v{224+4+r}, 0")
    if OPT.get("sch", 1) == 3:
        for r in range(8, 16):
            a(f"v_mov_b32 v{S[1]+r}, 0")
    a(f"s_mov_b32 s44, s{MT}")
    a("s_mov_b32 s55, 0")
    a("s_nop 7")
    def ex(b, lo, hi):
        for r in range(lo, hi):
            a(f"v_exp_f32 v{b+r}, v{b+r}")
    def cv(b, h):
        for r in range(4):
            a(f"v_cvt_pk_bf16_f32 v{b+4*h+r}, v{b+8*h+2*r}, v{b+8*h+2*r+1}")
    def pv(x, vb, h):
        a(f"v_mfma_f32_32x32x16_bf16 {vr(O[x],16)}, {vr(vb+4*h,4)}, {vr(S[x]+4*h,4)}, {vr(O[x],16)}")
    def pf_head(tag):
        if tag == 0:
            a("s_cmp_eq_u32 s49, 0")
            a("s_cbranch_scc1 B_first")
            a.lab("B_first_ret")
        a(f"""
        s_add_u32 s44, s44, 1
        s_and_b32 s44, s44, 15
        s_bitcmp1_b32 s45, s44
        s_cbranch_scc0 B_poll{tag}
        """)
        a.lab(f"B_pf{tag}")
        a(f"""
        s_lshl_b32 s47, s44, 13
        s_add_u32 s47, s47, s46
        s_add_u32 s48, s47, 4096
        """)
    def ldk(s, u):
        so = 47 if u < 2 else 48
        a(f"buffer_load_dwordx4 {vr(KB(s,u),4)}, v2, {WSRD}, s{so} offen offset:{(u&1)*2048} sc1")
    def ldv(s, u):
        so = 47 if u < 2 else 48
        a("s_mov_b64 exec, s[52:53]")
        a(f"buffer_load_dwordx4 {vr(VB(s,u),4)}, v2, {WSRD}, s{so} offen offset:{(u&1)*2048+1024} sc1")
        a(f"buffer_load_dwordx4 {vr(VB(s,u)+4,4)}, v2, {WSRD}, s{so} offen offset:{(u&1)*2048+1280} sc1")
        a("s_mov_b64 exec, -1")
    a.lab("B_loop")
    D = OPT.get("D", 4)
    SCH = OPT.get("sch", 1)
    P = [216, 224]
    def e1(b, r):
        a(f"v_exp_f32 v{b+r}, v{b+r}")
    def cvp(x, lo, hi):
        for r in range(lo, hi):
            a(f"v_cvt_pk_bf16_f32 v{P[x]+r}, v{S[x]+2*r}, v{S[x]+2*r+1}")
    def pvp(x, vb, h):
        a(f"v_mfma_f32_32x32x16_bf16 {vr(O[x],16)}, {vr(vb+4*h,4)}, {vr(P[x]+4*h,4)}, {vr(O[x],16)}")
    for s in range(2):
        for u in range(4):
            vb = VB(s, u)
            vprev = VB(s, u-1) if u > 0 else VB(1-s, 3)
            kn = KB(s, u+1) if u < 3 else KB(1-s, 0)
            qs, qu = (s, u + D) if u + D < 4 else (1 - s, u + D - 4)
            guard = (s == 0 and qs == s)
            if OPT["prio"] == 2 and s == 1 and u == 0:
                a("s_cmp_lg_u32 s55, 7")
                a("s_cbranch_scc1 B_pm")
                a("s_setprio 0")
                a.lab("B_pm")
            def do_ldk():
                if qu == 0:
                    pf_head(s)
                if guard:
                    a("s_cmp_eq_u32 s49, 0")
                    a(f"s_cbranch_scc1 B_gk{u}")
                ldk(qs, qu)
                if guard:
                    a.lab(f"B_gk{u}")
            def do_ldv():
                if guard:
                    a("s_cmp_eq_u32 s49, 0")
                    a(f"s_cbranch_scc1 B_gv{u}")
                ldv(qs, qu)
                if guard:
                    a.lab(f"B_gv{u}")
                if u == 3 and s == 1:
                    a("s_cmp_lt_u32 s50, 4")
                    a("s_cbranch_scc1 B_wo")
                    a.lab("B_wo_ret")
            if SCH == 0:
                a(f"v_mfma_f32_32x32x16_bf16 {vr(S[1],16)}, {vr(KB(s,u),4)}, {vr(Q[1],4)}, {vr(C[1],16)}")
                do_ldk()
                ex(S[0], 0, 8)
                cv(S[0], 0)
                ex(S[0], 8, 16)
                a(f"s_waitcnt vmcnt({3*(D-1)+1})")
                pv(0, vb, 0)
                cv(S[0], 1)
                ex(S[1], 0, 2)
                pv(0, vb, 1)
                ex(S[1], 2, 8)
                a(f"s_waitcnt vmcnt({3*D-3})")
                a(f"v_mfma_f32_32x32x16_bf16 {vr(S[0],16)}, {vr(kn,4)}, {vr(Q[0],4)}, {vr(C[0],16)}")
                cv(S[1], 0)
                ex(S[1], 8, 16)
                pv(1, vb, 0)
                cv(S[1], 1)
                do_ldv()
                pv(1, vb, 1)
            else:
                scheds = {
                 1: "ea0-2 PVb1 ea2-8 QKb LK ca0-4 ea8-12 W PVa0 ea12-16 ca4-8 eb0-2 PVa1 eb2-7 QKa eb7-8 cb0-4 eb8-11 PVb0 LV eb11-16 cb4-8",
                 2: "ea0-2 PVb1 ea2-8 QKb LK ca0-4 ea8-12 W PVa0 ea12-16 eb0-2 ca4-8 eb2-4 PVa1 eb4-8 QKa eb8-10 cb0-4 eb10-12 PVb0 LV eb12-16 cb4-8",
                 3: "cb4-8 ea0-2 PVb1 ea2-8 QKb LK ea8-10 ca0-4 ea10-12 W PVa0 ea12-16 eb0-2 ca4-8 eb2-4 PVa1 eb4-8 QKa eb8-10 cb0-4 eb10-12 PVb0 LV eb12-16",
                 4: "ea0-4 PVb1 ea4-8 LK ca0-4 QKb ea8-12 W PVa0 ea12-16 ca4-8 eb0-2 PVa1 eb2-8 QKa cb0-4 eb8-11 PVb0 LV eb11-16 cb4-8",
                 5: "ea0-2 PVb1 ea2-6 QKb ea6-8 LK ca0-4 ea8-10 W PVa0 ea10-16 ca4-8 eb0-2 PVa1 eb2-6 QKa eb6-8 cb0-4 eb8-10 PVb0 eb10-13 LV eb13-16 cb4-8",
                }
                for tok in scheds[SCH].split():
                    if tok == "PVb1": pvp(1, vprev, 1)
                    elif tok == "PVa0": pvp(0, vb, 0)
                    elif tok == "PVa1": pvp(0, vb, 1)
                    elif tok == "PVb0": pvp(1, vb, 0)
                    elif tok == "QKb": a(f"v_mfma_f32_32x32x16_bf16 {vr(S[1],16)}, {vr(KB(s,u),4)}, {vr(Q[1],4)}, {vr(C[1],16)}")
                    elif tok == "QKa": a(f"v_mfma_f32_32x32x16_bf16 {vr(S[0],16)}, {vr(kn,4)}, {vr(Q[0],4)}, {vr(C[0],16)}")
                    elif tok == "LK": do_ldk()
                    elif tok == "LV": do_ldv()
                    elif tok == "W": a(f"s_waitcnt vmcnt({3*D-3})")
                    else:
                        x = 0 if tok[1] == "a" else 1
                        lo, hi = [int(z) for z in tok[2:].split("-")]
                        if tok[0] == "e": ex(S[x], lo, hi)
                        else: cvp(x, lo, hi)
    a("s_add_u32 s55, s55, 1")
    if OPT["prio"] == 1:
        a("""
        s_and_b32 s40, s55, 1
        s_cbranch_scc1 B_noprio
        s_cmp_eq_u32 s55, 2
        s_cbranch_scc0 B_p1
        s_setprio 2
        """)
        a.lab("B_p1")
        a("s_cmp_eq_u32 s55, 4")
        a("s_cbranch_scc0 B_p2")
        a("s_setprio 1")
        a.lab("B_p2")
        a("s_cmp_eq_u32 s55, 6")
        a("s_cbranch_scc0 B_noprio")
        a("s_setprio 0")
        a.lab("B_noprio")
    if OPT["prio"] == 3:
        a("s_cmp_lt_u32 s55, 5")
        a("s_cbranch_scc1 B_noprio")
        a("s_setprio 2")
        a("s_cmp_eq_u32 s55, 5")
        a("s_cbranch_scc1 B_noprio")
        a("s_setprio 1")
        a("s_cmp_eq_u32 s55, 6")
        a("s_cbranch_scc1 B_noprio")
        a("s_setprio 0")
        a.lab("B_noprio")
    if OPT["prio"] == 2:
        a("s_cmp_lt_u32 s55, 6")
        a("s_cbranch_scc1 B_noprio")
        a("s_setprio 2")
        a("s_cmp_eq_u32 s55, 6")
        a("s_cbranch_scc1 B_noprio")
        a("s_setprio 1")
        a.lab("B_noprio")
    a("s_cmp_ge_u32 s55, 5")
    a("s_cbranch_scc1 B_wobar")
    a.lab("B_wobar_ret")
    if PROF and OPT.get("lstamp", 0):
        a("s_cmp_eq_u32 s55, 1")
        a("s_cbranch_scc0 B_ls1")
        stamp(a, 9)
        a.lab("B_ls1")
        a(f"s_cmp_eq_u32 s55, {OPT.get('ls2', 4)}")
        a("s_cbranch_scc0 B_ls2")
        stamp(a, 10)
        a.lab("B_ls2")
    a("s_cmp_lt_u32 s55, 8")
    a("s_cbranch_scc1 B_loop")
    if OPT.get("sch", 1) == 3:
        for r in range(4, 8):
            a(f"v_cvt_pk_bf16_f32 v{224+r}, v{S[1]+2*r}, v{S[1]+2*r+1}")
    if OPT.get("sch", 1):
        a("s_nop 1")
        a(f"v_mfma_f32_32x32x16_bf16 {vr(O[1],16)}, {vr(VB(1,3)+4,4)}, {vr(224+4,4)}, {vr(O[1],16)}")
    stamp(a, 6)
    a("s_nop 7")
    a("s_nop 7")
    a("s_cmp_lg_u32 s54, 0")
    a("s_cbranch_scc1 B_fin")
    a(f"v_mov_b32 v{T0}, 0")
    a(f"v_mov_b32 v{T1}, 0")
    for x in range(2):
        o = O[x]
        for r in range(0, 8, 2):
            a(f"v_max3_f32 v{T0}, v{T0}, |v{o+r}|, |v{o+r+1}|")
        a(f"v_max_f32 v{T0}, v{T0}, v{o+8}")
        for r in range(8):
            a(f"v_add_f32 v{T1}, v{T1}, v{o+r}")
    a(f"""
    v_mul_f32 v{T1}, 0, v{T1}
    v_add_f32 v{T0}, v{T0}, v{T1}
    s_mov_b32 s57, {f32(2.0**100)}
    v_cmp_gt_f32 vcc, s57, v{T0}
    s_cmp_eq_u64 vcc, exec
    s_cbranch_scc1 B_fin
    """)
    a(f"""
    s_mov_b32 s54, 1
    v_mov_b32 v{T0}, {f32(-3.0e38)}
    v_mov_b32 v{T1}, {f32(-3.0e38)}
    s_mov_b32 s47, s46
    s_mov_b32 s55, 0
    s_waitcnt vmcnt(0)
    """)
    a.lab("B_maxloop")
    a(f"buffer_load_dwordx4 {vr(KB(1,0),4)}, v2, {WSRD}, s47 offen sc1")
    a("s_waitcnt vmcnt(0)")
    for x in range(2):
        a(f"v_mfma_f32_32x32x16_bf16 {vr(S[x],16)}, {vr(KB(1,0),4)}, {vr(Q[x],4)}, 0")
    a("s_nop 7")
    a("s_nop 7")
    for x in range(2):
        for r in range(0, 16, 2):
            a(f"v_max3_f32 v{MX[x]}, v{MX[x]}, v{S[x]+r}, v{S[x]+r+1}")
    a("s_add_u32 s47, s47, 2048")
    a("s_add_u32 s55, s55, 1")
    a("s_cmp_lt_u32 s55, 64")
    a("s_cbranch_scc1 B_maxloop")
    a("s_branch B_setmax")
    a.lab("B_first")
    a("s_waitcnt vmcnt(0)")
    a("s_barrier")
    stamp(a, 5)
    a("s_mov_b32 s49, 1")
    a(f"""
    s_cmp_lg_u32 s{WV}, 0
    s_cbranch_scc1 B_first_ret
    s_lshl_b32 s40, s{CG}, 7
    s_lshl_b32 s41, s{MT}, 2
    s_add_u32 s40, s40, s41
    s_add_u32 s40, s40, {WS_F}
    v_mov_b32 v{T2}, 0
    v_mov_b32 v{T2+1}, s{NONCE}
    s_mov_b64 exec, 1
    buffer_store_dword v{T2+1}, v{T2}, {WSRD}, s40 offen sc1
    s_lshl_b32 s40, s{MT}, 7
    s_lshl_b32 s41, s{CG}, 2
    s_add_u32 s40, s40, s41
    s_add_u32 s40, s40, {WS_GF}
    buffer_store_dword v{T2+1}, v{T2}, {WSRD}, s40 offen sc1
    s_mov_b64 exec, -1
    s_branch B_first_ret
    """)
    a.lab("B_wobar")
    a("s_cmp_lg_u32 s54, 0")
    a("s_cbranch_scc1 B_wobar_ret")
    a("s_cmp_eq_u32 s55, 6")
    a("s_cbranch_scc1 B_wobar6")
    if GM() == 2:
        a("s_cmp_lg_u32 s55, 5")
        a("s_cbranch_scc1 B_wobar_ret")
        a(f"s_cmp_lg_u32 s{WV}, 0")
        a("s_cbranch_scc1 B_wobar_ret")
        a(f"""
        s_lshl_b32 s40, s{MT}, 7
        s_add_u32 s40, s40, {WS_GF}
        v_lshlrev_b32 v{T2}, 2, v1
        s_mov_b32 s69, 0
        """)
        a.lab("B_gpoll")
        a(f"""
        s_mov_b64 exec, 0xffff
        buffer_load_dword v{T2+1}, v{T2}, {WSRD}, s40 offen sc1
        s_add_u32 s69, s69, 1
        s_waitcnt vmcnt(0)
        v_cmp_eq_u32 vcc, s{NONCE}, v{T2+1}
        s_mov_b64 exec, -1
        s_cmp_eq_u32 vcc_lo, 0xffff
        s_cbranch_scc1 B_wobar_ret
        s_cmp_lt_u32 s69, 200000
        s_cbranch_scc1 B_gpoll
        """)
    a("s_branch B_wobar_ret")
    a.lab("B_wobar6")
    a("s_barrier")
    if GM() == 2:
        a(f"""
        s_lshl_b32 s40, s{QT}, 7
        s_add_u32 s40, s40, {WS_G}
        v_and_b32 v{T2}, 31, v1
        v_lshlrev_b32 v{T2}, 2, v{T2}
        buffer_load_dword v{G[0]}, v{T2}, {WSRD}, s40 offen sc1
        buffer_load_dword v{G[1]}, v{T2}, {WSRD}, s40 offen offset:128 sc1
        """)
    a("s_branch B_wobar_ret")
    a.lab("B_wo")
    for i in range(4):
        a(f"s_add_u32 m0, s58, {i*1024}")
        a(f"s_add_u32 s51, s59, {i*8192}")
        a(f"buffer_load_dwordx4 v212, s[60:63], s51 offen lds")
    a("s_add_u32 s58, s58, 4096")
    a("s_add_u32 s59, s59, 32768")
    a("s_add_u32 s50, s50, 1")
    a("s_branch B_wo_ret")
    for sset in range(2):
        a.lab(f"B_poll{sset}")
        a("s_mov_b32 s69, 0")
        a(f"s_cmp_lg_u32 s{WV}, 0")
        a(f"s_cbranch_scc1 B_lp{sset}")
        a(f"""
        s_lshl_b32 s40, s{CG}, 7
        s_add_u32 s40, s40, {WS_F}
        v_lshlrev_b32 v{T2}, 2, v1
        """)
        a.lab(f"B_gp{sset}")
        a(f"""
        s_mov_b64 exec, 0xffff
        buffer_load_dword v{T2+1}, v{T2}, {WSRD}, s40 offen sc1
        s_add_u32 s69, s69, 1
        s_waitcnt vmcnt(0)
        v_cmp_eq_u32 vcc, s{NONCE}, v{T2+1}
        s_mov_b64 exec, -1
        s_or_b32 s45, s45, vcc_lo
        s_bitcmp1_b32 s45, s44
        s_cbranch_scc1 B_gok{sset}
        s_cmp_lt_u32 s69, 200000
        s_cbranch_scc1 B_gp{sset}
        """)
        a.lab(f"B_gok{sset}")
        a(f"""
        v_mov_b32 v{T2}, {RELAY+4}
        v_mov_b32 v{T2+1}, s45
        ds_write_b32 v{T2}, v{T2+1}
        s_branch B_pf{sset}
        """)
        a.lab(f"B_lp{sset}")
        a(f"v_mov_b32 v{T2}, {RELAY+4}")
        a.lab(f"B_lpl{sset}")
        a(f"""
        ds_read_b32 v{T2+1}, v{T2}
        s_add_u32 s69, s69, 1
        s_waitcnt lgkmcnt(0)
        v_readfirstlane_b32 s40, v{T2+1}
        s_nop 3
        s_or_b32 s45, s45, s40
        s_bitcmp1_b32 s45, s44
        s_cbranch_scc1 B_pf{sset}
        s_cmp_lt_u32 s69, 4000000
        s_cbranch_scc1 B_lpl{sset}
        s_branch B_pf{sset}
        """)
    a.lab("B_fin")
    if GM() == 2:
        a("s_waitcnt vmcnt(0)")
        a(f"s_cmp_eq_u32 s{BB}, 0")
        a("s_cbranch_scc1 B_fin2")
        a(f"v_sub_f32 v{G[0]}, 1.0, v{G[0]}")
        a(f"v_sub_f32 v{G[1]}, 1.0, v{G[1]}")
        a.lab("B_fin2")
    for x in range(2):
        o = O[x]
        a(f"v_rcp_f32 v{T0}, v{o+8}")
        a("s_nop 0")
        a(f"v_mul_f32 v{T0}, v{T0}, v{G[x]}")
        for r in range(8):
            a(f"v_mul_f32 v{o+r}, v{o+r}, v{T0}")
        for r in range(4):
            a(f"v_cvt_pk_bf16_f32 v{o+r}, v{o+2*r}, v{o+2*r+1}")
    a(f"""
    s_lshl_b32 s40, s{QT}, 6
    s_add_u32 s40, s40, s{PAIR}
    s_lshl_b32 s40, s40, 10
    s_add_u32 s40, s40, {WS_O}
    s_add_u32 s41, s40, 65536
    buffer_store_dwordx4 {vr(O[0],4)}, v2, {WSRD}, s40 offen sc1
    buffer_store_dwordx4 {vr(O[1],4)}, v2, {WSRD}, s41 offen sc1
    """)
    if OPT.get("oflag", 0):
        a(f"""
        s_lshl_b32 s40, s{MT}, 9
        s_lshl_b32 s41, s{QH}, 8
        s_add_u32 s40, s40, s41
        s_lshl_b32 s41, s{CG}, 4
        s_add_u32 s40, s40, s41
        s_lshl_b32 s41, s{H4}, 2
        s_add_u32 s40, s40, s41
        s_add_u32 s40, s40, {WS_F+2048}
        v_mov_b32 v4, 0
        v_mov_b32 v5, s{NONCE}
        s_waitcnt vmcnt(0)
        s_mov_b64 exec, 1
        buffer_store_dword v5, v4, {WSRD}, s40 offen sc1
        s_mov_b64 exec, -1
        """)
        stamp(a, 7)
    else:
        a("s_waitcnt vmcnt(0)")
        a("s_barrier")
        stamp(a, 7)
        a(f"""
        s_cmp_lg_u32 s{WV}, 0
        s_cbranch_scc1 B_opub_done
        s_lshl_b32 s40, s{MT}, 9
        s_lshl_b32 s41, s{CG}, 2
        s_add_u32 s40, s40, s41
        s_add_u32 s40, s40, {WS_F+2048}
        v_mov_b32 v4, 0
        v_mov_b32 v5, s{NONCE}
        s_mov_b64 exec, 1
        buffer_store_dword v5, v4, {WSRD}, s40 offen sc1
        s_mov_b64 exec, -1
        """)
    a.lab("B_opub_done")

def c_prefetch_setup(a):
    a(f"""
    v_lshrrev_b32 v212, 3, v1
    v_and_b32 v213, 7, v1
    v_bfe_u32 v214, v1, 4, 1
    v_lshlrev_b32 v214, 2, v214
    v_xor_b32 v214, v213, v214
    v_lshlrev_b32 v214, 4, v214
    v_lshl_add_u32 v212, v212, 10, v214
    s_cmp_lt_u32 s{WV}, 4
    s_cselect_b32 s60, s8, s14
    s_cselect_b32 s61, s9, s15
    s_and_b32 s56, s{WV}, 3
    s_lshl_b32 s56, s56, 17
    s_and_b32 s57, s{CG}, 7
    s_lshl_b32 s57, s57, 7
    s_add_u32 s56, s56, s57
    s_add_u32 s60, s60, s56
    s_addc_u32 s61, s61, 0
    s_sub_u32 s62, 524288, s56
    s_mov_b32 s63, 0x20000
    s_lshl_b32 s58, s{WV}, 14
    s_mov_b32 s59, 0
    """)

def phase_c(a):
    MT64, NT, KQ, TT = 30, 31, 32, 33
    OF = 64
    ACC = 128
    a(f"""
    s_lshl_b32 s{MT64}, s{MT}, 1
    s_lshr_b32 s40, s{CG}, 3
    s_add_u32 s{MT64}, s{MT64}, s40
    s_and_b32 s{NT}, s{CG}, 7
    s_lshr_b32 s{KQ}, s{WV}, 1
    s_and_b32 s{TT}, s{WV}, 1
    v_lshrrev_b32 v5, 4, v1
    s_lshl_b32 s44, s{MT}, 9
    s_lshr_b32 s40, s{CG}, 3
    s_lshl_b32 s40, s40, 8
    s_add_u32 s44, s44, s40
    s_lshl_b32 s40, s{KQ}, 6
    s_add_u32 s44, s44, s40
    s_add_u32 s44, s44, {WS_F+2048}
    v_lshlrev_b32 v6, 2, v1
    s_mov_b32 s47, 0
    s_lshl_b32 s45, s{MT64}, 1
    s_add_u32 s45, s45, s{TT}
    s_lshl_b32 s45, s45, 6
    s_lshl_b32 s46, s{KQ}, 4
    s_add_u32 s45, s45, s46
    s_lshl_b32 s45, s45, 10
    s_add_u32 s45, s45, {WS_O}
    """)
    if OPT.get("oflag", 0):
        for g in range(4):
            m = 0xf << (4*g)
            a(f"s_and_b32 s40, s47, {m}")
            a(f"s_cmp_eq_u32 s40, {m}")
            a(f"s_cbranch_scc1 C_rdy{g}")
            a("s_mov_b32 s69, 0")
            a.lab(f"C_poll{g}")
            a(f"""
            s_mov_b64 exec, 0xffff
            buffer_load_dword v7, v6, {WSRD}, s44 offen sc1
            s_add_u32 s69, s69, 1
            s_waitcnt vmcnt(0)
            v_cmp_eq_u32 vcc, s{NONCE}, v7
            s_mov_b64 exec, -1
            s_mov_b32 s47, vcc_lo
            s_and_b32 s40, s47, {m}
            s_cmp_eq_u32 s40, {m}
            s_cbranch_scc1 C_rdy{g}
            s_sleep {OPT.get("sleep", 4)}
            s_cmp_lt_u32 s69, 200000
            s_cbranch_scc1 C_poll{g}
            """)
            a.lab(f"C_rdy{g}")
            if g == 3:
                stamp(a, 8)
            for i in range(4*g, 4*g+4):
                a(f"buffer_load_dwordx4 {vr(OF+4*i,4)}, v2, {WSRD}, s45 offen offset:{(i%4)*1024} sc1")
            if g < 3:
                a("s_add_u32 s45, s45, 4096")
    else:
        a(f"""
        s_lshl_b32 s44, s{MT}, 9
        s_add_u32 s44, s44, {WS_F+2048}
        s_cmp_lg_u32 s{WV}, 0
        s_cbranch_scc1 C_wait_done
        s_mov_b32 s69, 0
        """)
        a.lab("C_poll")
        a(f"""
        s_mov_b64 exec, 0xffff
        buffer_load_dword v7, v6, {WSRD}, s44 offen sc1
        s_add_u32 s69, s69, 1
        s_waitcnt vmcnt(0)
        v_cmp_eq_u32 vcc, s{NONCE}, v7
        s_mov_b64 exec, -1
        s_cmp_eq_u32 vcc_lo, 0xffff
        s_cbranch_scc1 C_wait_done
        s_cmp_lt_u32 s69, 200000
        s_cbranch_scc1 C_poll
        """)
        a.lab("C_wait_done")
        a("s_barrier")
        stamp(a, 8)
        for i in range(16):
            if i and i % 4 == 0:
                a("s_add_u32 s45, s45, 4096")
            a(f"buffer_load_dwordx4 {vr(OF+4*i,4)}, v2, {WSRD}, s45 offen offset:{(i%4)*1024} sc1")
    a(f"""
    v_lshrrev_b32 v21, 5, v1
    v_and_b32 v26, 15, v1
    v_lshrrev_b32 v27, 2, v26
    v_lshl_add_u32 v28, v21, 2, v27
    v_lshlrev_b32 v28, 7, v28
    v_and_b32 v29, 1, v5
    v_lshlrev_b32 v29, 1, v29
    v_bfe_u32 v30, v26, 1, 1
    v_add_u32 v29, v29, v30
    v_bfe_u32 v30, v27, 1, 1
    v_lshlrev_b32 v30, 2, v30
    v_xor_b32 v29, v29, v30
    v_lshl_add_u32 v28, v29, 4, v28
    v_and_b32 v30, 1, v26
    v_lshl_add_u32 v28, v30, 3, v28
    s_lshl_b32 s40, s{KQ}, 15
    v_add_u32 v20, s40, v28
    v_xor_b32 v21, 64, v20
    """)
    WFR = [32, 40]
    def rd(i):
        f = WFR[i & 1]
        return [f"ds_read_b64_tr_b16 {vr(f+4*ct+2*u,2)}, v{20+ct} offset:{(16*i+8*u)*128}" for ct in range(2) for u in range(2)]
    for x in rd(0):
        a(x)
    for i in range(16):
        nxt = rd(i+1) if i < 15 else []
        a(f"s_waitcnt vmcnt({15-i}) lgkmcnt(0)")
        f = WFR[i & 1]
        for ct in range(2):
            d = vr(ACC+16*ct, 16)
            c = "0" if i == 0 else d
            a(f"v_mfma_f32_32x32x16_bf16 {d}, {vr(f+4*ct,4)}, {vr(OF+4*i,4)}, {c}")
            for x in nxt[2*ct:2*ct+2]:
                a(x)
    if not OPT.get('lstamp', 0): stamp(a, 9)
    a("s_barrier")
    a(f"""
    v_and_b32 v22, 31, v1
    v_lshrrev_b32 v23, 5, v1
    v_and_b32 v24, 7, v22
    v_lshlrev_b32 v25, 8, v22
    s_lshl_b32 s40, s{KQ}, 14
    s_lshl_b32 s41, s{TT}, 13
    s_add_u32 s40, s40, s41
    v_add_u32 v25, s40, v25
    s_nop 7
    s_nop 7
    """)
    for ct in range(2):
        for q4 in range(4):
            a(f"v_add_u32 v26, {ct*8+2*q4}, v23")
            a(f"v_xor_b32 v26, v26, v24")
            a(f"v_lshl_add_u32 v26, v26, 4, v25")
            a(f"ds_write_b128 v26, {vr(ACC+16*ct+4*q4,4)}")
    a("s_waitcnt lgkmcnt(0)")
    a("s_barrier")
    a("""
    v_lshrrev_b32 v22, 3, v0
    v_and_b32 v23, 7, v0
    v_and_b32 v24, 7, v22
    v_lshlrev_b32 v25, 8, v22
    v_lshlrev_b32 v27, 1, v23
    """)
    for c in range(2):
        a(f"v_add_u32 v26, {c}, v27")
        a(f"v_xor_b32 v26, v26, v24")
        a(f"v_lshl_add_u32 v26, v26, 4, v25")
        for k in range(4):
            a(f"ds_read_b128 {vr(64+k*8+c*4,4)}, v26 offset:{k*16384}")
    a(f"""
    s_mov_b32 s60, s18
    s_mov_b32 s61, s19
    s_mov_b32 s62, 2097152
    s_mov_b32 s63, 0x20000
    v_lshlrev_b32 v22, 10, v22
    v_lshl_add_u32 v22, v23, 4, v22
    s_lshl_b32 s40, s{MT64}, 16
    s_lshl_b32 s41, s{NT}, 7
    s_add_u32 s40, s40, s41
    s_waitcnt lgkmcnt(0)
    """)
    for r in range(8):
        a(f"v_add_f32 v{64+r}, v{64+r}, v{72+r}")
        a(f"v_add_f32 v{80+r}, v{80+r}, v{88+r}")
    for r in range(8):
        a(f"v_add_f32 v{64+r}, v{64+r}, v{80+r}")
    for r in range(4):
        a(f"v_cvt_pk_bf16_f32 v{64+r}, v{64+2*r}, v{64+2*r+1}")
    a("buffer_store_dwordx4 v[64:67], v22, s[60:63], s40 offen" + {0: "", 1: " sc1", 2: " nt", 3: " sc0 sc1"}[OPT.get("ost", 0)])
    if not OPT.get("lstamp", 0): stamp(a, 10)

HEAD = open("cdna_kernels/%s.s.ref" % NAME).read().split("; Override")[0]

def main(out):
    a = A()
    gen(a)
    s = HEAD
    s += "; @launch grid=(256,1,1) block=(512,1,1) lds=163840\n"
    s += '.amdgcn_target "amdgcn-amd-amdhsa--gfx950"\n'
    s += a.text()
    s += f""".section .rodata,"a"
.p2align 6
.amdhsa_kernel {KNAME}
  .amdhsa_next_free_vgpr 256
  .amdhsa_next_free_sgpr 102
  .amdhsa_accum_offset 256
  .amdhsa_group_segment_fixed_size 0
  .amdhsa_kernarg_size 80
  .amdhsa_user_sgpr_count 2
  .amdhsa_user_sgpr_kernarg_segment_ptr 1
  .amdhsa_system_sgpr_workgroup_id_x 1
.end_amdhsa_kernel
"""
    open(out, "w").write(s)

if __name__ == "__main__":
    if "--prof" in sys.argv:
        PROF = True
        sys.argv.remove("--prof")
    for x in list(sys.argv):
        if x.startswith("--") and "=" in x:
            k, v = x[2:].split("=")
            OPT[k] = int(v)
            sys.argv.remove(x)
    set_nslot(OPT.get("nslot", 3))
    main(sys.argv[1] if len(sys.argv) > 1 else "fused3.s")
```

```python
import sys, struct

NAME = "gated_mix__mha_block__mha_block__prompt"
KNAME = NAME + "_kernel"
WS_KV = 4 << 20
WS_O = 12 << 20
WS_F = 16 << 20
WS_GF = WS_F + 2048 + 8192
WS_G = WS_GF + 2048
WS_END = WS_G + 8192
RELAY = 160000
NONCE = 68
WS_T = 32 << 20
QSCALE = 0.25 * 1.4426950408889634
LOG2E = 1.4426950408889634
PROF = False
OPT = dict(prio=3, rot=1, pfu=0, D=4, cpf=1, sch=2, wpf=1)
NST = 12
SB = 70

def f32(x):
    return "0x%08x" % struct.unpack("<I", struct.pack("<f", x))[0]

class A:
    def __init__(self):
        self.l = []
    def __call__(self, s):
        for x in s.strip().split("\n"):
            if x.strip():
                self.l.append("  " + x.strip())
    def lab(self, s):
        self.l.append(s + ":")
    def raw(self, s):
        self.l.append(s)
    def text(self):
        return "\n".join(self.l) + "\n"

def vr(b, n):
    return f"v[{b}:{b+n-1}]"
def u32(x):
    return x & 0xffffffff

def GM():
    return OPT.get('gm', 2)
def GMF():
    return GM() == 1
def stamp(a, k):
    if PROF:
        a(f"s_memtime s[{SB+2*k}:{SB+2*k+1}]")

WV = 3
XCD, SLOT_ = 24, 25
CG, MT, BB, HG = 26, 27, 28, 29
SRDW = 36
DBG = 20
WS = 22
WSRD = f"s[{SRDW}:{SRDW+3}]"

def gen(a):
    a.raw(".text")
    a.raw(f".globl {KNAME}")
    a.raw(".p2align 8")
    a.raw(f".type {KNAME},@function")
    a.lab(KNAME)
    a("s_cmp_ge_u32 s2, 256")
    a("s_cbranch_scc1 L_end")
    if PROF:
        a(f"s_memrealtime s[{SB+2*NST}:{SB+2*NST+1}]")
        stamp(a, 0)
    a(f"""
    s_load_dwordx4 s[4:7], s[0:1], 0
    s_load_dwordx2 s[8:9], s[0:1], 16
    s_load_dwordx4 s[12:15], s[0:1], 32
    s_load_dwordx4 s[16:19], s[0:1], 48
    s_load_dwordx4 s[20:23], s[0:1], 64
    v_lshrrev_b32 v2, 6, v0
    v_and_b32 v1, 63, v0
    s_and_b32 s{XCD}, s2, 7
    s_lshr_b32 s{SLOT_}, s2, 3
    v_readfirstlane_b32 s{WV}, v2
    v_lshlrev_b32 v2, 4, v1
    s_lshr_b32 s40, s{XCD}, 1
    s_lshl_b32 s40, s40, 2
    s_and_b32 s41, s{SLOT_}, 3
    s_add_u32 s{CG}, s40, s41
    s_lshr_b32 s{BB}, s{CG}, 3
    s_and_b32 s{HG}, s{CG}, 7
    s_and_b32 s{MT}, s{XCD}, 1
    s_lshl_b32 s{MT}, s{MT}, 3
    s_lshr_b32 s41, s{SLOT_}, 2
    s_add_u32 s{MT}, s{MT}, s41
    """)
    if OPT.get("diag", 0):
        a("s_memrealtime s[94:95]")
        a("s_memtime s[96:97]")
    phase_a(a)
    phase_b(a)
    phase_c(a)
    if OPT.get("diag", 0):
        a(f"""
        s_waitcnt vmcnt(0)
        s_memrealtime s[90:91]
        s_memtime s[92:93]
        s_waitcnt lgkmcnt(0)
        s_sub_u32 s92, s92, s96
        s_not_b32 s94, s94
        s_and_b32 s91, s2, 15
        s_or_b32 s91, s91, s{WV}
        s_cmp_lg_u32 s91, 0
        s_cbranch_scc1 L_end
        s_mov_b64 exec, 1
        v_mov_b32 v4, 16
        v_mov_b32 v5, s92
        global_atomic_umax v4, v5, s[{DBG}:{DBG+1}]
        v_mov_b32 v4, 20
        v_mov_b32 v5, s90
        global_atomic_umax v4, v5, s[{DBG}:{DBG+1}]
        v_mov_b32 v4, 24
        v_mov_b32 v5, s94
        global_atomic_umax v4, v5, s[{DBG}:{DBG+1}]
        s_mov_b64 exec, -1
        """)
    if PROF:
        a("s_waitcnt vmcnt(0)")
        a(f"s_memrealtime s[{SB+2*NST+2}:{SB+2*NST+3}]")
        stamp(a, NST-1)
        a("s_waitcnt lgkmcnt(0)")
        if OPT.get("lprof", 0):
            for k, r in ((8, 98), (9, 99), (10, 100)):
                a(f"s_add_u32 s{SB+2*k}, s{SB}, s{r}")
                a(f"s_addc_u32 s{SB+2*k+1}, s{SB+1}, 0")
            a.lab("L_nolp")
        a(f"""
        s_lshl_b32 s40, s2, 4
        s_add_u32 s40, s40, s{WV}
        s_lshl_b32 s40, s40, 7
        s_add_u32 s40, s40, {WS_T}
        s_add_u32 s40, s{WS}, s40
        s_addc_u32 s41, s{WS+1}, 0
        s_mov_b64 exec, 1
        v_mov_b32 v4, 0
        """)
        for k in range(NST+2):
            a(f"v_mov_b32 v6, s{SB+2*k}")
            a(f"v_mov_b32 v7, s{SB+2*k+1}")
            a(f"global_store_dwordx2 v4, v[6:7], s[40:41] offset:{8*k}")
            a("s_nop 1")
    a.lab("L_end")
    a("s_endpgm")
    a.lab("L_codeend")

SLOT = 40960
NSLOT = 3
GIMG = NSLOT * SLOT
def set_nslot(n):
    global NSLOT, GIMG
    NSLOT = n
    GIMG = 3 * SLOT
QX, KVX, GX = 0, 16384, 49152

def phase_a(a):
    a(f"""
    v_lshrrev_b32 v5, 4, v1
    s_cmp_ge_u32 s{WV}, 4
    s_cbranch_scc0 A_compute
    """)
    LW = 30
    a(f"""
    s_sub_u32 s{LW}, s{WV}, 4
    s_setprio 3
    v_lshrrev_b32 v3, 3, v1
    v_and_b32 v4, 7, v1
    v_xor_b32 v6, v4, v5
    v_lshlrev_b32 v6, 4, v6
    v_lshl_add_u32 v10, v3, 10, v6
    v_add_u32 v7, 4, v5
    v_xor_b32 v7, v4, v7
    v_lshlrev_b32 v7, 4, v7
    v_lshl_add_u32 v11, v3, 10, v7
    v_and_b32 v8, 1, v5
    v_lshlrev_b32 v8, 2, v8
    v_xor_b32 v8, v4, v8
    v_lshlrev_b32 v8, 4, v8
    v_mul_u32_u24 v9, 3072, v3
    v_add_u32 v12, v9, v8
    s_lshl_b32 s54, s{LW}, 15
    """)
    for u in range(4):
        a(f"s_add_u32 s{44+u}, s54, {u*8192}")
    a(f"s_mul_i32 s54, s{LW}, 49152")
    for g3 in range(3):
        for e in range(2):
            a(f"s_add_u32 s{48+g3*2+e}, s54, {g3*1024 + e*8*3072}")
    a(f"""
    s_lshl_b32 s55, s{LW}, 12
    s_lshl_b32 s56, s{LW}, 11
    s_add_u32 s56, s56, 16384
    s_lshl_b32 s40, s{MT}, 17
    s_lshl_b32 s41, s{HG}, 7
    s_mov_b32 s62, 131072
    s_mov_b32 s63, 0x20000
    s_sub_u32 s34, 1572864, s41
    s_mov_b32 s35, 0x20000
    """)
    if OPT["rot"]:
        a(f"s_mov_b32 s57, s{XCD}")
    else:
        a("s_mov_b32 s57, 0")
    a(f"""
    s_lshl_b32 s42, s57, 7
    v_add_u32 v10, s42, v10
    v_add_u32 v11, s42, v11
    s_mul_i32 s42, s57, 196608
    v_add_u32 v12, s42, v12
    s_mov_b32 s64, {u32(-896)}
    s_mov_b32 s65, 128
    s_mov_b32 s66, {u32(-7*196608)}
    s_mov_b32 s67, 196608
    s_waitcnt lgkmcnt(0)
    s_cmp_eq_u32 s{BB}, 0
    s_cselect_b32 s32, s6, s12
    s_cselect_b32 s33, s7, s13
    s_add_u32 s60, s4, s40
    s_addc_u32 s61, s5, 0
    s_add_u32 s32, s32, s41
    s_addc_u32 s33, s33, 0
    """)
    def issue_stage(extra=None):
        extra = list(extra or [])
        seq = [("w",0,0),("x",0,0),("w",0,1),("x",1,0),("w",1,0),("x",2,0),("w",1,1),("x",3,0),("w",2,0),("w",2,1)]
        for n, (kind, i, e) in enumerate(seq):
            if kind == "x":
                a(f"s_add_u32 m0, s55, {i*1024}")
                a("s_add_u32 s57, s57, 1" if n == 1 else ("s_and_b32 s57, s57, 7" if n == 3 else "s_nop 0"))
                a(f"buffer_load_dwordx4 v{10+(i&1)}, s[60:63], s{44+i} offen lds")
            else:
                a(f"s_add_u32 m0, s56, {i*8192+e*1024}")
                a("s_cmp_eq_u32 s57, 0" if n == 4 else "s_nop 0")
                a(f"buffer_load_dwordx4 v12, s[32:35], s{48+i*2+e} offen lds")
                if n == 4:
                    a("s_cselect_b32 s42, s64, s65")
                    a("s_cselect_b32 s43, s66, s67")
            if n >= 2 and extra:
                k = 1 if n == 2 else 3
                for _ in range(k):
                    if extra: a(extra.pop(0))
        for x in extra:
            a(x)
        a("v_add_u32 v10, s42, v10")
        a("v_add_u32 v11, s42, v11")
        a("v_add_u32 v12, s43, v12")
        a(f"s_add_u32 s55, s55, {SLOT}")
        a(f"s_add_u32 s56, s56, {SLOT}")
        a(f"s_cmp_ge_u32 s56, {NSLOT*SLOT}")
        a(f"s_cselect_b32 s54, {NSLOT*SLOT}, 0")
        a("s_sub_u32 s55, s55, s54")
        a("s_sub_u32 s56, s56, s54")
    a(f"""
    s_mov_b32 s{SRDW}, s16
    s_mov_b32 s{SRDW+1}, s17
    s_mov_b32 s{SRDW+2}, 1024
    s_mov_b32 s{SRDW+3}, 0x20000
    s_lshl_b32 s43, s{LW}, 8
    s_add_u32 m0, s43, {GIMG}
    """)
    if GM() == 2:
        pass
    elif not OPT.get("nogate", 0):
        a(f"""
        s_mov_b64 exec, 0xffff
        buffer_load_dwordx4 v2, {WSRD}, s43 offen lds
        s_mov_b64 exec, -1
        """)
    if GM() == 0:
        a(f"""
        v_and_b32 v20, 31, v1
        v_lshrrev_b32 v21, 5, v1
        v_lshrrev_b32 v22, 1, v1
        v_and_b32 v22, 7, v22
        s_lshl_b32 s40, s{LW}, 12
        v_lshlrev_b32 v23, 7, v20
        v_add_u32 v23, s40, v23
        """)
        for ks in range(4):
            a(f"v_add_u32 v24, {2*ks}, v21")
            a(f"v_xor_b32 v24, v24, v22")
            a(f"v_lshl_add_u32 v{16+ks}, v24, 4, v23")
        a(f"""
        v_lshlrev_b32 v15, 4, v21
        v_add_u32 v15, {GIMG}, v15
        v_mov_b32 v64, 0
        s_mov_b32 s59, 0
        """)
        if OPT["rot"]:
            a(f"s_mov_b32 s31, s{XCD}")
        else:
            a("s_mov_b32 s31, 0")
    LK = OPT.get("look", 2)
    if OPT.get("pfwait", 0):
        a("s_barrier")
    for _ in range(LK):
        issue_stage()
    def gate_reads():
        if OPT.get("nogate", 0) or GM() != 0: return
        a("s_lshl_b32 s40, s31, 7")
        a("v_add_u32 v14, s40, v15")
        for ks in range(4):
            a(f"v_add_u32 v24, s59, v{16+ks}")
            a(f"ds_read_b128 {vr(28+8*ks,4)}, v24")
            a(f"ds_read_b128 {vr(32+8*ks,4)}, v14 offset:{ks*32}")
        a("s_add_u32 s31, s31, 1")
        a("s_and_b32 s31, s31, 7")
        a(f"s_add_u32 s59, s59, {SLOT}")
        a(f"s_cmp_ge_u32 s59, {NSLOT*SLOT}")
        a(f"s_cselect_b32 s40, {NSLOT*SLOT}, 0")
        a("s_sub_u32 s59, s59, s40")
    def gate_dots():
        if OPT.get("nogate", 0) or GM() != 0: return
        a("s_waitcnt lgkmcnt(0)")
        for ks in range(4):
            for q in range(4):
                a(f"v_dot2c_f32_bf16 v64, v{28+8*ks+q}, v{32+8*ks+q}")
    if OPT.get("ldprio", 0) == 0:
        a("s_setprio 0")
    a("s_mov_b32 s58, 0")
    LP = PROF and OPT.get("lprof", 0)
    def tick(acc):
        if LP:
            a("s_memtime s[88:89]")
            a("s_waitcnt lgkmcnt(0)")
            a("s_sub_u32 s87, s88, s86")
            a(f"s_add_u32 s{acc}, s{acc}, s87")
            a("s_mov_b32 s86, s88")
    if LP:
        a("s_memtime s[88:89]")
        a("s_waitcnt lgkmcnt(0)")
        a("s_mov_b32 s86, s88")
        a("s_mov_b32 s80, 0"); a("s_mov_b32 s81, 0"); a("s_mov_b32 s82, 0"); a("s_mov_b32 s83, 0"); a("s_mov_b32 s84, 0"); a("s_mov_b32 s85, 0")
    a.lab("A_ld_loop")
    a(f"s_waitcnt vmcnt({10*(LK-1)})")
    tick(80)
    a("s_barrier")
    tick(82)
    gate_reads()
    issue_stage(None if (OPT.get("nogate", 0) or GM() != 0) else ["s_waitcnt lgkmcnt(0)"] + [f"v_dot2c_f32_bf16 v64, v{28+8*ks+q}, v{32+8*ks+q}" for ks in range(4) for q in range(4)])
    tick(84)
    a("s_add_u32 s58, s58, 1")
    a(f"s_cmp_lt_u32 s58, {8-LK}")
    a("s_cbranch_scc1 A_ld_loop")
    if GM() == 2:
        a(f"""
        s_mov_b32 s{SRDW}, s16
        s_mov_b32 s{SRDW+1}, s17
        s_mov_b32 s{SRDW+2}, 1024
        s_mov_b32 s{SRDW+3}, 0x20000
        v_and_b32 v13, 15, v1
        v_lshlrev_b32 v13, 4, v13
        v_lshl_add_u32 v14, v5, 10, v13
        s_lshl_b32 s40, s{CG}, 3
        s_and_b32 s41, s{LW}, 1
        s_lshl_b32 s41, s41, 2
        s_add_u32 s29, s40, s41
        s_lshl_b32 s41, s29, 10
        s_cmp_ge_u32 s{LW}, 2
        s_cbranch_scc1 A_nogl
        """)
        for i in range(4):
            a(f"buffer_load_dwordx4 {vr(16+4*i,4)}, v14, s[60:63], s41 offen offset:{256*i}")
        for i in range(4):
            a(f"buffer_load_dwordx4 {vr(32+4*i,4)}, v13, {WSRD}, 0 offen offset:{256*i}")
        a.lab("A_nogl")
    for k in range(LK):
        a(f"s_waitcnt vmcnt({10*(LK-1-k)})")
        a("s_barrier")
        gate_reads()
        gate_dots()
    if LP:
        a("s_mov_b32 s98, s80"); a("s_mov_b32 s99, s82"); a("s_mov_b32 s100, s84")
    a("s_setprio 0")
    a(f"""
    s_mov_b32 s{SRDW}, s{WS}
    s_mov_b32 s{SRDW+1}, s{WS+1}
    s_mov_b32 s{SRDW+2}, {WS_END}
    s_mov_b32 s{SRDW+3}, 0x20000
    """)
    if GM() == 1:
        a("s_barrier")
    elif GM() == 2:
        a("s_barrier")
        a(f"s_cmp_ge_u32 s{LW}, 2")
        a("s_cbranch_scc1 A_join")
        a("v_mov_b32 v48, 0")
        a("s_waitcnt vmcnt(0)")
        for i in range(16):
            a(f"v_dot2c_f32_bf16 v48, v{16+i}, v{32+i}")
        a("s_nop 3")
        for rot in (8, 4, 2, 1):
            a(f"v_add_f32_dpp v48, v48, v48 row_ror:{rot} row_mask:0xf bank_mask:0xf")
            a("s_nop 1")
        a(f"""
        v_mul_f32 v48, {f32(-LOG2E)}, v48
        v_exp_f32 v48, v48
        s_nop 0
        v_add_f32 v48, 1.0, v48
        v_rcp_f32 v48, v48
        s_lshl_b32 s41, s{MT}, 7
        s_add_u32 s41, s41, s29
        s_lshl_b32 s41, s41, 2
        s_add_u32 s41, s41, {WS_G}
        v_lshlrev_b32 v49, 2, v5
        v_and_b32 v50, 15, v1
        v_cmp_eq_u32 vcc, 0, v50
        s_and_saveexec_b64 s[58:59], vcc
        buffer_store_dword v48, v49, {WSRD}, s41 offen sc1
        s_mov_b64 exec, s[58:59]
        """)
    else:
        a(f"""
        s_nop 3
        v_mov_b32 v20, v64
        s_nop 1
        v_permlane32_swap_b32 v64, v20
        s_nop 1
        v_add_f32 v64, v64, v20
        v_mul_f32 v64, {f32(-LOG2E)}, v64
        v_exp_f32 v64, v64
        s_nop 0
        v_add_f32 v64, 1.0, v64
        v_rcp_f32 v64, v64
        s_nop 0
        v_sub_f32 v20, 1.0, v64
        s_cmp_eq_u32 s{BB}, 0
        s_cselect_b64 vcc, -1, 0
        s_nop 1
        v_cndmask_b32 v20, v20, v64, vcc
        v_and_b32 v19, 31, v1
        v_lshlrev_b32 v19, 2, v19
        s_lshl_b32 s41, s{LW}, 7
        v_add_u32 v19, s41, v19
        s_barrier
        ds_write_b32 v19, v20 offset:{GX}
        """)
    a("""
    s_branch A_join
    """)
    a.lab("A_compute")
    WM, WN = 30, 31
    a(f"""
    s_and_b32 s{WM}, s{WV}, 1
    s_lshr_b32 s{WN}, s{WV}, 1
    v_and_b32 v20, 31, v1
    v_lshrrev_b32 v21, 5, v1
    v_lshrrev_b32 v22, 1, v1
    v_and_b32 v22, 7, v22
    s_lshl_b32 s40, s{WM}, 13
    v_lshlrev_b32 v23, 7, v20
    v_add_u32 v23, s40, v23
    """)
    for ks in range(4):
        a(f"v_add_u32 v24, {2*ks}, v21")
        a(f"v_xor_b32 v24, v24, v22")
        a(f"v_lshl_add_u32 v{16+ks}, v24, 4, v23")
    a(f"""
    v_and_b32 v26, 15, v1
    v_lshrrev_b32 v27, 2, v26
    v_lshl_add_u32 v28, v21, 3, v27
    v_lshlrev_b32 v28, 7, v28
    v_and_b32 v29, 1, v5
    v_lshlrev_b32 v29, 1, v29
    v_bfe_u32 v30, v26, 1, 1
    v_add_u32 v29, v29, v30
    s_lshl_b32 s40, s{WN}, 2
    v_add_u32 v29, s40, v29
    v_bfe_u32 v30, v27, 1, 1
    v_lshlrev_b32 v30, 2, v30
    v_xor_b32 v29, v29, v30
    v_lshl_add_u32 v28, v29, 4, v28
    v_and_b32 v30, 1, v26
    v_lshl_add_u32 v25, v30, 3, v28
    """)
    ACC = 64
    XF = [32, 160]
    WF = [40, 168]
    GF = [52, 180]
    GACC = 192
    for r in range(96):
        a(f"v_mov_b32 v{ACC+r}, 0")
    if GMF():
        for r in range(16):
            a(f"v_mov_b32 v{GACC+r}, 0")
        a(f"s_mov_b32 s59, s{XCD}" if OPT["rot"] else "s_mov_b32 s59, 0")
        a(f"""
        s_lshl_b32 s40, s59, 7
        v_lshlrev_b32 v15, 4, v21
        v_add_u32 v15, {GIMG}, v15
        v_add_u32 v14, s40, v15
        s_cmp_eq_u32 s{WN}, 0
        s_cselect_b64 vcc, -1, 0
        """)
    a(f"""
    s_lshl_b32 s40, s{CG}, 2
    s_lshl_b32 s41, s{WN}, 1
    s_add_u32 s40, s40, s41
    s_lshl_b32 s40, s40, 6
    s_lshl_b32 s41, s{MT}, 2
    s_add_u32 s40, s40, s41
    s_lshl_b32 s41, s{WM}, 1
    s_add_u32 s40, s40, s41
    s_lshl_b32 s46, s40, 11
    s_add_u32 s46, s46, {WS_KV}
    s_mov_b32 s48, {f32(QSCALE)}
    v_and_b32 v11, 15, v1
    v_lshlrev_b32 v11, 4, v11
    v_lshl_add_u32 v11, v21, 9, v11
    v_bfe_u32 v12, v1, 4, 1
    v_lshl_add_u32 v13, v12, 13, v11
    v_lshl_add_u32 v11, v12, 17, v11
    v_add_u32 v11, 1024, v11
    s_add_u32 s47, s46, 131072
    s_mov_b32 s{SRDW+2}, {WS_END}
    s_mov_b32 s{SRDW+3}, 0x20000
    s_mov_b32 s57, 0
    s_mov_b32 s58, 0
    """)
    def set_addr():
        for ks in range(4):
            a(f"v_add_u32 v{20+ks}, s57, v{16+ks}")
        a("v_add_u32 v24, s57, v25")
    set_addr()
    a("s_waitcnt lgkmcnt(0)")
    a(f"s_mov_b32 s{SRDW}, s{WS}")
    a(f"s_mov_b32 s{SRDW+1}, s{WS+1}")
    if OPT.get("wpf", 0):
        a(f"""
        s_lshl_b32 s40, s2, 2
        s_add_u32 s40, s40, s{WV}
        s_and_b32 s41, s40, 511
        s_mul_i32 s41, s41, 3072
        s_cmp_lt_u32 s40, 512
        s_cselect_b32 s42, s6, s12
        s_cselect_b32 s43, s7, s13
        s_add_u32 s42, s42, s41
        s_addc_u32 s43, s43, 0
        global_load_dwordx4 v[208:211], v2, s[42:43]
        global_load_dwordx4 v[208:211], v2, s[42:43] offset:1024
        global_load_dwordx4 v[208:211], v2, s[42:43] offset:2048
        s_lshl_b32 s40, s2, 3
        s_lshl_b32 s41, s{WV}, 1
        s_add_u32 s40, s40, s41
        s_lshl_b32 s40, s40, 10
        s_add_u32 s42, s4, s40
        s_addc_u32 s43, s5, 0
        global_load_dwordx4 v[208:211], v2, s[42:43]
        global_load_dwordx4 v[208:211], v2, s[42:43] offset:1024
        """)
    if OPT.get("xpf", 0):
        a(f"""
        s_and_b32 s40, s{XCD}, 1
        s_lshl_b32 s40, s40, 10
        s_lshl_b32 s41, s{SLOT_}, 5
        s_add_u32 s40, s40, s41
        s_lshl_b32 s41, s{WV}, 3
        s_add_u32 s40, s40, s41
        s_lshl_b32 s40, s40, 10
        s_add_u32 s42, s4, s40
        s_addc_u32 s43, s5, 0
        v_mov_b32 v212, v2
        """)
        a(f"""
        s_cmp_eq_u32 s{BB}, 0
        s_cselect_b32 s44, s6, s12
        s_cselect_b32 s45, s7, s13
        s_lshl_b32 s40, s{SLOT_}, 4
        s_lshl_b32 s41, s{WV}, 2
        s_add_u32 s40, s40, s41
        s_mul_i32 s40, s40, 3072
        s_and_b32 s41, s{HG}, 4
        s_lshl_b32 s41, s41, 7
        s_add_u32 s40, s40, s41
        s_add_u32 s44, s44, s40
        s_addc_u32 s45, s45, 0
        v_lshrrev_b32 v213, 5, v1
        v_mul_u32_u24 v213, 3072, v213
        v_and_b32 v214, 31, v1
        v_lshl_add_u32 v213, v214, 4, v213
        v_add_u32 v214, 6144, v213
        """)
        for t in range(3):
            a(f"global_load_dwordx4 v[208:211], v213, s[44:45] offset:{t*1024}")
            a(f"global_load_dwordx4 v[208:211], v214, s[44:45] offset:{t*1024}")
        for i in range(8):
            a(f"global_load_dwordx4 v[208:211], v212, s[42:43]")
            if i < 7: a("v_add_u32 v212, 1024, v212")
    if OPT.get("pfwait", 0):
        a("s_waitcnt vmcnt(0)")
        a("s_barrier")
    if OPT.get("cpf", 0):
        a(f"""
        s_cmp_lg_u32 s{WV}, 3
        s_cbranch_scc1 A_nocpf
        s_cmp_ge_u32 s{SLOT_}, (L_codeend-{KNAME})>>10
        s_cbranch_scc1 A_nocpf
        s_getpc_b64 s[42:43]
        """)
        a.lab("A_pc")
        a(f"""
        s_sub_u32 s42, s42, A_pc-{KNAME}
        s_subb_u32 s43, s43, 0
        s_lshl_b32 s40, s{SLOT_}, 10
        s_add_u32 s42, s42, s40
        s_addc_u32 s43, s43, 0
        global_load_dwordx4 v[208:211], v2, s[42:43]
        """)
        a.lab("A_nocpf")
    if OPT.get("pt", 0):
        a(f"""
        s_cmp_lg_u32 s{WV}, 1
        s_cbranch_scc1 A_nopt1
        s_lshl_b32 s40, s{CG}, 19
        s_add_u32 s40, s40, {WS_KV}
        v_lshlrev_b32 v212, 13, v1
        buffer_load_dword v208, v212, {WSRD}, s40 offen
        """)
        a.lab("A_nopt1")
        a(f"""
        s_cmp_lg_u32 s{WV}, 2
        s_cbranch_scc1 A_nopt2
        v_lshlrev_b32 v212, 16, v1
        s_mov_b32 s40, {WS_O}
        buffer_load_dword v208, v212, {WSRD}, s40 offen
        v_mov_b32 v213, 0
        s_mov_b32 s40, {WS_F}
        buffer_load_dword v209, v213, {WSRD}, s40 offen
        v_lshlrev_b32 v213, 15, v1
        global_load_dword v210, v213, s[18:19]
        v_lshlrev_b32 v214, 13, v1
        global_load_dword v211, v214, s[8:9]
        global_load_dword v211, v214, s[14:15]
        """)
        a.lab("A_nopt2")
    a(f"""
    s_cmp_lg_u32 s{WV}, 0
    s_cbranch_scc1 A_nononce
    s_memrealtime s[40:41]
    s_waitcnt lgkmcnt(0)
    s_or_b32 s40, s40, 1
    v_mov_b32 v186, s40
    v_mov_b32 v187, 0
    v_mov_b32 v188, 0
    s_mov_b64 exec, 1
    global_atomic_cmpswap v189, v188, v[186:187], s[{DBG}:{DBG+1}] sc0
    s_mov_b64 exec, -1
    """)
    a.lab("A_nononce")
    def read_list(ks, f):
        r = []
        r.append(f"ds_read_b64_tr_b16 {vr(WF[f]+0,2)}, v24 offset:{16384+(16*ks+0)*128}")
        r.append(f"ds_read_b64_tr_b16 {vr(WF[f]+2,2)}, v24 offset:{16384+(16*ks+4)*128}")
        r.append(f"ds_read_b128 {vr(XF[f],4)}, v{20+ks} offset:0")
        r.append(f"ds_read_b128 {vr(XF[f]+4,4)}, v{20+ks} offset:4096")
        for g3 in (1, 2):
            for u in range(2):
                r.append(f"ds_read_b64_tr_b16 {vr(WF[f]+4*g3+2*u,2)}, v24 offset:{16384+g3*8192+(16*ks+4*u)*128}")
        if GMF():
            r.append(f"ds_read_b128 {vr(GF[f],4)}, v14 offset:{ks*32}")
        return r
    gl = [0]
    FW = OPT.get("finewait", 1)
    def group(f, rl, barrier=False):
        order = [(0,0),(0,1),(1,0),(1,1),(2,0),(2,1)]
        nold = 9 if GMF() else 8
        need = {0: 3, 1: 4, 2: 6, 4: 8}
        rl = list(rl)
        issued = 0
        per = OPT.get("rpg", 2)
        for i, (g3, tt) in enumerate(order):
            if FW and i in need:
                a(f"s_waitcnt lgkmcnt({min(15, nold - need[i] + issued)})")
            x = vr(XF[f]+4*tt, 4); w = vr(WF[f]+4*g3, 4); d = vr(ACC+16*(tt*3+g3), 16)
            if g3 < 2:
                a(f"v_mfma_f32_32x32x16_bf16 {d}, {w}, {x}, {d}")
            else:
                a(f"v_mfma_f32_32x32x16_bf16 {d}, {x}, {w}, {d}")
            if i == 0 and barrier:
                if PROF and OPT.get("lprof", 0):
                    a("s_memtime s[88:89]")
                a(f"s_waitcnt lgkmcnt(0)")
                a("s_barrier")
                if PROF and OPT.get("lprof", 0):
                    a("s_memtime s[86:87]")
                    a("s_waitcnt lgkmcnt(0)")
                    a("s_sub_u32 s86, s86, s88")
                    a("s_add_u32 s98, s98, s86")
            for _ in range(per):
                if rl:
                    a(rl.pop(0)); issued += 1
        if GMF():
            if FW:
                a(f"s_waitcnt lgkmcnt({min(15, issued)})")
            n = gl[0]; gl[0] += 1
            d = vr(GACC, 16)
            a(f"s_cbranch_vccz A_g{n}a")
            a(f"v_mfma_f32_32x32x16_bf16 {d}, {vr(GF[f],4)}, {vr(XF[f],4)}, {d}")
            a(f"s_branch A_g{n}b")
            a.lab(f"A_g{n}a")
            a(f"v_mfma_f32_32x32x16_bf16 {d}, {vr(GF[f],4)}, {vr(XF[f]+4,4)}, {d}")
            a.lab(f"A_g{n}b")
        for x in rl:
            a(x)
    a("s_barrier")
    stamp(a, 1)
    for x in read_list(0, 0):
        a(x)
    if PROF and OPT.get("lprof", 0):
        a("s_mov_b32 s98, 0"); a("s_mov_b32 s99, 0"); a("s_mov_b32 s100, 0")
    a.lab("A_loop")
    for ks in range(3):
        if not FW: a("s_waitcnt lgkmcnt(0)")
        group(ks & 1, read_list(ks+1, (ks+1) & 1))
    a("s_cmp_eq_u32 s58, 7")
    a("s_cbranch_scc1 A_last")
    a(f"""
    s_add_u32 s57, s57, {SLOT}
    s_cmp_ge_u32 s57, {NSLOT*SLOT}
    s_cselect_b32 s40, {NSLOT*SLOT}, 0
    s_sub_u32 s57, s57, s40
    """)
    if GMF():
        a("""
        s_add_u32 s59, s59, 1
        s_and_b32 s59, s59, 7
        s_lshl_b32 s40, s59, 7
        v_add_u32 v14, s40, v15
        """)
    set_addr()
    if not FW: a("s_waitcnt lgkmcnt(0)")
    group(1, read_list(0, 0), barrier=True)
    a("s_add_u32 s58, s58, 1")
    a("s_branch A_loop")
    a.lab("A_last")
    if not FW: a("s_waitcnt lgkmcnt(0)")
    group(1, [])
    stamp(a, 2)
    a("s_barrier")
    a(f"""
    s_lshl_b32 s40, s{WN}, 3
    s_lshl_b32 s41, s{WM}, 1
    s_add_u32 s40, s40, s41
    s_lshl_b32 s41, s40, 10
    v_add_u32 v16, s41, v2
    s_lshl_b32 s41, s40, 11
    v_add_u32 v17, s41, v2
    v_add_u32 v18, s41, v13
    s_nop 3
    """)
    a(f"""
    s_cmp_lg_u32 s{WV}, 0
    s_cbranch_scc1 A_nononce2
    s_waitcnt vmcnt(0)
    v_cmp_eq_u32 vcc, 0, v189
    s_nop 1
    v_cndmask_b32 v186, v189, v186, vcc
    v_mov_b32 v188, {RELAY}
    s_mov_b64 exec, 1
    ds_write_b64 v188, v[186:187]
    s_mov_b64 exec, -1
    """)
    a.lab("A_nononce2")
    STF = {0: ' sc1', 1: ' sc0 sc1', 2: ' sc1 nt', 3: ' sc0 sc1 nt'}[OPT.get('stf', 0)]
    for tt in range(2):
        d = ACC + 16*(tt*3+1)
        for r in range(8):
            a(f"v_cvt_pk_bf16_f32 v{d+r}, v{d+2*r}, v{d+2*r+1}")
        a(f"buffer_store_dwordx4 {vr(d,4)}, v2, {WSRD}, s46 offen offset:{tt*2048}{STF}")
        a(f"buffer_store_dwordx4 {vr(d+4,4)}, v2, {WSRD}, s47 offen offset:{tt*2048}{STF}")
        a(f"ds_write_b128 v17, {vr(d,4)} offset:{KVX+tt*2048}")
        a(f"ds_write_b128 v17, {vr(d+4,4)} offset:{KVX+tt*2048+8192}")
        d = ACC + 16*(tt*3+2)
        for r in range(8):
            a(f"v_cvt_pk_bf16_f32 v{d+r}, v{d+2*r}, v{d+2*r+1}")
        a(f"buffer_store_dwordx4 {vr(d,4)}, v11, {WSRD}, s46 offen offset:{tt*2048}{STF}")
        a(f"buffer_store_dwordx4 {vr(d+4,4)}, v11, {WSRD}, s46 offen offset:{tt*2048+256}{STF}")
        a(f"ds_write_b128 v18, {vr(d,4)} offset:{KVX+tt*2048+1024}")
        a(f"ds_write_b128 v18, {vr(d+4,4)} offset:{KVX+tt*2048+1280}")
    for tt in range(2):
        d = ACC + 16*(tt*3+0)
        for r in range(16):
            a(f"v_mul_f32 v{d+r}, s48, v{d+r}")
        for r in range(8):
            a(f"v_cvt_pk_bf16_f32 v{d+r}, v{d+2*r}, v{d+2*r+1}")
        a(f"ds_write_b128 v16, {vr(d,4)} offset:{QX+tt*1024}")
        a(f"ds_write_b128 v16, {vr(d+4,4)} offset:{QX+tt*1024+4096}")
    if GMF():
        g = GACC
        a(f"""
        v_mul_f32 v{g}, {f32(-LOG2E)}, v{g}
        v_exp_f32 v{g}, v{g}
        s_nop 0
        v_add_f32 v{g}, 1.0, v{g}
        v_rcp_f32 v{g}, v{g}
        s_nop 0
        v_sub_f32 v20, 1.0, v{g}
        s_cmp_eq_u32 s{BB}, 0
        s_cselect_b64 vcc, -1, 0
        v_and_b32 v19, 31, v1
        v_lshlrev_b32 v19, 2, v19
        v_cndmask_b32 v20, v20, v{g}, vcc
        s_lshl_b32 s41, s{WM}, 8
        s_lshl_b32 s40, s{WN}, 7
        s_add_u32 s41, s41, s40
        v_add_u32 v19, s41, v19
        ds_write_b32 v19, v20 offset:{GX}
        """)
    a.lab("A_join")
    a("s_waitcnt lgkmcnt(0)")
    a("s_barrier")
    stamp(a, 3)

def spin(a, lab, addr_v, val_v, cond):
    a("s_mov_b32 s69, 0")
    a.lab(lab)
    a(f"global_load_dword v{val_v}, v{addr_v}, s[{DBG}:{DBG+1}] sc1")
    a("s_add_u32 s69, s69, 1")
    a("s_waitcnt vmcnt(0)")
    cond()
    a(f"s_cbranch_scc1 {lab}_ok")
    a("s_cmp_lt_u32 s69, 200000")
    a(f"s_cbranch_scc1 {lab}")
    a.lab(lab + "_ok")

def phase_b(a):
    Q = [4, 8]; S = [12, 28]; O = [44, 60]; C = [76, 92]
    KB = lambda s, u: 108 + s*16 + u*4
    VB = lambda s, u: 140 + s*32 + u*8
    G = [204, 205]; T0 = 206; T1 = 207; T2 = 208
    H4, QH, PAIR, QT = 30, 31, 32, 33
    a(f"""
    s_lshr_b32 s{H4}, s{WV}, 1
    s_and_b32 s{QH}, s{WV}, 1
    s_lshl_b32 s{PAIR}, s{CG}, 2
    s_add_u32 s{PAIR}, s{PAIR}, s{H4}
    s_lshl_b32 s{QT}, s{MT}, 2
    s_lshl_b32 s40, s{QH}, 1
    s_add_u32 s{QT}, s{QT}, s40
    s_lshl_b32 s46, s{PAIR}, 17
    s_add_u32 s46, s46, {WS_KV}
    s_lshl_b32 s40, s{H4}, 12
    s_lshl_b32 s41, s{QH}, 11
    s_add_u32 s40, s40, s41
    v_add_u32 v{T0}, s40, v2
    ds_read_b128 {vr(Q[0],4)}, v{T0} offset:{QX}
    ds_read_b128 {vr(Q[1],4)}, v{T0} offset:{QX+1024}
    v_and_b32 v{T1}, 31, v1
    v_lshlrev_b32 v{T1}, 2, v{T1}
    s_lshl_b32 s41, s{QH}, 8
    v_add_u32 v{T1}, s41, v{T1}
    """)
    if GM() != 2:
        a(f"ds_read_b32 v{G[0]}, v{T1} offset:{GX}")
        a(f"ds_read_b32 v{G[1]}, v{T1} offset:{GX+128}")
    a(f"""
    v_and_b32 v{T0}, 27, v1
    v_cmp_eq_u32 vcc, 16, v{T0}
    v_mov_b32 v{T1}, 0x3f803f80
    s_nop 0
    v_cndmask_b32 v{T0}, 0, v{T1}, vcc
    """)
    for r in range(64):
        a(f"v_mov_b32 v{VB(0,0)+r}, v{T0}")
    a(f"""
    s_mov_b32 s52, 0x0000ffff
    s_mov_b32 s53, 0x0000ffff
    s_lshl_b32 s40, s{H4}, 13
    v_add_u32 v{T0}, s40, v2
    """)
    for u in range(4):
        a(f"ds_read_b128 {vr(KB(0,u),4)}, v{T0} offset:{KVX+u*2048}")
    a("s_mov_b64 exec, s[52:53]")
    for u in range(4):
        a(f"ds_read_b128 {vr(VB(0,u),4)}, v{T0} offset:{KVX+u*2048+1024}")
        a(f"ds_read_b128 {vr(VB(0,u)+4,4)}, v{T0} offset:{KVX+u*2048+1280}")
    a("s_mov_b64 exec, -1")
    a(f"v_mov_b32 v{T2}, {RELAY}")
    a(f"ds_read_b32 v{T2+1}, v{T2}")
    a("s_waitcnt lgkmcnt(0)")
    a(f"v_readfirstlane_b32 s{NONCE}, v{T2+1}")
    a("s_barrier")
    stamp(a, 4)
    c_prefetch_setup(a)
    a("s_mov_b32 s49, 0")
    a("s_mov_b32 s50, 0")
    a("s_mov_b32 s54, 0")
    a(f"s_lshl_b32 s45, 1, s{MT}")
    if OPT.get("nodep", 0):
        a("s_mov_b32 s45, 0xffff")
        a("s_mov_b32 s49, 1")
    if OPT["prio"]:
        a("s_setprio 3")
    for x in range(2):
        a(f"v_mfma_f32_32x32x16_bf16 {vr(S[x],16)}, {vr(KB(0,0),4)}, {vr(Q[x],4)}, 0")
    a("s_nop 7")
    a("s_nop 7")
    MX = [T0, T1]
    for x in range(2):
        a(f"v_max3_f32 v{MX[x]}, v{S[x]}, v{S[x]+1}, v{S[x]+2}")
        for r in range(3, 15, 2):
            a(f"v_max3_f32 v{MX[x]}, v{MX[x]}, v{S[x]+r}, v{S[x]+r+1}")
        a(f"v_max_f32 v{MX[x]}, v{MX[x]}, v{S[x]+15}")
    a.lab("B_setmax")
    for x in range(2):
        a(f"""
        v_mov_b32 v{T2}, v{MX[x]}
        s_nop 1
        v_permlane32_swap_b32 v{MX[x]}, v{T2}
        s_nop 1
        v_max_f32 v{MX[x]}, v{MX[x]}, v{T2}
        """)
        for r in range(16):
            a(f"v_sub_f32 v{C[x]+r}, 0, v{MX[x]}")
        for r in range(16):
            a(f"v_mov_b32 v{O[x]+r}, 0")
    a(f"v_mfma_f32_32x32x16_bf16 {vr(S[0],16)}, {vr(KB(0,0),4)}, {vr(Q[0],4)}, {vr(C[0],16)}")
    for r in range(4):
        a(f"v_mov_b32 v{224+4+r}, 0")
    if OPT.get("sch", 1) == 3:
        for r in range(8, 16):
            a(f"v_mov_b32 v{S[1]+r}, 0")
    a(f"s_mov_b32 s44, s{MT}")
    a("s_mov_b32 s55, 0")
    a("s_nop 7")
    def ex(b, lo, hi):
        for r in range(lo, hi):
            a(f"v_exp_f32 v{b+r}, v{b+r}")
    def cv(b, h):
        for r in range(4):
            a(f"v_cvt_pk_bf16_f32 v{b+4*h+r}, v{b+8*h+2*r}, v{b+8*h+2*r+1}")
    def pv(x, vb, h):
        a(f"v_mfma_f32_32x32x16_bf16 {vr(O[x],16)}, {vr(vb+4*h,4)}, {vr(S[x]+4*h,4)}, {vr(O[x],16)}")
    def pf_head(tag):
        if tag == 0 and OPT.get("D", 4) <= 4:
            a("s_cmp_eq_u32 s49, 0")
            a("s_cbranch_scc1 B_first")
            a.lab("B_first_ret")
        a(f"""
        s_add_u32 s44, s44, 1
        s_and_b32 s44, s44, 15
        s_bitcmp1_b32 s45, s44
        s_cbranch_scc0 B_poll{tag}
        """)
        a.lab(f"B_pf{tag}")
        a(f"""
        s_lshl_b32 s47, s44, 13
        s_add_u32 s47, s47, s46
        s_add_u32 s48, s47, 4096
        """)
    def ldk(s, u):
        so = 47 if u < 2 else 48
        a(f"buffer_load_dwordx4 {vr(KB(s,u),4)}, v2, {WSRD}, s{so} offen offset:{(u&1)*2048} sc1")
    def ldv(s, u):
        so = 47 if u < 2 else 48
        a("s_mov_b64 exec, s[52:53]")
        a(f"buffer_load_dwordx4 {vr(VB(s,u),4)}, v2, {WSRD}, s{so} offen offset:{(u&1)*2048+1024} sc1")
        a(f"buffer_load_dwordx4 {vr(VB(s,u)+4,4)}, v2, {WSRD}, s{so} offen offset:{(u&1)*2048+1280} sc1")
        a("s_mov_b64 exec, -1")
    D = OPT.get("D", 4)
    if D > 4:
        a("s_cmp_eq_u32 s49, 0")
        a("s_cbranch_scc1 B_first")
        a.lab("B_first_ret")
        pf_head(2)
        for uu in range(D - 4):
            ldk(1, uu)
            ldv(1, uu)
    a.lab("B_loop")
    SCH = OPT.get("sch", 1)
    P = [216, 224]
    def e1(b, r):
        a(f"v_exp_f32 v{b+r}, v{b+r}")
    def cvp(x, lo, hi):
        for r in range(lo, hi):
            a(f"v_cvt_pk_bf16_f32 v{P[x]+r}, v{S[x]+2*r}, v{S[x]+2*r+1}")
    def pvp(x, vb, h):
        a(f"v_mfma_f32_32x32x16_bf16 {vr(O[x],16)}, {vr(vb+4*h,4)}, {vr(P[x]+4*h,4)}, {vr(O[x],16)}")
    for s in range(2):
        for u in range(4):
            vb = VB(s, u)
            vprev = VB(s, u-1) if u > 0 else VB(1-s, 3)
            kn = KB(s, u+1) if u < 3 else KB(1-s, 0)
            L = (4*s + u + D) % 8
            qs, qu = L // 4, L % 4
            guard = (D < 4 and s == 0 and qs == s)
            if OPT["prio"] == 2 and s == 1 and u == 0:
                a("s_cmp_lg_u32 s55, 7")
                a("s_cbranch_scc1 B_pm")
                a("s_setprio 0")
                a.lab("B_pm")
            def do_ldk():
                if qu == 0:
                    pf_head(s)
                if guard:
                    a("s_cmp_eq_u32 s49, 0")
                    a(f"s_cbranch_scc1 B_gk{u}")
                ldk(qs, qu)
                if guard:
                    a.lab(f"B_gk{u}")
            def do_ldv():
                if guard:
                    a("s_cmp_eq_u32 s49, 0")
                    a(f"s_cbranch_scc1 B_gv{u}")
                ldv(qs, qu)
                if guard:
                    a.lab(f"B_gv{u}")
                if u == 3 and s == 1:
                    a("s_cmp_lt_u32 s50, 4")
                    a("s_cbranch_scc1 B_wo")
                    a.lab("B_wo_ret")
            if SCH == 0:
                a(f"v_mfma_f32_32x32x16_bf16 {vr(S[1],16)}, {vr(KB(s,u),4)}, {vr(Q[1],4)}, {vr(C[1],16)}")
                do_ldk()
                ex(S[0], 0, 8)
                cv(S[0], 0)
                ex(S[0], 8, 16)
                a(f"s_waitcnt vmcnt({3*(D-1)+1})")
                pv(0, vb, 0)
                cv(S[0], 1)
                ex(S[1], 0, 2)
                pv(0, vb, 1)
                ex(S[1], 2, 8)
                a(f"s_waitcnt vmcnt({3*D-3})")
                a(f"v_mfma_f32_32x32x16_bf16 {vr(S[0],16)}, {vr(kn,4)}, {vr(Q[0],4)}, {vr(C[0],16)}")
                cv(S[1], 0)
                ex(S[1], 8, 16)
                pv(1, vb, 0)
                cv(S[1], 1)
                do_ldv()
                pv(1, vb, 1)
            else:
                scheds = {
                 1: "ea0-2 PVb1 ea2-8 QKb LK ca0-4 ea8-12 W PVa0 ea12-16 ca4-8 eb0-2 PVa1 eb2-7 QKa eb7-8 cb0-4 eb8-11 PVb0 LV eb11-16 cb4-8",
                 2: "ea0-2 PVb1 ea2-8 QKb LK ca0-4 ea8-12 W PVa0 ea12-16 eb0-2 ca4-8 eb2-4 PVa1 eb4-8 QKa eb8-10 cb0-4 eb10-12 PVb0 LV eb12-16 cb4-8",
                 3: "cb4-8 ea0-2 PVb1 ea2-8 QKb LK ea8-10 ca0-4 ea10-12 W PVa0 ea12-16 eb0-2 ca4-8 eb2-4 PVa1 eb4-8 QKa eb8-10 cb0-4 eb10-12 PVb0 LV eb12-16",
                 4: "ea0-4 PVb1 ea4-8 LK ca0-4 QKb ea8-12 W PVa0 ea12-16 ca4-8 eb0-2 PVa1 eb2-8 QKa cb0-4 eb8-11 PVb0 LV eb11-16 cb4-8",
                 5: "ea0-2 PVb1 ea2-6 QKb ea6-8 LK ca0-4 ea8-10 W PVa0 ea10-16 ca4-8 eb0-2 PVa1 eb2-6 QKa eb6-8 cb0-4 eb8-10 PVb0 eb10-13 LV eb13-16 cb4-8",
                }
                for tok in scheds[SCH].split():
                    if tok == "PVb1": pvp(1, vprev, 1)
                    elif tok == "PVa0": pvp(0, vb, 0)
                    elif tok == "PVa1": pvp(0, vb, 1)
                    elif tok == "PVb0": pvp(1, vb, 0)
                    elif tok == "QKb": a(f"v_mfma_f32_32x32x16_bf16 {vr(S[1],16)}, {vr(KB(s,u),4)}, {vr(Q[1],4)}, {vr(C[1],16)}")
                    elif tok == "QKa": a(f"v_mfma_f32_32x32x16_bf16 {vr(S[0],16)}, {vr(kn,4)}, {vr(Q[0],4)}, {vr(C[0],16)}")
                    elif tok == "LK": do_ldk()
                    elif tok == "LV": do_ldv()
                    elif tok == "W": a(f"s_waitcnt vmcnt({3*D-3})")
                    else:
                        x = 0 if tok[1] == "a" else 1
                        lo, hi = [int(z) for z in tok[2:].split("-")]
                        if tok[0] == "e": ex(S[x], lo, hi)
                        else: cvp(x, lo, hi)
    a("s_add_u32 s55, s55, 1")
    if OPT["prio"] == 1:
        a("""
        s_and_b32 s40, s55, 1
        s_cbranch_scc1 B_noprio
        s_cmp_eq_u32 s55, 2
        s_cbranch_scc0 B_p1
        s_setprio 2
        """)
        a.lab("B_p1")
        a("s_cmp_eq_u32 s55, 4")
        a("s_cbranch_scc0 B_p2")
        a("s_setprio 1")
        a.lab("B_p2")
        a("s_cmp_eq_u32 s55, 6")
        a("s_cbranch_scc0 B_noprio")
        a("s_setprio 0")
        a.lab("B_noprio")
    if OPT["prio"] == 3:
        a("s_cmp_lt_u32 s55, 5")
        a("s_cbranch_scc1 B_noprio")
        a("s_setprio 2")
        a("s_cmp_eq_u32 s55, 5")
        a("s_cbranch_scc1 B_noprio")
        a("s_setprio 1")
        a("s_cmp_eq_u32 s55, 6")
        a("s_cbranch_scc1 B_noprio")
        a("s_setprio 0")
        a.lab("B_noprio")
    if OPT["prio"] == 2:
        a("s_cmp_lt_u32 s55, 6")
        a("s_cbranch_scc1 B_noprio")
        a("s_setprio 2")
        a("s_cmp_eq_u32 s55, 6")
        a("s_cbranch_scc1 B_noprio")
        a("s_setprio 1")
        a.lab("B_noprio")
    a("s_cmp_ge_u32 s55, 5")
    a("s_cbranch_scc1 B_wobar")
    a.lab("B_wobar_ret")
    if PROF and OPT.get("lstamp", 0):
        a("s_cmp_eq_u32 s55, 1")
        a("s_cbranch_scc0 B_ls1")
        stamp(a, 9)
        a.lab("B_ls1")
        a(f"s_cmp_eq_u32 s55, {OPT.get('ls2', 4)}")
        a("s_cbranch_scc0 B_ls2")
        stamp(a, 10)
        a.lab("B_ls2")
    a("s_cmp_lt_u32 s55, 8")
    a("s_cbranch_scc1 B_loop")
    if OPT.get("sch", 1) == 3:
        for r in range(4, 8):
            a(f"v_cvt_pk_bf16_f32 v{224+r}, v{S[1]+2*r}, v{S[1]+2*r+1}")
    if OPT.get("sch", 1):
        a("s_nop 1")
        a(f"v_mfma_f32_32x32x16_bf16 {vr(O[1],16)}, {vr(VB(1,3)+4,4)}, {vr(224+4,4)}, {vr(O[1],16)}")
    stamp(a, 6)
    a("s_nop 7")
    a("s_nop 7")
    a("s_cmp_lg_u32 s54, 0")
    a("s_cbranch_scc1 B_fin")
    a(f"v_mov_b32 v{T0}, 0")
    a(f"v_mov_b32 v{T1}, 0")
    for x in range(2):
        o = O[x]
        for r in range(0, 8, 2):
            a(f"v_max3_f32 v{T0}, v{T0}, |v{o+r}|, |v{o+r+1}|")
        a(f"v_max_f32 v{T0}, v{T0}, v{o+8}")
        for r in range(8):
            a(f"v_add_f32 v{T1}, v{T1}, v{o+r}")
    a(f"""
    v_mul_f32 v{T1}, 0, v{T1}
    v_add_f32 v{T0}, v{T0}, v{T1}
    s_mov_b32 s57, {f32(2.0**100)}
    v_cmp_gt_f32 vcc, s57, v{T0}
    s_cmp_eq_u64 vcc, exec
    s_cbranch_scc1 B_fin
    """)
    a(f"""
    s_mov_b32 s54, 1
    v_mov_b32 v{T0}, {f32(-3.0e38)}
    v_mov_b32 v{T1}, {f32(-3.0e38)}
    s_mov_b32 s47, s46
    s_mov_b32 s55, 0
    s_waitcnt vmcnt(0)
    """)
    a.lab("B_maxloop")
    a(f"buffer_load_dwordx4 {vr(KB(1,0),4)}, v2, {WSRD}, s47 offen sc1")
    a("s_waitcnt vmcnt(0)")
    for x in range(2):
        a(f"v_mfma_f32_32x32x16_bf16 {vr(S[x],16)}, {vr(KB(1,0),4)}, {vr(Q[x],4)}, 0")
    a("s_nop 7")
    a("s_nop 7")
    for x in range(2):
        for r in range(0, 16, 2):
            a(f"v_max3_f32 v{MX[x]}, v{MX[x]}, v{S[x]+r}, v{S[x]+r+1}")
    a("s_add_u32 s47, s47, 2048")
    a("s_add_u32 s55, s55, 1")
    a("s_cmp_lt_u32 s55, 64")
    a("s_cbranch_scc1 B_maxloop")
    a("s_branch B_setmax")
    a.lab("B_first")
    a("s_waitcnt vmcnt(0)")
    a("s_barrier")
    stamp(a, 5)
    a("s_mov_b32 s49, 1")
    a(f"""
    s_cmp_lg_u32 s{WV}, 0
    s_cbranch_scc1 B_first_ret
    s_lshl_b32 s40, s{CG}, 7
    s_lshl_b32 s41, s{MT}, 2
    s_add_u32 s40, s40, s41
    s_add_u32 s40, s40, {WS_F}
    v_mov_b32 v{T2}, 0
    v_mov_b32 v{T2+1}, s{NONCE}
    s_mov_b64 exec, 1
    buffer_store_dword v{T2+1}, v{T2}, {WSRD}, s40 offen sc1
    s_lshl_b32 s40, s{MT}, 7
    s_lshl_b32 s41, s{CG}, 2
    s_add_u32 s40, s40, s41
    s_add_u32 s40, s40, {WS_GF}
    buffer_store_dword v{T2+1}, v{T2}, {WSRD}, s40 offen sc1
    s_mov_b64 exec, -1
    s_branch B_first_ret
    """)
    a.lab("B_wobar")
    a("s_cmp_lg_u32 s54, 0")
    a("s_cbranch_scc1 B_wobar_ret")
    a("s_cmp_eq_u32 s55, 6")
    a("s_cbranch_scc1 B_wobar6")
    if GM() == 2:
        a("s_cmp_lg_u32 s55, 5")
        a("s_cbranch_scc1 B_wobar_ret")
        a(f"s_cmp_lg_u32 s{WV}, 0")
        a("s_cbranch_scc1 B_wobar_ret")
        a(f"""
        s_lshl_b32 s40, s{MT}, 7
        s_add_u32 s40, s40, {WS_GF}
        v_lshlrev_b32 v{T2}, 2, v1
        s_mov_b32 s69, 0
        """)
        a.lab("B_gpoll")
        a(f"""
        s_mov_b64 exec, 0xffff
        buffer_load_dword v{T2+1}, v{T2}, {WSRD}, s40 offen sc1
        s_add_u32 s69, s69, 1
        s_waitcnt vmcnt(0)
        v_cmp_eq_u32 vcc, s{NONCE}, v{T2+1}
        s_mov_b64 exec, -1
        s_cmp_eq_u32 vcc_lo, 0xffff
        s_cbranch_scc1 B_wobar_ret
        s_cmp_lt_u32 s69, 200000
        s_cbranch_scc1 B_gpoll
        """)
    a("s_branch B_wobar_ret")
    a.lab("B_wobar6")
    a("s_barrier")
    if GM() == 2:
        a(f"""
        s_lshl_b32 s40, s{QT}, 7
        s_add_u32 s40, s40, {WS_G}
        v_and_b32 v{T2}, 31, v1
        v_lshlrev_b32 v{T2}, 2, v{T2}
        buffer_load_dword v{G[0]}, v{T2}, {WSRD}, s40 offen sc1
        buffer_load_dword v{G[1]}, v{T2}, {WSRD}, s40 offen offset:128 sc1
        """)
    a("s_branch B_wobar_ret")
    a.lab("B_wo")
    for i in range(4):
        a(f"s_add_u32 m0, s58, {i*1024}")
        a(f"s_add_u32 s51, s59, {i*8192}")
        a(f"buffer_load_dwordx4 v212, s[60:63], s51 offen lds")
    a("s_add_u32 s58, s58, 4096")
    a("s_add_u32 s59, s59, 32768")
    a("s_add_u32 s50, s50, 1")
    a("s_branch B_wo_ret")
    for sset in range(3 if OPT.get('D', 4) > 4 else 2):
        a.lab(f"B_poll{sset}")
        a("s_mov_b32 s69, 0")
        a(f"s_cmp_lg_u32 s{WV}, 0")
        a(f"s_cbranch_scc1 B_lp{sset}")
        a(f"""
        s_lshl_b32 s40, s{CG}, 7
        s_add_u32 s40, s40, {WS_F}
        v_lshlrev_b32 v{T2}, 2, v1
        """)
        a.lab(f"B_gp{sset}")
        a(f"""
        s_mov_b64 exec, 0xffff
        buffer_load_dword v{T2+1}, v{T2}, {WSRD}, s40 offen sc1
        s_add_u32 s69, s69, 1
        s_waitcnt vmcnt(0)
        v_cmp_eq_u32 vcc, s{NONCE}, v{T2+1}
        s_mov_b64 exec, -1
        s_or_b32 s45, s45, vcc_lo
        s_bitcmp1_b32 s45, s44
        s_cbranch_scc1 B_gok{sset}
        s_cmp_lt_u32 s69, 200000
        s_cbranch_scc1 B_gp{sset}
        """)
        a.lab(f"B_gok{sset}")
        a(f"""
        v_mov_b32 v{T2}, {RELAY+4}
        v_mov_b32 v{T2+1}, s45
        ds_write_b32 v{T2}, v{T2+1}
        s_branch B_pf{sset}
        """)
        a.lab(f"B_lp{sset}")
        a(f"v_mov_b32 v{T2}, {RELAY+4}")
        a.lab(f"B_lpl{sset}")
        a(f"""
        ds_read_b32 v{T2+1}, v{T2}
        s_add_u32 s69, s69, 1
        s_waitcnt lgkmcnt(0)
        v_readfirstlane_b32 s40, v{T2+1}
        s_nop 3
        s_or_b32 s45, s45, s40
        s_bitcmp1_b32 s45, s44
        s_cbranch_scc1 B_pf{sset}
        s_cmp_lt_u32 s69, 4000000
        s_cbranch_scc1 B_lpl{sset}
        s_branch B_pf{sset}
        """)
    a.lab("B_fin")
    if GM() == 2:
        a("s_waitcnt vmcnt(0)")
        a(f"s_cmp_eq_u32 s{BB}, 0")
        a("s_cbranch_scc1 B_fin2")
        a(f"v_sub_f32 v{G[0]}, 1.0, v{G[0]}")
        a(f"v_sub_f32 v{G[1]}, 1.0, v{G[1]}")
        a.lab("B_fin2")
    for x in range(2):
        o = O[x]
        a(f"v_rcp_f32 v{T0}, v{o+8}")
        a("s_nop 0")
        a(f"v_mul_f32 v{T0}, v{T0}, v{G[x]}")
        for r in range(8):
            a(f"v_mul_f32 v{o+r}, v{o+r}, v{T0}")
        for r in range(4):
            a(f"v_cvt_pk_bf16_f32 v{o+r}, v{o+2*r}, v{o+2*r+1}")
    a(f"""
    s_lshl_b32 s40, s{QT}, 6
    s_add_u32 s40, s40, s{PAIR}
    s_lshl_b32 s40, s40, 10
    s_add_u32 s40, s40, {WS_O}
    s_add_u32 s41, s40, 65536
    buffer_store_dwordx4 {vr(O[0],4)}, v2, {WSRD}, s40 offen sc1
    buffer_store_dwordx4 {vr(O[1],4)}, v2, {WSRD}, s41 offen sc1
    """)
    if OPT.get("oflag", 0):
        a(f"""
        s_lshl_b32 s40, s{MT}, 9
        s_lshl_b32 s41, s{QH}, 8
        s_add_u32 s40, s40, s41
        s_lshl_b32 s41, s{CG}, 4
        s_add_u32 s40, s40, s41
        s_lshl_b32 s41, s{H4}, 2
        s_add_u32 s40, s40, s41
        s_add_u32 s40, s40, {WS_F+2048}
        v_mov_b32 v4, 0
        v_mov_b32 v5, s{NONCE}
        s_waitcnt vmcnt(0)
        s_mov_b64 exec, 1
        buffer_store_dword v5, v4, {WSRD}, s40 offen sc1
        s_mov_b64 exec, -1
        """)
        stamp(a, 7)
    else:
        a("s_waitcnt vmcnt(0)")
        a("s_barrier")
        stamp(a, 7)
        a(f"""
        s_cmp_lg_u32 s{WV}, 0
        s_cbranch_scc1 B_opub_done
        s_lshl_b32 s40, s{MT}, 9
        s_lshl_b32 s41, s{CG}, 2
        s_add_u32 s40, s40, s41
        s_add_u32 s40, s40, {WS_F+2048}
        v_mov_b32 v4, 0
        v_mov_b32 v5, s{NONCE}
        s_mov_b64 exec, 1
        buffer_store_dword v5, v4, {WSRD}, s40 offen sc1
        s_mov_b64 exec, -1
        """)
    a.lab("B_opub_done")

def c_prefetch_setup(a):
    a(f"""
    v_lshrrev_b32 v212, 3, v1
    v_and_b32 v213, 7, v1
    v_bfe_u32 v214, v1, 4, 1
    v_lshlrev_b32 v214, 2, v214
    v_xor_b32 v214, v213, v214
    v_lshlrev_b32 v214, 4, v214
    v_lshl_add_u32 v212, v212, 10, v214
    s_cmp_lt_u32 s{WV}, 4
    s_cselect_b32 s60, s8, s14
    s_cselect_b32 s61, s9, s15
    s_and_b32 s56, s{WV}, 3
    s_lshl_b32 s56, s56, 17
    s_and_b32 s57, s{CG}, 7
    s_lshl_b32 s57, s57, 7
    s_add_u32 s56, s56, s57
    s_add_u32 s60, s60, s56
    s_addc_u32 s61, s61, 0
    s_sub_u32 s62, 524288, s56
    s_mov_b32 s63, 0x20000
    s_lshl_b32 s58, s{WV}, 14
    s_mov_b32 s59, 0
    """)

def phase_c(a):
    MT64, NT, KQ, TT = 30, 31, 32, 33
    OF = 64
    ACC = 128
    a(f"""
    s_lshl_b32 s{MT64}, s{MT}, 1
    s_lshr_b32 s40, s{CG}, 3
    s_add_u32 s{MT64}, s{MT64}, s40
    s_and_b32 s{NT}, s{CG}, 7
    s_lshr_b32 s{KQ}, s{WV}, 1
    s_and_b32 s{TT}, s{WV}, 1
    v_lshrrev_b32 v5, 4, v1
    s_lshl_b32 s44, s{MT}, 9
    s_lshr_b32 s40, s{CG}, 3
    s_lshl_b32 s40, s40, 8
    s_add_u32 s44, s44, s40
    s_lshl_b32 s40, s{KQ}, 6
    s_add_u32 s44, s44, s40
    s_add_u32 s44, s44, {WS_F+2048}
    v_lshlrev_b32 v6, 2, v1
    s_mov_b32 s47, 0
    s_lshl_b32 s45, s{MT64}, 1
    s_add_u32 s45, s45, s{TT}
    s_lshl_b32 s45, s45, 6
    s_lshl_b32 s46, s{KQ}, 4
    s_add_u32 s45, s45, s46
    s_lshl_b32 s45, s45, 10
    s_add_u32 s45, s45, {WS_O}
    """)
    if OPT.get("oflag", 0):
        for g in range(4):
            m = 0xf << (4*g)
            a(f"s_and_b32 s40, s47, {m}")
            a(f"s_cmp_eq_u32 s40, {m}")
            a(f"s_cbranch_scc1 C_rdy{g}")
            a("s_mov_b32 s69, 0")
            a.lab(f"C_poll{g}")
            a(f"""
            s_mov_b64 exec, 0xffff
            buffer_load_dword v7, v6, {WSRD}, s44 offen sc1
            s_add_u32 s69, s69, 1
            s_waitcnt vmcnt(0)
            v_cmp_eq_u32 vcc, s{NONCE}, v7
            s_mov_b64 exec, -1
            s_mov_b32 s47, vcc_lo
            s_and_b32 s40, s47, {m}
            s_cmp_eq_u32 s40, {m}
            s_cbranch_scc1 C_rdy{g}
            s_sleep {OPT.get("sleep", 4)}
            s_cmp_lt_u32 s69, 200000
            s_cbranch_scc1 C_poll{g}
            """)
            a.lab(f"C_rdy{g}")
            if g == 3:
                stamp(a, 8)
            for i in range(4*g, 4*g+4):
                a(f"buffer_load_dwordx4 {vr(OF+4*i,4)}, v2, {WSRD}, s45 offen offset:{(i%4)*1024} sc1")
            if g < 3:
                a("s_add_u32 s45, s45, 4096")
    else:
        a(f"""
        s_lshl_b32 s44, s{MT}, 9
        s_add_u32 s44, s44, {WS_F+2048}
        s_cmp_lg_u32 s{WV}, 0
        s_cbranch_scc1 C_wait_done
        s_mov_b32 s69, 0
        """)
        a.lab("C_poll")
        a(f"""
        s_mov_b64 exec, 0xffff
        buffer_load_dword v7, v6, {WSRD}, s44 offen sc1
        s_add_u32 s69, s69, 1
        s_waitcnt vmcnt(0)
        v_cmp_eq_u32 vcc, s{NONCE}, v7
        s_mov_b64 exec, -1
        s_cmp_eq_u32 vcc_lo, 0xffff
        s_cbranch_scc1 C_wait_done
        s_cmp_lt_u32 s69, 200000
        s_cbranch_scc1 C_poll
        """)
        a.lab("C_wait_done")
        a("s_barrier")
        stamp(a, 8)
        for i in range(16):
            if i and i % 4 == 0:
                a("s_add_u32 s45, s45, 4096")
            a(f"buffer_load_dwordx4 {vr(OF+4*i,4)}, v2, {WSRD}, s45 offen offset:{(i%4)*1024} sc1")
    a(f"""
    v_lshrrev_b32 v21, 5, v1
    v_and_b32 v26, 15, v1
    v_lshrrev_b32 v27, 2, v26
    v_lshl_add_u32 v28, v21, 2, v27
    v_lshlrev_b32 v28, 7, v28
    v_and_b32 v29, 1, v5
    v_lshlrev_b32 v29, 1, v29
    v_bfe_u32 v30, v26, 1, 1
    v_add_u32 v29, v29, v30
    v_bfe_u32 v30, v27, 1, 1
    v_lshlrev_b32 v30, 2, v30
    v_xor_b32 v29, v29, v30
    v_lshl_add_u32 v28, v29, 4, v28
    v_and_b32 v30, 1, v26
    v_lshl_add_u32 v28, v30, 3, v28
    s_lshl_b32 s40, s{KQ}, 15
    v_add_u32 v20, s40, v28
    v_xor_b32 v21, 64, v20
    """)
    WFR = [32, 40]
    def rd(i):
        f = WFR[i & 1]
        return [f"ds_read_b64_tr_b16 {vr(f+4*ct+2*u,2)}, v{20+ct} offset:{(16*i+8*u)*128}" for ct in range(2) for u in range(2)]
    for x in rd(0):
        a(x)
    for i in range(16):
        nxt = rd(i+1) if i < 15 else []
        a(f"s_waitcnt vmcnt({15-i}) lgkmcnt(0)")
        f = WFR[i & 1]
        for ct in range(2):
            d = vr(ACC+16*ct, 16)
            c = "0" if i == 0 else d
            a(f"v_mfma_f32_32x32x16_bf16 {d}, {vr(f+4*ct,4)}, {vr(OF+4*i,4)}, {c}")
            for x in nxt[2*ct:2*ct+2]:
                a(x)
    if not OPT.get('lstamp', 0): stamp(a, 9)
    a("s_barrier")
    a(f"""
    v_and_b32 v22, 31, v1
    v_lshrrev_b32 v23, 5, v1
    v_and_b32 v24, 7, v22
    v_lshlrev_b32 v25, 8, v22
    s_lshl_b32 s40, s{KQ}, 14
    s_lshl_b32 s41, s{TT}, 13
    s_add_u32 s40, s40, s41
    v_add_u32 v25, s40, v25
    s_nop 7
    s_nop 7
    """)
    for ct in range(2):
        for q4 in range(4):
            a(f"v_add_u32 v26, {ct*8+2*q4}, v23")
            a(f"v_xor_b32 v26, v26, v24")
            a(f"v_lshl_add_u32 v26, v26, 4, v25")
            a(f"ds_write_b128 v26, {vr(ACC+16*ct+4*q4,4)}")
    a("s_waitcnt lgkmcnt(0)")
    a("s_barrier")
    a("""
    v_lshrrev_b32 v22, 3, v0
    v_and_b32 v23, 7, v0
    v_and_b32 v24, 7, v22
    v_lshlrev_b32 v25, 8, v22
    v_lshlrev_b32 v27, 1, v23
    """)
    for c in range(2):
        a(f"v_add_u32 v26, {c}, v27")
        a(f"v_xor_b32 v26, v26, v24")
        a(f"v_lshl_add_u32 v26, v26, 4, v25")
        for k in range(4):
            a(f"ds_read_b128 {vr(64+k*8+c*4,4)}, v26 offset:{k*16384}")
    a(f"""
    s_mov_b32 s60, s18
    s_mov_b32 s61, s19
    s_mov_b32 s62, 2097152
    s_mov_b32 s63, 0x20000
    v_lshlrev_b32 v22, 10, v22
    v_lshl_add_u32 v22, v23, 4, v22
    s_lshl_b32 s40, s{MT64}, 16
    s_lshl_b32 s41, s{NT}, 7
    s_add_u32 s40, s40, s41
    s_waitcnt lgkmcnt(0)
    """)
    for r in range(8):
        a(f"v_add_f32 v{64+r}, v{64+r}, v{72+r}")
        a(f"v_add_f32 v{80+r}, v{80+r}, v{88+r}")
    for r in range(8):
        a(f"v_add_f32 v{64+r}, v{64+r}, v{80+r}")
    for r in range(4):
        a(f"v_cvt_pk_bf16_f32 v{64+r}, v{64+2*r}, v{64+2*r+1}")
    a("buffer_store_dwordx4 v[64:67], v22, s[60:63], s40 offen" + {0: "", 1: " sc1", 2: " nt", 3: " sc0 sc1"}[OPT.get("ost", 0)])
    if not OPT.get("lstamp", 0): stamp(a, 10)

HEAD = open("cdna_kernels/%s.s.ref" % NAME).read().split("; Override")[0]

def main(out):
    a = A()
    gen(a)
    s = HEAD
    s += "; @launch grid=(256,1,1) block=(512,1,1) lds=163840\n"
    s += '.amdgcn_target "amdgcn-amd-amdhsa--gfx950"\n'
    s += a.text()
    s += f""".section .rodata,"a"
.p2align 6
.amdhsa_kernel {KNAME}
  .amdhsa_next_free_vgpr 256
  .amdhsa_next_free_sgpr 102
  .amdhsa_accum_offset 256
  .amdhsa_group_segment_fixed_size 0
  .amdhsa_kernarg_size 80
  .amdhsa_user_sgpr_count 2
  .amdhsa_user_sgpr_kernarg_segment_ptr 1
  .amdhsa_system_sgpr_workgroup_id_x 1
.end_amdhsa_kernel
"""
    open(out, "w").write(s)

if __name__ == "__main__":
    if "--prof" in sys.argv:
        PROF = True
        sys.argv.remove("--prof")
    for x in list(sys.argv):
        if x.startswith("--") and "=" in x:
            k, v = x[2:].split("=")
            OPT[k] = int(v)
            sys.argv.remove(x)
    set_nslot(OPT.get("nslot", 3))
    main(sys.argv[1] if len(sys.argv) > 1 else "fused3.s")
```

```python
import sys, struct

NAME = "gated_mix__mha_block__mha_block__prompt"
KNAME = NAME + "_kernel"
WS_KV = 4 << 20
WS_O = 12 << 20
WS_F = 16 << 20
WS_GF = WS_F + 2048 + 8192
WS_G = WS_GF + 2048
WS_END = WS_G + 8192
RELAY = 160000
NONCE = 68
WS_T = 32 << 20
QSCALE = 0.25 * 1.4426950408889634
LOG2E = 1.4426950408889634
PROF = False
OPT = dict(prio=3, rot=1, pfu=0, D=4, cpf=1, sch=2, wpf=1)
NST = 12
SB = 70

def f32(x):
    return "0x%08x" % struct.unpack("<I", struct.pack("<f", x))[0]

class A:
    def __init__(self):
        self.l = []
    def __call__(self, s):
        for x in s.strip().split("\n"):
            if x.strip():
                self.l.append("  " + x.strip())
    def lab(self, s):
        self.l.append(s + ":")
    def raw(self, s):
        self.l.append(s)
    def text(self):
        return "\n".join(self.l) + "\n"

def vr(b, n):
    return f"v[{b}:{b+n-1}]"
def u32(x):
    return x & 0xffffffff

def GM():
    return OPT.get('gm', 2)
def GMF():
    return GM() == 1
def stamp(a, k):
    if PROF:
        a(f"s_memtime s[{SB+2*k}:{SB+2*k+1}]")

WV = 3
XCD, SLOT_ = 24, 25
CG, MT, BB, HG = 26, 27, 28, 29
SRDW = 36
DBG = 20
WS = 22
WSRD = f"s[{SRDW}:{SRDW+3}]"

def gen(a):
    a.raw(".text")
    a.raw(f".globl {KNAME}")
    a.raw(".p2align 8")
    a.raw(f".type {KNAME},@function")
    a.lab(KNAME)
    a("s_cmp_ge_u32 s2, 256")
    a("s_cbranch_scc1 L_end")
    if PROF:
        a(f"s_memrealtime s[{SB+2*NST}:{SB+2*NST+1}]")
        stamp(a, 0)
    a(f"""
    s_load_dwordx4 s[4:7], s[0:1], 0
    s_load_dwordx2 s[8:9], s[0:1], 16
    s_load_dwordx4 s[12:15], s[0:1], 32
    s_load_dwordx4 s[16:19], s[0:1], 48
    s_load_dwordx4 s[20:23], s[0:1], 64
    v_lshrrev_b32 v2, 6, v0
    v_and_b32 v1, 63, v0
    s_and_b32 s{XCD}, s2, 7
    s_lshr_b32 s{SLOT_}, s2, 3
    """)
    if OPT.get("badmap", 0):
        a(f"""
        s_lshr_b32 s40, s2, 3
        s_xor_b32 s{XCD}, s{XCD}, s40
        s_lshr_b32 s40, s2, 6
        s_xor_b32 s{XCD}, s{XCD}, s40
        s_and_b32 s{XCD}, s{XCD}, 7
        """)
    a(f"""
    v_readfirstlane_b32 s{WV}, v2
    v_lshlrev_b32 v2, 4, v1
    s_lshr_b32 s40, s{XCD}, 1
    s_lshl_b32 s40, s40, 2
    s_and_b32 s41, s{SLOT_}, 3
    s_add_u32 s{CG}, s40, s41
    s_lshr_b32 s{BB}, s{CG}, 3
    s_and_b32 s{HG}, s{CG}, 7
    s_and_b32 s{MT}, s{XCD}, 1
    s_lshl_b32 s{MT}, s{MT}, 3
    s_lshr_b32 s41, s{SLOT_}, 2
    s_add_u32 s{MT}, s{MT}, s41
    """)
    if OPT.get("diag", 0):
        a("s_memrealtime s[94:95]")
        a("s_memtime s[96:97]")
    phase_a(a)
    phase_b(a)
    phase_c(a)
    if OPT.get("diag", 0):
        a(f"""
        s_waitcnt vmcnt(0)
        s_memrealtime s[90:91]
        s_memtime s[92:93]
        s_waitcnt lgkmcnt(0)
        s_sub_u32 s92, s92, s96
        s_not_b32 s94, s94
        s_and_b32 s91, s2, 15
        s_or_b32 s91, s91, s{WV}
        s_cmp_lg_u32 s91, 0
        s_cbranch_scc1 L_end
        s_mov_b64 exec, 1
        v_mov_b32 v4, 16
        v_mov_b32 v5, s92
        global_atomic_umax v4, v5, s[{DBG}:{DBG+1}]
        v_mov_b32 v4, 20
        v_mov_b32 v5, s90
        global_atomic_umax v4, v5, s[{DBG}:{DBG+1}]
        v_mov_b32 v4, 24
        v_mov_b32 v5, s94
        global_atomic_umax v4, v5, s[{DBG}:{DBG+1}]
        s_mov_b64 exec, -1
        """)
    if PROF:
        a("s_waitcnt vmcnt(0)")
        a(f"s_memrealtime s[{SB+2*NST+2}:{SB+2*NST+3}]")
        stamp(a, NST-1)
        a("s_waitcnt lgkmcnt(0)")
        if OPT.get("lprof", 0):
            for k, r in ((8, 98), (9, 99), (10, 100)):
                a(f"s_add_u32 s{SB+2*k}, s{SB}, s{r}")
                a(f"s_addc_u32 s{SB+2*k+1}, s{SB+1}, 0")
            a.lab("L_nolp")
        a(f"""
        s_lshl_b32 s40, s2, 4
        s_add_u32 s40, s40, s{WV}
        s_lshl_b32 s40, s40, 7
        s_add_u32 s40, s40, {WS_T}
        s_add_u32 s40, s{WS}, s40
        s_addc_u32 s41, s{WS+1}, 0
        s_mov_b64 exec, 1
        v_mov_b32 v4, 0
        """)
        for k in range(NST+2):
            a(f"v_mov_b32 v6, s{SB+2*k}")
            a(f"v_mov_b32 v7, s{SB+2*k+1}")
            a(f"global_store_dwordx2 v4, v[6:7], s[40:41] offset:{8*k}")
            a("s_nop 1")
    a.lab("L_end")
    a("s_endpgm")
    a.lab("L_codeend")

SLOT = 40960
NSLOT = 3
GIMG = NSLOT * SLOT
def set_nslot(n):
    global NSLOT, GIMG
    NSLOT = n
    GIMG = 3 * SLOT
QX, KVX, GX = 0, 16384, 49152

def phase_a(a):
    a(f"""
    v_lshrrev_b32 v5, 4, v1
    s_cmp_ge_u32 s{WV}, 4
    s_cbranch_scc0 A_compute
    """)
    LW = 30
    a(f"""
    s_sub_u32 s{LW}, s{WV}, 4
    s_setprio 3
    v_lshrrev_b32 v3, 3, v1
    v_and_b32 v4, 7, v1
    v_xor_b32 v6, v4, v5
    v_lshlrev_b32 v6, 4, v6
    v_lshl_add_u32 v10, v3, 10, v6
    v_add_u32 v7, 4, v5
    v_xor_b32 v7, v4, v7
    v_lshlrev_b32 v7, 4, v7
    v_lshl_add_u32 v11, v3, 10, v7
    v_and_b32 v8, 1, v5
    v_lshlrev_b32 v8, 2, v8
    v_xor_b32 v8, v4, v8
    v_lshlrev_b32 v8, 4, v8
    v_mul_u32_u24 v9, 3072, v3
    v_add_u32 v12, v9, v8
    s_lshl_b32 s54, s{LW}, 15
    """)
    for u in range(4):
        a(f"s_add_u32 s{44+u}, s54, {u*8192}")
    a(f"s_mul_i32 s54, s{LW}, 49152")
    for g3 in range(3):
        for e in range(2):
            a(f"s_add_u32 s{48+g3*2+e}, s54, {g3*1024 + e*8*3072}")
    a(f"""
    s_lshl_b32 s55, s{LW}, 12
    s_lshl_b32 s56, s{LW}, 11
    s_add_u32 s56, s56, 16384
    s_lshl_b32 s40, s{MT}, 17
    s_lshl_b32 s41, s{HG}, 7
    s_mov_b32 s62, 131072
    s_mov_b32 s63, 0x20000
    s_sub_u32 s34, 1572864, s41
    s_mov_b32 s35, 0x20000
    """)
    if OPT["rot"]:
        a(f"s_mov_b32 s57, s{XCD}")
    else:
        a("s_mov_b32 s57, 0")
    a(f"""
    s_lshl_b32 s42, s57, 7
    v_add_u32 v10, s42, v10
    v_add_u32 v11, s42, v11
    s_mul_i32 s42, s57, 196608
    v_add_u32 v12, s42, v12
    s_mov_b32 s64, {u32(-896)}
    s_mov_b32 s65, 128
    s_mov_b32 s66, {u32(-7*196608)}
    s_mov_b32 s67, 196608
    s_waitcnt lgkmcnt(0)
    s_cmp_eq_u32 s{BB}, 0
    s_cselect_b32 s32, s6, s12
    s_cselect_b32 s33, s7, s13
    s_add_u32 s60, s4, s40
    s_addc_u32 s61, s5, 0
    s_add_u32 s32, s32, s41
    s_addc_u32 s33, s33, 0
    """)
    def issue_stage(extra=None):
        extra = list(extra or [])
        seq = [("w",0,0),("x",0,0),("w",0,1),("x",1,0),("w",1,0),("x",2,0),("w",1,1),("x",3,0),("w",2,0),("w",2,1)]
        for n, (kind, i, e) in enumerate(seq):
            if kind == "x":
                a(f"s_add_u32 m0, s55, {i*1024}")
                a("s_add_u32 s57, s57, 1" if n == 1 else ("s_and_b32 s57, s57, 7" if n == 3 else "s_nop 0"))
                a(f"buffer_load_dwordx4 v{10+(i&1)}, s[60:63], s{44+i} offen lds")
            else:
                a(f"s_add_u32 m0, s56, {i*8192+e*1024}")
                a("s_cmp_eq_u32 s57, 0" if n == 4 else "s_nop 0")
                a(f"buffer_load_dwordx4 v12, s[32:35], s{48+i*2+e} offen lds")
                if n == 4:
                    a("s_cselect_b32 s42, s64, s65")
                    a("s_cselect_b32 s43, s66, s67")
            if n >= 2 and extra:
                k = 1 if n == 2 else 3
                for _ in range(k):
                    if extra: a(extra.pop(0))
        for x in extra:
            a(x)
        a("v_add_u32 v10, s42, v10")
        a("v_add_u32 v11, s42, v11")
        a("v_add_u32 v12, s43, v12")
        a(f"s_add_u32 s55, s55, {SLOT}")
        a(f"s_add_u32 s56, s56, {SLOT}")
        a(f"s_cmp_ge_u32 s56, {NSLOT*SLOT}")
        a(f"s_cselect_b32 s54, {NSLOT*SLOT}, 0")
        a("s_sub_u32 s55, s55, s54")
        a("s_sub_u32 s56, s56, s54")
    a(f"""
    s_mov_b32 s{SRDW}, s16
    s_mov_b32 s{SRDW+1}, s17
    s_mov_b32 s{SRDW+2}, 1024
    s_mov_b32 s{SRDW+3}, 0x20000
    s_lshl_b32 s43, s{LW}, 8
    s_add_u32 m0, s43, {GIMG}
    """)
    if GM() == 2:
        pass
    elif not OPT.get("nogate", 0):
        a(f"""
        s_mov_b64 exec, 0xffff
        buffer_load_dwordx4 v2, {WSRD}, s43 offen lds
        s_mov_b64 exec, -1
        """)
    if GM() == 0:
        a(f"""
        v_and_b32 v20, 31, v1
        v_lshrrev_b32 v21, 5, v1
        v_lshrrev_b32 v22, 1, v1
        v_and_b32 v22, 7, v22
        s_lshl_b32 s40, s{LW}, 12
        v_lshlrev_b32 v23, 7, v20
        v_add_u32 v23, s40, v23
        """)
        for ks in range(4):
            a(f"v_add_u32 v24, {2*ks}, v21")
            a(f"v_xor_b32 v24, v24, v22")
            a(f"v_lshl_add_u32 v{16+ks}, v24, 4, v23")
        a(f"""
        v_lshlrev_b32 v15, 4, v21
        v_add_u32 v15, {GIMG}, v15
        v_mov_b32 v64, 0
        s_mov_b32 s59, 0
        """)
        if OPT["rot"]:
            a(f"s_mov_b32 s31, s{XCD}")
        else:
            a("s_mov_b32 s31, 0")
    LK = OPT.get("look", 2)
    if OPT.get("pfwait", 0):
        a("s_barrier")
    for _ in range(LK):
        issue_stage()
    def gate_reads():
        if OPT.get("nogate", 0) or GM() != 0: return
        a("s_lshl_b32 s40, s31, 7")
        a("v_add_u32 v14, s40, v15")
        for ks in range(4):
            a(f"v_add_u32 v24, s59, v{16+ks}")
            a(f"ds_read_b128 {vr(28+8*ks,4)}, v24")
            a(f"ds_read_b128 {vr(32+8*ks,4)}, v14 offset:{ks*32}")
        a("s_add_u32 s31, s31, 1")
        a("s_and_b32 s31, s31, 7")
        a(f"s_add_u32 s59, s59, {SLOT}")
        a(f"s_cmp_ge_u32 s59, {NSLOT*SLOT}")
        a(f"s_cselect_b32 s40, {NSLOT*SLOT}, 0")
        a("s_sub_u32 s59, s59, s40")
    def gate_dots():
        if OPT.get("nogate", 0) or GM() != 0: return
        a("s_waitcnt lgkmcnt(0)")
        for ks in range(4):
            for q in range(4):
                a(f"v_dot2c_f32_bf16 v64, v{28+8*ks+q}, v{32+8*ks+q}")
    if OPT.get("ldprio", 0) == 0:
        a("s_setprio 0")
    a("s_mov_b32 s58, 0")
    LP = PROF and OPT.get("lprof", 0)
    def tick(acc):
        if LP:
            a("s_memtime s[88:89]")
            a("s_waitcnt lgkmcnt(0)")
            a("s_sub_u32 s87, s88, s86")
            a(f"s_add_u32 s{acc}, s{acc}, s87")
            a("s_mov_b32 s86, s88")
    if LP:
        a("s_memtime s[88:89]")
        a("s_waitcnt lgkmcnt(0)")
        a("s_mov_b32 s86, s88")
        a("s_mov_b32 s80, 0"); a("s_mov_b32 s81, 0"); a("s_mov_b32 s82, 0"); a("s_mov_b32 s83, 0"); a("s_mov_b32 s84, 0"); a("s_mov_b32 s85, 0")
    a.lab("A_ld_loop")
    a(f"s_waitcnt vmcnt({10*(LK-1)})")
    tick(80)
    a("s_barrier")
    tick(82)
    gate_reads()
    issue_stage(None if (OPT.get("nogate", 0) or GM() != 0) else ["s_waitcnt lgkmcnt(0)"] + [f"v_dot2c_f32_bf16 v64, v{28+8*ks+q}, v{32+8*ks+q}" for ks in range(4) for q in range(4)])
    tick(84)
    a("s_add_u32 s58, s58, 1")
    a(f"s_cmp_lt_u32 s58, {8-LK}")
    a("s_cbranch_scc1 A_ld_loop")
    if GM() == 2:
        a(f"""
        s_mov_b32 s{SRDW}, s16
        s_mov_b32 s{SRDW+1}, s17
        s_mov_b32 s{SRDW+2}, 1024
        s_mov_b32 s{SRDW+3}, 0x20000
        v_and_b32 v13, 15, v1
        v_lshlrev_b32 v13, 4, v13
        v_lshl_add_u32 v14, v5, 10, v13
        s_lshl_b32 s40, s{CG}, 3
        s_and_b32 s41, s{LW}, 1
        s_lshl_b32 s41, s41, 2
        s_add_u32 s29, s40, s41
        s_lshl_b32 s41, s29, 10
        s_cmp_ge_u32 s{LW}, 2
        s_cbranch_scc1 A_nogl
        """)
        for i in range(4):
            a(f"buffer_load_dwordx4 {vr(16+4*i,4)}, v14, s[60:63], s41 offen offset:{256*i}")
        for i in range(4):
            a(f"buffer_load_dwordx4 {vr(32+4*i,4)}, v13, {WSRD}, 0 offen offset:{256*i}")
        a.lab("A_nogl")
    for k in range(LK):
        a(f"s_waitcnt vmcnt({10*(LK-1-k)})")
        a("s_barrier")
        gate_reads()
        gate_dots()
    if LP:
        a("s_mov_b32 s98, s80"); a("s_mov_b32 s99, s82"); a("s_mov_b32 s100, s84")
    a("s_setprio 0")
    a(f"""
    s_mov_b32 s{SRDW}, s{WS}
    s_mov_b32 s{SRDW+1}, s{WS+1}
    s_mov_b32 s{SRDW+2}, {WS_END}
    s_mov_b32 s{SRDW+3}, 0x20000
    """)
    if GM() == 1:
        a("s_barrier")
    elif GM() == 2:
        a("s_barrier")
        a(f"s_cmp_ge_u32 s{LW}, 2")
        a("s_cbranch_scc1 A_join")
        a("v_mov_b32 v48, 0")
        a("s_waitcnt vmcnt(0)")
        for i in range(16):
            a(f"v_dot2c_f32_bf16 v48, v{16+i}, v{32+i}")
        a("s_nop 3")
        for rot in (8, 4, 2, 1):
            a(f"v_add_f32_dpp v48, v48, v48 row_ror:{rot} row_mask:0xf bank_mask:0xf")
            a("s_nop 1")
        a(f"""
        v_mul_f32 v48, {f32(-LOG2E)}, v48
        v_exp_f32 v48, v48
        s_nop 0
        v_add_f32 v48, 1.0, v48
        v_rcp_f32 v48, v48
        s_lshl_b32 s41, s{MT}, 7
        s_add_u32 s41, s41, s29
        s_lshl_b32 s41, s41, 2
        s_add_u32 s41, s41, {WS_G}
        v_lshlrev_b32 v49, 2, v5
        v_and_b32 v50, 15, v1
        v_cmp_eq_u32 vcc, 0, v50
        s_and_saveexec_b64 s[58:59], vcc
        buffer_store_dword v48, v49, {WSRD}, s41 offen sc1
        s_mov_b64 exec, s[58:59]
        """)
    else:
        a(f"""
        s_nop 3
        v_mov_b32 v20, v64
        s_nop 1
        v_permlane32_swap_b32 v64, v20
        s_nop 1
        v_add_f32 v64, v64, v20
        v_mul_f32 v64, {f32(-LOG2E)}, v64
        v_exp_f32 v64, v64
        s_nop 0
        v_add_f32 v64, 1.0, v64
        v_rcp_f32 v64, v64
        s_nop 0
        v_sub_f32 v20, 1.0, v64
        s_cmp_eq_u32 s{BB}, 0
        s_cselect_b64 vcc, -1, 0
        s_nop 1
        v_cndmask_b32 v20, v20, v64, vcc
        v_and_b32 v19, 31, v1
        v_lshlrev_b32 v19, 2, v19
        s_lshl_b32 s41, s{LW}, 7
        v_add_u32 v19, s41, v19
        s_barrier
        ds_write_b32 v19, v20 offset:{GX}
        """)
    a("""
    s_branch A_join
    """)
    a.lab("A_compute")
    WM, WN = 30, 31
    a(f"""
    s_and_b32 s{WM}, s{WV}, 1
    s_lshr_b32 s{WN}, s{WV}, 1
    v_and_b32 v20, 31, v1
    v_lshrrev_b32 v21, 5, v1
    v_lshrrev_b32 v22, 1, v1
    v_and_b32 v22, 7, v22
    s_lshl_b32 s40, s{WM}, 13
    v_lshlrev_b32 v23, 7, v20
    v_add_u32 v23, s40, v23
    """)
    for ks in range(4):
        a(f"v_add_u32 v24, {2*ks}, v21")
        a(f"v_xor_b32 v24, v24, v22")
        a(f"v_lshl_add_u32 v{16+ks}, v24, 4, v23")
    a(f"""
    v_and_b32 v26, 15, v1
    v_lshrrev_b32 v27, 2, v26
    v_lshl_add_u32 v28, v21, 3, v27
    v_lshlrev_b32 v28, 7, v28
    v_and_b32 v29, 1, v5
    v_lshlrev_b32 v29, 1, v29
    v_bfe_u32 v30, v26, 1, 1
    v_add_u32 v29, v29, v30
    s_lshl_b32 s40, s{WN}, 2
    v_add_u32 v29, s40, v29
    v_bfe_u32 v30, v27, 1, 1
    v_lshlrev_b32 v30, 2, v30
    v_xor_b32 v29, v29, v30
    v_lshl_add_u32 v28, v29, 4, v28
    v_and_b32 v30, 1, v26
    v_lshl_add_u32 v25, v30, 3, v28
    """)
    ACC = 64
    XF = [32, 160]
    WF = [40, 168]
    GF = [52, 180]
    GACC = 192
    for r in range(96):
        a(f"v_mov_b32 v{ACC+r}, 0")
    if GMF():
        for r in range(16):
            a(f"v_mov_b32 v{GACC+r}, 0")
        a(f"s_mov_b32 s59, s{XCD}" if OPT["rot"] else "s_mov_b32 s59, 0")
        a(f"""
        s_lshl_b32 s40, s59, 7
        v_lshlrev_b32 v15, 4, v21
        v_add_u32 v15, {GIMG}, v15
        v_add_u32 v14, s40, v15
        s_cmp_eq_u32 s{WN}, 0
        s_cselect_b64 vcc, -1, 0
        """)
    a(f"""
    s_lshl_b32 s40, s{CG}, 2
    s_lshl_b32 s41, s{WN}, 1
    s_add_u32 s40, s40, s41
    s_lshl_b32 s40, s40, 6
    s_lshl_b32 s41, s{MT}, 2
    s_add_u32 s40, s40, s41
    s_lshl_b32 s41, s{WM}, 1
    s_add_u32 s40, s40, s41
    s_lshl_b32 s46, s40, 11
    s_add_u32 s46, s46, {WS_KV}
    s_mov_b32 s48, {f32(QSCALE)}
    v_and_b32 v11, 15, v1
    v_lshlrev_b32 v11, 4, v11
    v_lshl_add_u32 v11, v21, 9, v11
    v_bfe_u32 v12, v1, 4, 1
    v_lshl_add_u32 v13, v12, 13, v11
    v_lshl_add_u32 v11, v12, 17, v11
    v_add_u32 v11, 1024, v11
    s_add_u32 s47, s46, 131072
    s_mov_b32 s{SRDW+2}, {WS_END}
    s_mov_b32 s{SRDW+3}, 0x20000
    s_mov_b32 s57, 0
    s_mov_b32 s58, 0
    """)
    def set_addr():
        for ks in range(4):
            a(f"v_add_u32 v{20+ks}, s57, v{16+ks}")
        a("v_add_u32 v24, s57, v25")
    set_addr()
    a("s_waitcnt lgkmcnt(0)")
    a(f"s_mov_b32 s{SRDW}, s{WS}")
    a(f"s_mov_b32 s{SRDW+1}, s{WS+1}")
    if OPT.get("wpf", 0):
        a(f"""
        s_lshl_b32 s40, s2, 2
        s_add_u32 s40, s40, s{WV}
        s_and_b32 s41, s40, 511
        s_mul_i32 s41, s41, 3072
        s_cmp_lt_u32 s40, 512
        s_cselect_b32 s42, s6, s12
        s_cselect_b32 s43, s7, s13
        s_add_u32 s42, s42, s41
        s_addc_u32 s43, s43, 0
        global_load_dwordx4 v[208:211], v2, s[42:43]
        global_load_dwordx4 v[208:211], v2, s[42:43] offset:1024
        global_load_dwordx4 v[208:211], v2, s[42:43] offset:2048
        s_lshl_b32 s40, s2, 3
        s_lshl_b32 s41, s{WV}, 1
        s_add_u32 s40, s40, s41
        s_lshl_b32 s40, s40, 10
        s_add_u32 s42, s4, s40
        s_addc_u32 s43, s5, 0
        global_load_dwordx4 v[208:211], v2, s[42:43]
        global_load_dwordx4 v[208:211], v2, s[42:43] offset:1024
        """)
    if OPT.get("xpf", 0):
        a(f"""
        s_and_b32 s40, s{XCD}, 1
        s_lshl_b32 s40, s40, 10
        s_lshl_b32 s41, s{SLOT_}, 5
        s_add_u32 s40, s40, s41
        s_lshl_b32 s41, s{WV}, 3
        s_add_u32 s40, s40, s41
        s_lshl_b32 s40, s40, 10
        s_add_u32 s42, s4, s40
        s_addc_u32 s43, s5, 0
        v_mov_b32 v212, v2
        """)
        a(f"""
        s_cmp_eq_u32 s{BB}, 0
        s_cselect_b32 s44, s6, s12
        s_cselect_b32 s45, s7, s13
        s_lshl_b32 s40, s{SLOT_}, 4
        s_lshl_b32 s41, s{WV}, 2
        s_add_u32 s40, s40, s41
        s_mul_i32 s40, s40, 3072
        s_and_b32 s41, s{HG}, 4
        s_lshl_b32 s41, s41, 7
        s_add_u32 s40, s40, s41
        s_add_u32 s44, s44, s40
        s_addc_u32 s45, s45, 0
        v_lshrrev_b32 v213, 5, v1
        v_mul_u32_u24 v213, 3072, v213
        v_and_b32 v214, 31, v1
        v_lshl_add_u32 v213, v214, 4, v213
        v_add_u32 v214, 6144, v213
        """)
        for t in range(3):
            a(f"global_load_dwordx4 v[208:211], v213, s[44:45] offset:{t*1024}")
            a(f"global_load_dwordx4 v[208:211], v214, s[44:45] offset:{t*1024}")
        for i in range(8):
            a(f"global_load_dwordx4 v[208:211], v212, s[42:43]")
            if i < 7: a("v_add_u32 v212, 1024, v212")
    if OPT.get("pfwait", 0):
        a("s_waitcnt vmcnt(0)")
        a("s_barrier")
    if OPT.get("cpf", 0):
        a(f"""
        s_cmp_lg_u32 s{WV}, 3
        s_cbranch_scc1 A_nocpf
        s_cmp_ge_u32 s{SLOT_}, (L_codeend-{KNAME})>>10
        s_cbranch_scc1 A_nocpf
        s_getpc_b64 s[42:43]
        """)
        a.lab("A_pc")
        a(f"""
        s_sub_u32 s42, s42, A_pc-{KNAME}
        s_subb_u32 s43, s43, 0
        s_lshl_b32 s40, s{SLOT_}, 10
        s_add_u32 s42, s42, s40
        s_addc_u32 s43, s43, 0
        global_load_dwordx4 v[208:211], v2, s[42:43]
        """)
        a.lab("A_nocpf")
    if OPT.get("pt", 0):
        a(f"""
        s_cmp_lg_u32 s{WV}, 1
        s_cbranch_scc1 A_nopt1
        s_lshl_b32 s40, s{CG}, 19
        s_add_u32 s40, s40, {WS_KV}
        v_lshlrev_b32 v212, 13, v1
        buffer_load_dword v208, v212, {WSRD}, s40 offen
        """)
        a.lab("A_nopt1")
        a(f"""
        s_cmp_lg_u32 s{WV}, 2
        s_cbranch_scc1 A_nopt2
        v_lshlrev_b32 v212, 16, v1
        s_mov_b32 s40, {WS_O}
        buffer_load_dword v208, v212, {WSRD}, s40 offen
        v_mov_b32 v213, 0
        s_mov_b32 s40, {WS_F}
        buffer_load_dword v209, v213, {WSRD}, s40 offen
        v_lshlrev_b32 v213, 15, v1
        global_load_dword v210, v213, s[18:19]
        v_lshlrev_b32 v214, 13, v1
        global_load_dword v211, v214, s[8:9]
        global_load_dword v211, v214, s[14:15]
        """)
        a.lab("A_nopt2")
    a(f"""
    s_cmp_lg_u32 s{WV}, 0
    s_cbranch_scc1 A_nononce
    s_memrealtime s[40:41]
    s_waitcnt lgkmcnt(0)
    s_or_b32 s40, s40, 1
    v_mov_b32 v186, s40
    v_mov_b32 v187, 0
    v_mov_b32 v188, 0
    s_mov_b64 exec, 1
    global_atomic_cmpswap v189, v188, v[186:187], s[{DBG}:{DBG+1}] sc0
    s_mov_b64 exec, -1
    """)
    a.lab("A_nononce")
    def read_list(ks, f):
        r = []
        r.append(f"ds_read_b64_tr_b16 {vr(WF[f]+0,2)}, v24 offset:{16384+(16*ks+0)*128}")
        r.append(f"ds_read_b64_tr_b16 {vr(WF[f]+2,2)}, v24 offset:{16384+(16*ks+4)*128}")
        r.append(f"ds_read_b128 {vr(XF[f],4)}, v{20+ks} offset:0")
        r.append(f"ds_read_b128 {vr(XF[f]+4,4)}, v{20+ks} offset:4096")
        for g3 in (1, 2):
            for u in range(2):
                r.append(f"ds_read_b64_tr_b16 {vr(WF[f]+4*g3+2*u,2)}, v24 offset:{16384+g3*8192+(16*ks+4*u)*128}")
        if GMF():
            r.append(f"ds_read_b128 {vr(GF[f],4)}, v14 offset:{ks*32}")
        return r
    gl = [0]
    FW = OPT.get("finewait", 1)
    def group(f, rl, barrier=False):
        order = [(0,0),(0,1),(1,0),(1,1),(2,0),(2,1)]
        nold = 9 if GMF() else 8
        need = {0: 3, 1: 4, 2: 6, 4: 8}
        rl = list(rl)
        issued = 0
        per = OPT.get("rpg", 2)
        for i, (g3, tt) in enumerate(order):
            if FW and i in need:
                a(f"s_waitcnt lgkmcnt({min(15, nold - need[i] + issued)})")
            x = vr(XF[f]+4*tt, 4); w = vr(WF[f]+4*g3, 4); d = vr(ACC+16*(tt*3+g3), 16)
            if g3 < 2:
                a(f"v_mfma_f32_32x32x16_bf16 {d}, {w}, {x}, {d}")
            else:
                a(f"v_mfma_f32_32x32x16_bf16 {d}, {x}, {w}, {d}")
            if i == 0 and barrier:
                if PROF and OPT.get("lprof", 0):
                    a("s_memtime s[88:89]")
                a(f"s_waitcnt lgkmcnt(0)")
                a("s_barrier")
                if PROF and OPT.get("lprof", 0):
                    a("s_memtime s[86:87]")
                    a("s_waitcnt lgkmcnt(0)")
                    a("s_sub_u32 s86, s86, s88")
                    a("s_add_u32 s98, s98, s86")
            for _ in range(per):
                if rl:
                    a(rl.pop(0)); issued += 1
        if GMF():
            if FW:
                a(f"s_waitcnt lgkmcnt({min(15, issued)})")
            n = gl[0]; gl[0] += 1
            d = vr(GACC, 16)
            a(f"s_cbranch_vccz A_g{n}a")
            a(f"v_mfma_f32_32x32x16_bf16 {d}, {vr(GF[f],4)}, {vr(XF[f],4)}, {d}")
            a(f"s_branch A_g{n}b")
            a.lab(f"A_g{n}a")
            a(f"v_mfma_f32_32x32x16_bf16 {d}, {vr(GF[f],4)}, {vr(XF[f]+4,4)}, {d}")
            a.lab(f"A_g{n}b")
        for x in rl:
            a(x)
    a("s_barrier")
    stamp(a, 1)
    for x in read_list(0, 0):
        a(x)
    if PROF and OPT.get("lprof", 0):
        a("s_mov_b32 s98, 0"); a("s_mov_b32 s99, 0"); a("s_mov_b32 s100, 0")
    a.lab("A_loop")
    for ks in range(3):
        if not FW: a("s_waitcnt lgkmcnt(0)")
        group(ks & 1, read_list(ks+1, (ks+1) & 1))
    a("s_cmp_eq_u32 s58, 7")
    a("s_cbranch_scc1 A_last")
    a(f"""
    s_add_u32 s57, s57, {SLOT}
    s_cmp_ge_u32 s57, {NSLOT*SLOT}
    s_cselect_b32 s40, {NSLOT*SLOT}, 0
    s_sub_u32 s57, s57, s40
    """)
    if GMF():
        a("""
        s_add_u32 s59, s59, 1
        s_and_b32 s59, s59, 7
        s_lshl_b32 s40, s59, 7
        v_add_u32 v14, s40, v15
        """)
    set_addr()
    if not FW: a("s_waitcnt lgkmcnt(0)")
    group(1, read_list(0, 0), barrier=True)
    a("s_add_u32 s58, s58, 1")
    a("s_branch A_loop")
    a.lab("A_last")
    if not FW: a("s_waitcnt lgkmcnt(0)")
    group(1, [])
    stamp(a, 2)
    a("s_barrier")
    a(f"""
    s_lshl_b32 s40, s{WN}, 3
    s_lshl_b32 s41, s{WM}, 1
    s_add_u32 s40, s40, s41
    s_lshl_b32 s41, s40, 10
    v_add_u32 v16, s41, v2
    s_lshl_b32 s41, s40, 11
    v_add_u32 v17, s41, v2
    v_add_u32 v18, s41, v13
    s_nop 3
    """)
    a(f"""
    s_cmp_lg_u32 s{WV}, 0
    s_cbranch_scc1 A_nononce2
    s_waitcnt vmcnt(0)
    v_cmp_eq_u32 vcc, 0, v189
    s_nop 1
    v_cndmask_b32 v186, v189, v186, vcc
    v_mov_b32 v188, {RELAY}
    s_mov_b64 exec, 1
    ds_write_b64 v188, v[186:187]
    s_mov_b64 exec, -1
    """)
    a.lab("A_nononce2")
    STF = {0: ' sc1', 1: ' sc0 sc1', 2: ' sc1 nt', 3: ' sc0 sc1 nt'}[OPT.get('stf', 0)]
    for tt in range(2):
        d = ACC + 16*(tt*3+1)
        for r in range(8):
            a(f"v_cvt_pk_bf16_f32 v{d+r}, v{d+2*r}, v{d+2*r+1}")
        a(f"buffer_store_dwordx4 {vr(d,4)}, v2, {WSRD}, s46 offen offset:{tt*2048}{STF}")
        a(f"buffer_store_dwordx4 {vr(d+4,4)}, v2, {WSRD}, s47 offen offset:{tt*2048}{STF}")
        a(f"ds_write_b128 v17, {vr(d,4)} offset:{KVX+tt*2048}")
        a(f"ds_write_b128 v17, {vr(d+4,4)} offset:{KVX+tt*2048+8192}")
        d = ACC + 16*(tt*3+2)
        for r in range(8):
            a(f"v_cvt_pk_bf16_f32 v{d+r}, v{d+2*r}, v{d+2*r+1}")
        a(f"buffer_store_dwordx4 {vr(d,4)}, v11, {WSRD}, s46 offen offset:{tt*2048}{STF}")
        a(f"buffer_store_dwordx4 {vr(d+4,4)}, v11, {WSRD}, s46 offen offset:{tt*2048+256}{STF}")
        a(f"ds_write_b128 v18, {vr(d,4)} offset:{KVX+tt*2048+1024}")
        a(f"ds_write_b128 v18, {vr(d+4,4)} offset:{KVX+tt*2048+1280}")
    for tt in range(2):
        d = ACC + 16*(tt*3+0)
        for r in range(16):
            a(f"v_mul_f32 v{d+r}, s48, v{d+r}")
        for r in range(8):
            a(f"v_cvt_pk_bf16_f32 v{d+r}, v{d+2*r}, v{d+2*r+1}")
        a(f"ds_write_b128 v16, {vr(d,4)} offset:{QX+tt*1024}")
        a(f"ds_write_b128 v16, {vr(d+4,4)} offset:{QX+tt*1024+4096}")
    if GMF():
        g = GACC
        a(f"""
        v_mul_f32 v{g}, {f32(-LOG2E)}, v{g}
        v_exp_f32 v{g}, v{g}
        s_nop 0
        v_add_f32 v{g}, 1.0, v{g}
        v_rcp_f32 v{g}, v{g}
        s_nop 0
        v_sub_f32 v20, 1.0, v{g}
        s_cmp_eq_u32 s{BB}, 0
        s_cselect_b64 vcc, -1, 0
        v_and_b32 v19, 31, v1
        v_lshlrev_b32 v19, 2, v19
        v_cndmask_b32 v20, v20, v{g}, vcc
        s_lshl_b32 s41, s{WM}, 8
        s_lshl_b32 s40, s{WN}, 7
        s_add_u32 s41, s41, s40
        v_add_u32 v19, s41, v19
        ds_write_b32 v19, v20 offset:{GX}
        """)
    a.lab("A_join")
    a("s_waitcnt lgkmcnt(0)")
    a("s_barrier")
    stamp(a, 3)

def spin(a, lab, addr_v, val_v, cond):
    a("s_mov_b32 s69, 0")
    a.lab(lab)
    a(f"global_load_dword v{val_v}, v{addr_v}, s[{DBG}:{DBG+1}] sc1")
    a("s_add_u32 s69, s69, 1")
    a("s_waitcnt vmcnt(0)")
    cond()
    a(f"s_cbranch_scc1 {lab}_ok")
    a("s_cmp_lt_u32 s69, 200000")
    a(f"s_cbranch_scc1 {lab}")
    a.lab(lab + "_ok")

def phase_b(a):
    Q = [4, 8]; S = [12, 28]; O = [44, 60]; C = [76, 92]
    KB = lambda s, u: 108 + s*16 + u*4
    VB = lambda s, u: 140 + s*32 + u*8
    G = [204, 205]; T0 = 206; T1 = 207; T2 = 208
    H4, QH, PAIR, QT = 30, 31, 32, 33
    a(f"""
    s_lshr_b32 s{H4}, s{WV}, 1
    s_and_b32 s{QH}, s{WV}, 1
    s_lshl_b32 s{PAIR}, s{CG}, 2
    s_add_u32 s{PAIR}, s{PAIR}, s{H4}
    s_lshl_b32 s{QT}, s{MT}, 2
    s_lshl_b32 s40, s{QH}, 1
    s_add_u32 s{QT}, s{QT}, s40
    s_lshl_b32 s46, s{PAIR}, 17
    s_add_u32 s46, s46, {WS_KV}
    s_lshl_b32 s40, s{H4}, 12
    s_lshl_b32 s41, s{QH}, 11
    s_add_u32 s40, s40, s41
    v_add_u32 v{T0}, s40, v2
    ds_read_b128 {vr(Q[0],4)}, v{T0} offset:{QX}
    ds_read_b128 {vr(Q[1],4)}, v{T0} offset:{QX+1024}
    v_and_b32 v{T1}, 31, v1
    v_lshlrev_b32 v{T1}, 2, v{T1}
    s_lshl_b32 s41, s{QH}, 8
    v_add_u32 v{T1}, s41, v{T1}
    """)
    if GM() != 2:
        a(f"ds_read_b32 v{G[0]}, v{T1} offset:{GX}")
        a(f"ds_read_b32 v{G[1]}, v{T1} offset:{GX+128}")
    a(f"""
    v_and_b32 v{T0}, 27, v1
    v_cmp_eq_u32 vcc, 16, v{T0}
    v_mov_b32 v{T1}, 0x3f803f80
    s_nop 0
    v_cndmask_b32 v{T0}, 0, v{T1}, vcc
    """)
    for r in range(64):
        a(f"v_mov_b32 v{VB(0,0)+r}, v{T0}")
    a(f"""
    s_mov_b32 s52, 0x0000ffff
    s_mov_b32 s53, 0x0000ffff
    s_lshl_b32 s40, s{H4}, 13
    v_add_u32 v{T0}, s40, v2
    """)
    for u in range(4):
        a(f"ds_read_b128 {vr(KB(0,u),4)}, v{T0} offset:{KVX+u*2048}")
    a("s_mov_b64 exec, s[52:53]")
    for u in range(4):
        a(f"ds_read_b128 {vr(VB(0,u),4)}, v{T0} offset:{KVX+u*2048+1024}")
        a(f"ds_read_b128 {vr(VB(0,u)+4,4)}, v{T0} offset:{KVX+u*2048+1280}")
    a("s_mov_b64 exec, -1")
    a(f"v_mov_b32 v{T2}, {RELAY}")
    a(f"ds_read_b32 v{T2+1}, v{T2}")
    a("s_waitcnt lgkmcnt(0)")
    a(f"v_readfirstlane_b32 s{NONCE}, v{T2+1}")
    a("s_barrier")
    stamp(a, 4)
    c_prefetch_setup(a)
    a("s_mov_b32 s49, 0")
    a("s_mov_b32 s50, 0")
    a("s_mov_b32 s54, 0")
    a(f"s_lshl_b32 s45, 1, s{MT}")
    if OPT.get("nodep", 0):
        a("s_mov_b32 s45, 0xffff")
        a("s_mov_b32 s49, 1")
    if OPT["prio"]:
        a("s_setprio 3")
    for x in range(2):
        a(f"v_mfma_f32_32x32x16_bf16 {vr(S[x],16)}, {vr(KB(0,0),4)}, {vr(Q[x],4)}, 0")
    a("s_nop 7")
    a("s_nop 7")
    MX = [T0, T1]
    for x in range(2):
        a(f"v_max3_f32 v{MX[x]}, v{S[x]}, v{S[x]+1}, v{S[x]+2}")
        for r in range(3, 15, 2):
            a(f"v_max3_f32 v{MX[x]}, v{MX[x]}, v{S[x]+r}, v{S[x]+r+1}")
        a(f"v_max_f32 v{MX[x]}, v{MX[x]}, v{S[x]+15}")
    a.lab("B_setmax")
    for x in range(2):
        a(f"""
        v_mov_b32 v{T2}, v{MX[x]}
        s_nop 1
        v_permlane32_swap_b32 v{MX[x]}, v{T2}
        s_nop 1
        v_max_f32 v{MX[x]}, v{MX[x]}, v{T2}
        """)
        for r in range(16):
            a(f"v_sub_f32 v{C[x]+r}, 0, v{MX[x]}")
        for r in range(16):
            a(f"v_mov_b32 v{O[x]+r}, 0")
    a(f"v_mfma_f32_32x32x16_bf16 {vr(S[0],16)}, {vr(KB(0,0),4)}, {vr(Q[0],4)}, {vr(C[0],16)}")
    for r in range(4):
        a(f"v_mov_b32 v{224+4+r}, 0")
    if OPT.get("sch", 1) == 3:
        for r in range(8, 16):
            a(f"v_mov_b32 v{S[1]+r}, 0")
    a(f"s_mov_b32 s44, s{MT}")
    a("s_mov_b32 s55, 0")
    a("s_nop 7")
    def ex(b, lo, hi):
        for r in range(lo, hi):
            a(f"v_exp_f32 v{b+r}, v{b+r}")
    def cv(b, h):
        for r in range(4):
            a(f"v_cvt_pk_bf16_f32 v{b+4*h+r}, v{b+8*h+2*r}, v{b+8*h+2*r+1}")
    def pv(x, vb, h):
        a(f"v_mfma_f32_32x32x16_bf16 {vr(O[x],16)}, {vr(vb+4*h,4)}, {vr(S[x]+4*h,4)}, {vr(O[x],16)}")
    def pf_head(tag):
        if tag == 0 and OPT.get("D", 4) <= 4:
            a("s_cmp_eq_u32 s49, 0")
            a("s_cbranch_scc1 B_first")
            a.lab("B_first_ret")
        a(f"""
        s_add_u32 s44, s44, 1
        s_and_b32 s44, s44, 15
        s_bitcmp1_b32 s45, s44
        s_cbranch_scc0 B_poll{tag}
        """)
        a.lab(f"B_pf{tag}")
        a(f"""
        s_lshl_b32 s47, s44, 13
        s_add_u32 s47, s47, s46
        s_add_u32 s48, s47, 4096
        """)
    def ldk(s, u):
        so = 47 if u < 2 else 48
        a(f"buffer_load_dwordx4 {vr(KB(s,u),4)}, v2, {WSRD}, s{so} offen offset:{(u&1)*2048} sc1")
    def ldv(s, u):
        so = 47 if u < 2 else 48
        a("s_mov_b64 exec, s[52:53]")
        a(f"buffer_load_dwordx4 {vr(VB(s,u),4)}, v2, {WSRD}, s{so} offen offset:{(u&1)*2048+1024} sc1")
        a(f"buffer_load_dwordx4 {vr(VB(s,u)+4,4)}, v2, {WSRD}, s{so} offen offset:{(u&1)*2048+1280} sc1")
        a("s_mov_b64 exec, -1")
    D = OPT.get("D", 4)
    if D > 4:
        a("s_cmp_eq_u32 s49, 0")
        a("s_cbranch_scc1 B_first")
        a.lab("B_first_ret")
        pf_head(2)
        for uu in range(D - 4):
            ldk(1, uu)
            ldv(1, uu)
    a.lab("B_loop")
    SCH = OPT.get("sch", 1)
    P = [216, 224]
    def e1(b, r):
        a(f"v_exp_f32 v{b+r}, v{b+r}")
    def cvp(x, lo, hi):
        for r in range(lo, hi):
            a(f"v_cvt_pk_bf16_f32 v{P[x]+r}, v{S[x]+2*r}, v{S[x]+2*r+1}")
    def pvp(x, vb, h):
        a(f"v_mfma_f32_32x32x16_bf16 {vr(O[x],16)}, {vr(vb+4*h,4)}, {vr(P[x]+4*h,4)}, {vr(O[x],16)}")
    for s in range(2):
        for u in range(4):
            vb = VB(s, u)
            vprev = VB(s, u-1) if u > 0 else VB(1-s, 3)
            kn = KB(s, u+1) if u < 3 else KB(1-s, 0)
            L = (4*s + u + D) % 8
            qs, qu = L // 4, L % 4
            guard = (D < 4 and s == 0 and qs == s)
            if OPT["prio"] == 2 and s == 1 and u == 0:
                a("s_cmp_lg_u32 s55, 7")
                a("s_cbranch_scc1 B_pm")
                a("s_setprio 0")
                a.lab("B_pm")
            def do_ldk():
                if qu == 0:
                    pf_head(s)
                if guard:
                    a("s_cmp_eq_u32 s49, 0")
                    a(f"s_cbranch_scc1 B_gk{u}")
                ldk(qs, qu)
                if guard:
                    a.lab(f"B_gk{u}")
            def do_ldv():
                if guard:
                    a("s_cmp_eq_u32 s49, 0")
                    a(f"s_cbranch_scc1 B_gv{u}")
                ldv(qs, qu)
                if guard:
                    a.lab(f"B_gv{u}")
                if u == 3 and s == 1:
                    a("s_cmp_lt_u32 s50, 4")
                    a("s_cbranch_scc1 B_wo")
                    a.lab("B_wo_ret")
            if SCH == 0:
                a(f"v_mfma_f32_32x32x16_bf16 {vr(S[1],16)}, {vr(KB(s,u),4)}, {vr(Q[1],4)}, {vr(C[1],16)}")
                do_ldk()
                ex(S[0], 0, 8)
                cv(S[0], 0)
                ex(S[0], 8, 16)
                a(f"s_waitcnt vmcnt({3*(D-1)+1})")
                pv(0, vb, 0)
                cv(S[0], 1)
                ex(S[1], 0, 2)
                pv(0, vb, 1)
                ex(S[1], 2, 8)
                a(f"s_waitcnt vmcnt({3*D-3})")
                a(f"v_mfma_f32_32x32x16_bf16 {vr(S[0],16)}, {vr(kn,4)}, {vr(Q[0],4)}, {vr(C[0],16)}")
                cv(S[1], 0)
                ex(S[1], 8, 16)
                pv(1, vb, 0)
                cv(S[1], 1)
                do_ldv()
                pv(1, vb, 1)
            else:
                scheds = {
                 1: "ea0-2 PVb1 ea2-8 QKb LK ca0-4 ea8-12 W PVa0 ea12-16 ca4-8 eb0-2 PVa1 eb2-7 QKa eb7-8 cb0-4 eb8-11 PVb0 LV eb11-16 cb4-8",
                 2: "ea0-2 PVb1 ea2-8 QKb LK ca0-4 ea8-12 W PVa0 ea12-16 eb0-2 ca4-8 eb2-4 PVa1 eb4-8 QKa eb8-10 cb0-4 eb10-12 PVb0 LV eb12-16 cb4-8",
                 3: "cb4-8 ea0-2 PVb1 ea2-8 QKb LK ea8-10 ca0-4 ea10-12 W PVa0 ea12-16 eb0-2 ca4-8 eb2-4 PVa1 eb4-8 QKa eb8-10 cb0-4 eb10-12 PVb0 LV eb12-16",
                 4: "ea0-4 PVb1 ea4-8 LK ca0-4 QKb ea8-12 W PVa0 ea12-16 ca4-8 eb0-2 PVa1 eb2-8 QKa cb0-4 eb8-11 PVb0 LV eb11-16 cb4-8",
                 5: "ea0-2 PVb1 ea2-6 QKb ea6-8 LK ca0-4 ea8-10 W PVa0 ea10-16 ca4-8 eb0-2 PVa1 eb2-6 QKa eb6-8 cb0-4 eb8-10 PVb0 eb10-13 LV eb13-16 cb4-8",
                }
                for tok in scheds[SCH].split():
                    if tok == "PVb1": pvp(1, vprev, 1)
                    elif tok == "PVa0": pvp(0, vb, 0)
                    elif tok == "PVa1": pvp(0, vb, 1)
                    elif tok == "PVb0": pvp(1, vb, 0)
                    elif tok == "QKb": a(f"v_mfma_f32_32x32x16_bf16 {vr(S[1],16)}, {vr(KB(s,u),4)}, {vr(Q[1],4)}, {vr(C[1],16)}")
                    elif tok == "QKa": a(f"v_mfma_f32_32x32x16_bf16 {vr(S[0],16)}, {vr(kn,4)}, {vr(Q[0],4)}, {vr(C[0],16)}")
                    elif tok == "LK": do_ldk()
                    elif tok == "LV": do_ldv()
                    elif tok == "W": a(f"s_waitcnt vmcnt({3*D-3})")
                    else:
                        x = 0 if tok[1] == "a" else 1
                        lo, hi = [int(z) for z in tok[2:].split("-")]
                        if tok[0] == "e": ex(S[x], lo, hi)
                        else: cvp(x, lo, hi)
    a("s_add_u32 s55, s55, 1")
    if OPT["prio"] == 1:
        a("""
        s_and_b32 s40, s55, 1
        s_cbranch_scc1 B_noprio
        s_cmp_eq_u32 s55, 2
        s_cbranch_scc0 B_p1
        s_setprio 2
        """)
        a.lab("B_p1")
        a("s_cmp_eq_u32 s55, 4")
        a("s_cbranch_scc0 B_p2")
        a("s_setprio 1")
        a.lab("B_p2")
        a("s_cmp_eq_u32 s55, 6")
        a("s_cbranch_scc0 B_noprio")
        a("s_setprio 0")
        a.lab("B_noprio")
    if OPT["prio"] == 3:
        a("s_cmp_lt_u32 s55, 5")
        a("s_cbranch_scc1 B_noprio")
        a("s_setprio 2")
        a("s_cmp_eq_u32 s55, 5")
        a("s_cbranch_scc1 B_noprio")
        a("s_setprio 1")
        a("s_cmp_eq_u32 s55, 6")
        a("s_cbranch_scc1 B_noprio")
        a("s_setprio 0")
        a.lab("B_noprio")
    if OPT["prio"] == 2:
        a("s_cmp_lt_u32 s55, 6")
        a("s_cbranch_scc1 B_noprio")
        a("s_setprio 2")
        a("s_cmp_eq_u32 s55, 6")
        a("s_cbranch_scc1 B_noprio")
        a("s_setprio 1")
        a.lab("B_noprio")
    a("s_cmp_ge_u32 s55, 5")
    a("s_cbranch_scc1 B_wobar")
    a.lab("B_wobar_ret")
    if PROF and OPT.get("lstamp", 0):
        a("s_cmp_eq_u32 s55, 1")
        a("s_cbranch_scc0 B_ls1")
        stamp(a, 9)
        a.lab("B_ls1")
        a(f"s_cmp_eq_u32 s55, {OPT.get('ls2', 4)}")
        a("s_cbranch_scc0 B_ls2")
        stamp(a, 10)
        a.lab("B_ls2")
    a("s_cmp_lt_u32 s55, 8")
    a("s_cbranch_scc1 B_loop")
    if OPT.get("sch", 1) == 3:
        for r in range(4, 8):
            a(f"v_cvt_pk_bf16_f32 v{224+r}, v{S[1]+2*r}, v{S[1]+2*r+1}")
    if OPT.get("sch", 1):
        a("s_nop 1")
        a(f"v_mfma_f32_32x32x16_bf16 {vr(O[1],16)}, {vr(VB(1,3)+4,4)}, {vr(224+4,4)}, {vr(O[1],16)}")
    stamp(a, 6)
    a("s_nop 7")
    a("s_nop 7")
    a("s_cmp_lg_u32 s54, 0")
    a("s_cbranch_scc1 B_fin")
    a(f"v_mov_b32 v{T0}, 0")
    a(f"v_mov_b32 v{T1}, 0")
    for x in range(2):
        o = O[x]
        for r in range(0, 8, 2):
            a(f"v_max3_f32 v{T0}, v{T0}, |v{o+r}|, |v{o+r+1}|")
        a(f"v_max_f32 v{T0}, v{T0}, v{o+8}")
        for r in range(8):
            a(f"v_add_f32 v{T1}, v{T1}, v{o+r}")
    a(f"""
    v_mul_f32 v{T1}, 0, v{T1}
    v_add_f32 v{T0}, v{T0}, v{T1}
    s_mov_b32 s57, {f32(2.0**100)}
    v_cmp_gt_f32 vcc, s57, v{T0}
    s_cmp_eq_u64 vcc, exec
    s_cbranch_scc1 B_fin
    """)
    a(f"""
    s_mov_b32 s54, 1
    v_mov_b32 v{T0}, {f32(-3.0e38)}
    v_mov_b32 v{T1}, {f32(-3.0e38)}
    s_mov_b32 s47, s46
    s_mov_b32 s55, 0
    s_waitcnt vmcnt(0)
    """)
    a.lab("B_maxloop")
    a(f"buffer_load_dwordx4 {vr(KB(1,0),4)}, v2, {WSRD}, s47 offen sc1")
    a("s_waitcnt vmcnt(0)")
    for x in range(2):
        a(f"v_mfma_f32_32x32x16_bf16 {vr(S[x],16)}, {vr(KB(1,0),4)}, {vr(Q[x],4)}, 0")
    a("s_nop 7")
    a("s_nop 7")
    for x in range(2):
        for r in range(0, 16, 2):
            a(f"v_max3_f32 v{MX[x]}, v{MX[x]}, v{S[x]+r}, v{S[x]+r+1}")
    a("s_add_u32 s47, s47, 2048")
    a("s_add_u32 s55, s55, 1")
    a("s_cmp_lt_u32 s55, 64")
    a("s_cbranch_scc1 B_maxloop")
    a("s_branch B_setmax")
    a.lab("B_first")
    a("s_waitcnt vmcnt(0)")
    a("s_barrier")
    stamp(a, 5)
    a("s_mov_b32 s49, 1")
    a(f"""
    s_cmp_lg_u32 s{WV}, 0
    s_cbranch_scc1 B_first_ret
    s_lshl_b32 s40, s{CG}, 7
    s_lshl_b32 s41, s{MT}, 2
    s_add_u32 s40, s40, s41
    s_add_u32 s40, s40, {WS_F}
    v_mov_b32 v{T2}, 0
    v_mov_b32 v{T2+1}, s{NONCE}
    s_mov_b64 exec, 1
    buffer_store_dword v{T2+1}, v{T2}, {WSRD}, s40 offen sc1
    s_lshl_b32 s40, s{MT}, 7
    s_lshl_b32 s41, s{CG}, 2
    s_add_u32 s40, s40, s41
    s_add_u32 s40, s40, {WS_GF}
    buffer_store_dword v{T2+1}, v{T2}, {WSRD}, s40 offen sc1
    s_mov_b64 exec, -1
    s_branch B_first_ret
    """)
    a.lab("B_wobar")
    a("s_cmp_lg_u32 s54, 0")
    a("s_cbranch_scc1 B_wobar_ret")
    a("s_cmp_eq_u32 s55, 6")
    a("s_cbranch_scc1 B_wobar6")
    if GM() == 2:
        a("s_cmp_lg_u32 s55, 5")
        a("s_cbranch_scc1 B_wobar_ret")
        a(f"s_cmp_lg_u32 s{WV}, 0")
        a("s_cbranch_scc1 B_wobar_ret")
        a(f"""
        s_lshl_b32 s40, s{MT}, 7
        s_add_u32 s40, s40, {WS_GF}
        v_lshlrev_b32 v{T2}, 2, v1
        s_mov_b32 s69, 0
        """)
        a.lab("B_gpoll")
        a(f"""
        s_mov_b64 exec, 0xffff
        buffer_load_dword v{T2+1}, v{T2}, {WSRD}, s40 offen sc1
        s_add_u32 s69, s69, 1
        s_waitcnt vmcnt(0)
        v_cmp_eq_u32 vcc, s{NONCE}, v{T2+1}
        s_mov_b64 exec, -1
        s_cmp_eq_u32 vcc_lo, 0xffff
        s_cbranch_scc1 B_wobar_ret
        s_cmp_lt_u32 s69, 200000
        s_cbranch_scc1 B_gpoll
        """)
    a("s_branch B_wobar_ret")
    a.lab("B_wobar6")
    a("s_barrier")
    if GM() == 2:
        a(f"""
        s_lshl_b32 s40, s{QT}, 7
        s_add_u32 s40, s40, {WS_G}
        v_and_b32 v{T2}, 31, v1
        v_lshlrev_b32 v{T2}, 2, v{T2}
        buffer_load_dword v{G[0]}, v{T2}, {WSRD}, s40 offen sc1
        buffer_load_dword v{G[1]}, v{T2}, {WSRD}, s40 offen offset:128 sc1
        """)
    a("s_branch B_wobar_ret")
    a.lab("B_wo")
    for i in range(4):
        a(f"s_add_u32 m0, s58, {i*1024}")
        a(f"s_add_u32 s51, s59, {i*8192}")
        a(f"buffer_load_dwordx4 v212, s[60:63], s51 offen lds")
    a("s_add_u32 s58, s58, 4096")
    a("s_add_u32 s59, s59, 32768")
    a("s_add_u32 s50, s50, 1")
    a("s_branch B_wo_ret")
    for sset in range(3 if OPT.get('D', 4) > 4 else 2):
        a.lab(f"B_poll{sset}")
        a("s_mov_b32 s69, 0")
        a(f"s_cmp_lg_u32 s{WV}, 0")
        a(f"s_cbranch_scc1 B_lp{sset}")
        a(f"""
        s_lshl_b32 s40, s{CG}, 7
        s_add_u32 s40, s40, {WS_F}
        v_lshlrev_b32 v{T2}, 2, v1
        """)
        a.lab(f"B_gp{sset}")
        a(f"""
        s_mov_b64 exec, 0xffff
        buffer_load_dword v{T2+1}, v{T2}, {WSRD}, s40 offen sc1
        s_add_u32 s69, s69, 1
        s_waitcnt vmcnt(0)
        v_cmp_eq_u32 vcc, s{NONCE}, v{T2+1}
        s_mov_b64 exec, -1
        s_or_b32 s45, s45, vcc_lo
        s_bitcmp1_b32 s45, s44
        s_cbranch_scc1 B_gok{sset}
        s_cmp_lt_u32 s69, 200000
        s_cbranch_scc1 B_gp{sset}
        """)
        a.lab(f"B_gok{sset}")
        a(f"""
        v_mov_b32 v{T2}, {RELAY+4}
        v_mov_b32 v{T2+1}, s45
        ds_write_b32 v{T2}, v{T2+1}
        s_branch B_pf{sset}
        """)
        a.lab(f"B_lp{sset}")
        a(f"v_mov_b32 v{T2}, {RELAY+4}")
        a.lab(f"B_lpl{sset}")
        a(f"""
        ds_read_b32 v{T2+1}, v{T2}
        s_add_u32 s69, s69, 1
        s_waitcnt lgkmcnt(0)
        v_readfirstlane_b32 s40, v{T2+1}
        s_nop 3
        s_or_b32 s45, s45, s40
        s_bitcmp1_b32 s45, s44
        s_cbranch_scc1 B_pf{sset}
        s_cmp_lt_u32 s69, 4000000
        s_cbranch_scc1 B_lpl{sset}
        s_branch B_pf{sset}
        """)
    a.lab("B_fin")
    if GM() == 2:
        a("s_waitcnt vmcnt(0)")
        a(f"s_cmp_eq_u32 s{BB}, 0")
        a("s_cbranch_scc1 B_fin2")
        a(f"v_sub_f32 v{G[0]}, 1.0, v{G[0]}")
        a(f"v_sub_f32 v{G[1]}, 1.0, v{G[1]}")
        a.lab("B_fin2")
    for x in range(2):
        o = O[x]
        a(f"v_rcp_f32 v{T0}, v{o+8}")
        a("s_nop 0")
        a(f"v_mul_f32 v{T0}, v{T0}, v{G[x]}")
        for r in range(8):
            a(f"v_mul_f32 v{o+r}, v{o+r}, v{T0}")
        for r in range(4):
            a(f"v_cvt_pk_bf16_f32 v{o+r}, v{o+2*r}, v{o+2*r+1}")
    a(f"""
    s_lshl_b32 s40, s{QT}, 6
    s_add_u32 s40, s40, s{PAIR}
    s_lshl_b32 s40, s40, 10
    s_add_u32 s40, s40, {WS_O}
    s_add_u32 s41, s40, 65536
    buffer_store_dwordx4 {vr(O[0],4)}, v2, {WSRD}, s40 offen sc1
    buffer_store_dwordx4 {vr(O[1],4)}, v2, {WSRD}, s41 offen sc1
    """)
    if OPT.get("oflag", 0):
        a(f"""
        s_lshl_b32 s40, s{MT}, 9
        s_lshl_b32 s41, s{QH}, 8
        s_add_u32 s40, s40, s41
        s_lshl_b32 s41, s{CG}, 4
        s_add_u32 s40, s40, s41
        s_lshl_b32 s41, s{H4}, 2
        s_add_u32 s40, s40, s41
        s_add_u32 s40, s40, {WS_F+2048}
        v_mov_b32 v4, 0
        v_mov_b32 v5, s{NONCE}
        s_waitcnt vmcnt(0)
        s_mov_b64 exec, 1
        buffer_store_dword v5, v4, {WSRD}, s40 offen sc1
        s_mov_b64 exec, -1
        """)
        stamp(a, 7)
    else:
        a("s_waitcnt vmcnt(0)")
        a("s_barrier")
        stamp(a, 7)
        a(f"""
        s_cmp_lg_u32 s{WV}, 0
        s_cbranch_scc1 B_opub_done
        s_lshl_b32 s40, s{MT}, 9
        s_lshl_b32 s41, s{CG}, 2
        s_add_u32 s40, s40, s41
        s_add_u32 s40, s40, {WS_F+2048}
        v_mov_b32 v4, 0
        v_mov_b32 v5, s{NONCE}
        s_mov_b64 exec, 1
        buffer_store_dword v5, v4, {WSRD}, s40 offen sc1
        s_mov_b64 exec, -1
        """)
    a.lab("B_opub_done")

def c_prefetch_setup(a):
    a(f"""
    v_lshrrev_b32 v212, 3, v1
    v_and_b32 v213, 7, v1
    v_bfe_u32 v214, v1, 4, 1
    v_lshlrev_b32 v214, 2, v214
    v_xor_b32 v214, v213, v214
    v_lshlrev_b32 v214, 4, v214
    v_lshl_add_u32 v212, v212, 10, v214
    s_cmp_lt_u32 s{WV}, 4
    s_cselect_b32 s60, s8, s14
    s_cselect_b32 s61, s9, s15
    s_and_b32 s56, s{WV}, 3
    s_lshl_b32 s56, s56, 17
    s_and_b32 s57, s{CG}, 7
    s_lshl_b32 s57, s57, 7
    s_add_u32 s56, s56, s57
    s_add_u32 s60, s60, s56
    s_addc_u32 s61, s61, 0
    s_sub_u32 s62, 524288, s56
    s_mov_b32 s63, 0x20000
    s_lshl_b32 s58, s{WV}, 14
    s_mov_b32 s59, 0
    """)

def phase_c(a):
    MT64, NT, KQ, TT = 30, 31, 32, 33
    OF = 64
    ACC = 128
    a(f"""
    s_lshl_b32 s{MT64}, s{MT}, 1
    s_lshr_b32 s40, s{CG}, 3
    s_add_u32 s{MT64}, s{MT64}, s40
    s_and_b32 s{NT}, s{CG}, 7
    s_lshr_b32 s{KQ}, s{WV}, 1
    s_and_b32 s{TT}, s{WV}, 1
    v_lshrrev_b32 v5, 4, v1
    s_lshl_b32 s44, s{MT}, 9
    s_lshr_b32 s40, s{CG}, 3
    s_lshl_b32 s40, s40, 8
    s_add_u32 s44, s44, s40
    s_lshl_b32 s40, s{KQ}, 6
    s_add_u32 s44, s44, s40
    s_add_u32 s44, s44, {WS_F+2048}
    v_lshlrev_b32 v6, 2, v1
    s_mov_b32 s47, 0
    s_lshl_b32 s45, s{MT64}, 1
    s_add_u32 s45, s45, s{TT}
    s_lshl_b32 s45, s45, 6
    s_lshl_b32 s46, s{KQ}, 4
    s_add_u32 s45, s45, s46
    s_lshl_b32 s45, s45, 10
    s_add_u32 s45, s45, {WS_O}
    """)
    if OPT.get("oflag", 0):
        for g in range(4):
            m = 0xf << (4*g)
            a(f"s_and_b32 s40, s47, {m}")
            a(f"s_cmp_eq_u32 s40, {m}")
            a(f"s_cbranch_scc1 C_rdy{g}")
            a("s_mov_b32 s69, 0")
            a.lab(f"C_poll{g}")
            a(f"""
            s_mov_b64 exec, 0xffff
            buffer_load_dword v7, v6, {WSRD}, s44 offen sc1
            s_add_u32 s69, s69, 1
            s_waitcnt vmcnt(0)
            v_cmp_eq_u32 vcc, s{NONCE}, v7
            s_mov_b64 exec, -1
            s_mov_b32 s47, vcc_lo
            s_and_b32 s40, s47, {m}
            s_cmp_eq_u32 s40, {m}
            s_cbranch_scc1 C_rdy{g}
            s_sleep {OPT.get("sleep", 4)}
            s_cmp_lt_u32 s69, 200000
            s_cbranch_scc1 C_poll{g}
            """)
            a.lab(f"C_rdy{g}")
            if g == 3:
                stamp(a, 8)
            for i in range(4*g, 4*g+4):
                a(f"buffer_load_dwordx4 {vr(OF+4*i,4)}, v2, {WSRD}, s45 offen offset:{(i%4)*1024} sc1")
            if g < 3:
                a("s_add_u32 s45, s45, 4096")
    else:
        a(f"""
        s_lshl_b32 s44, s{MT}, 9
        s_add_u32 s44, s44, {WS_F+2048}
        s_cmp_lg_u32 s{WV}, 0
        s_cbranch_scc1 C_wait_done
        s_mov_b32 s69, 0
        """)
        a.lab("C_poll")
        a(f"""
        s_mov_b64 exec, 0xffff
        buffer_load_dword v7, v6, {WSRD}, s44 offen sc1
        s_add_u32 s69, s69, 1
        s_waitcnt vmcnt(0)
        v_cmp_eq_u32 vcc, s{NONCE}, v7
        s_mov_b64 exec, -1
        s_cmp_eq_u32 vcc_lo, 0xffff
        s_cbranch_scc1 C_wait_done
        s_cmp_lt_u32 s69, 200000
        s_cbranch_scc1 C_poll
        """)
        a.lab("C_wait_done")
        a("s_barrier")
        stamp(a, 8)
        for i in range(16):
            if i and i % 4 == 0:
                a("s_add_u32 s45, s45, 4096")
            a(f"buffer_load_dwordx4 {vr(OF+4*i,4)}, v2, {WSRD}, s45 offen offset:{(i%4)*1024} sc1")
    a(f"""
    v_lshrrev_b32 v21, 5, v1
    v_and_b32 v26, 15, v1
    v_lshrrev_b32 v27, 2, v26
    v_lshl_add_u32 v28, v21, 2, v27
    v_lshlrev_b32 v28, 7, v28
    v_and_b32 v29, 1, v5
    v_lshlrev_b32 v29, 1, v29
    v_bfe_u32 v30, v26, 1, 1
    v_add_u32 v29, v29, v30
    v_bfe_u32 v30, v27, 1, 1
    v_lshlrev_b32 v30, 2, v30
    v_xor_b32 v29, v29, v30
    v_lshl_add_u32 v28, v29, 4, v28
    v_and_b32 v30, 1, v26
    v_lshl_add_u32 v28, v30, 3, v28
    s_lshl_b32 s40, s{KQ}, 15
    v_add_u32 v20, s40, v28
    v_xor_b32 v21, 64, v20
    """)
    WFR = [32, 40]
    def rd(i):
        f = WFR[i & 1]
        return [f"ds_read_b64_tr_b16 {vr(f+4*ct+2*u,2)}, v{20+ct} offset:{(16*i+8*u)*128}" for ct in range(2) for u in range(2)]
    for x in rd(0):
        a(x)
    for i in range(16):
        nxt = rd(i+1) if i < 15 else []
        a(f"s_waitcnt vmcnt({15-i}) lgkmcnt(0)")
        f = WFR[i & 1]
        for ct in range(2):
            d = vr(ACC+16*ct, 16)
            c = "0" if i == 0 else d
            a(f"v_mfma_f32_32x32x16_bf16 {d}, {vr(f+4*ct,4)}, {vr(OF+4*i,4)}, {c}")
            for x in nxt[2*ct:2*ct+2]:
                a(x)
    if not OPT.get('lstamp', 0): stamp(a, 9)
    a("s_barrier")
    a(f"""
    v_and_b32 v22, 31, v1
    v_lshrrev_b32 v23, 5, v1
    v_and_b32 v24, 7, v22
    v_lshlrev_b32 v25, 8, v22
    s_lshl_b32 s40, s{KQ}, 14
    s_lshl_b32 s41, s{TT}, 13
    s_add_u32 s40, s40, s41
    v_add_u32 v25, s40, v25
    s_nop 7
    s_nop 7
    """)
    for ct in range(2):
        for q4 in range(4):
            a(f"v_add_u32 v26, {ct*8+2*q4}, v23")
            a(f"v_xor_b32 v26, v26, v24")
            a(f"v_lshl_add_u32 v26, v26, 4, v25")
            a(f"ds_write_b128 v26, {vr(ACC+16*ct+4*q4,4)}")
    a("s_waitcnt lgkmcnt(0)")
    a("s_barrier")
    a("""
    v_lshrrev_b32 v22, 3, v0
    v_and_b32 v23, 7, v0
    v_and_b32 v24, 7, v22
    v_lshlrev_b32 v25, 8, v22
    v_lshlrev_b32 v27, 1, v23
    """)
    for c in range(2):
        a(f"v_add_u32 v26, {c}, v27")
        a(f"v_xor_b32 v26, v26, v24")
        a(f"v_lshl_add_u32 v26, v26, 4, v25")
        for k in range(4):
            a(f"ds_read_b128 {vr(64+k*8+c*4,4)}, v26 offset:{k*16384}")
    a(f"""
    s_mov_b32 s60, s18
    s_mov_b32 s61, s19
    s_mov_b32 s62, 2097152
    s_mov_b32 s63, 0x20000
    v_lshlrev_b32 v22, 10, v22
    v_lshl_add_u32 v22, v23, 4, v22
    s_lshl_b32 s40, s{MT64}, 16
    s_lshl_b32 s41, s{NT}, 7
    s_add_u32 s40, s40, s41
    s_waitcnt lgkmcnt(0)
    """)
    for r in range(8):
        a(f"v_add_f32 v{64+r}, v{64+r}, v{72+r}")
        a(f"v_add_f32 v{80+r}, v{80+r}, v{88+r}")
    for r in range(8):
        a(f"v_add_f32 v{64+r}, v{64+r}, v{80+r}")
    for r in range(4):
        a(f"v_cvt_pk_bf16_f32 v{64+r}, v{64+2*r}, v{64+2*r+1}")
    a("buffer_store_dwordx4 v[64:67], v22, s[60:63], s40 offen" + {0: "", 1: " sc1", 2: " nt", 3: " sc0 sc1"}[OPT.get("ost", 0)])
    if not OPT.get("lstamp", 0): stamp(a, 10)

HEAD = open("cdna_kernels/%s.s.ref" % NAME).read().split("; Override")[0]

def main(out):
    a = A()
    gen(a)
    s = HEAD
    s += "; @launch grid=(256,1,1) block=(512,1,1) lds=163840\n"
    s += '.amdgcn_target "amdgcn-amd-amdhsa--gfx950"\n'
    s += a.text()
    s += f""".section .rodata,"a"
.p2align 6
.amdhsa_kernel {KNAME}
  .amdhsa_next_free_vgpr 256
  .amdhsa_next_free_sgpr 102
  .amdhsa_accum_offset 256
  .amdhsa_group_segment_fixed_size 0
  .amdhsa_kernarg_size 80
  .amdhsa_user_sgpr_count 2
  .amdhsa_user_sgpr_kernarg_segment_ptr 1
  .amdhsa_system_sgpr_workgroup_id_x 1
.end_amdhsa_kernel
"""
    open(out, "w").write(s)

if __name__ == "__main__":
    if "--prof" in sys.argv:
        PROF = True
        sys.argv.remove("--prof")
    for x in list(sys.argv):
        if x.startswith("--") and "=" in x:
            k, v = x[2:].split("=")
            OPT[k] = int(v)
            sys.argv.remove(x)
    set_nslot(OPT.get("nslot", 3))
    main(sys.argv[1] if len(sys.argv) > 1 else "fused3.s")
```

```python
import sys, struct

NAME = "gated_mix__mha_block__mha_block__prompt"
KNAME = NAME + "_kernel"
WS_KV = 4 << 20
WS_O = 12 << 20
WS_F = 16 << 20
WS_GF = WS_F + 2048 + 8192
WS_G = WS_GF + 2048
WS_END = WS_G + 8192
RELAY = 160000
NONCE = 68
WS_T = 32 << 20
QSCALE = 0.25 * 1.4426950408889634
LOG2E = 1.4426950408889634
PROF = False
OPT = dict(prio=3, rot=1, pfu=0, D=4, cpf=1, sch=2, wpf=1)
NST = 12
SB = 70

def f32(x):
    return "0x%08x" % struct.unpack("<I", struct.pack("<f", x))[0]

class A:
    def __init__(self):
        self.l = []
    def __call__(self, s):
        for x in s.strip().split("\n"):
            if x.strip():
                self.l.append("  " + x.strip())
    def lab(self, s):
        self.l.append(s + ":")
    def raw(self, s):
        self.l.append(s)
    def text(self):
        return "\n".join(self.l) + "\n"

def vr(b, n):
    return f"v[{b}:{b+n-1}]"
def u32(x):
    return x & 0xffffffff

def GM():
    return OPT.get('gm', 2)
def GMF():
    return GM() == 1
def stamp(a, k):
    if PROF:
        a(f"s_memtime s[{SB+2*k}:{SB+2*k+1}]")

WV = 3
XCD, SLOT_ = 24, 25
CG, MT, BB, HG = 26, 27, 28, 29
SRDW = 36
DBG = 20
WS = 22
WSRD = f"s[{SRDW}:{SRDW+3}]"

def gen(a):
    a.raw(".text")
    a.raw(f".globl {KNAME}")
    a.raw(".p2align 8")
    a.raw(f".type {KNAME},@function")
    a.lab(KNAME)
    a("s_cmp_ge_u32 s2, 256")
    a("s_cbranch_scc1 L_end")
    if PROF:
        a(f"s_memrealtime s[{SB+2*NST}:{SB+2*NST+1}]")
        stamp(a, 0)
    a(f"""
    s_load_dwordx4 s[4:7], s[0:1], 0
    s_load_dwordx2 s[8:9], s[0:1], 16
    s_load_dwordx4 s[12:15], s[0:1], 32
    s_load_dwordx4 s[16:19], s[0:1], 48
    s_load_dwordx4 s[20:23], s[0:1], 64
    v_lshrrev_b32 v2, 6, v0
    v_and_b32 v1, 63, v0
    s_and_b32 s{XCD}, s2, 7
    s_lshr_b32 s{SLOT_}, s2, 3
    """)
    if OPT.get("badmap", 0):
        a(f"""
        s_lshr_b32 s40, s2, 3
        s_xor_b32 s{XCD}, s{XCD}, s40
        s_lshr_b32 s40, s2, 6
        s_xor_b32 s{XCD}, s{XCD}, s40
        s_and_b32 s{XCD}, s{XCD}, 7
        """)
    a(f"""
    v_readfirstlane_b32 s{WV}, v2
    v_lshlrev_b32 v2, 4, v1
    s_lshr_b32 s40, s{XCD}, 1
    s_lshl_b32 s40, s40, 2
    s_and_b32 s41, s{SLOT_}, 3
    s_add_u32 s{CG}, s40, s41
    s_lshr_b32 s{BB}, s{CG}, 3
    s_and_b32 s{HG}, s{CG}, 7
    s_and_b32 s{MT}, s{XCD}, 1
    s_lshl_b32 s{MT}, s{MT}, 3
    s_lshr_b32 s41, s{SLOT_}, 2
    s_add_u32 s{MT}, s{MT}, s41
    """)
    if OPT.get("diag", 0):
        a("s_memrealtime s[94:95]")
        a("s_memtime s[96:97]")
    phase_a(a)
    phase_b(a)
    phase_c(a)
    if OPT.get("diag", 0):
        a(f"""
        s_waitcnt vmcnt(0)
        s_memrealtime s[90:91]
        s_memtime s[92:93]
        s_waitcnt lgkmcnt(0)
        s_sub_u32 s92, s92, s96
        s_not_b32 s94, s94
        s_and_b32 s91, s2, 15
        s_or_b32 s91, s91, s{WV}
        s_cmp_lg_u32 s91, 0
        s_cbranch_scc1 L_end
        s_mov_b64 exec, 1
        v_mov_b32 v4, 16
        v_mov_b32 v5, s92
        global_atomic_umax v4, v5, s[{DBG}:{DBG+1}]
        v_mov_b32 v4, 20
        v_mov_b32 v5, s90
        global_atomic_umax v4, v5, s[{DBG}:{DBG+1}]
        v_mov_b32 v4, 24
        v_mov_b32 v5, s94
        global_atomic_umax v4, v5, s[{DBG}:{DBG+1}]
        s_mov_b64 exec, -1
        """)
    if PROF:
        a("s_waitcnt vmcnt(0)")
        a(f"s_memrealtime s[{SB+2*NST+2}:{SB+2*NST+3}]")
        stamp(a, NST-1)
        a("s_waitcnt lgkmcnt(0)")
        if OPT.get("lprof", 0):
            for k, r in ((8, 98), (9, 99), (10, 100)):
                a(f"s_add_u32 s{SB+2*k}, s{SB}, s{r}")
                a(f"s_addc_u32 s{SB+2*k+1}, s{SB+1}, 0")
            a.lab("L_nolp")
        a(f"""
        s_lshl_b32 s40, s2, 4
        s_add_u32 s40, s40, s{WV}
        s_lshl_b32 s40, s40, 7
        s_add_u32 s40, s40, {WS_T}
        s_add_u32 s40, s{WS}, s40
        s_addc_u32 s41, s{WS+1}, 0
        s_mov_b64 exec, 1
        v_mov_b32 v4, 0
        """)
        for k in range(NST+2):
            a(f"v_mov_b32 v6, s{SB+2*k}")
            a(f"v_mov_b32 v7, s{SB+2*k+1}")
            a(f"global_store_dwordx2 v4, v[6:7], s[40:41] offset:{8*k}")
            a("s_nop 1")
    a.lab("L_end")
    a("s_endpgm")
    a.lab("L_codeend")

SLOT = 40960
NSLOT = 3
GIMG = NSLOT * SLOT
def set_nslot(n):
    global NSLOT, GIMG
    NSLOT = n
    GIMG = 3 * SLOT
QX, KVX, GX = 0, 16384, 49152

def phase_a(a):
    a(f"""
    v_lshrrev_b32 v5, 4, v1
    s_cmp_ge_u32 s{WV}, 4
    s_cbranch_scc0 A_compute
    """)
    LW = 30
    a(f"""
    s_sub_u32 s{LW}, s{WV}, 4
    s_setprio 3
    v_lshrrev_b32 v3, 3, v1
    v_and_b32 v4, 7, v1
    v_xor_b32 v6, v4, v5
    v_lshlrev_b32 v6, 4, v6
    v_lshl_add_u32 v10, v3, 10, v6
    v_add_u32 v7, 4, v5
    v_xor_b32 v7, v4, v7
    v_lshlrev_b32 v7, 4, v7
    v_lshl_add_u32 v11, v3, 10, v7
    v_and_b32 v8, 1, v5
    v_lshlrev_b32 v8, 2, v8
    v_xor_b32 v8, v4, v8
    v_lshlrev_b32 v8, 4, v8
    v_mul_u32_u24 v9, 3072, v3
    v_add_u32 v12, v9, v8
    s_lshl_b32 s54, s{LW}, 15
    """)
    for u in range(4):
        a(f"s_add_u32 s{44+u}, s54, {u*8192}")
    a(f"s_mul_i32 s54, s{LW}, 49152")
    for g3 in range(3):
        for e in range(2):
            a(f"s_add_u32 s{48+g3*2+e}, s54, {g3*1024 + e*8*3072}")
    a(f"""
    s_lshl_b32 s55, s{LW}, 12
    s_lshl_b32 s56, s{LW}, 11
    s_add_u32 s56, s56, 16384
    s_lshl_b32 s40, s{MT}, 17
    s_lshl_b32 s41, s{HG}, 7
    s_mov_b32 s62, 131072
    s_mov_b32 s63, 0x20000
    s_sub_u32 s34, 1572864, s41
    s_mov_b32 s35, 0x20000
    """)
    if OPT["rot"]:
        a(f"s_mov_b32 s57, s{XCD}")
    else:
        a("s_mov_b32 s57, 0")
    a(f"""
    s_lshl_b32 s42, s57, 7
    v_add_u32 v10, s42, v10
    v_add_u32 v11, s42, v11
    s_mul_i32 s42, s57, 196608
    v_add_u32 v12, s42, v12
    s_mov_b32 s64, {u32(-896)}
    s_mov_b32 s65, 128
    s_mov_b32 s66, {u32(-7*196608)}
    s_mov_b32 s67, 196608
    s_waitcnt lgkmcnt(0)
    s_cmp_eq_u32 s{BB}, 0
    s_cselect_b32 s32, s6, s12
    s_cselect_b32 s33, s7, s13
    s_add_u32 s60, s4, s40
    s_addc_u32 s61, s5, 0
    s_add_u32 s32, s32, s41
    s_addc_u32 s33, s33, 0
    """)
    def issue_stage(extra=None):
        extra = list(extra or [])
        seq = [("w",0,0),("x",0,0),("w",0,1),("x",1,0),("w",1,0),("x",2,0),("w",1,1),("x",3,0),("w",2,0),("w",2,1)]
        for n, (kind, i, e) in enumerate(seq):
            if kind == "x":
                a(f"s_add_u32 m0, s55, {i*1024}")
                a("s_add_u32 s57, s57, 1" if n == 1 else ("s_and_b32 s57, s57, 7" if n == 3 else "s_nop 0"))
                a(f"buffer_load_dwordx4 v{10+(i&1)}, s[60:63], s{44+i} offen lds")
            else:
                a(f"s_add_u32 m0, s56, {i*8192+e*1024}")
                a("s_cmp_eq_u32 s57, 0" if n == 4 else "s_nop 0")
                a(f"buffer_load_dwordx4 v12, s[32:35], s{48+i*2+e} offen lds")
                if n == 4:
                    a("s_cselect_b32 s42, s64, s65")
                    a("s_cselect_b32 s43, s66, s67")
            if n >= 2 and extra:
                k = 1 if n == 2 else 3
                for _ in range(k):
                    if extra: a(extra.pop(0))
        for x in extra:
            a(x)
        a("v_add_u32 v10, s42, v10")
        a("v_add_u32 v11, s42, v11")
        a("v_add_u32 v12, s43, v12")
        a(f"s_add_u32 s55, s55, {SLOT}")
        a(f"s_add_u32 s56, s56, {SLOT}")
        a(f"s_cmp_ge_u32 s56, {NSLOT*SLOT}")
        a(f"s_cselect_b32 s54, {NSLOT*SLOT}, 0")
        a("s_sub_u32 s55, s55, s54")
        a("s_sub_u32 s56, s56, s54")
    a(f"""
    s_mov_b32 s{SRDW}, s16
    s_mov_b32 s{SRDW+1}, s17
    s_mov_b32 s{SRDW+2}, 1024
    s_mov_b32 s{SRDW+3}, 0x20000
    s_lshl_b32 s43, s{LW}, 8
    s_add_u32 m0, s43, {GIMG}
    """)
    if GM() == 2:
        pass
    elif not OPT.get("nogate", 0):
        a(f"""
        s_mov_b64 exec, 0xffff
        buffer_load_dwordx4 v2, {WSRD}, s43 offen lds
        s_mov_b64 exec, -1
        """)
    if GM() == 0:
        a(f"""
        v_and_b32 v20, 31, v1
        v_lshrrev_b32 v21, 5, v1
        v_lshrrev_b32 v22, 1, v1
        v_and_b32 v22, 7, v22
        s_lshl_b32 s40, s{LW}, 12
        v_lshlrev_b32 v23, 7, v20
        v_add_u32 v23, s40, v23
        """)
        for ks in range(4):
            a(f"v_add_u32 v24, {2*ks}, v21")
            a(f"v_xor_b32 v24, v24, v22")
            a(f"v_lshl_add_u32 v{16+ks}, v24, 4, v23")
        a(f"""
        v_lshlrev_b32 v15, 4, v21
        v_add_u32 v15, {GIMG}, v15
        v_mov_b32 v64, 0
        s_mov_b32 s59, 0
        """)
        if OPT["rot"]:
            a(f"s_mov_b32 s31, s{XCD}")
        else:
            a("s_mov_b32 s31, 0")
    LK = OPT.get("look", 2)
    if OPT.get("pfwait", 0):
        a("s_barrier")
    for _ in range(LK):
        issue_stage()
    def gate_reads():
        if OPT.get("nogate", 0) or GM() != 0: return
        a("s_lshl_b32 s40, s31, 7")
        a("v_add_u32 v14, s40, v15")
        for ks in range(4):
            a(f"v_add_u32 v24, s59, v{16+ks}")
            a(f"ds_read_b128 {vr(28+8*ks,4)}, v24")
            a(f"ds_read_b128 {vr(32+8*ks,4)}, v14 offset:{ks*32}")
        a("s_add_u32 s31, s31, 1")
        a("s_and_b32 s31, s31, 7")
        a(f"s_add_u32 s59, s59, {SLOT}")
        a(f"s_cmp_ge_u32 s59, {NSLOT*SLOT}")
        a(f"s_cselect_b32 s40, {NSLOT*SLOT}, 0")
        a("s_sub_u32 s59, s59, s40")
    def gate_dots():
        if OPT.get("nogate", 0) or GM() != 0: return
        a("s_waitcnt lgkmcnt(0)")
        for ks in range(4):
            for q in range(4):
                a(f"v_dot2c_f32_bf16 v64, v{28+8*ks+q}, v{32+8*ks+q}")
    if OPT.get("ldprio", 0) == 0:
        a("s_setprio 0")
    a("s_mov_b32 s58, 0")
    LP = PROF and OPT.get("lprof", 0)
    def tick(acc):
        if LP:
            a("s_memtime s[88:89]")
            a("s_waitcnt lgkmcnt(0)")
            a("s_sub_u32 s87, s88, s86")
            a(f"s_add_u32 s{acc}, s{acc}, s87")
            a("s_mov_b32 s86, s88")
    if LP:
        a("s_memtime s[88:89]")
        a("s_waitcnt lgkmcnt(0)")
        a("s_mov_b32 s86, s88")
        a("s_mov_b32 s80, 0"); a("s_mov_b32 s81, 0"); a("s_mov_b32 s82, 0"); a("s_mov_b32 s83, 0"); a("s_mov_b32 s84, 0"); a("s_mov_b32 s85, 0")
    a.lab("A_ld_loop")
    a(f"s_waitcnt vmcnt({10*(LK-1)})")
    tick(80)
    a("s_barrier")
    tick(82)
    gate_reads()
    issue_stage(None if (OPT.get("nogate", 0) or GM() != 0) else ["s_waitcnt lgkmcnt(0)"] + [f"v_dot2c_f32_bf16 v64, v{28+8*ks+q}, v{32+8*ks+q}" for ks in range(4) for q in range(4)])
    tick(84)
    a("s_add_u32 s58, s58, 1")
    a(f"s_cmp_lt_u32 s58, {8-LK}")
    a("s_cbranch_scc1 A_ld_loop")
    if GM() == 2:
        a(f"""
        s_mov_b32 s{SRDW}, s16
        s_mov_b32 s{SRDW+1}, s17
        s_mov_b32 s{SRDW+2}, 1024
        s_mov_b32 s{SRDW+3}, 0x20000
        v_and_b32 v13, 15, v1
        v_lshlrev_b32 v13, 4, v13
        v_lshl_add_u32 v14, v5, 10, v13
        s_lshl_b32 s40, s{CG}, 3
        s_and_b32 s41, s{LW}, 1
        s_lshl_b32 s41, s41, 2
        s_add_u32 s29, s40, s41
        s_lshl_b32 s41, s29, 10
        s_cmp_ge_u32 s{LW}, 2
        s_cbranch_scc1 A_nogl
        """)
        for i in range(4):
            a(f"buffer_load_dwordx4 {vr(16+4*i,4)}, v14, s[60:63], s41 offen offset:{256*i}")
        for i in range(4):
            a(f"buffer_load_dwordx4 {vr(32+4*i,4)}, v13, {WSRD}, 0 offen offset:{256*i}")
        a.lab("A_nogl")
    for k in range(LK):
        a(f"s_waitcnt vmcnt({10*(LK-1-k)})")
        a("s_barrier")
        gate_reads()
        gate_dots()
    if LP:
        a("s_mov_b32 s98, s80"); a("s_mov_b32 s99, s82"); a("s_mov_b32 s100, s84")
    a("s_setprio 0")
    a(f"""
    s_mov_b32 s{SRDW}, s{WS}
    s_mov_b32 s{SRDW+1}, s{WS+1}
    s_mov_b32 s{SRDW+2}, {WS_END}
    s_mov_b32 s{SRDW+3}, 0x20000
    """)
    if GM() == 1:
        a("s_barrier")
    elif GM() == 2:
        a("s_barrier")
        a(f"s_cmp_ge_u32 s{LW}, 2")
        a("s_cbranch_scc1 A_join")
        a("v_mov_b32 v48, 0")
        a("s_waitcnt vmcnt(0)")
        for i in range(16):
            a(f"v_dot2c_f32_bf16 v48, v{16+i}, v{32+i}")
        a("s_nop 3")
        for rot in (8, 4, 2, 1):
            a(f"v_add_f32_dpp v48, v48, v48 row_ror:{rot} row_mask:0xf bank_mask:0xf")
            a("s_nop 1")
        a(f"""
        v_mul_f32 v48, {f32(-LOG2E)}, v48
        v_exp_f32 v48, v48
        s_nop 0
        v_add_f32 v48, 1.0, v48
        v_rcp_f32 v48, v48
        s_lshl_b32 s41, s{MT}, 7
        s_add_u32 s41, s41, s29
        s_lshl_b32 s41, s41, 2
        s_add_u32 s41, s41, {WS_G}
        v_lshlrev_b32 v49, 2, v5
        v_and_b32 v50, 15, v1
        v_cmp_eq_u32 vcc, 0, v50
        s_and_saveexec_b64 s[58:59], vcc
        buffer_store_dword v48, v49, {WSRD}, s41 offen sc1
        s_mov_b64 exec, s[58:59]
        """)
    else:
        a(f"""
        s_nop 3
        v_mov_b32 v20, v64
        s_nop 1
        v_permlane32_swap_b32 v64, v20
        s_nop 1
        v_add_f32 v64, v64, v20
        v_mul_f32 v64, {f32(-LOG2E)}, v64
        v_exp_f32 v64, v64
        s_nop 0
        v_add_f32 v64, 1.0, v64
        v_rcp_f32 v64, v64
        s_nop 0
        v_sub_f32 v20, 1.0, v64
        s_cmp_eq_u32 s{BB}, 0
        s_cselect_b64 vcc, -1, 0
        s_nop 1
        v_cndmask_b32 v20, v20, v64, vcc
        v_and_b32 v19, 31, v1
        v_lshlrev_b32 v19, 2, v19
        s_lshl_b32 s41, s{LW}, 7
        v_add_u32 v19, s41, v19
        s_barrier
        ds_write_b32 v19, v20 offset:{GX}
        """)
    a("""
    s_branch A_join
    """)
    a.lab("A_compute")
    WM, WN = 30, 31
    a(f"""
    s_and_b32 s{WM}, s{WV}, 1
    s_lshr_b32 s{WN}, s{WV}, 1
    v_and_b32 v20, 31, v1
    v_lshrrev_b32 v21, 5, v1
    v_lshrrev_b32 v22, 1, v1
    v_and_b32 v22, 7, v22
    s_lshl_b32 s40, s{WM}, 13
    v_lshlrev_b32 v23, 7, v20
    v_add_u32 v23, s40, v23
    """)
    for ks in range(4):
        a(f"v_add_u32 v24, {2*ks}, v21")
        a(f"v_xor_b32 v24, v24, v22")
        a(f"v_lshl_add_u32 v{16+ks}, v24, 4, v23")
    a(f"""
    v_and_b32 v26, 15, v1
    v_lshrrev_b32 v27, 2, v26
    v_lshl_add_u32 v28, v21, 3, v27
    v_lshlrev_b32 v28, 7, v28
    v_and_b32 v29, 1, v5
    v_lshlrev_b32 v29, 1, v29
    v_bfe_u32 v30, v26, 1, 1
    v_add_u32 v29, v29, v30
    s_lshl_b32 s40, s{WN}, 2
    v_add_u32 v29, s40, v29
    v_bfe_u32 v30, v27, 1, 1
    v_lshlrev_b32 v30, 2, v30
    v_xor_b32 v29, v29, v30
    v_lshl_add_u32 v28, v29, 4, v28
    v_and_b32 v30, 1, v26
    v_lshl_add_u32 v25, v30, 3, v28
    """)
    ACC = 64
    XF = [32, 160]
    WF = [40, 168]
    GF = [52, 180]
    GACC = 192
    for r in range(96):
        a(f"v_mov_b32 v{ACC+r}, 0")
    if GMF():
        for r in range(16):
            a(f"v_mov_b32 v{GACC+r}, 0")
        a(f"s_mov_b32 s59, s{XCD}" if OPT["rot"] else "s_mov_b32 s59, 0")
        a(f"""
        s_lshl_b32 s40, s59, 7
        v_lshlrev_b32 v15, 4, v21
        v_add_u32 v15, {GIMG}, v15
        v_add_u32 v14, s40, v15
        s_cmp_eq_u32 s{WN}, 0
        s_cselect_b64 vcc, -1, 0
        """)
    a(f"""
    s_lshl_b32 s40, s{CG}, 2
    s_lshl_b32 s41, s{WN}, 1
    s_add_u32 s40, s40, s41
    s_lshl_b32 s40, s40, 6
    s_lshl_b32 s41, s{MT}, 2
    s_add_u32 s40, s40, s41
    s_lshl_b32 s41, s{WM}, 1
    s_add_u32 s40, s40, s41
    s_lshl_b32 s46, s40, 11
    s_add_u32 s46, s46, {WS_KV}
    s_mov_b32 s48, {f32(QSCALE)}
    v_and_b32 v11, 15, v1
    v_lshlrev_b32 v11, 4, v11
    v_lshl_add_u32 v11, v21, 9, v11
    v_bfe_u32 v12, v1, 4, 1
    v_lshl_add_u32 v13, v12, 13, v11
    v_lshl_add_u32 v11, v12, 17, v11
    v_add_u32 v11, 1024, v11
    s_add_u32 s47, s46, 131072
    s_mov_b32 s{SRDW+2}, {WS_END}
    s_mov_b32 s{SRDW+3}, 0x20000
    s_mov_b32 s57, 0
    s_mov_b32 s58, 0
    """)
    def set_addr():
        for ks in range(4):
            a(f"v_add_u32 v{20+ks}, s57, v{16+ks}")
        a("v_add_u32 v24, s57, v25")
    set_addr()
    a("s_waitcnt lgkmcnt(0)")
    a(f"s_mov_b32 s{SRDW}, s{WS}")
    a(f"s_mov_b32 s{SRDW+1}, s{WS+1}")
    if OPT.get("wpf", 0):
        a(f"""
        s_lshl_b32 s40, s2, 2
        s_add_u32 s40, s40, s{WV}
        s_and_b32 s41, s40, 511
        s_mul_i32 s41, s41, 3072
        s_cmp_lt_u32 s40, 512
        s_cselect_b32 s42, s6, s12
        s_cselect_b32 s43, s7, s13
        s_add_u32 s42, s42, s41
        s_addc_u32 s43, s43, 0
        global_load_dwordx4 v[208:211], v2, s[42:43]
        global_load_dwordx4 v[208:211], v2, s[42:43] offset:1024
        global_load_dwordx4 v[208:211], v2, s[42:43] offset:2048
        s_lshl_b32 s40, s2, 3
        s_lshl_b32 s41, s{WV}, 1
        s_add_u32 s40, s40, s41
        s_lshl_b32 s40, s40, 10
        s_add_u32 s42, s4, s40
        s_addc_u32 s43, s5, 0
        global_load_dwordx4 v[208:211], v2, s[42:43]
        global_load_dwordx4 v[208:211], v2, s[42:43] offset:1024
        """)
    if OPT.get("xpf", 0):
        a(f"""
        s_and_b32 s40, s{XCD}, 1
        s_lshl_b32 s40, s40, 10
        s_lshl_b32 s41, s{SLOT_}, 5
        s_add_u32 s40, s40, s41
        s_lshl_b32 s41, s{WV}, 3
        s_add_u32 s40, s40, s41
        s_lshl_b32 s40, s40, 10
        s_add_u32 s42, s4, s40
        s_addc_u32 s43, s5, 0
        v_mov_b32 v212, v2
        """)
        a(f"""
        s_cmp_eq_u32 s{BB}, 0
        s_cselect_b32 s44, s6, s12
        s_cselect_b32 s45, s7, s13
        s_lshl_b32 s40, s{SLOT_}, 4
        s_lshl_b32 s41, s{WV}, 2
        s_add_u32 s40, s40, s41
        s_mul_i32 s40, s40, 3072
        s_and_b32 s41, s{HG}, 4
        s_lshl_b32 s41, s41, 7
        s_add_u32 s40, s40, s41
        s_add_u32 s44, s44, s40
        s_addc_u32 s45, s45, 0
        v_lshrrev_b32 v213, 5, v1
        v_mul_u32_u24 v213, 3072, v213
        v_and_b32 v214, 31, v1
        v_lshl_add_u32 v213, v214, 4, v213
        v_add_u32 v214, 6144, v213
        """)
        for t in range(3):
            a(f"global_load_dwordx4 v[208:211], v213, s[44:45] offset:{t*1024}")
            a(f"global_load_dwordx4 v[208:211], v214, s[44:45] offset:{t*1024}")
        for i in range(8):
            a(f"global_load_dwordx4 v[208:211], v212, s[42:43]")
            if i < 7: a("v_add_u32 v212, 1024, v212")
    if OPT.get("pfwait", 0):
        a("s_waitcnt vmcnt(0)")
        a("s_barrier")
    if OPT.get("cpf", 0):
        a(f"""
        s_cmp_lg_u32 s{WV}, 3
        s_cbranch_scc1 A_nocpf
        s_cmp_ge_u32 s{SLOT_}, (L_codeend-{KNAME})>>10
        s_cbranch_scc1 A_nocpf
        s_getpc_b64 s[42:43]
        """)
        a.lab("A_pc")
        a(f"""
        s_sub_u32 s42, s42, A_pc-{KNAME}
        s_subb_u32 s43, s43, 0
        s_lshl_b32 s40, s{SLOT_}, 10
        s_add_u32 s42, s42, s40
        s_addc_u32 s43, s43, 0
        global_load_dwordx4 v[208:211], v2, s[42:43]
        """)
        a.lab("A_nocpf")
    if OPT.get("pt", 0):
        a(f"""
        s_cmp_lg_u32 s{WV}, 1
        s_cbranch_scc1 A_nopt1
        s_lshl_b32 s40, s{CG}, 19
        s_add_u32 s40, s40, {WS_KV}
        v_lshlrev_b32 v212, 13, v1
        buffer_load_dword v208, v212, {WSRD}, s40 offen
        """)
        a.lab("A_nopt1")
        a(f"""
        s_cmp_lg_u32 s{WV}, 2
        s_cbranch_scc1 A_nopt2
        v_lshlrev_b32 v212, 16, v1
        s_mov_b32 s40, {WS_O}
        buffer_load_dword v208, v212, {WSRD}, s40 offen
        v_mov_b32 v213, 0
        s_mov_b32 s40, {WS_F}
        buffer_load_dword v209, v213, {WSRD}, s40 offen
        v_lshlrev_b32 v213, 15, v1
        global_load_dword v210, v213, s[18:19]
        v_lshlrev_b32 v214, 13, v1
        global_load_dword v211, v214, s[8:9]
        global_load_dword v211, v214, s[14:15]
        """)
        a.lab("A_nopt2")
    a(f"""
    s_cmp_lg_u32 s{WV}, 0
    s_cbranch_scc1 A_nononce
    s_memrealtime s[40:41]
    s_waitcnt lgkmcnt(0)
    s_or_b32 s40, s40, 1
    v_mov_b32 v186, s40
    v_mov_b32 v187, 0
    v_mov_b32 v188, 0
    s_mov_b64 exec, 1
    global_atomic_cmpswap v189, v188, v[186:187], s[{DBG}:{DBG+1}] sc0
    s_mov_b64 exec, -1
    """)
    a.lab("A_nononce")
    def read_list(ks, f):
        r = []
        r.append(f"ds_read_b64_tr_b16 {vr(WF[f]+0,2)}, v24 offset:{16384+(16*ks+0)*128}")
        r.append(f"ds_read_b64_tr_b16 {vr(WF[f]+2,2)}, v24 offset:{16384+(16*ks+4)*128}")
        r.append(f"ds_read_b128 {vr(XF[f],4)}, v{20+ks} offset:0")
        r.append(f"ds_read_b128 {vr(XF[f]+4,4)}, v{20+ks} offset:4096")
        for g3 in (1, 2):
            for u in range(2):
                r.append(f"ds_read_b64_tr_b16 {vr(WF[f]+4*g3+2*u,2)}, v24 offset:{16384+g3*8192+(16*ks+4*u)*128}")
        if GMF():
            r.append(f"ds_read_b128 {vr(GF[f],4)}, v14 offset:{ks*32}")
        return r
    gl = [0]
    FW = OPT.get("finewait", 1)
    def group(f, rl, barrier=False):
        order = [(0,0),(0,1),(1,0),(1,1),(2,0),(2,1)]
        nold = 9 if GMF() else 8
        need = {0: 3, 1: 4, 2: 6, 4: 8}
        rl = list(rl)
        issued = 0
        per = OPT.get("rpg", 2)
        for i, (g3, tt) in enumerate(order):
            if FW and i in need:
                a(f"s_waitcnt lgkmcnt({min(15, nold - need[i] + issued)})")
            x = vr(XF[f]+4*tt, 4); w = vr(WF[f]+4*g3, 4); d = vr(ACC+16*(tt*3+g3), 16)
            if g3 < 2:
                a(f"v_mfma_f32_32x32x16_bf16 {d}, {w}, {x}, {d}")
            else:
                a(f"v_mfma_f32_32x32x16_bf16 {d}, {x}, {w}, {d}")
            if i == 0 and barrier:
                if PROF and OPT.get("lprof", 0):
                    a("s_memtime s[88:89]")
                a(f"s_waitcnt lgkmcnt(0)")
                a("s_barrier")
                if PROF and OPT.get("lprof", 0):
                    a("s_memtime s[86:87]")
                    a("s_waitcnt lgkmcnt(0)")
                    a("s_sub_u32 s86, s86, s88")
                    a("s_add_u32 s98, s98, s86")
            for _ in range(per):
                if rl:
                    a(rl.pop(0)); issued += 1
        if GMF():
            if FW:
                a(f"s_waitcnt lgkmcnt({min(15, issued)})")
            n = gl[0]; gl[0] += 1
            d = vr(GACC, 16)
            a(f"s_cbranch_vccz A_g{n}a")
            a(f"v_mfma_f32_32x32x16_bf16 {d}, {vr(GF[f],4)}, {vr(XF[f],4)}, {d}")
            a(f"s_branch A_g{n}b")
            a.lab(f"A_g{n}a")
            a(f"v_mfma_f32_32x32x16_bf16 {d}, {vr(GF[f],4)}, {vr(XF[f]+4,4)}, {d}")
            a.lab(f"A_g{n}b")
        for x in rl:
            a(x)
    a("s_barrier")
    stamp(a, 1)
    for x in read_list(0, 0):
        a(x)
    if PROF and OPT.get("lprof", 0):
        a("s_mov_b32 s98, 0"); a("s_mov_b32 s99, 0"); a("s_mov_b32 s100, 0")
    a.lab("A_loop")
    for ks in range(3):
        if not FW: a("s_waitcnt lgkmcnt(0)")
        group(ks & 1, read_list(ks+1, (ks+1) & 1))
    a("s_cmp_eq_u32 s58, 7")
    a("s_cbranch_scc1 A_last")
    a(f"""
    s_add_u32 s57, s57, {SLOT}
    s_cmp_ge_u32 s57, {NSLOT*SLOT}
    s_cselect_b32 s40, {NSLOT*SLOT}, 0
    s_sub_u32 s57, s57, s40
    """)
    if GMF():
        a("""
        s_add_u32 s59, s59, 1
        s_and_b32 s59, s59, 7
        s_lshl_b32 s40, s59, 7
        v_add_u32 v14, s40, v15
        """)
    set_addr()
    if not FW: a("s_waitcnt lgkmcnt(0)")
    group(1, read_list(0, 0), barrier=True)
    a("s_add_u32 s58, s58, 1")
    a("s_branch A_loop")
    a.lab("A_last")
    if not FW: a("s_waitcnt lgkmcnt(0)")
    group(1, [])
    stamp(a, 2)
    a("s_barrier")
    a(f"""
    s_lshl_b32 s40, s{WN}, 3
    s_lshl_b32 s41, s{WM}, 1
    s_add_u32 s40, s40, s41
    s_lshl_b32 s41, s40, 10
    v_add_u32 v16, s41, v2
    s_lshl_b32 s41, s40, 11
    v_add_u32 v17, s41, v2
    v_add_u32 v18, s41, v13
    s_nop 3
    """)
    a(f"""
    s_cmp_lg_u32 s{WV}, 0
    s_cbranch_scc1 A_nononce2
    s_waitcnt vmcnt(0)
    v_cmp_eq_u32 vcc, 0, v189
    s_nop 1
    v_cndmask_b32 v186, v189, v186, vcc
    v_mov_b32 v188, {RELAY}
    s_mov_b64 exec, 1
    ds_write_b64 v188, v[186:187]
    ds_write_b32 v188, v187 offset:8
    s_mov_b64 exec, -1
    """)
    a.lab("A_nononce2")
    STF = {0: ' sc1', 1: ' sc0 sc1', 2: ' sc1 nt', 3: ' sc0 sc1 nt'}[OPT.get('stf', 0)]
    for tt in range(2):
        d = ACC + 16*(tt*3+1)
        for r in range(8):
            a(f"v_cvt_pk_bf16_f32 v{d+r}, v{d+2*r}, v{d+2*r+1}")
        a(f"buffer_store_dwordx4 {vr(d,4)}, v2, {WSRD}, s46 offen offset:{tt*2048}{STF}")
        a(f"buffer_store_dwordx4 {vr(d+4,4)}, v2, {WSRD}, s47 offen offset:{tt*2048}{STF}")
        a(f"ds_write_b128 v17, {vr(d,4)} offset:{KVX+tt*2048}")
        a(f"ds_write_b128 v17, {vr(d+4,4)} offset:{KVX+tt*2048+8192}")
        d = ACC + 16*(tt*3+2)
        for r in range(8):
            a(f"v_cvt_pk_bf16_f32 v{d+r}, v{d+2*r}, v{d+2*r+1}")
        a(f"buffer_store_dwordx4 {vr(d,4)}, v11, {WSRD}, s46 offen offset:{tt*2048}{STF}")
        a(f"buffer_store_dwordx4 {vr(d+4,4)}, v11, {WSRD}, s46 offen offset:{tt*2048+256}{STF}")
        a(f"ds_write_b128 v18, {vr(d,4)} offset:{KVX+tt*2048+1024}")
        a(f"ds_write_b128 v18, {vr(d+4,4)} offset:{KVX+tt*2048+1280}")
    for tt in range(2):
        d = ACC + 16*(tt*3+0)
        for r in range(16):
            a(f"v_mul_f32 v{d+r}, s48, v{d+r}")
        for r in range(8):
            a(f"v_cvt_pk_bf16_f32 v{d+r}, v{d+2*r}, v{d+2*r+1}")
        a(f"ds_write_b128 v16, {vr(d,4)} offset:{QX+tt*1024}")
        a(f"ds_write_b128 v16, {vr(d+4,4)} offset:{QX+tt*1024+4096}")
    if GMF():
        g = GACC
        a(f"""
        v_mul_f32 v{g}, {f32(-LOG2E)}, v{g}
        v_exp_f32 v{g}, v{g}
        s_nop 0
        v_add_f32 v{g}, 1.0, v{g}
        v_rcp_f32 v{g}, v{g}
        s_nop 0
        v_sub_f32 v20, 1.0, v{g}
        s_cmp_eq_u32 s{BB}, 0
        s_cselect_b64 vcc, -1, 0
        v_and_b32 v19, 31, v1
        v_lshlrev_b32 v19, 2, v19
        v_cndmask_b32 v20, v20, v{g}, vcc
        s_lshl_b32 s41, s{WM}, 8
        s_lshl_b32 s40, s{WN}, 7
        s_add_u32 s41, s41, s40
        v_add_u32 v19, s41, v19
        ds_write_b32 v19, v20 offset:{GX}
        """)
    a.lab("A_join")
    a("s_waitcnt lgkmcnt(0)")
    a("s_barrier")
    stamp(a, 3)

def spin(a, lab, addr_v, val_v, cond):
    a("s_mov_b32 s69, 0")
    a.lab(lab)
    a(f"global_load_dword v{val_v}, v{addr_v}, s[{DBG}:{DBG+1}] sc1")
    a("s_add_u32 s69, s69, 1")
    a("s_waitcnt vmcnt(0)")
    cond()
    a(f"s_cbranch_scc1 {lab}_ok")
    a("s_cmp_lt_u32 s69, 200000")
    a(f"s_cbranch_scc1 {lab}")
    a.lab(lab + "_ok")

def phase_b(a):
    Q = [4, 8]; S = [12, 28]; O = [44, 60]; C = [76, 92]
    KB = lambda s, u: 108 + s*16 + u*4
    VB = lambda s, u: 140 + s*32 + u*8
    G = [204, 205]; T0 = 206; T1 = 207; T2 = 208
    H4, QH, PAIR, QT = 30, 31, 32, 33
    a(f"""
    s_lshr_b32 s{H4}, s{WV}, 1
    s_and_b32 s{QH}, s{WV}, 1
    s_lshl_b32 s{PAIR}, s{CG}, 2
    s_add_u32 s{PAIR}, s{PAIR}, s{H4}
    s_lshl_b32 s{QT}, s{MT}, 2
    s_lshl_b32 s40, s{QH}, 1
    s_add_u32 s{QT}, s{QT}, s40
    s_lshl_b32 s46, s{PAIR}, 17
    s_add_u32 s46, s46, {WS_KV}
    s_lshl_b32 s40, s{H4}, 12
    s_lshl_b32 s41, s{QH}, 11
    s_add_u32 s40, s40, s41
    v_add_u32 v{T0}, s40, v2
    ds_read_b128 {vr(Q[0],4)}, v{T0} offset:{QX}
    ds_read_b128 {vr(Q[1],4)}, v{T0} offset:{QX+1024}
    v_and_b32 v{T1}, 31, v1
    v_lshlrev_b32 v{T1}, 2, v{T1}
    s_lshl_b32 s41, s{QH}, 8
    v_add_u32 v{T1}, s41, v{T1}
    """)
    if GM() != 2:
        a(f"ds_read_b32 v{G[0]}, v{T1} offset:{GX}")
        a(f"ds_read_b32 v{G[1]}, v{T1} offset:{GX+128}")
    a(f"""
    v_and_b32 v{T0}, 27, v1
    v_cmp_eq_u32 vcc, 16, v{T0}
    v_mov_b32 v{T1}, 0x3f803f80
    s_nop 0
    v_cndmask_b32 v{T0}, 0, v{T1}, vcc
    """)
    for r in range(64):
        a(f"v_mov_b32 v{VB(0,0)+r}, v{T0}")
    a(f"""
    s_mov_b32 s52, 0x0000ffff
    s_mov_b32 s53, 0x0000ffff
    s_lshl_b32 s40, s{H4}, 13
    v_add_u32 v{T0}, s40, v2
    """)
    for u in range(4):
        a(f"ds_read_b128 {vr(KB(0,u),4)}, v{T0} offset:{KVX+u*2048}")
    a("s_mov_b64 exec, s[52:53]")
    for u in range(4):
        a(f"ds_read_b128 {vr(VB(0,u),4)}, v{T0} offset:{KVX+u*2048+1024}")
        a(f"ds_read_b128 {vr(VB(0,u)+4,4)}, v{T0} offset:{KVX+u*2048+1280}")
    a("s_mov_b64 exec, -1")
    a(f"v_mov_b32 v{T2}, {RELAY}")
    a(f"ds_read_b32 v{T2+1}, v{T2}")
    a("s_waitcnt lgkmcnt(0)")
    a(f"v_readfirstlane_b32 s{NONCE}, v{T2+1}")
    a("s_barrier")
    stamp(a, 4)
    c_prefetch_setup(a)
    a("s_mov_b32 s49, 0")
    a("s_mov_b32 s50, 0")
    a("s_mov_b32 s54, 0")
    a(f"s_lshl_b32 s45, 1, s{MT}")
    if OPT.get("nodep", 0):
        a("s_mov_b32 s45, 0xffff")
        a("s_mov_b32 s49, 1")
    if OPT["prio"]:
        a("s_setprio 3")
    for x in range(2):
        a(f"v_mfma_f32_32x32x16_bf16 {vr(S[x],16)}, {vr(KB(0,0),4)}, {vr(Q[x],4)}, 0")
    a("s_nop 7")
    a("s_nop 7")
    MX = [T0, T1]
    for x in range(2):
        a(f"v_max3_f32 v{MX[x]}, v{S[x]}, v{S[x]+1}, v{S[x]+2}")
        for r in range(3, 15, 2):
            a(f"v_max3_f32 v{MX[x]}, v{MX[x]}, v{S[x]+r}, v{S[x]+r+1}")
        a(f"v_max_f32 v{MX[x]}, v{MX[x]}, v{S[x]+15}")
    a.lab("B_setmax")
    for x in range(2):
        a(f"""
        v_mov_b32 v{T2}, v{MX[x]}
        s_nop 1
        v_permlane32_swap_b32 v{MX[x]}, v{T2}
        s_nop 1
        v_max_f32 v{MX[x]}, v{MX[x]}, v{T2}
        """)
        for r in range(16):
            a(f"v_sub_f32 v{C[x]+r}, 0, v{MX[x]}")
        for r in range(16):
            a(f"v_mov_b32 v{O[x]+r}, 0")
    a(f"v_mfma_f32_32x32x16_bf16 {vr(S[0],16)}, {vr(KB(0,0),4)}, {vr(Q[0],4)}, {vr(C[0],16)}")
    for r in range(4):
        a(f"v_mov_b32 v{224+4+r}, 0")
    if OPT.get("sch", 1) == 3:
        for r in range(8, 16):
            a(f"v_mov_b32 v{S[1]+r}, 0")
    a(f"s_mov_b32 s44, s{MT}")
    a("s_mov_b32 s55, 0")
    a("s_nop 7")
    def ex(b, lo, hi):
        for r in range(lo, hi):
            a(f"v_exp_f32 v{b+r}, v{b+r}")
    def cv(b, h):
        for r in range(4):
            a(f"v_cvt_pk_bf16_f32 v{b+4*h+r}, v{b+8*h+2*r}, v{b+8*h+2*r+1}")
    def pv(x, vb, h):
        a(f"v_mfma_f32_32x32x16_bf16 {vr(O[x],16)}, {vr(vb+4*h,4)}, {vr(S[x]+4*h,4)}, {vr(O[x],16)}")
    def pf_head(tag):
        if tag == 0 and OPT.get("D", 4) <= 4:
            a("s_cmp_eq_u32 s49, 0")
            a("s_cbranch_scc1 B_first")
            a.lab("B_first_ret")
        a(f"""
        s_add_u32 s44, s44, 1
        s_and_b32 s44, s44, 15
        s_bitcmp1_b32 s45, s44
        s_cbranch_scc0 B_poll{tag}
        """)
        a.lab(f"B_pf{tag}")
        a(f"""
        s_lshl_b32 s47, s44, 13
        s_add_u32 s47, s47, s46
        s_add_u32 s48, s47, 4096
        """)
    def ldk(s, u):
        so = 47 if u < 2 else 48
        a(f"buffer_load_dwordx4 {vr(KB(s,u),4)}, v2, {WSRD}, s{so} offen offset:{(u&1)*2048} sc1")
    def ldv(s, u):
        so = 47 if u < 2 else 48
        a("s_mov_b64 exec, s[52:53]")
        a(f"buffer_load_dwordx4 {vr(VB(s,u),4)}, v2, {WSRD}, s{so} offen offset:{(u&1)*2048+1024} sc1")
        a(f"buffer_load_dwordx4 {vr(VB(s,u)+4,4)}, v2, {WSRD}, s{so} offen offset:{(u&1)*2048+1280} sc1")
        a("s_mov_b64 exec, -1")
    D = OPT.get("D", 4)
    if D > 4:
        a("s_cmp_eq_u32 s49, 0")
        a("s_cbranch_scc1 B_first")
        a.lab("B_first_ret")
        pf_head(2)
        for uu in range(D - 4):
            ldk(1, uu)
            ldv(1, uu)
    a.lab("B_loop")
    SCH = OPT.get("sch", 1)
    P = [216, 224]
    def e1(b, r):
        a(f"v_exp_f32 v{b+r}, v{b+r}")
    def cvp(x, lo, hi):
        for r in range(lo, hi):
            a(f"v_cvt_pk_bf16_f32 v{P[x]+r}, v{S[x]+2*r}, v{S[x]+2*r+1}")
    def pvp(x, vb, h):
        a(f"v_mfma_f32_32x32x16_bf16 {vr(O[x],16)}, {vr(vb+4*h,4)}, {vr(P[x]+4*h,4)}, {vr(O[x],16)}")
    for s in range(2):
        for u in range(4):
            vb = VB(s, u)
            vprev = VB(s, u-1) if u > 0 else VB(1-s, 3)
            kn = KB(s, u+1) if u < 3 else KB(1-s, 0)
            L = (4*s + u + D) % 8
            qs, qu = L // 4, L % 4
            guard = (D < 4 and s == 0 and qs == s)
            if OPT["prio"] == 2 and s == 1 and u == 0:
                a("s_cmp_lg_u32 s55, 7")
                a("s_cbranch_scc1 B_pm")
                a("s_setprio 0")
                a.lab("B_pm")
            def do_ldk():
                if qu == 0:
                    pf_head(s)
                if guard:
                    a("s_cmp_eq_u32 s49, 0")
                    a(f"s_cbranch_scc1 B_gk{u}")
                ldk(qs, qu)
                if guard:
                    a.lab(f"B_gk{u}")
            def do_ldv():
                if guard:
                    a("s_cmp_eq_u32 s49, 0")
                    a(f"s_cbranch_scc1 B_gv{u}")
                ldv(qs, qu)
                if guard:
                    a.lab(f"B_gv{u}")
                if u == 3 and s == 1:
                    a("s_cmp_lt_u32 s50, 4")
                    a("s_cbranch_scc1 B_wo")
                    a.lab("B_wo_ret")
            if SCH == 0:
                a(f"v_mfma_f32_32x32x16_bf16 {vr(S[1],16)}, {vr(KB(s,u),4)}, {vr(Q[1],4)}, {vr(C[1],16)}")
                do_ldk()
                ex(S[0], 0, 8)
                cv(S[0], 0)
                ex(S[0], 8, 16)
                a(f"s_waitcnt vmcnt({3*(D-1)+1})")
                pv(0, vb, 0)
                cv(S[0], 1)
                ex(S[1], 0, 2)
                pv(0, vb, 1)
                ex(S[1], 2, 8)
                a(f"s_waitcnt vmcnt({3*D-3})")
                a(f"v_mfma_f32_32x32x16_bf16 {vr(S[0],16)}, {vr(kn,4)}, {vr(Q[0],4)}, {vr(C[0],16)}")
                cv(S[1], 0)
                ex(S[1], 8, 16)
                pv(1, vb, 0)
                cv(S[1], 1)
                do_ldv()
                pv(1, vb, 1)
            else:
                scheds = {
                 1: "ea0-2 PVb1 ea2-8 QKb LK ca0-4 ea8-12 W PVa0 ea12-16 ca4-8 eb0-2 PVa1 eb2-7 QKa eb7-8 cb0-4 eb8-11 PVb0 LV eb11-16 cb4-8",
                 2: "ea0-2 PVb1 ea2-8 QKb LK ca0-4 ea8-12 W PVa0 ea12-16 eb0-2 ca4-8 eb2-4 PVa1 eb4-8 QKa eb8-10 cb0-4 eb10-12 PVb0 LV eb12-16 cb4-8",
                 3: "cb4-8 ea0-2 PVb1 ea2-8 QKb LK ea8-10 ca0-4 ea10-12 W PVa0 ea12-16 eb0-2 ca4-8 eb2-4 PVa1 eb4-8 QKa eb8-10 cb0-4 eb10-12 PVb0 LV eb12-16",
                 4: "ea0-4 PVb1 ea4-8 LK ca0-4 QKb ea8-12 W PVa0 ea12-16 ca4-8 eb0-2 PVa1 eb2-8 QKa cb0-4 eb8-11 PVb0 LV eb11-16 cb4-8",
                 5: "ea0-2 PVb1 ea2-6 QKb ea6-8 LK ca0-4 ea8-10 W PVa0 ea10-16 ca4-8 eb0-2 PVa1 eb2-6 QKa eb6-8 cb0-4 eb8-10 PVb0 eb10-13 LV eb13-16 cb4-8",
                }
                for tok in scheds[SCH].split():
                    if tok == "PVb1": pvp(1, vprev, 1)
                    elif tok == "PVa0": pvp(0, vb, 0)
                    elif tok == "PVa1": pvp(0, vb, 1)
                    elif tok == "PVb0": pvp(1, vb, 0)
                    elif tok == "QKb": a(f"v_mfma_f32_32x32x16_bf16 {vr(S[1],16)}, {vr(KB(s,u),4)}, {vr(Q[1],4)}, {vr(C[1],16)}")
                    elif tok == "QKa": a(f"v_mfma_f32_32x32x16_bf16 {vr(S[0],16)}, {vr(kn,4)}, {vr(Q[0],4)}, {vr(C[0],16)}")
                    elif tok == "LK": do_ldk()
                    elif tok == "LV": do_ldv()
                    elif tok == "W": a(f"s_waitcnt vmcnt({3*D-3})")
                    else:
                        x = 0 if tok[1] == "a" else 1
                        lo, hi = [int(z) for z in tok[2:].split("-")]
                        if tok[0] == "e": ex(S[x], lo, hi)
                        else: cvp(x, lo, hi)
    a("s_add_u32 s55, s55, 1")
    if OPT["prio"] == 1:
        a("""
        s_and_b32 s40, s55, 1
        s_cbranch_scc1 B_noprio
        s_cmp_eq_u32 s55, 2
        s_cbranch_scc0 B_p1
        s_setprio 2
        """)
        a.lab("B_p1")
        a("s_cmp_eq_u32 s55, 4")
        a("s_cbranch_scc0 B_p2")
        a("s_setprio 1")
        a.lab("B_p2")
        a("s_cmp_eq_u32 s55, 6")
        a("s_cbranch_scc0 B_noprio")
        a("s_setprio 0")
        a.lab("B_noprio")
    if OPT["prio"] == 3:
        a("s_cmp_lt_u32 s55, 5")
        a("s_cbranch_scc1 B_noprio")
        a("s_setprio 2")
        a("s_cmp_eq_u32 s55, 5")
        a("s_cbranch_scc1 B_noprio")
        a("s_setprio 1")
        a("s_cmp_eq_u32 s55, 6")
        a("s_cbranch_scc1 B_noprio")
        a("s_setprio 0")
        a.lab("B_noprio")
    if OPT["prio"] == 2:
        a("s_cmp_lt_u32 s55, 6")
        a("s_cbranch_scc1 B_noprio")
        a("s_setprio 2")
        a("s_cmp_eq_u32 s55, 6")
        a("s_cbranch_scc1 B_noprio")
        a("s_setprio 1")
        a.lab("B_noprio")
    a("s_cmp_ge_u32 s55, 5")
    a("s_cbranch_scc1 B_wobar")
    a.lab("B_wobar_ret")
    if PROF and OPT.get("lstamp", 0):
        a("s_cmp_eq_u32 s55, 1")
        a("s_cbranch_scc0 B_ls1")
        stamp(a, 9)
        a.lab("B_ls1")
        a(f"s_cmp_eq_u32 s55, {OPT.get('ls2', 4)}")
        a("s_cbranch_scc0 B_ls2")
        stamp(a, 10)
        a.lab("B_ls2")
    a("s_cmp_lt_u32 s55, 8")
    a("s_cbranch_scc1 B_loop")
    if OPT.get("sch", 1) == 3:
        for r in range(4, 8):
            a(f"v_cvt_pk_bf16_f32 v{224+r}, v{S[1]+2*r}, v{S[1]+2*r+1}")
    if OPT.get("sch", 1):
        a("s_nop 1")
        a(f"v_mfma_f32_32x32x16_bf16 {vr(O[1],16)}, {vr(VB(1,3)+4,4)}, {vr(224+4,4)}, {vr(O[1],16)}")
    stamp(a, 6)
    a("s_nop 7")
    a("s_nop 7")
    a("s_cmp_lg_u32 s54, 0")
    a("s_cbranch_scc1 B_fin")
    a(f"v_mov_b32 v{T0}, 0")
    a(f"v_mov_b32 v{T1}, 0")
    for x in range(2):
        o = O[x]
        for r in range(0, 8, 2):
            a(f"v_max3_f32 v{T0}, v{T0}, |v{o+r}|, |v{o+r+1}|")
        a(f"v_max_f32 v{T0}, v{T0}, v{o+8}")
        for r in range(8):
            a(f"v_add_f32 v{T1}, v{T1}, v{o+r}")
    a(f"""
    v_mul_f32 v{T1}, 0, v{T1}
    v_add_f32 v{T0}, v{T0}, v{T1}
    s_mov_b32 s57, {f32(2.0**100)}
    v_cmp_gt_f32 vcc, s57, v{T0}
    s_cmp_eq_u64 vcc, exec
    s_cbranch_scc1 B_fin
    """)
    a(f"""
    s_mov_b32 s54, 1
    v_mov_b32 v{T0}, {f32(-3.0e38)}
    v_mov_b32 v{T1}, {f32(-3.0e38)}
    s_mov_b32 s47, s46
    s_mov_b32 s55, 0
    s_waitcnt vmcnt(0)
    """)
    a.lab("B_maxloop")
    a(f"buffer_load_dwordx4 {vr(KB(1,0),4)}, v2, {WSRD}, s47 offen sc1")
    a("s_waitcnt vmcnt(0)")
    for x in range(2):
        a(f"v_mfma_f32_32x32x16_bf16 {vr(S[x],16)}, {vr(KB(1,0),4)}, {vr(Q[x],4)}, 0")
    a("s_nop 7")
    a("s_nop 7")
    for x in range(2):
        for r in range(0, 16, 2):
            a(f"v_max3_f32 v{MX[x]}, v{MX[x]}, v{S[x]+r}, v{S[x]+r+1}")
    a("s_add_u32 s47, s47, 2048")
    a("s_add_u32 s55, s55, 1")
    a("s_cmp_lt_u32 s55, 64")
    a("s_cbranch_scc1 B_maxloop")
    a("s_branch B_setmax")
    a.lab("B_first")
    a("s_waitcnt vmcnt(0)")
    a("s_barrier")
    stamp(a, 5)
    a("s_mov_b32 s49, 1")
    a(f"""
    s_cmp_lg_u32 s{WV}, 0
    s_cbranch_scc1 B_first_ret
    s_lshl_b32 s40, s{CG}, 7
    s_lshl_b32 s41, s{MT}, 2
    s_add_u32 s40, s40, s41
    s_add_u32 s40, s40, {WS_F}
    v_mov_b32 v{T2}, 0
    v_mov_b32 v{T2+1}, s{NONCE}
    s_mov_b64 exec, 1
    buffer_store_dword v{T2+1}, v{T2}, {WSRD}, s40 offen sc1
    s_lshl_b32 s40, s{MT}, 7
    s_lshl_b32 s41, s{CG}, 2
    s_add_u32 s40, s40, s41
    s_add_u32 s40, s40, {WS_GF}
    buffer_store_dword v{T2+1}, v{T2}, {WSRD}, s40 offen sc1
    s_mov_b64 exec, -1
    s_branch B_first_ret
    """)
    a.lab("B_wobar")
    a("s_cmp_lg_u32 s54, 0")
    a("s_cbranch_scc1 B_wobar_ret")
    a("s_cmp_eq_u32 s55, 6")
    a("s_cbranch_scc1 B_wobar6")
    if GM() == 2:
        a("s_cmp_lg_u32 s55, 5")
        a("s_cbranch_scc1 B_wobar_ret")
        a(f"s_cmp_lg_u32 s{WV}, 0")
        a("s_cbranch_scc1 B_wobar_ret")
        a(f"""
        s_lshl_b32 s40, s{MT}, 7
        s_add_u32 s40, s40, {WS_GF}
        v_lshlrev_b32 v{T2}, 2, v1
        s_mov_b32 s69, 0
        """)
        a.lab("B_gpoll")
        a(f"""
        s_mov_b64 exec, 0xffff
        buffer_load_dword v{T2+1}, v{T2}, {WSRD}, s40 offen sc1
        s_add_u32 s69, s69, 1
        s_waitcnt vmcnt(0)
        v_cmp_eq_u32 vcc, s{NONCE}, v{T2+1}
        s_mov_b64 exec, -1
        s_cmp_eq_u32 vcc_lo, 0xffff
        s_cbranch_scc1 B_wobar_ret
        s_cmp_lt_u32 s69, 200000
        s_cbranch_scc1 B_gpoll
        """)
    a("s_branch B_wobar_ret")
    a.lab("B_wobar6")
    a("s_barrier")
    if GM() == 2:
        a(f"""
        s_lshl_b32 s40, s{QT}, 7
        s_add_u32 s40, s40, {WS_G}
        v_and_b32 v{T2}, 31, v1
        v_lshlrev_b32 v{T2}, 2, v{T2}
        buffer_load_dword v{G[0]}, v{T2}, {WSRD}, s40 offen sc1
        buffer_load_dword v{G[1]}, v{T2}, {WSRD}, s40 offen offset:128 sc1
        """)
    a("s_branch B_wobar_ret")
    a.lab("B_wo")
    for i in range(4):
        a(f"s_add_u32 m0, s58, {i*1024}")
        a(f"s_add_u32 s51, s59, {i*8192}")
        a(f"buffer_load_dwordx4 v212, s[60:63], s51 offen lds")
    a("s_add_u32 s58, s58, 4096")
    a("s_add_u32 s59, s59, 32768")
    a("s_add_u32 s50, s50, 1")
    a("s_branch B_wo_ret")
    for sset in range(3 if OPT.get('D', 4) > 4 else 2):
        a.lab(f"B_poll{sset}")
        a("s_mov_b32 s69, 0")
        a(f"s_cmp_lg_u32 s{WV}, 0")
        a(f"s_cbranch_scc1 B_lp{sset}")
        a(f"""
        s_lshl_b32 s40, s{CG}, 7
        s_add_u32 s40, s40, {WS_F}
        v_lshlrev_b32 v{T2}, 2, v1
        """)
        a.lab(f"B_gp{sset}")
        a(f"""
        s_mov_b64 exec, 0xffff
        buffer_load_dword v{T2+1}, v{T2}, {WSRD}, s40 offen sc1
        s_add_u32 s69, s69, 1
        s_waitcnt vmcnt(0)
        v_cmp_eq_u32 vcc, s{NONCE}, v{T2+1}
        s_mov_b64 exec, -1
        s_or_b32 s45, s45, vcc_lo
        s_bitcmp1_b32 s45, s44
        s_cbranch_scc1 B_gok{sset}
        s_cmp_lt_u32 s69, 200000
        s_cbranch_scc1 B_gp{sset}
        """)
        a.lab(f"B_gok{sset}")
        a(f"""
        v_mov_b32 v{T2}, {RELAY+4}
        v_mov_b32 v{T2+1}, s45
        ds_write_b32 v{T2}, v{T2+1}
        s_branch B_pf{sset}
        """)
        a.lab(f"B_lp{sset}")
        a(f"v_mov_b32 v{T2}, {RELAY+4}")
        a.lab(f"B_lpl{sset}")
        a(f"""
        ds_read_b32 v{T2+1}, v{T2}
        s_add_u32 s69, s69, 1
        s_waitcnt lgkmcnt(0)
        v_readfirstlane_b32 s40, v{T2+1}
        s_nop 3
        s_or_b32 s45, s45, s40
        s_bitcmp1_b32 s45, s44
        s_cbranch_scc1 B_pf{sset}
        s_cmp_lt_u32 s69, 4000000
        s_cbranch_scc1 B_lpl{sset}
        s_branch B_pf{sset}
        """)
    a.lab("B_fin")
    if GM() == 2:
        a("s_waitcnt vmcnt(0)")
        a(f"s_cmp_eq_u32 s{BB}, 0")
        a("s_cbranch_scc1 B_fin2")
        a(f"v_sub_f32 v{G[0]}, 1.0, v{G[0]}")
        a(f"v_sub_f32 v{G[1]}, 1.0, v{G[1]}")
        a.lab("B_fin2")
    for x in range(2):
        o = O[x]
        a(f"v_rcp_f32 v{T0}, v{o+8}")
        a("s_nop 0")
        a(f"v_mul_f32 v{T0}, v{T0}, v{G[x]}")
        for r in range(8):
            a(f"v_mul_f32 v{o+r}, v{o+r}, v{T0}")
        for r in range(4):
            a(f"v_cvt_pk_bf16_f32 v{o+r}, v{o+2*r}, v{o+2*r+1}")
    a(f"""
    s_lshl_b32 s40, s{QT}, 6
    s_add_u32 s40, s40, s{PAIR}
    s_lshl_b32 s40, s40, 10
    s_add_u32 s40, s40, {WS_O}
    s_add_u32 s41, s40, 65536
    buffer_store_dwordx4 {vr(O[0],4)}, v2, {WSRD}, s40 offen sc1
    buffer_store_dwordx4 {vr(O[1],4)}, v2, {WSRD}, s41 offen sc1
    """)
    if OPT.get("oflag", 0):
        a(f"""
        s_lshl_b32 s40, s{MT}, 9
        s_lshl_b32 s41, s{QH}, 8
        s_add_u32 s40, s40, s41
        s_lshl_b32 s41, s{CG}, 4
        s_add_u32 s40, s40, s41
        s_lshl_b32 s41, s{H4}, 2
        s_add_u32 s40, s40, s41
        s_add_u32 s40, s40, {WS_F+2048}
        v_mov_b32 v4, 0
        v_mov_b32 v5, s{NONCE}
        s_waitcnt vmcnt(0)
        s_mov_b64 exec, 1
        buffer_store_dword v5, v4, {WSRD}, s40 offen sc1
        s_mov_b64 exec, -1
        """)
        stamp(a, 7)
    else:
        a("s_waitcnt vmcnt(0)")
        a("s_barrier")
        stamp(a, 7)
        a(f"""
        s_cmp_lg_u32 s{WV}, 0
        s_cbranch_scc1 B_opub_done
        s_lshl_b32 s40, s{MT}, 9
        s_lshl_b32 s41, s{CG}, 2
        s_add_u32 s40, s40, s41
        s_add_u32 s40, s40, {WS_F+2048}
        v_mov_b32 v4, 0
        v_mov_b32 v5, s{NONCE}
        s_mov_b64 exec, 1
        buffer_store_dword v5, v4, {WSRD}, s40 offen sc1
        s_mov_b64 exec, -1
        """)
    a.lab("B_opub_done")

def c_prefetch_setup(a):
    a(f"""
    v_lshrrev_b32 v212, 3, v1
    v_and_b32 v213, 7, v1
    v_bfe_u32 v214, v1, 4, 1
    v_lshlrev_b32 v214, 2, v214
    v_xor_b32 v214, v213, v214
    v_lshlrev_b32 v214, 4, v214
    v_lshl_add_u32 v212, v212, 10, v214
    s_cmp_lt_u32 s{WV}, 4
    s_cselect_b32 s60, s8, s14
    s_cselect_b32 s61, s9, s15
    s_and_b32 s56, s{WV}, 3
    s_lshl_b32 s56, s56, 17
    s_and_b32 s57, s{CG}, 7
    s_lshl_b32 s57, s57, 7
    s_add_u32 s56, s56, s57
    s_add_u32 s60, s60, s56
    s_addc_u32 s61, s61, 0
    s_sub_u32 s62, 524288, s56
    s_mov_b32 s63, 0x20000
    s_lshl_b32 s58, s{WV}, 14
    s_mov_b32 s59, 0
    """)

def phase_c(a):
    MT64, NT, KQ, TT = 30, 31, 32, 33
    OF = 64
    ACC = 128
    a(f"""
    s_lshl_b32 s{MT64}, s{MT}, 1
    s_lshr_b32 s40, s{CG}, 3
    s_add_u32 s{MT64}, s{MT64}, s40
    s_and_b32 s{NT}, s{CG}, 7
    s_lshr_b32 s{KQ}, s{WV}, 1
    s_and_b32 s{TT}, s{WV}, 1
    v_lshrrev_b32 v5, 4, v1
    s_lshl_b32 s44, s{MT}, 9
    s_lshr_b32 s40, s{CG}, 3
    s_lshl_b32 s40, s40, 8
    s_add_u32 s44, s44, s40
    s_lshl_b32 s40, s{KQ}, 6
    s_add_u32 s44, s44, s40
    s_add_u32 s44, s44, {WS_F+2048}
    v_lshlrev_b32 v6, 2, v1
    s_mov_b32 s47, 0
    s_lshl_b32 s45, s{MT64}, 1
    s_add_u32 s45, s45, s{TT}
    s_lshl_b32 s45, s45, 6
    s_lshl_b32 s46, s{KQ}, 4
    s_add_u32 s45, s45, s46
    s_lshl_b32 s45, s45, 10
    s_add_u32 s45, s45, {WS_O}
    """)
    if OPT.get("oflag", 0):
        for g in range(4):
            m = 0xf << (4*g)
            a(f"s_and_b32 s40, s47, {m}")
            a(f"s_cmp_eq_u32 s40, {m}")
            a(f"s_cbranch_scc1 C_rdy{g}")
            a("s_mov_b32 s69, 0")
            a.lab(f"C_poll{g}")
            a(f"""
            s_mov_b64 exec, 0xffff
            buffer_load_dword v7, v6, {WSRD}, s44 offen sc1
            s_add_u32 s69, s69, 1
            s_waitcnt vmcnt(0)
            v_cmp_eq_u32 vcc, s{NONCE}, v7
            s_mov_b64 exec, -1
            s_mov_b32 s47, vcc_lo
            s_and_b32 s40, s47, {m}
            s_cmp_eq_u32 s40, {m}
            s_cbranch_scc1 C_rdy{g}
            s_sleep {OPT.get("sleep", 4)}
            s_cmp_lt_u32 s69, 200000
            s_cbranch_scc1 C_poll{g}
            """)
            a.lab(f"C_rdy{g}")
            if g == 3:
                stamp(a, 8)
            for i in range(4*g, 4*g+4):
                a(f"buffer_load_dwordx4 {vr(OF+4*i,4)}, v2, {WSRD}, s45 offen offset:{(i%4)*1024} sc1")
            if g < 3:
                a("s_add_u32 s45, s45, 4096")
    elif OPT.get("cprog", 1):
        a(f"""
        s_lshl_b32 s44, s{MT}, 9
        s_add_u32 s44, s44, {WS_F+2048}
        s_lshl_b32 s50, s{KQ}, 2
        s_lshl_b32 s51, 1, s{CG}
        s_mov_b32 s47, s51
        v_mov_b32 v8, {RELAY+8}
        s_mov_b32 s69, 0
        s_cmp_eq_u32 s{WV}, 7
        s_cbranch_scc1 C_poller
        """)
        def oloads(g):
            for i in range(4*g, 4*g+4):
                a(f"buffer_load_dwordx4 {vr(OF+4*i,4)}, v2, {WSRD}, s45 offen offset:{(i%4)*1024} sc1")
            if g < 3:
                a("s_add_u32 s45, s45, 4096")
        for g in range(4):
            a.lab(f"C_lw{g}")
            a("s_bitcmp1_b32 s47, s50")
            a(f"s_cbranch_scc1 C_lr{g}")
            a(f"""
            ds_read_b32 v9, v8
            s_add_u32 s69, s69, 1
            s_waitcnt lgkmcnt(0)
            v_readfirstlane_b32 s47, v9
            s_nop 3
            s_or_b32 s47, s47, s51
            s_cmp_lt_u32 s69, 4000000
            s_cbranch_scc1 C_lw{g}
            """)
            a.lab(f"C_lr{g}")
            oloads(g)
            a("s_add_u32 s50, s50, 1")
        a("s_branch C_go")
        a.lab("C_poller")
        def poll_issue():
            a("s_mov_b64 exec, 0xffff")
            a(f"buffer_load_dword v7, v6, {WSRD}, s44 offen sc1")
            a("s_mov_b64 exec, -1")
        def poll_take():
            a(f"""
            s_mov_b64 exec, 0xffff
            v_cmp_eq_u32 vcc, s{NONCE}, v7
            s_mov_b64 exec, -1
            s_or_b32 s47, vcc_lo, s51
            v_mov_b32 v9, s47
            ds_write_b32 v8, v9
            """)
        for g in range(4):
            a.lab(f"C_pw{g}")
            a("s_bitcmp1_b32 s47, s50")
            a(f"s_cbranch_scc1 C_pr{g}")
            poll_issue()
            a("s_add_u32 s69, s69, 1")
            a("s_waitcnt vmcnt(0)")
            poll_take()
            a("s_cmp_lt_u32 s69, 200000")
            a(f"s_cbranch_scc1 C_pw{g}")
            a.lab(f"C_pr{g}")
            a("s_cmp_eq_u32 s47, 0xffff")
            a(f"s_cbranch_scc1 C_pf{g}")
            poll_issue()
            for i in range(4*g, 4*g+4):
                a(f"buffer_load_dwordx4 {vr(OF+4*i,4)}, v2, {WSRD}, s45 offen offset:{(i%4)*1024} sc1")
            a("s_waitcnt vmcnt(4)")
            poll_take()
            a(f"s_branch C_pn{g}")
            a.lab(f"C_pf{g}")
            for i in range(4*g, 4*g+4):
                a(f"buffer_load_dwordx4 {vr(OF+4*i,4)}, v2, {WSRD}, s45 offen offset:{(i%4)*1024} sc1")
            a.lab(f"C_pn{g}")
            if g < 3:
                a("s_add_u32 s45, s45, 4096")
            a("s_add_u32 s50, s50, 1")
        a.lab("C_pw4")
        a("s_cmp_eq_u32 s47, 0xffff")
        a("s_cbranch_scc1 C_go")
        poll_issue()
        a("s_add_u32 s69, s69, 1")
        a("s_waitcnt vmcnt(0)")
        poll_take()
        a("s_cmp_lt_u32 s69, 200000")
        a("s_cbranch_scc1 C_pw4")
        a.lab("C_go")
        stamp(a, 8)
    else:
        a(f"""
        s_lshl_b32 s44, s{MT}, 9
        s_add_u32 s44, s44, {WS_F+2048}
        s_cmp_lg_u32 s{WV}, 0
        s_cbranch_scc1 C_wait_done
        s_mov_b32 s69, 0
        """)
        a.lab("C_poll")
        a(f"""
        s_mov_b64 exec, 0xffff
        buffer_load_dword v7, v6, {WSRD}, s44 offen sc1
        s_add_u32 s69, s69, 1
        s_waitcnt vmcnt(0)
        v_cmp_eq_u32 vcc, s{NONCE}, v7
        s_mov_b64 exec, -1
        s_cmp_eq_u32 vcc_lo, 0xffff
        s_cbranch_scc1 C_wait_done
        s_cmp_lt_u32 s69, 200000
        s_cbranch_scc1 C_poll
        """)
        a.lab("C_wait_done")
        a("s_barrier")
        stamp(a, 8)
        for i in range(16):
            if i and i % 4 == 0:
                a("s_add_u32 s45, s45, 4096")
            a(f"buffer_load_dwordx4 {vr(OF+4*i,4)}, v2, {WSRD}, s45 offen offset:{(i%4)*1024} sc1")
    a(f"""
    v_lshrrev_b32 v21, 5, v1
    v_and_b32 v26, 15, v1
    v_lshrrev_b32 v27, 2, v26
    v_lshl_add_u32 v28, v21, 2, v27
    v_lshlrev_b32 v28, 7, v28
    v_and_b32 v29, 1, v5
    v_lshlrev_b32 v29, 1, v29
    v_bfe_u32 v30, v26, 1, 1
    v_add_u32 v29, v29, v30
    v_bfe_u32 v30, v27, 1, 1
    v_lshlrev_b32 v30, 2, v30
    v_xor_b32 v29, v29, v30
    v_lshl_add_u32 v28, v29, 4, v28
    v_and_b32 v30, 1, v26
    v_lshl_add_u32 v28, v30, 3, v28
    s_lshl_b32 s40, s{KQ}, 15
    v_add_u32 v20, s40, v28
    v_xor_b32 v21, 64, v20
    """)
    WFR = [32, 40]
    def rd(i):
        f = WFR[i & 1]
        return [f"ds_read_b64_tr_b16 {vr(f+4*ct+2*u,2)}, v{20+ct} offset:{(16*i+8*u)*128}" for ct in range(2) for u in range(2)]
    for x in rd(0):
        a(x)
    for i in range(16):
        nxt = rd(i+1) if i < 15 else []
        a(f"s_waitcnt vmcnt({15-i}) lgkmcnt(0)")
        f = WFR[i & 1]
        for ct in range(2):
            d = vr(ACC+16*ct, 16)
            c = "0" if i == 0 else d
            a(f"v_mfma_f32_32x32x16_bf16 {d}, {vr(f+4*ct,4)}, {vr(OF+4*i,4)}, {c}")
            for x in nxt[2*ct:2*ct+2]:
                a(x)
    if not OPT.get('lstamp', 0): stamp(a, 9)
    a("s_barrier")
    a(f"""
    v_and_b32 v22, 31, v1
    v_lshrrev_b32 v23, 5, v1
    v_and_b32 v24, 7, v22
    v_lshlrev_b32 v25, 8, v22
    s_lshl_b32 s40, s{KQ}, 14
    s_lshl_b32 s41, s{TT}, 13
    s_add_u32 s40, s40, s41
    v_add_u32 v25, s40, v25
    s_nop 7
    s_nop 7
    """)
    for ct in range(2):
        for q4 in range(4):
            a(f"v_add_u32 v26, {ct*8+2*q4}, v23")
            a(f"v_xor_b32 v26, v26, v24")
            a(f"v_lshl_add_u32 v26, v26, 4, v25")
            a(f"ds_write_b128 v26, {vr(ACC+16*ct+4*q4,4)}")
    a("s_waitcnt lgkmcnt(0)")
    a("s_barrier")
    a("""
    v_lshrrev_b32 v22, 3, v0
    v_and_b32 v23, 7, v0
    v_and_b32 v24, 7, v22
    v_lshlrev_b32 v25, 8, v22
    v_lshlrev_b32 v27, 1, v23
    """)
    for c in range(2):
        a(f"v_add_u32 v26, {c}, v27")
        a(f"v_xor_b32 v26, v26, v24")
        a(f"v_lshl_add_u32 v26, v26, 4, v25")
        for k in range(4):
            a(f"ds_read_b128 {vr(64+k*8+c*4,4)}, v26 offset:{k*16384}")
    a(f"""
    s_mov_b32 s60, s18
    s_mov_b32 s61, s19
    s_mov_b32 s62, 2097152
    s_mov_b32 s63, 0x20000
    v_lshlrev_b32 v22, 10, v22
    v_lshl_add_u32 v22, v23, 4, v22
    s_lshl_b32 s40, s{MT64}, 16
    s_lshl_b32 s41, s{NT}, 7
    s_add_u32 s40, s40, s41
    s_waitcnt lgkmcnt(0)
    """)
    for r in range(8):
        a(f"v_add_f32 v{64+r}, v{64+r}, v{72+r}")
        a(f"v_add_f32 v{80+r}, v{80+r}, v{88+r}")
    for r in range(8):
        a(f"v_add_f32 v{64+r}, v{64+r}, v{80+r}")
    for r in range(4):
        a(f"v_cvt_pk_bf16_f32 v{64+r}, v{64+2*r}, v{64+2*r+1}")
    a("buffer_store_dwordx4 v[64:67], v22, s[60:63], s40 offen" + {0: "", 1: " sc1", 2: " nt", 3: " sc0 sc1"}[OPT.get("ost", 0)])
    if not OPT.get("lstamp", 0): stamp(a, 10)

HEAD = open("cdna_kernels/%s.s.ref" % NAME).read().split("; Override")[0]

def main(out):
    a = A()
    gen(a)
    s = HEAD
    s += "; @launch grid=(256,1,1) block=(512,1,1) lds=163840\n"
    s += '.amdgcn_target "amdgcn-amd-amdhsa--gfx950"\n'
    s += a.text()
    s += f""".section .rodata,"a"
.p2align 6
.amdhsa_kernel {KNAME}
  .amdhsa_next_free_vgpr 256
  .amdhsa_next_free_sgpr 102
  .amdhsa_accum_offset 256
  .amdhsa_group_segment_fixed_size 0
  .amdhsa_kernarg_size 80
  .amdhsa_user_sgpr_count 2
  .amdhsa_user_sgpr_kernarg_segment_ptr 1
  .amdhsa_system_sgpr_workgroup_id_x 1
.end_amdhsa_kernel
"""
    open(out, "w").write(s)

if __name__ == "__main__":
    if "--prof" in sys.argv:
        PROF = True
        sys.argv.remove("--prof")
    for x in list(sys.argv):
        if x.startswith("--") and "=" in x:
            k, v = x[2:].split("=")
            OPT[k] = int(v)
            sys.argv.remove(x)
    set_nslot(OPT.get("nslot", 3))
    main(sys.argv[1] if len(sys.argv) > 1 else "fused3.s")
```

```python
import sys, struct

NAME = "gated_mix__mha_block__mha_block__prompt"
KNAME = NAME + "_kernel"
WS_KV = 4 << 20
WS_O = 12 << 20
WS_F = 16 << 20
WS_GF = WS_F + 2048 + 8192
WS_G = WS_GF + 2048
WS_END = WS_G + 8192
RELAY = 160000
NONCE = 68
WS_T = 32 << 20
QSCALE = 0.25 * 1.4426950408889634
LOG2E = 1.4426950408889634
PROF = False
OPT = dict(prio=3, rot=1, pfu=0, D=4, cpf=1, sch=2, wpf=1)
NST = 12
SB = 70

def f32(x):
    return "0x%08x" % struct.unpack("<I", struct.pack("<f", x))[0]

class A:
    def __init__(self):
        self.l = []
    def __call__(self, s):
        for x in s.strip().split("\n"):
            if x.strip():
                self.l.append("  " + x.strip())
    def lab(self, s):
        self.l.append(s + ":")
    def raw(self, s):
        self.l.append(s)
    def text(self):
        return "\n".join(self.l) + "\n"

def vr(b, n):
    return f"v[{b}:{b+n-1}]"
def u32(x):
    return x & 0xffffffff

def GM():
    return OPT.get('gm', 2)
def GMF():
    return GM() == 1
def stamp(a, k):
    if PROF:
        a(f"s_memtime s[{SB+2*k}:{SB+2*k+1}]")

WV = 3
XCD, SLOT_ = 24, 25
CG, MT, BB, HG = 26, 27, 28, 29
SRDW = 36
DBG = 20
WS = 22
WSRD = f"s[{SRDW}:{SRDW+3}]"

def gen(a):
    a.raw(".text")
    a.raw(f".globl {KNAME}")
    a.raw(".p2align 8")
    a.raw(f".type {KNAME},@function")
    a.lab(KNAME)
    a("s_cmp_ge_u32 s2, 256")
    a("s_cbranch_scc1 L_end")
    if PROF:
        a(f"s_memrealtime s[{SB+2*NST}:{SB+2*NST+1}]")
        stamp(a, 0)
    a(f"""
    s_load_dwordx4 s[4:7], s[0:1], 0
    s_load_dwordx2 s[8:9], s[0:1], 16
    s_load_dwordx4 s[12:15], s[0:1], 32
    s_load_dwordx4 s[16:19], s[0:1], 48
    s_load_dwordx4 s[20:23], s[0:1], 64
    v_lshrrev_b32 v2, 6, v0
    v_and_b32 v1, 63, v0
    s_and_b32 s{XCD}, s2, 7
    s_lshr_b32 s{SLOT_}, s2, 3
    """)
    if OPT.get("badmap", 0):
        a(f"""
        s_lshr_b32 s40, s2, 3
        s_xor_b32 s{XCD}, s{XCD}, s40
        s_lshr_b32 s40, s2, 6
        s_xor_b32 s{XCD}, s{XCD}, s40
        s_and_b32 s{XCD}, s{XCD}, 7
        """)
    a(f"""
    v_readfirstlane_b32 s{WV}, v2
    v_lshlrev_b32 v2, 4, v1
    s_lshr_b32 s40, s{XCD}, 1
    s_lshl_b32 s40, s40, 2
    s_and_b32 s41, s{SLOT_}, 3
    s_add_u32 s{CG}, s40, s41
    s_lshr_b32 s{BB}, s{CG}, 3
    s_and_b32 s{HG}, s{CG}, 7
    s_and_b32 s{MT}, s{XCD}, 1
    s_lshl_b32 s{MT}, s{MT}, 3
    s_lshr_b32 s41, s{SLOT_}, 2
    s_add_u32 s{MT}, s{MT}, s41
    """)
    if OPT.get("diag", 0):
        a("s_memrealtime s[94:95]")
        a("s_memtime s[96:97]")
    phase_a(a)
    phase_b(a)
    phase_c(a)
    if OPT.get("diag", 0):
        a(f"""
        s_waitcnt vmcnt(0)
        s_memrealtime s[90:91]
        s_memtime s[92:93]
        s_waitcnt lgkmcnt(0)
        s_sub_u32 s92, s92, s96
        s_not_b32 s94, s94
        s_and_b32 s91, s2, 15
        s_or_b32 s91, s91, s{WV}
        s_cmp_lg_u32 s91, 0
        s_cbranch_scc1 L_end
        s_mov_b64 exec, 1
        v_mov_b32 v4, 16
        v_mov_b32 v5, s92
        global_atomic_umax v4, v5, s[{DBG}:{DBG+1}]
        v_mov_b32 v4, 20
        v_mov_b32 v5, s90
        global_atomic_umax v4, v5, s[{DBG}:{DBG+1}]
        v_mov_b32 v4, 24
        v_mov_b32 v5, s94
        global_atomic_umax v4, v5, s[{DBG}:{DBG+1}]
        s_mov_b64 exec, -1
        """)
    if PROF:
        a("s_waitcnt vmcnt(0)")
        a(f"s_memrealtime s[{SB+2*NST+2}:{SB+2*NST+3}]")
        stamp(a, NST-1)
        a("s_waitcnt lgkmcnt(0)")
        if OPT.get("lprof", 0):
            for k, r in ((8, 98), (9, 99), (10, 100)):
                a(f"s_add_u32 s{SB+2*k}, s{SB}, s{r}")
                a(f"s_addc_u32 s{SB+2*k+1}, s{SB+1}, 0")
            a.lab("L_nolp")
        a(f"""
        s_lshl_b32 s40, s2, 4
        s_add_u32 s40, s40, s{WV}
        s_lshl_b32 s40, s40, 7
        s_add_u32 s40, s40, {WS_T}
        s_add_u32 s40, s{WS}, s40
        s_addc_u32 s41, s{WS+1}, 0
        s_mov_b64 exec, 1
        v_mov_b32 v4, 0
        """)
        for k in range(NST+2):
            a(f"v_mov_b32 v6, s{SB+2*k}")
            a(f"v_mov_b32 v7, s{SB+2*k+1}")
            a(f"global_store_dwordx2 v4, v[6:7], s[40:41] offset:{8*k}")
            a("s_nop 1")
    a.lab("L_end")
    a("s_endpgm")
    a.lab("L_codeend")

SLOT = 40960
NSLOT = 3
GIMG = NSLOT * SLOT
def set_nslot(n):
    global NSLOT, GIMG
    NSLOT = n
    GIMG = 3 * SLOT
QX, KVX, GX = 0, 16384, 49152

def v_init(a, t0, t1):
    a(f"""
    v_and_b32 v{t0}, 27, v1
    v_cmp_eq_u32 vcc, 16, v{t0}
    v_mov_b32 v{t1}, 0x3f803f80
    s_nop 0
    v_cndmask_b32 v{t0}, 0, v{t1}, vcc
    """)
    for r in range(64):
        a(f"v_mov_b32 v{192+r}, v{t0}")

def phase_a(a):
    a(f"""
    v_lshrrev_b32 v5, 4, v1
    s_cmp_ge_u32 s{WV}, 4
    s_cbranch_scc0 A_compute
    """)
    LW = 30
    a(f"""
    s_sub_u32 s{LW}, s{WV}, 4
    s_setprio 3
    v_lshrrev_b32 v3, 3, v1
    v_and_b32 v4, 7, v1
    v_xor_b32 v6, v4, v5
    v_lshlrev_b32 v6, 4, v6
    v_lshl_add_u32 v10, v3, 10, v6
    v_add_u32 v7, 4, v5
    v_xor_b32 v7, v4, v7
    v_lshlrev_b32 v7, 4, v7
    v_lshl_add_u32 v11, v3, 10, v7
    v_and_b32 v8, 1, v5
    v_lshlrev_b32 v8, 2, v8
    v_xor_b32 v8, v4, v8
    v_lshlrev_b32 v8, 4, v8
    v_mul_u32_u24 v9, 3072, v3
    v_add_u32 v12, v9, v8
    s_lshl_b32 s54, s{LW}, 15
    """)
    for u in range(4):
        a(f"s_add_u32 s{44+u}, s54, {u*8192}")
    a(f"s_mul_i32 s54, s{LW}, 49152")
    for g3 in range(3):
        for e in range(2):
            a(f"s_add_u32 s{48+g3*2+e}, s54, {g3*1024 + e*8*3072}")
    a(f"""
    s_lshl_b32 s55, s{LW}, 12
    s_lshl_b32 s56, s{LW}, 11
    s_add_u32 s56, s56, 16384
    s_lshl_b32 s40, s{MT}, 17
    s_lshl_b32 s41, s{HG}, 7
    s_mov_b32 s62, 131072
    s_mov_b32 s63, 0x20000
    s_sub_u32 s34, 1572864, s41
    s_mov_b32 s35, 0x20000
    """)
    if OPT["rot"]:
        a(f"s_mov_b32 s57, s{XCD}")
    else:
        a("s_mov_b32 s57, 0")
    a(f"""
    s_lshl_b32 s42, s57, 7
    v_add_u32 v10, s42, v10
    v_add_u32 v11, s42, v11
    s_mul_i32 s42, s57, 196608
    v_add_u32 v12, s42, v12
    s_mov_b32 s64, {u32(-896)}
    s_mov_b32 s65, 128
    s_mov_b32 s66, {u32(-7*196608)}
    s_mov_b32 s67, 196608
    s_waitcnt lgkmcnt(0)
    s_cmp_eq_u32 s{BB}, 0
    s_cselect_b32 s32, s6, s12
    s_cselect_b32 s33, s7, s13
    s_add_u32 s60, s4, s40
    s_addc_u32 s61, s5, 0
    s_add_u32 s32, s32, s41
    s_addc_u32 s33, s33, 0
    """)
    def issue_stage(extra=None):
        extra = list(extra or [])
        seq = [("w",0,0),("x",0,0),("w",0,1),("x",1,0),("w",1,0),("x",2,0),("w",1,1),("x",3,0),("w",2,0),("w",2,1)]
        for n, (kind, i, e) in enumerate(seq):
            if kind == "x":
                a(f"s_add_u32 m0, s55, {i*1024}")
                a("s_add_u32 s57, s57, 1" if n == 1 else ("s_and_b32 s57, s57, 7" if n == 3 else "s_nop 0"))
                a(f"buffer_load_dwordx4 v{10+(i&1)}, s[60:63], s{44+i} offen lds")
            else:
                a(f"s_add_u32 m0, s56, {i*8192+e*1024}")
                a("s_cmp_eq_u32 s57, 0" if n == 4 else "s_nop 0")
                a(f"buffer_load_dwordx4 v12, s[32:35], s{48+i*2+e} offen lds")
                if n == 4:
                    a("s_cselect_b32 s42, s64, s65")
                    a("s_cselect_b32 s43, s66, s67")
            if n >= 2 and extra:
                k = 1 if n == 2 else 3
                for _ in range(k):
                    if extra: a(extra.pop(0))
        for x in extra:
            a(x)
        a("v_add_u32 v10, s42, v10")
        a("v_add_u32 v11, s42, v11")
        a("v_add_u32 v12, s43, v12")
        a(f"s_add_u32 s55, s55, {SLOT}")
        a(f"s_add_u32 s56, s56, {SLOT}")
        a(f"s_cmp_ge_u32 s56, {NSLOT*SLOT}")
        a(f"s_cselect_b32 s54, {NSLOT*SLOT}, 0")
        a("s_sub_u32 s55, s55, s54")
        a("s_sub_u32 s56, s56, s54")
    a(f"""
    s_mov_b32 s{SRDW}, s16
    s_mov_b32 s{SRDW+1}, s17
    s_mov_b32 s{SRDW+2}, 1024
    s_mov_b32 s{SRDW+3}, 0x20000
    s_lshl_b32 s43, s{LW}, 8
    s_add_u32 m0, s43, {GIMG}
    """)
    if GM() == 2:
        pass
    elif not OPT.get("nogate", 0):
        a(f"""
        s_mov_b64 exec, 0xffff
        buffer_load_dwordx4 v2, {WSRD}, s43 offen lds
        s_mov_b64 exec, -1
        """)
    if GM() == 0:
        a(f"""
        v_and_b32 v20, 31, v1
        v_lshrrev_b32 v21, 5, v1
        v_lshrrev_b32 v22, 1, v1
        v_and_b32 v22, 7, v22
        s_lshl_b32 s40, s{LW}, 12
        v_lshlrev_b32 v23, 7, v20
        v_add_u32 v23, s40, v23
        """)
        for ks in range(4):
            a(f"v_add_u32 v24, {2*ks}, v21")
            a(f"v_xor_b32 v24, v24, v22")
            a(f"v_lshl_add_u32 v{16+ks}, v24, 4, v23")
        a(f"""
        v_lshlrev_b32 v15, 4, v21
        v_add_u32 v15, {GIMG}, v15
        v_mov_b32 v64, 0
        s_mov_b32 s59, 0
        """)
        if OPT["rot"]:
            a(f"s_mov_b32 s31, s{XCD}")
        else:
            a("s_mov_b32 s31, 0")
    LK = OPT.get("look", 2)
    if OPT.get("pfwait", 0):
        a("s_barrier")
    for _ in range(LK):
        issue_stage()
    v_init(a, 60, 61)
    def gate_reads():
        if OPT.get("nogate", 0) or GM() != 0: return
        a("s_lshl_b32 s40, s31, 7")
        a("v_add_u32 v14, s40, v15")
        for ks in range(4):
            a(f"v_add_u32 v24, s59, v{16+ks}")
            a(f"ds_read_b128 {vr(28+8*ks,4)}, v24")
            a(f"ds_read_b128 {vr(32+8*ks,4)}, v14 offset:{ks*32}")
        a("s_add_u32 s31, s31, 1")
        a("s_and_b32 s31, s31, 7")
        a(f"s_add_u32 s59, s59, {SLOT}")
        a(f"s_cmp_ge_u32 s59, {NSLOT*SLOT}")
        a(f"s_cselect_b32 s40, {NSLOT*SLOT}, 0")
        a("s_sub_u32 s59, s59, s40")
    def gate_dots():
        if OPT.get("nogate", 0) or GM() != 0: return
        a("s_waitcnt lgkmcnt(0)")
        for ks in range(4):
            for q in range(4):
                a(f"v_dot2c_f32_bf16 v64, v{28+8*ks+q}, v{32+8*ks+q}")
    if OPT.get("ldprio", 0) == 0:
        a("s_setprio 0")
    a("s_mov_b32 s58, 0")
    LP = PROF and OPT.get("lprof", 0)
    def tick(acc):
        if LP:
            a("s_memtime s[88:89]")
            a("s_waitcnt lgkmcnt(0)")
            a("s_sub_u32 s87, s88, s86")
            a(f"s_add_u32 s{acc}, s{acc}, s87")
            a("s_mov_b32 s86, s88")
    if LP:
        a("s_memtime s[88:89]")
        a("s_waitcnt lgkmcnt(0)")
        a("s_mov_b32 s86, s88")
        a("s_mov_b32 s80, 0"); a("s_mov_b32 s81, 0"); a("s_mov_b32 s82, 0"); a("s_mov_b32 s83, 0"); a("s_mov_b32 s84, 0"); a("s_mov_b32 s85, 0")
    a.lab("A_ld_loop")
    a(f"s_waitcnt vmcnt({10*(LK-1)})")
    tick(80)
    a("s_barrier")
    tick(82)
    gate_reads()
    issue_stage(None if (OPT.get("nogate", 0) or GM() != 0) else ["s_waitcnt lgkmcnt(0)"] + [f"v_dot2c_f32_bf16 v64, v{28+8*ks+q}, v{32+8*ks+q}" for ks in range(4) for q in range(4)])
    tick(84)
    a("s_add_u32 s58, s58, 1")
    a(f"s_cmp_lt_u32 s58, {8-LK}")
    a("s_cbranch_scc1 A_ld_loop")
    if GM() == 2:
        a(f"""
        s_mov_b32 s{SRDW}, s16
        s_mov_b32 s{SRDW+1}, s17
        s_mov_b32 s{SRDW+2}, 1024
        s_mov_b32 s{SRDW+3}, 0x20000
        v_and_b32 v13, 15, v1
        v_lshlrev_b32 v13, 4, v13
        v_lshl_add_u32 v14, v5, 10, v13
        s_lshl_b32 s40, s{CG}, 3
        s_and_b32 s41, s{LW}, 1
        s_lshl_b32 s41, s41, 2
        s_add_u32 s29, s40, s41
        s_lshl_b32 s41, s29, 10
        s_cmp_ge_u32 s{LW}, 2
        s_cbranch_scc1 A_nogl
        """)
        for i in range(4):
            a(f"buffer_load_dwordx4 {vr(16+4*i,4)}, v14, s[60:63], s41 offen offset:{256*i}")
        for i in range(4):
            a(f"buffer_load_dwordx4 {vr(32+4*i,4)}, v13, {WSRD}, 0 offen offset:{256*i}")
        a.lab("A_nogl")
    for k in range(LK):
        a(f"s_waitcnt vmcnt({10*(LK-1-k)})")
        a("s_barrier")
        gate_reads()
        gate_dots()
    if LP:
        a("s_mov_b32 s98, s80"); a("s_mov_b32 s99, s82"); a("s_mov_b32 s100, s84")
    a("s_setprio 0")
    a(f"""
    s_mov_b32 s{SRDW}, s{WS}
    s_mov_b32 s{SRDW+1}, s{WS+1}
    s_mov_b32 s{SRDW+2}, {WS_END}
    s_mov_b32 s{SRDW+3}, 0x20000
    """)
    if GM() == 1:
        a("s_barrier")
    elif GM() == 2:
        a("s_barrier")
        a(f"s_cmp_ge_u32 s{LW}, 2")
        a("s_cbranch_scc1 A_join")
        a("v_mov_b32 v48, 0")
        a("s_waitcnt vmcnt(0)")
        for i in range(16):
            a(f"v_dot2c_f32_bf16 v48, v{16+i}, v{32+i}")
        a("s_nop 3")
        for rot in (8, 4, 2, 1):
            a(f"v_add_f32_dpp v48, v48, v48 row_ror:{rot} row_mask:0xf bank_mask:0xf")
            a("s_nop 1")
        a(f"""
        v_mul_f32 v48, {f32(-LOG2E)}, v48
        v_exp_f32 v48, v48
        s_nop 0
        v_add_f32 v48, 1.0, v48
        v_rcp_f32 v48, v48
        s_lshl_b32 s41, s{MT}, 7
        s_add_u32 s41, s41, s29
        s_lshl_b32 s41, s41, 2
        s_add_u32 s41, s41, {WS_G}
        v_lshlrev_b32 v49, 2, v5
        v_and_b32 v50, 15, v1
        v_cmp_eq_u32 vcc, 0, v50
        s_and_saveexec_b64 s[58:59], vcc
        buffer_store_dword v48, v49, {WSRD}, s41 offen sc1
        s_mov_b64 exec, s[58:59]
        """)
    else:
        a(f"""
        s_nop 3
        v_mov_b32 v20, v64
        s_nop 1
        v_permlane32_swap_b32 v64, v20
        s_nop 1
        v_add_f32 v64, v64, v20
        v_mul_f32 v64, {f32(-LOG2E)}, v64
        v_exp_f32 v64, v64
        s_nop 0
        v_add_f32 v64, 1.0, v64
        v_rcp_f32 v64, v64
        s_nop 0
        v_sub_f32 v20, 1.0, v64
        s_cmp_eq_u32 s{BB}, 0
        s_cselect_b64 vcc, -1, 0
        s_nop 1
        v_cndmask_b32 v20, v20, v64, vcc
        v_and_b32 v19, 31, v1
        v_lshlrev_b32 v19, 2, v19
        s_lshl_b32 s41, s{LW}, 7
        v_add_u32 v19, s41, v19
        s_barrier
        ds_write_b32 v19, v20 offset:{GX}
        """)
    a("""
    s_branch A_join
    """)
    a.lab("A_compute")
    WM, WN = 30, 31
    a(f"""
    s_and_b32 s{WM}, s{WV}, 1
    s_lshr_b32 s{WN}, s{WV}, 1
    v_and_b32 v20, 31, v1
    v_lshrrev_b32 v21, 5, v1
    v_lshrrev_b32 v22, 1, v1
    v_and_b32 v22, 7, v22
    s_lshl_b32 s40, s{WM}, 13
    v_lshlrev_b32 v23, 7, v20
    v_add_u32 v23, s40, v23
    """)
    for ks in range(4):
        a(f"v_add_u32 v24, {2*ks}, v21")
        a(f"v_xor_b32 v24, v24, v22")
        a(f"v_lshl_add_u32 v{16+ks}, v24, 4, v23")
    a(f"""
    v_and_b32 v26, 15, v1
    v_lshrrev_b32 v27, 2, v26
    v_lshl_add_u32 v28, v21, 3, v27
    v_lshlrev_b32 v28, 7, v28
    v_and_b32 v29, 1, v5
    v_lshlrev_b32 v29, 1, v29
    v_bfe_u32 v30, v26, 1, 1
    v_add_u32 v29, v29, v30
    s_lshl_b32 s40, s{WN}, 2
    v_add_u32 v29, s40, v29
    v_bfe_u32 v30, v27, 1, 1
    v_lshlrev_b32 v30, 2, v30
    v_xor_b32 v29, v29, v30
    v_lshl_add_u32 v28, v29, 4, v28
    v_and_b32 v30, 1, v26
    v_lshl_add_u32 v25, v30, 3, v28
    """)
    ACC = 64
    XF = [32, 160]
    WF = [40, 168]
    GF = [52, 180]
    GACC = 192
    assert GM() != 1
    v_init(a, 190, 191)
    for r in range(0, 96, 2):
        a(f"v_mov_b64 v[{ACC+r}:{ACC+r+1}], 0")
    if GMF():
        for r in range(16):
            a(f"v_mov_b32 v{GACC+r}, 0")
        a(f"s_mov_b32 s59, s{XCD}" if OPT["rot"] else "s_mov_b32 s59, 0")
        a(f"""
        s_lshl_b32 s40, s59, 7
        v_lshlrev_b32 v15, 4, v21
        v_add_u32 v15, {GIMG}, v15
        v_add_u32 v14, s40, v15
        s_cmp_eq_u32 s{WN}, 0
        s_cselect_b64 vcc, -1, 0
        """)
    a(f"""
    s_lshl_b32 s40, s{CG}, 2
    s_lshl_b32 s41, s{WN}, 1
    s_add_u32 s40, s40, s41
    s_lshl_b32 s40, s40, 6
    s_lshl_b32 s41, s{MT}, 2
    s_add_u32 s40, s40, s41
    s_lshl_b32 s41, s{WM}, 1
    s_add_u32 s40, s40, s41
    s_lshl_b32 s46, s40, 11
    s_add_u32 s46, s46, {WS_KV}
    s_mov_b32 s48, {f32(QSCALE)}
    v_and_b32 v11, 15, v1
    v_lshlrev_b32 v11, 4, v11
    v_lshl_add_u32 v11, v21, 9, v11
    v_bfe_u32 v12, v1, 4, 1
    v_lshl_add_u32 v13, v12, 13, v11
    v_lshl_add_u32 v11, v12, 17, v11
    v_add_u32 v11, 1024, v11
    s_add_u32 s47, s46, 131072
    s_mov_b32 s{SRDW+2}, {WS_END}
    s_mov_b32 s{SRDW+3}, 0x20000
    s_mov_b32 s57, 0
    s_mov_b32 s58, 0
    """)
    def set_addr():
        for ks in range(4):
            a(f"v_add_u32 v{20+ks}, s57, v{16+ks}")
        a("v_add_u32 v24, s57, v25")
    set_addr()
    a("s_waitcnt lgkmcnt(0)")
    a(f"s_mov_b32 s{SRDW}, s{WS}")
    a(f"s_mov_b32 s{SRDW+1}, s{WS+1}")
    if OPT.get("wpf", 0):
        a(f"""
        s_lshl_b32 s40, s2, 2
        s_add_u32 s40, s40, s{WV}
        s_and_b32 s41, s40, 511
        s_mul_i32 s41, s41, 3072
        s_cmp_lt_u32 s40, 512
        s_cselect_b32 s42, s6, s12
        s_cselect_b32 s43, s7, s13
        s_add_u32 s42, s42, s41
        s_addc_u32 s43, s43, 0
        global_load_dwordx4 v[180:183], v2, s[42:43]
        global_load_dwordx4 v[180:183], v2, s[42:43] offset:1024
        global_load_dwordx4 v[180:183], v2, s[42:43] offset:2048
        s_lshl_b32 s40, s2, 3
        s_lshl_b32 s41, s{WV}, 1
        s_add_u32 s40, s40, s41
        s_lshl_b32 s40, s40, 10
        s_add_u32 s42, s4, s40
        s_addc_u32 s43, s5, 0
        global_load_dwordx4 v[180:183], v2, s[42:43]
        global_load_dwordx4 v[180:183], v2, s[42:43] offset:1024
        """)
    if OPT.get("xpf", 0):
        a(f"""
        s_and_b32 s40, s{XCD}, 1
        s_lshl_b32 s40, s40, 10
        s_lshl_b32 s41, s{SLOT_}, 5
        s_add_u32 s40, s40, s41
        s_lshl_b32 s41, s{WV}, 3
        s_add_u32 s40, s40, s41
        s_lshl_b32 s40, s40, 10
        s_add_u32 s42, s4, s40
        s_addc_u32 s43, s5, 0
        v_mov_b32 v212, v2
        """)
        a(f"""
        s_cmp_eq_u32 s{BB}, 0
        s_cselect_b32 s44, s6, s12
        s_cselect_b32 s45, s7, s13
        s_lshl_b32 s40, s{SLOT_}, 4
        s_lshl_b32 s41, s{WV}, 2
        s_add_u32 s40, s40, s41
        s_mul_i32 s40, s40, 3072
        s_and_b32 s41, s{HG}, 4
        s_lshl_b32 s41, s41, 7
        s_add_u32 s40, s40, s41
        s_add_u32 s44, s44, s40
        s_addc_u32 s45, s45, 0
        v_lshrrev_b32 v213, 5, v1
        v_mul_u32_u24 v213, 3072, v213
        v_and_b32 v214, 31, v1
        v_lshl_add_u32 v213, v214, 4, v213
        v_add_u32 v214, 6144, v213
        """)
        for t in range(3):
            a(f"global_load_dwordx4 v[208:211], v213, s[44:45] offset:{t*1024}")
            a(f"global_load_dwordx4 v[208:211], v214, s[44:45] offset:{t*1024}")
        for i in range(8):
            a(f"global_load_dwordx4 v[208:211], v212, s[42:43]")
            if i < 7: a("v_add_u32 v212, 1024, v212")
    if OPT.get("pfwait", 0):
        a("s_waitcnt vmcnt(0)")
        a("s_barrier")
    if OPT.get("cpf", 0):
        a(f"""
        s_cmp_lg_u32 s{WV}, 3
        s_cbranch_scc1 A_nocpf
        s_cmp_ge_u32 s{SLOT_}, (L_codeend-{KNAME})>>10
        s_cbranch_scc1 A_nocpf
        s_getpc_b64 s[42:43]
        """)
        a.lab("A_pc")
        a(f"""
        s_sub_u32 s42, s42, A_pc-{KNAME}
        s_subb_u32 s43, s43, 0
        s_lshl_b32 s40, s{SLOT_}, 10
        s_add_u32 s42, s42, s40
        s_addc_u32 s43, s43, 0
        global_load_dwordx4 v[180:183], v2, s[42:43]
        """)
        a.lab("A_nocpf")
    if OPT.get("pt", 0):
        a(f"""
        s_cmp_lg_u32 s{WV}, 1
        s_cbranch_scc1 A_nopt1
        s_lshl_b32 s40, s{CG}, 19
        s_add_u32 s40, s40, {WS_KV}
        v_lshlrev_b32 v212, 13, v1
        buffer_load_dword v208, v212, {WSRD}, s40 offen
        """)
        a.lab("A_nopt1")
        a(f"""
        s_cmp_lg_u32 s{WV}, 2
        s_cbranch_scc1 A_nopt2
        v_lshlrev_b32 v212, 16, v1
        s_mov_b32 s40, {WS_O}
        buffer_load_dword v208, v212, {WSRD}, s40 offen
        v_mov_b32 v213, 0
        s_mov_b32 s40, {WS_F}
        buffer_load_dword v209, v213, {WSRD}, s40 offen
        v_lshlrev_b32 v213, 15, v1
        global_load_dword v210, v213, s[18:19]
        v_lshlrev_b32 v214, 13, v1
        global_load_dword v211, v214, s[8:9]
        global_load_dword v211, v214, s[14:15]
        """)
        a.lab("A_nopt2")
    a(f"""
    s_cmp_lg_u32 s{WV}, 0
    s_cbranch_scc1 A_nononce
    s_memrealtime s[40:41]
    s_waitcnt lgkmcnt(0)
    s_or_b32 s40, s40, 1
    v_mov_b32 v186, s40
    v_mov_b32 v187, 0
    v_mov_b32 v188, 0
    s_mov_b64 exec, 1
    global_atomic_cmpswap v189, v188, v[186:187], s[{DBG}:{DBG+1}] sc0
    s_mov_b64 exec, -1
    """)
    a.lab("A_nononce")
    def read_list(ks, f):
        r = []
        r.append(f"ds_read_b64_tr_b16 {vr(WF[f]+0,2)}, v24 offset:{16384+(16*ks+0)*128}")
        r.append(f"ds_read_b64_tr_b16 {vr(WF[f]+2,2)}, v24 offset:{16384+(16*ks+4)*128}")
        r.append(f"ds_read_b128 {vr(XF[f],4)}, v{20+ks} offset:0")
        r.append(f"ds_read_b128 {vr(XF[f]+4,4)}, v{20+ks} offset:4096")
        for g3 in (1, 2):
            for u in range(2):
                r.append(f"ds_read_b64_tr_b16 {vr(WF[f]+4*g3+2*u,2)}, v24 offset:{16384+g3*8192+(16*ks+4*u)*128}")
        if GMF():
            r.append(f"ds_read_b128 {vr(GF[f],4)}, v14 offset:{ks*32}")
        return r
    gl = [0]
    FW = OPT.get("finewait", 1)
    def group(f, rl, barrier=False):
        order = [(0,0),(0,1),(1,0),(1,1),(2,0),(2,1)]
        nold = 9 if GMF() else 8
        need = {0: 3, 1: 4, 2: 6, 4: 8}
        rl = list(rl)
        issued = 0
        per = OPT.get("rpg", 2)
        for i, (g3, tt) in enumerate(order):
            if FW and i in need:
                a(f"s_waitcnt lgkmcnt({min(15, nold - need[i] + issued)})")
            x = vr(XF[f]+4*tt, 4); w = vr(WF[f]+4*g3, 4); d = vr(ACC+16*(tt*3+g3), 16)
            if g3 < 2:
                a(f"v_mfma_f32_32x32x16_bf16 {d}, {w}, {x}, {d}")
            else:
                a(f"v_mfma_f32_32x32x16_bf16 {d}, {x}, {w}, {d}")
            if i == 0 and barrier:
                if PROF and OPT.get("lprof", 0):
                    a("s_memtime s[88:89]")
                a(f"s_waitcnt lgkmcnt(0)")
                a("s_barrier")
                if PROF and OPT.get("lprof", 0):
                    a("s_memtime s[86:87]")
                    a("s_waitcnt lgkmcnt(0)")
                    a("s_sub_u32 s86, s86, s88")
                    a("s_add_u32 s98, s98, s86")
            for _ in range(per):
                if rl:
                    a(rl.pop(0)); issued += 1
        if GMF():
            if FW:
                a(f"s_waitcnt lgkmcnt({min(15, issued)})")
            n = gl[0]; gl[0] += 1
            d = vr(GACC, 16)
            a(f"s_cbranch_vccz A_g{n}a")
            a(f"v_mfma_f32_32x32x16_bf16 {d}, {vr(GF[f],4)}, {vr(XF[f],4)}, {d}")
            a(f"s_branch A_g{n}b")
            a.lab(f"A_g{n}a")
            a(f"v_mfma_f32_32x32x16_bf16 {d}, {vr(GF[f],4)}, {vr(XF[f]+4,4)}, {d}")
            a.lab(f"A_g{n}b")
        for x in rl:
            a(x)
    a("s_barrier")
    stamp(a, 1)
    for x in read_list(0, 0):
        a(x)
    if PROF and OPT.get("lprof", 0):
        a("s_mov_b32 s98, 0"); a("s_mov_b32 s99, 0"); a("s_mov_b32 s100, 0")
    a.lab("A_loop")
    for ks in range(3):
        if not FW: a("s_waitcnt lgkmcnt(0)")
        group(ks & 1, read_list(ks+1, (ks+1) & 1))
    a("s_cmp_eq_u32 s58, 7")
    a("s_cbranch_scc1 A_last")
    a(f"""
    s_add_u32 s57, s57, {SLOT}
    s_cmp_ge_u32 s57, {NSLOT*SLOT}
    s_cselect_b32 s40, {NSLOT*SLOT}, 0
    s_sub_u32 s57, s57, s40
    """)
    if GMF():
        a("""
        s_add_u32 s59, s59, 1
        s_and_b32 s59, s59, 7
        s_lshl_b32 s40, s59, 7
        v_add_u32 v14, s40, v15
        """)
    set_addr()
    if not FW: a("s_waitcnt lgkmcnt(0)")
    group(1, read_list(0, 0), barrier=True)
    a("s_add_u32 s58, s58, 1")
    a("s_branch A_loop")
    a.lab("A_last")
    if not FW: a("s_waitcnt lgkmcnt(0)")
    group(1, [])
    stamp(a, 2)
    a("s_barrier")
    a(f"""
    s_lshl_b32 s40, s{WN}, 3
    s_lshl_b32 s41, s{WM}, 1
    s_add_u32 s40, s40, s41
    s_lshl_b32 s41, s40, 10
    v_add_u32 v16, s41, v2
    s_lshl_b32 s41, s40, 11
    v_add_u32 v17, s41, v2
    v_add_u32 v18, s41, v13
    s_nop 3
    """)
    a(f"""
    s_cmp_lg_u32 s{WV}, 0
    s_cbranch_scc1 A_nononce2
    s_waitcnt vmcnt(0)
    v_cmp_eq_u32 vcc, 0, v189
    s_nop 1
    v_cndmask_b32 v186, v189, v186, vcc
    v_mov_b32 v188, {RELAY}
    s_mov_b64 exec, 1
    ds_write_b64 v188, v[186:187]
    ds_write_b32 v188, v187 offset:8
    s_mov_b64 exec, -1
    """)
    a.lab("A_nononce2")
    STF = {0: ' sc1', 1: ' sc0 sc1', 2: ' sc1 nt', 3: ' sc0 sc1 nt'}[OPT.get('stf', 0)]
    for tt in range(2):
        d = ACC + 16*(tt*3+1)
        for r in range(8):
            a(f"v_cvt_pk_bf16_f32 v{d+r}, v{d+2*r}, v{d+2*r+1}")
        a(f"buffer_store_dwordx4 {vr(d,4)}, v2, {WSRD}, s46 offen offset:{tt*2048}{STF}")
        a(f"buffer_store_dwordx4 {vr(d+4,4)}, v2, {WSRD}, s47 offen offset:{tt*2048}{STF}")
        a(f"ds_write_b128 v17, {vr(d,4)} offset:{KVX+tt*2048}")
        a(f"ds_write_b128 v17, {vr(d+4,4)} offset:{KVX+tt*2048+8192}")
        d = ACC + 16*(tt*3+2)
        for r in range(8):
            a(f"v_cvt_pk_bf16_f32 v{d+r}, v{d+2*r}, v{d+2*r+1}")
        a(f"buffer_store_dwordx4 {vr(d,4)}, v11, {WSRD}, s46 offen offset:{tt*2048}{STF}")
        a(f"buffer_store_dwordx4 {vr(d+4,4)}, v11, {WSRD}, s46 offen offset:{tt*2048+256}{STF}")
        a(f"ds_write_b128 v18, {vr(d,4)} offset:{KVX+tt*2048+1024}")
        a(f"ds_write_b128 v18, {vr(d+4,4)} offset:{KVX+tt*2048+1280}")
    for tt in range(2):
        d = ACC + 16*(tt*3+0)
        for r in range(16):
            a(f"v_mul_f32 v{d+r}, s48, v{d+r}")
        for r in range(8):
            a(f"v_cvt_pk_bf16_f32 v{d+r}, v{d+2*r}, v{d+2*r+1}")
        a(f"ds_write_b128 v16, {vr(d,4)} offset:{QX+tt*1024}")
        a(f"ds_write_b128 v16, {vr(d+4,4)} offset:{QX+tt*1024+4096}")
    if GMF():
        g = GACC
        a(f"""
        v_mul_f32 v{g}, {f32(-LOG2E)}, v{g}
        v_exp_f32 v{g}, v{g}
        s_nop 0
        v_add_f32 v{g}, 1.0, v{g}
        v_rcp_f32 v{g}, v{g}
        s_nop 0
        v_sub_f32 v20, 1.0, v{g}
        s_cmp_eq_u32 s{BB}, 0
        s_cselect_b64 vcc, -1, 0
        v_and_b32 v19, 31, v1
        v_lshlrev_b32 v19, 2, v19
        v_cndmask_b32 v20, v20, v{g}, vcc
        s_lshl_b32 s41, s{WM}, 8
        s_lshl_b32 s40, s{WN}, 7
        s_add_u32 s41, s41, s40
        v_add_u32 v19, s41, v19
        ds_write_b32 v19, v20 offset:{GX}
        """)
    a.lab("A_join")
    a("s_waitcnt lgkmcnt(0)")
    a("s_barrier")
    stamp(a, 3)

def spin(a, lab, addr_v, val_v, cond):
    a("s_mov_b32 s69, 0")
    a.lab(lab)
    a(f"global_load_dword v{val_v}, v{addr_v}, s[{DBG}:{DBG+1}] sc1")
    a("s_add_u32 s69, s69, 1")
    a("s_waitcnt vmcnt(0)")
    cond()
    a(f"s_cbranch_scc1 {lab}_ok")
    a("s_cmp_lt_u32 s69, 200000")
    a(f"s_cbranch_scc1 {lab}")
    a.lab(lab + "_ok")

def phase_b(a):
    Q = [4, 8]; S = [12, 28]; O = [44, 60]; C = [76, 92]
    KB = lambda s, u: 108 + s*16 + u*4
    VB = lambda s, u: 192 + s*32 + u*8
    G = [156, 157]; T0 = 158; T1 = 159; T2 = 160
    H4, QH, PAIR, QT = 30, 31, 32, 33
    a(f"""
    s_lshr_b32 s{H4}, s{WV}, 1
    s_and_b32 s{QH}, s{WV}, 1
    s_lshl_b32 s{PAIR}, s{CG}, 2
    s_add_u32 s{PAIR}, s{PAIR}, s{H4}
    s_lshl_b32 s{QT}, s{MT}, 2
    s_lshl_b32 s40, s{QH}, 1
    s_add_u32 s{QT}, s{QT}, s40
    s_lshl_b32 s46, s{PAIR}, 17
    s_add_u32 s46, s46, {WS_KV}
    s_lshl_b32 s40, s{H4}, 12
    s_lshl_b32 s41, s{QH}, 11
    s_add_u32 s40, s40, s41
    v_add_u32 v{T0}, s40, v2
    ds_read_b128 {vr(Q[0],4)}, v{T0} offset:{QX}
    ds_read_b128 {vr(Q[1],4)}, v{T0} offset:{QX+1024}
    v_and_b32 v{T1}, 31, v1
    v_lshlrev_b32 v{T1}, 2, v{T1}
    s_lshl_b32 s41, s{QH}, 8
    v_add_u32 v{T1}, s41, v{T1}
    """)
    if GM() != 2:
        a(f"ds_read_b32 v{G[0]}, v{T1} offset:{GX}")
        a(f"ds_read_b32 v{G[1]}, v{T1} offset:{GX+128}")
    a(f"""
    """)
    a(f"""
    s_mov_b32 s52, 0x0000ffff
    s_mov_b32 s53, 0x0000ffff
    s_lshl_b32 s40, s{H4}, 13
    v_add_u32 v{T0}, s40, v2
    """)
    for u in range(4):
        a(f"ds_read_b128 {vr(KB(0,u),4)}, v{T0} offset:{KVX+u*2048}")
    a("s_mov_b64 exec, s[52:53]")
    for u in range(4):
        a(f"ds_read_b128 {vr(VB(0,u),4)}, v{T0} offset:{KVX+u*2048+1024}")
        a(f"ds_read_b128 {vr(VB(0,u)+4,4)}, v{T0} offset:{KVX+u*2048+1280}")
    a("s_mov_b64 exec, -1")
    a(f"v_mov_b32 v{T2}, {RELAY}")
    a(f"ds_read_b32 v{T2+1}, v{T2}")
    a("s_waitcnt lgkmcnt(0)")
    a(f"v_readfirstlane_b32 s{NONCE}, v{T2+1}")
    stamp(a, 4)
    c_prefetch_setup(a)
    a("s_mov_b32 s49, 0")
    a("s_mov_b32 s50, 0")
    a("s_mov_b32 s54, 0")
    a(f"s_lshl_b32 s45, 1, s{MT}")
    if OPT.get("nodep", 0):
        a("s_mov_b32 s45, 0xffff")
        a("s_mov_b32 s49, 1")
    if OPT["prio"]:
        a("s_setprio 3")
    for x in range(2):
        a(f"v_mfma_f32_32x32x16_bf16 {vr(S[x],16)}, {vr(KB(0,0),4)}, {vr(Q[x],4)}, 0")
    a("s_nop 7")
    a("s_nop 7")
    MX = [T0, T1]
    for x in range(2):
        a(f"v_max3_f32 v{MX[x]}, v{S[x]}, v{S[x]+1}, v{S[x]+2}")
        for r in range(3, 15, 2):
            a(f"v_max3_f32 v{MX[x]}, v{MX[x]}, v{S[x]+r}, v{S[x]+r+1}")
        a(f"v_max_f32 v{MX[x]}, v{MX[x]}, v{S[x]+15}")
    a.lab("B_setmax")
    for x in range(2):
        a(f"""
        v_mov_b32 v{T2}, v{MX[x]}
        s_nop 1
        v_permlane32_swap_b32 v{MX[x]}, v{T2}
        s_nop 1
        v_max_f32 v{MX[x]}, v{MX[x]}, v{T2}
        """)
        a(f"v_sub_f32 v{C[x]}, 0, v{MX[x]}")
        a(f"v_sub_f32 v{C[x]+1}, 0, v{MX[x]}")
        for r in range(0, 16, 2):
            a(f"v_mov_b64 v[{O[x]+r}:{O[x]+r+1}], 0")
        for r in range(2, 16, 2):
            a(f"v_mov_b64 v[{C[x]+r}:{C[x]+r+1}], v[{C[x]}:{C[x]+1}]")
    a(f"v_mfma_f32_32x32x16_bf16 {vr(S[0],16)}, {vr(KB(0,0),4)}, {vr(Q[0],4)}, {vr(C[0],16)}")
    for r in range(4):
        a(f"v_mov_b32 v{148+4+r}, 0")
    if OPT.get("sch", 1) == 3:
        for r in range(8, 16):
            a(f"v_mov_b32 v{S[1]+r}, 0")
    a(f"s_mov_b32 s44, s{MT}")
    a("s_mov_b32 s55, 0")
    a("s_nop 7")
    def ex(b, lo, hi):
        for r in range(lo, hi):
            a(f"v_exp_f32 v{b+r}, v{b+r}")
    def cv(b, h):
        for r in range(4):
            a(f"v_cvt_pk_bf16_f32 v{b+4*h+r}, v{b+8*h+2*r}, v{b+8*h+2*r+1}")
    def pv(x, vb, h):
        a(f"v_mfma_f32_32x32x16_bf16 {vr(O[x],16)}, {vr(vb+4*h,4)}, {vr(S[x]+4*h,4)}, {vr(O[x],16)}")
    def pf_head(tag):
        if tag == 0 and OPT.get("D", 4) <= 4 and not (OPT.get("late", 1) and OPT.get("D", 4) == 4):
            a("s_cmp_eq_u32 s49, 0")
            a("s_cbranch_scc1 B_first")
            a.lab("B_first_ret")
        a(f"""
        s_add_u32 s44, s44, 1
        s_and_b32 s44, s44, 15
        s_bitcmp1_b32 s45, s44
        s_cbranch_scc0 B_poll{tag}
        """)
        a.lab(f"B_pf{tag}")
        a(f"""
        s_lshl_b32 s47, s44, 13
        s_add_u32 s47, s47, s46
        s_add_u32 s48, s47, 4096
        """)
    def ldk(s, u):
        so = 47 if u < 2 else 48
        a(f"buffer_load_dwordx4 {vr(KB(s,u),4)}, v2, {WSRD}, s{so} offen offset:{(u&1)*2048} sc1")
    def ldv(s, u):
        so = 47 if u < 2 else 48
        a("s_mov_b64 exec, s[52:53]")
        a(f"buffer_load_dwordx4 {vr(VB(s,u),4)}, v2, {WSRD}, s{so} offen offset:{(u&1)*2048+1024} sc1")
        a(f"buffer_load_dwordx4 {vr(VB(s,u)+4,4)}, v2, {WSRD}, s{so} offen offset:{(u&1)*2048+1280} sc1")
        a("s_mov_b64 exec, -1")
    D = OPT.get("D", 4)
    if D > 4:
        a("s_cmp_eq_u32 s49, 0")
        a("s_cbranch_scc1 B_first")
        a.lab("B_first_ret")
        pf_head(2)
        for uu in range(D - 4):
            ldk(1, uu)
            ldv(1, uu)
    a.lab("B_loop")
    SCH = OPT.get("sch", 1)
    P = [140, 148]
    def e1(b, r):
        a(f"v_exp_f32 v{b+r}, v{b+r}")
    def cvp(x, lo, hi):
        for r in range(lo, hi):
            a(f"v_cvt_pk_bf16_f32 v{P[x]+r}, v{S[x]+2*r}, v{S[x]+2*r+1}")
    def pvp(x, vb, h):
        a(f"v_mfma_f32_32x32x16_bf16 {vr(O[x],16)}, {vr(vb+4*h,4)}, {vr(P[x]+4*h,4)}, {vr(O[x],16)}")
    for s in range(2):
        for u in range(4):
            vb = VB(s, u)
            vprev = VB(s, u-1) if u > 0 else VB(1-s, 3)
            kn = KB(s, u+1) if u < 3 else KB(1-s, 0)
            L = (4*s + u + D) % 8
            qs, qu = L // 4, L % 4
            guard = (D < 4 and s == 0 and qs == s)
            if OPT["prio"] == 2 and s == 1 and u == 0:
                a("s_cmp_lg_u32 s55, 7")
                a("s_cbranch_scc1 B_pm")
                a("s_setprio 0")
                a.lab("B_pm")
            LATE = OPT.get("late", 1) and D == 4
            def do_ldk():
                if LATE and s == 0 and u <= 2:
                    if u == 2:
                        a("s_cmp_eq_u32 s49, 1")
                        a("s_cbranch_scc1 B_start")
                        a.lab("B_start_ret")
                        ldk(qs, qu)
                        return
                    a("s_cmp_lt_u32 s49, 2")
                    a(f"s_cbranch_scc1 B_late{u}")
                    if qu == 0:
                        pf_head(s)
                    ldk(qs, qu)
                    a.lab(f"B_late{u}_ret")
                    return
                if qu == 0:
                    pf_head(s)
                if guard:
                    a("s_cmp_eq_u32 s49, 0")
                    a(f"s_cbranch_scc1 B_gk{u}")
                ldk(qs, qu)
                if guard:
                    a.lab(f"B_gk{u}")
            def do_ldv():
                if LATE and s == 0 and u <= 1:
                    a("s_cmp_lt_u32 s49, 2")
                    a(f"s_cbranch_scc1 B_gv{u}")
                    ldv(qs, qu)
                    a.lab(f"B_gv{u}")
                    return
                if guard:
                    a("s_cmp_eq_u32 s49, 0")
                    a(f"s_cbranch_scc1 B_gv{u}")
                ldv(qs, qu)
                if guard:
                    a.lab(f"B_gv{u}")
                if u == 3 and s == 1:
                    a("s_cmp_lt_u32 s50, 4")
                    a("s_cbranch_scc1 B_wo")
                    a.lab("B_wo_ret")
            if SCH == 0:
                a(f"v_mfma_f32_32x32x16_bf16 {vr(S[1],16)}, {vr(KB(s,u),4)}, {vr(Q[1],4)}, {vr(C[1],16)}")
                do_ldk()
                ex(S[0], 0, 8)
                cv(S[0], 0)
                ex(S[0], 8, 16)
                a(f"s_waitcnt vmcnt({3*(D-1)+1})")
                pv(0, vb, 0)
                cv(S[0], 1)
                ex(S[1], 0, 2)
                pv(0, vb, 1)
                ex(S[1], 2, 8)
                a(f"s_waitcnt vmcnt({3*D-3})")
                a(f"v_mfma_f32_32x32x16_bf16 {vr(S[0],16)}, {vr(kn,4)}, {vr(Q[0],4)}, {vr(C[0],16)}")
                cv(S[1], 0)
                ex(S[1], 8, 16)
                pv(1, vb, 0)
                cv(S[1], 1)
                do_ldv()
                pv(1, vb, 1)
            else:
                scheds = {
                 1: "ea0-2 PVb1 ea2-8 QKb LK ca0-4 ea8-12 W PVa0 ea12-16 ca4-8 eb0-2 PVa1 eb2-7 QKa eb7-8 cb0-4 eb8-11 PVb0 LV eb11-16 cb4-8",
                 2: "ea0-2 PVb1 ea2-8 QKb LK ca0-4 ea8-12 W PVa0 ea12-16 eb0-2 ca4-8 eb2-4 PVa1 eb4-8 QKa eb8-10 cb0-4 eb10-12 PVb0 LV eb12-16 cb4-8",
                 3: "cb4-8 ea0-2 PVb1 ea2-8 QKb LK ea8-10 ca0-4 ea10-12 W PVa0 ea12-16 eb0-2 ca4-8 eb2-4 PVa1 eb4-8 QKa eb8-10 cb0-4 eb10-12 PVb0 LV eb12-16",
                 4: "ea0-4 PVb1 ea4-8 LK ca0-4 QKb ea8-12 W PVa0 ea12-16 ca4-8 eb0-2 PVa1 eb2-8 QKa cb0-4 eb8-11 PVb0 LV eb11-16 cb4-8",
                 5: "ea0-2 PVb1 ea2-6 QKb ea6-8 LK ca0-4 ea8-10 W PVa0 ea10-16 ca4-8 eb0-2 PVa1 eb2-6 QKa eb6-8 cb0-4 eb8-10 PVb0 eb10-13 LV eb13-16 cb4-8",
                }
                for tok in scheds[SCH].split():
                    if tok == "PVb1": pvp(1, vprev, 1)
                    elif tok == "PVa0": pvp(0, vb, 0)
                    elif tok == "PVa1": pvp(0, vb, 1)
                    elif tok == "PVb0": pvp(1, vb, 0)
                    elif tok == "QKb": a(f"v_mfma_f32_32x32x16_bf16 {vr(S[1],16)}, {vr(KB(s,u),4)}, {vr(Q[1],4)}, {vr(C[1],16)}")
                    elif tok == "QKa": a(f"v_mfma_f32_32x32x16_bf16 {vr(S[0],16)}, {vr(kn,4)}, {vr(Q[0],4)}, {vr(C[0],16)}")
                    elif tok == "LK": do_ldk()
                    elif tok == "LV": do_ldv()
                    elif tok == "W": a(f"s_waitcnt vmcnt({3*D-3})")
                    else:
                        x = 0 if tok[1] == "a" else 1
                        lo, hi = [int(z) for z in tok[2:].split("-")]
                        if tok[0] == "e": ex(S[x], lo, hi)
                        else: cvp(x, lo, hi)
    a("s_add_u32 s55, s55, 1")
    if OPT["prio"] == 1:
        a("""
        s_and_b32 s40, s55, 1
        s_cbranch_scc1 B_noprio
        s_cmp_eq_u32 s55, 2
        s_cbranch_scc0 B_p1
        s_setprio 2
        """)
        a.lab("B_p1")
        a("s_cmp_eq_u32 s55, 4")
        a("s_cbranch_scc0 B_p2")
        a("s_setprio 1")
        a.lab("B_p2")
        a("s_cmp_eq_u32 s55, 6")
        a("s_cbranch_scc0 B_noprio")
        a("s_setprio 0")
        a.lab("B_noprio")
    if OPT["prio"] == 3:
        a("s_cmp_lt_u32 s55, 5")
        a("s_cbranch_scc1 B_noprio")
        a("s_setprio 2")
        a("s_cmp_eq_u32 s55, 5")
        a("s_cbranch_scc1 B_noprio")
        a("s_setprio 1")
        a("s_cmp_eq_u32 s55, 6")
        a("s_cbranch_scc1 B_noprio")
        a("s_setprio 0")
        a.lab("B_noprio")
    if OPT["prio"] == 2:
        a("s_cmp_lt_u32 s55, 6")
        a("s_cbranch_scc1 B_noprio")
        a("s_setprio 2")
        a("s_cmp_eq_u32 s55, 6")
        a("s_cbranch_scc1 B_noprio")
        a("s_setprio 1")
        a.lab("B_noprio")
    a("s_cmp_ge_u32 s55, 5")
    a("s_cbranch_scc1 B_wobar")
    a.lab("B_wobar_ret")
    if PROF and OPT.get("lstamp", 0):
        a("s_cmp_eq_u32 s55, 1")
        a("s_cbranch_scc0 B_ls1")
        stamp(a, 9)
        a.lab("B_ls1")
        a(f"s_cmp_eq_u32 s55, {OPT.get('ls2', 4)}")
        a("s_cbranch_scc0 B_ls2")
        stamp(a, 10)
        a.lab("B_ls2")
    a("s_cmp_lt_u32 s55, 8")
    a("s_cbranch_scc1 B_loop")
    if OPT.get("sch", 1) == 3:
        for r in range(4, 8):
            a(f"v_cvt_pk_bf16_f32 v{148+r}, v{S[1]+2*r}, v{S[1]+2*r+1}")
    if OPT.get("sch", 1):
        a("s_nop 1")
        a(f"v_mfma_f32_32x32x16_bf16 {vr(O[1],16)}, {vr(VB(1,3)+4,4)}, {vr(148+4,4)}, {vr(O[1],16)}")
    stamp(a, 6)
    a("s_nop 7")
    a("s_nop 7")
    a("s_cmp_lg_u32 s54, 0")
    a("s_cbranch_scc1 B_fin")
    a(f"v_mov_b32 v{T0}, 0")
    a(f"v_mov_b32 v{T1}, 0")
    for x in range(2):
        o = O[x]
        for r in range(0, 8, 2):
            a(f"v_max3_f32 v{T0}, v{T0}, |v{o+r}|, |v{o+r+1}|")
        a(f"v_max_f32 v{T0}, v{T0}, v{o+8}")
        for r in range(8):
            a(f"v_add_f32 v{T1}, v{T1}, v{o+r}")
    a(f"""
    v_mul_f32 v{T1}, 0, v{T1}
    v_add_f32 v{T0}, v{T0}, v{T1}
    s_mov_b32 s57, {f32(2.0**100)}
    v_cmp_gt_f32 vcc, s57, v{T0}
    s_cmp_eq_u64 vcc, exec
    s_cbranch_scc1 B_fin
    """)
    a(f"""
    s_mov_b32 s54, 1
    v_mov_b32 v{T0}, {f32(-3.0e38)}
    v_mov_b32 v{T1}, {f32(-3.0e38)}
    s_mov_b32 s47, s46
    s_mov_b32 s55, 0
    s_waitcnt vmcnt(0)
    """)
    a.lab("B_maxloop")
    a(f"buffer_load_dwordx4 {vr(KB(1,0),4)}, v2, {WSRD}, s47 offen sc1")
    a("s_waitcnt vmcnt(0)")
    for x in range(2):
        a(f"v_mfma_f32_32x32x16_bf16 {vr(S[x],16)}, {vr(KB(1,0),4)}, {vr(Q[x],4)}, 0")
    a("s_nop 7")
    a("s_nop 7")
    for x in range(2):
        for r in range(0, 16, 2):
            a(f"v_max3_f32 v{MX[x]}, v{MX[x]}, v{S[x]+r}, v{S[x]+r+1}")
    a("s_add_u32 s47, s47, 2048")
    a("s_add_u32 s55, s55, 1")
    a("s_cmp_lt_u32 s55, 64")
    a("s_cbranch_scc1 B_maxloop")
    a("s_branch B_setmax")
    if OPT.get("late", 1) and OPT.get("D", 4) == 4:
        a.lab("B_late0")
        a("s_branch B_late0_ret")
        a.lab("B_late1")
        a("s_cmp_lg_u32 s49, 0")
        a("s_cbranch_scc1 B_late1_ret")
        a("s_branch B_first")
        a.lab("B_start")
        pf_head(2)
        for uu in range(2):
            ldk(1, uu)
            ldv(1, uu)
        a("s_mov_b32 s49, 2")
        a("s_branch B_start_ret")
    FRET = "B_late1_ret" if (OPT.get("late", 1) and OPT.get("D", 4) == 4) else "B_first_ret"
    a.lab("B_first")
    a("s_waitcnt vmcnt(0)")
    a("s_barrier")
    stamp(a, 5)
    a("s_mov_b32 s49, 1")
    a(f"""
    s_cmp_lg_u32 s{WV}, 0
    s_cbranch_scc1 {FRET}
    s_lshl_b32 s40, s{CG}, 7
    s_lshl_b32 s41, s{MT}, 2
    s_add_u32 s40, s40, s41
    s_add_u32 s40, s40, {WS_F}
    v_mov_b32 v{T2}, 0
    v_mov_b32 v{T2+1}, s{NONCE}
    s_mov_b64 exec, 1
    buffer_store_dword v{T2+1}, v{T2}, {WSRD}, s40 offen sc1
    s_lshl_b32 s40, s{MT}, 7
    s_lshl_b32 s41, s{CG}, 2
    s_add_u32 s40, s40, s41
    s_add_u32 s40, s40, {WS_GF}
    buffer_store_dword v{T2+1}, v{T2}, {WSRD}, s40 offen sc1
    s_mov_b64 exec, -1
    s_branch {FRET}
    """)
    a.lab("B_wobar")
    a("s_cmp_lg_u32 s54, 0")
    a("s_cbranch_scc1 B_wobar_ret")
    a("s_cmp_eq_u32 s55, 6")
    a("s_cbranch_scc1 B_wobar6")
    if GM() == 2:
        a("s_cmp_lg_u32 s55, 5")
        a("s_cbranch_scc1 B_wobar_ret")
        a(f"s_cmp_lg_u32 s{WV}, 0")
        a("s_cbranch_scc1 B_wobar_ret")
        a(f"""
        s_lshl_b32 s40, s{MT}, 7
        s_add_u32 s40, s40, {WS_GF}
        v_lshlrev_b32 v{T2}, 2, v1
        s_mov_b32 s69, 0
        """)
        a.lab("B_gpoll")
        a(f"""
        s_mov_b64 exec, 0xffff
        buffer_load_dword v{T2+1}, v{T2}, {WSRD}, s40 offen sc1
        s_add_u32 s69, s69, 1
        s_waitcnt vmcnt(0)
        v_cmp_eq_u32 vcc, s{NONCE}, v{T2+1}
        s_mov_b64 exec, -1
        s_cmp_eq_u32 vcc_lo, 0xffff
        s_cbranch_scc1 B_wobar_ret
        s_cmp_lt_u32 s69, 200000
        s_cbranch_scc1 B_gpoll
        """)
    a("s_branch B_wobar_ret")
    a.lab("B_wobar6")
    a("s_barrier")
    if GM() == 2:
        a(f"""
        s_lshl_b32 s40, s{QT}, 7
        s_add_u32 s40, s40, {WS_G}
        v_and_b32 v{T2}, 31, v1
        v_lshlrev_b32 v{T2}, 2, v{T2}
        buffer_load_dword v{G[0]}, v{T2}, {WSRD}, s40 offen sc1
        buffer_load_dword v{G[1]}, v{T2}, {WSRD}, s40 offen offset:128 sc1
        """)
    a("s_branch B_wobar_ret")
    a.lab("B_wo")
    for i in range(4):
        a(f"s_add_u32 m0, s58, {i*1024}")
        a(f"s_add_u32 s51, s59, {i*8192}")
        a(f"buffer_load_dwordx4 v162, s[60:63], s51 offen lds")
    a("s_add_u32 s58, s58, 4096")
    a("s_add_u32 s59, s59, 32768")
    a("s_add_u32 s50, s50, 1")
    a("s_branch B_wo_ret")
    for sset in range(3 if (OPT.get('D', 4) > 4 or (OPT.get('late', 1) and OPT.get('D', 4) == 4)) else 2):
        a.lab(f"B_poll{sset}")
        a("s_mov_b32 s69, 0")
        a(f"s_cmp_lg_u32 s{WV}, 0")
        a(f"s_cbranch_scc1 B_lp{sset}")
        a(f"""
        s_lshl_b32 s40, s{CG}, 7
        s_add_u32 s40, s40, {WS_F}
        v_lshlrev_b32 v{T2}, 2, v1
        """)
        a.lab(f"B_gp{sset}")
        a(f"""
        s_mov_b64 exec, 0xffff
        buffer_load_dword v{T2+1}, v{T2}, {WSRD}, s40 offen sc1
        s_add_u32 s69, s69, 1
        s_waitcnt vmcnt(0)
        v_cmp_eq_u32 vcc, s{NONCE}, v{T2+1}
        s_mov_b64 exec, -1
        s_or_b32 s45, s45, vcc_lo
        s_bitcmp1_b32 s45, s44
        s_cbranch_scc1 B_gok{sset}
        s_cmp_lt_u32 s69, 200000
        s_cbranch_scc1 B_gp{sset}
        """)
        a.lab(f"B_gok{sset}")
        a(f"""
        v_mov_b32 v{T2}, {RELAY+4}
        v_mov_b32 v{T2+1}, s45
        ds_write_b32 v{T2}, v{T2+1}
        s_branch B_pf{sset}
        """)
        a.lab(f"B_lp{sset}")
        a(f"v_mov_b32 v{T2}, {RELAY+4}")
        a.lab(f"B_lpl{sset}")
        a(f"""
        ds_read_b32 v{T2+1}, v{T2}
        s_add_u32 s69, s69, 1
        s_waitcnt lgkmcnt(0)
        v_readfirstlane_b32 s40, v{T2+1}
        s_nop 3
        s_or_b32 s45, s45, s40
        s_bitcmp1_b32 s45, s44
        s_cbranch_scc1 B_pf{sset}
        s_cmp_lt_u32 s69, 4000000
        s_cbranch_scc1 B_lpl{sset}
        s_branch B_pf{sset}
        """)
    a.lab("B_fin")
    if GM() == 2:
        a("s_waitcnt vmcnt(0)")
        a(f"s_cmp_eq_u32 s{BB}, 0")
        a("s_cbranch_scc1 B_fin2")
        a(f"v_sub_f32 v{G[0]}, 1.0, v{G[0]}")
        a(f"v_sub_f32 v{G[1]}, 1.0, v{G[1]}")
        a.lab("B_fin2")
    for x in range(2):
        o = O[x]
        a(f"v_rcp_f32 v{T0}, v{o+8}")
        a("s_nop 0")
        a(f"v_mul_f32 v{T0}, v{T0}, v{G[x]}")
        for r in range(8):
            a(f"v_mul_f32 v{o+r}, v{o+r}, v{T0}")
        for r in range(4):
            a(f"v_cvt_pk_bf16_f32 v{o+r}, v{o+2*r}, v{o+2*r+1}")
    a(f"""
    s_lshl_b32 s40, s{QT}, 6
    s_add_u32 s40, s40, s{PAIR}
    s_lshl_b32 s40, s40, 10
    s_add_u32 s40, s40, {WS_O}
    s_add_u32 s41, s40, 65536
    buffer_store_dwordx4 {vr(O[0],4)}, v2, {WSRD}, s40 offen sc1
    buffer_store_dwordx4 {vr(O[1],4)}, v2, {WSRD}, s41 offen sc1
    """)
    if OPT.get("oflag", 0):
        a(f"""
        s_lshl_b32 s40, s{MT}, 9
        s_lshl_b32 s41, s{QH}, 8
        s_add_u32 s40, s40, s41
        s_lshl_b32 s41, s{CG}, 4
        s_add_u32 s40, s40, s41
        s_lshl_b32 s41, s{H4}, 2
        s_add_u32 s40, s40, s41
        s_add_u32 s40, s40, {WS_F+2048}
        v_mov_b32 v4, 0
        v_mov_b32 v5, s{NONCE}
        s_waitcnt vmcnt(0)
        s_mov_b64 exec, 1
        buffer_store_dword v5, v4, {WSRD}, s40 offen sc1
        s_mov_b64 exec, -1
        """)
        stamp(a, 7)
    else:
        a("s_waitcnt vmcnt(0)")
        a("s_barrier")
        stamp(a, 7)
        a(f"""
        s_cmp_lg_u32 s{WV}, 0
        s_cbranch_scc1 B_opub_done
        s_lshl_b32 s40, s{MT}, 9
        s_lshl_b32 s41, s{CG}, 2
        s_add_u32 s40, s40, s41
        s_add_u32 s40, s40, {WS_F+2048}
        v_mov_b32 v4, 0
        v_mov_b32 v5, s{NONCE}
        s_mov_b64 exec, 1
        buffer_store_dword v5, v4, {WSRD}, s40 offen sc1
        s_mov_b64 exec, -1
        """)
    a.lab("B_opub_done")

def c_prefetch_setup(a):
    a(f"""
    v_lshrrev_b32 v162, 3, v1
    v_and_b32 v163, 7, v1
    v_bfe_u32 v164, v1, 4, 1
    v_lshlrev_b32 v164, 2, v164
    v_xor_b32 v164, v163, v164
    v_lshlrev_b32 v164, 4, v164
    v_lshl_add_u32 v162, v162, 10, v164
    s_cmp_lt_u32 s{WV}, 4
    s_cselect_b32 s60, s8, s14
    s_cselect_b32 s61, s9, s15
    s_and_b32 s56, s{WV}, 3
    s_lshl_b32 s56, s56, 17
    s_and_b32 s57, s{CG}, 7
    s_lshl_b32 s57, s57, 7
    s_add_u32 s56, s56, s57
    s_add_u32 s60, s60, s56
    s_addc_u32 s61, s61, 0
    s_sub_u32 s62, 524288, s56
    s_mov_b32 s63, 0x20000
    s_lshl_b32 s58, s{WV}, 14
    s_mov_b32 s59, 0
    """)

def phase_c(a):
    MT64, NT, KQ, TT = 30, 31, 32, 33
    OF = 64
    ACC = 128
    a(f"""
    s_lshl_b32 s{MT64}, s{MT}, 1
    s_lshr_b32 s40, s{CG}, 3
    s_add_u32 s{MT64}, s{MT64}, s40
    s_and_b32 s{NT}, s{CG}, 7
    s_lshr_b32 s{KQ}, s{WV}, 1
    s_and_b32 s{TT}, s{WV}, 1
    v_lshrrev_b32 v5, 4, v1
    s_lshl_b32 s44, s{MT}, 9
    s_lshr_b32 s40, s{CG}, 3
    s_lshl_b32 s40, s40, 8
    s_add_u32 s44, s44, s40
    s_lshl_b32 s40, s{KQ}, 6
    s_add_u32 s44, s44, s40
    s_add_u32 s44, s44, {WS_F+2048}
    v_lshlrev_b32 v6, 2, v1
    s_mov_b32 s47, 0
    s_lshl_b32 s45, s{MT64}, 1
    s_add_u32 s45, s45, s{TT}
    s_lshl_b32 s45, s45, 6
    s_lshl_b32 s46, s{KQ}, 4
    s_add_u32 s45, s45, s46
    s_lshl_b32 s45, s45, 10
    s_add_u32 s45, s45, {WS_O}
    """)
    if OPT.get("oflag", 0):
        for g in range(4):
            m = 0xf << (4*g)
            a(f"s_and_b32 s40, s47, {m}")
            a(f"s_cmp_eq_u32 s40, {m}")
            a(f"s_cbranch_scc1 C_rdy{g}")
            a("s_mov_b32 s69, 0")
            a.lab(f"C_poll{g}")
            a(f"""
            s_mov_b64 exec, 0xffff
            buffer_load_dword v7, v6, {WSRD}, s44 offen sc1
            s_add_u32 s69, s69, 1
            s_waitcnt vmcnt(0)
            v_cmp_eq_u32 vcc, s{NONCE}, v7
            s_mov_b64 exec, -1
            s_mov_b32 s47, vcc_lo
            s_and_b32 s40, s47, {m}
            s_cmp_eq_u32 s40, {m}
            s_cbranch_scc1 C_rdy{g}
            s_sleep {OPT.get("sleep", 4)}
            s_cmp_lt_u32 s69, 200000
            s_cbranch_scc1 C_poll{g}
            """)
            a.lab(f"C_rdy{g}")
            if g == 3:
                stamp(a, 8)
            for i in range(4*g, 4*g+4):
                a(f"buffer_load_dwordx4 {vr(OF+4*i,4)}, v2, {WSRD}, s45 offen offset:{(i%4)*1024} sc1")
            if g < 3:
                a("s_add_u32 s45, s45, 4096")
    elif OPT.get("cprog", 1):
        a(f"""
        s_lshl_b32 s44, s{MT}, 9
        s_add_u32 s44, s44, {WS_F+2048}
        s_lshl_b32 s50, s{KQ}, 2
        s_lshl_b32 s51, 1, s{CG}
        s_mov_b32 s47, s51
        v_mov_b32 v8, {RELAY+8}
        s_mov_b32 s69, 0
        s_cmp_eq_u32 s{WV}, 7
        s_cbranch_scc1 C_poller
        """)
        def oloads(g):
            for i in range(4*g, 4*g+4):
                a(f"buffer_load_dwordx4 {vr(OF+4*i,4)}, v2, {WSRD}, s45 offen offset:{(i%4)*1024} sc1")
            if g < 3:
                a("s_add_u32 s45, s45, 4096")
        for g in range(4):
            a.lab(f"C_lw{g}")
            a("s_bitcmp1_b32 s47, s50")
            a(f"s_cbranch_scc1 C_lr{g}")
            a(f"""
            ds_read_b32 v9, v8
            s_add_u32 s69, s69, 1
            s_waitcnt lgkmcnt(0)
            v_readfirstlane_b32 s47, v9
            s_nop 3
            s_or_b32 s47, s47, s51
            s_cmp_lt_u32 s69, 4000000
            s_cbranch_scc1 C_lw{g}
            """)
            a.lab(f"C_lr{g}")
            oloads(g)
            a("s_add_u32 s50, s50, 1")
        a("s_branch C_go")
        a.lab("C_poller")
        def poll_issue():
            a("s_mov_b64 exec, 0xffff")
            a(f"buffer_load_dword v7, v6, {WSRD}, s44 offen sc1")
            a("s_mov_b64 exec, -1")
        def poll_take():
            a(f"""
            s_mov_b64 exec, 0xffff
            v_cmp_eq_u32 vcc, s{NONCE}, v7
            s_mov_b64 exec, -1
            s_or_b32 s47, vcc_lo, s51
            v_mov_b32 v9, s47
            ds_write_b32 v8, v9
            """)
        for g in range(4):
            a.lab(f"C_pw{g}")
            a("s_bitcmp1_b32 s47, s50")
            a(f"s_cbranch_scc1 C_pr{g}")
            poll_issue()
            a("s_add_u32 s69, s69, 1")
            a("s_waitcnt vmcnt(0)")
            poll_take()
            a("s_cmp_lt_u32 s69, 200000")
            a(f"s_cbranch_scc1 C_pw{g}")
            a.lab(f"C_pr{g}")
            a("s_cmp_eq_u32 s47, 0xffff")
            a(f"s_cbranch_scc1 C_pf{g}")
            poll_issue()
            for i in range(4*g, 4*g+4):
                a(f"buffer_load_dwordx4 {vr(OF+4*i,4)}, v2, {WSRD}, s45 offen offset:{(i%4)*1024} sc1")
            a("s_waitcnt vmcnt(4)")
            poll_take()
            a(f"s_branch C_pn{g}")
            a.lab(f"C_pf{g}")
            for i in range(4*g, 4*g+4):
                a(f"buffer_load_dwordx4 {vr(OF+4*i,4)}, v2, {WSRD}, s45 offen offset:{(i%4)*1024} sc1")
            a.lab(f"C_pn{g}")
            if g < 3:
                a("s_add_u32 s45, s45, 4096")
            a("s_add_u32 s50, s50, 1")
        a.lab("C_pw4")
        a("s_cmp_eq_u32 s47, 0xffff")
        a("s_cbranch_scc1 C_go")
        poll_issue()
        a("s_add_u32 s69, s69, 1")
        a("s_waitcnt vmcnt(0)")
        poll_take()
        a("s_cmp_lt_u32 s69, 200000")
        a("s_cbranch_scc1 C_pw4")
        a.lab("C_go")
        stamp(a, 8)
    else:
        a(f"""
        s_lshl_b32 s44, s{MT}, 9
        s_add_u32 s44, s44, {WS_F+2048}
        s_cmp_lg_u32 s{WV}, 0
        s_cbranch_scc1 C_wait_done
        s_mov_b32 s69, 0
        """)
        a.lab("C_poll")
        a(f"""
        s_mov_b64 exec, 0xffff
        buffer_load_dword v7, v6, {WSRD}, s44 offen sc1
        s_add_u32 s69, s69, 1
        s_waitcnt vmcnt(0)
        v_cmp_eq_u32 vcc, s{NONCE}, v7
        s_mov_b64 exec, -1
        s_cmp_eq_u32 vcc_lo, 0xffff
        s_cbranch_scc1 C_wait_done
        s_cmp_lt_u32 s69, 200000
        s_cbranch_scc1 C_poll
        """)
        a.lab("C_wait_done")
        a("s_barrier")
        stamp(a, 8)
        for i in range(16):
            if i and i % 4 == 0:
                a("s_add_u32 s45, s45, 4096")
            a(f"buffer_load_dwordx4 {vr(OF+4*i,4)}, v2, {WSRD}, s45 offen offset:{(i%4)*1024} sc1")
    a(f"""
    v_lshrrev_b32 v21, 5, v1
    v_and_b32 v26, 15, v1
    v_lshrrev_b32 v27, 2, v26
    v_lshl_add_u32 v28, v21, 2, v27
    v_lshlrev_b32 v28, 7, v28
    v_and_b32 v29, 1, v5
    v_lshlrev_b32 v29, 1, v29
    v_bfe_u32 v30, v26, 1, 1
    v_add_u32 v29, v29, v30
    v_bfe_u32 v30, v27, 1, 1
    v_lshlrev_b32 v30, 2, v30
    v_xor_b32 v29, v29, v30
    v_lshl_add_u32 v28, v29, 4, v28
    v_and_b32 v30, 1, v26
    v_lshl_add_u32 v28, v30, 3, v28
    s_lshl_b32 s40, s{KQ}, 15
    v_add_u32 v20, s40, v28
    v_xor_b32 v21, 64, v20
    """)
    WFR = [32, 40]
    def rd(i):
        f = WFR[i & 1]
        return [f"ds_read_b64_tr_b16 {vr(f+4*ct+2*u,2)}, v{20+ct} offset:{(16*i+8*u)*128}" for ct in range(2) for u in range(2)]
    for x in rd(0):
        a(x)
    for i in range(16):
        nxt = rd(i+1) if i < 15 else []
        a(f"s_waitcnt vmcnt({15-i}) lgkmcnt(0)")
        f = WFR[i & 1]
        for ct in range(2):
            d = vr(ACC+16*ct, 16)
            c = "0" if i == 0 else d
            a(f"v_mfma_f32_32x32x16_bf16 {d}, {vr(f+4*ct,4)}, {vr(OF+4*i,4)}, {c}")
            for x in nxt[2*ct:2*ct+2]:
                a(x)
    if not OPT.get('lstamp', 0): stamp(a, 9)
    a("s_barrier")
    a(f"""
    v_and_b32 v22, 31, v1
    v_lshrrev_b32 v23, 5, v1
    v_and_b32 v24, 7, v22
    v_lshlrev_b32 v25, 8, v22
    s_lshl_b32 s40, s{KQ}, 14
    s_lshl_b32 s41, s{TT}, 13
    s_add_u32 s40, s40, s41
    v_add_u32 v25, s40, v25
    s_nop 7
    s_nop 7
    """)
    for ct in range(2):
        for q4 in range(4):
            a(f"v_add_u32 v26, {ct*8+2*q4}, v23")
            a(f"v_xor_b32 v26, v26, v24")
            a(f"v_lshl_add_u32 v26, v26, 4, v25")
            a(f"ds_write_b128 v26, {vr(ACC+16*ct+4*q4,4)}")
    a("s_waitcnt lgkmcnt(0)")
    a("s_barrier")
    a("""
    v_lshrrev_b32 v22, 3, v0
    v_and_b32 v23, 7, v0
    v_and_b32 v24, 7, v22
    v_lshlrev_b32 v25, 8, v22
    v_lshlrev_b32 v27, 1, v23
    """)
    for c in range(2):
        a(f"v_add_u32 v26, {c}, v27")
        a(f"v_xor_b32 v26, v26, v24")
        a(f"v_lshl_add_u32 v26, v26, 4, v25")
        for k in range(4):
            a(f"ds_read_b128 {vr(64+k*8+c*4,4)}, v26 offset:{k*16384}")
    a(f"""
    s_mov_b32 s60, s18
    s_mov_b32 s61, s19
    s_mov_b32 s62, 2097152
    s_mov_b32 s63, 0x20000
    v_lshlrev_b32 v22, 10, v22
    v_lshl_add_u32 v22, v23, 4, v22
    s_lshl_b32 s40, s{MT64}, 16
    s_lshl_b32 s41, s{NT}, 7
    s_add_u32 s40, s40, s41
    s_waitcnt lgkmcnt(0)
    """)
    for r in range(8):
        a(f"v_add_f32 v{64+r}, v{64+r}, v{72+r}")
        a(f"v_add_f32 v{80+r}, v{80+r}, v{88+r}")
    for r in range(8):
        a(f"v_add_f32 v{64+r}, v{64+r}, v{80+r}")
    for r in range(4):
        a(f"v_cvt_pk_bf16_f32 v{64+r}, v{64+2*r}, v{64+2*r+1}")
    a("buffer_store_dwordx4 v[64:67], v22, s[60:63], s40 offen" + {0: "", 1: " sc1", 2: " nt", 3: " sc0 sc1"}[OPT.get("ost", 0)])
    if not OPT.get("lstamp", 0): stamp(a, 10)

HEAD = open("cdna_kernels/%s.s.ref" % NAME).read().split("; Override")[0]

def main(out):
    a = A()
    gen(a)
    s = HEAD
    s += "; @launch grid=(256,1,1) block=(512,1,1) lds=163840\n"
    s += '.amdgcn_target "amdgcn-amd-amdhsa--gfx950"\n'
    s += a.text()
    s += f""".section .rodata,"a"
.p2align 6
.amdhsa_kernel {KNAME}
  .amdhsa_next_free_vgpr 256
  .amdhsa_next_free_sgpr 102
  .amdhsa_accum_offset 256
  .amdhsa_group_segment_fixed_size 0
  .amdhsa_kernarg_size 80
  .amdhsa_user_sgpr_count 2
  .amdhsa_user_sgpr_kernarg_segment_ptr 1
  .amdhsa_system_sgpr_workgroup_id_x 1
.end_amdhsa_kernel
"""
    open(out, "w").write(s)

if __name__ == "__main__":
    if "--prof" in sys.argv:
        PROF = True
        sys.argv.remove("--prof")
    for x in list(sys.argv):
        if x.startswith("--") and "=" in x:
            k, v = x[2:].split("=")
            OPT[k] = int(v)
            sys.argv.remove(x)
    set_nslot(OPT.get("nslot", 3))
    main(sys.argv[1] if len(sys.argv) > 1 else "fused3.s")
```

```python
import sys, struct

NAME = "gated_mix__mha_block__mha_block__prompt"
KNAME = NAME + "_kernel"
WS_KV = 4 << 20
WS_O = 12 << 20
WS_F = 16 << 20
WS_GF = WS_F + 2048 + 8192
WS_G = WS_GF + 2048
WS_END = WS_G + 8192
RELAY = 160000
NONCE = 68
WS_T = 32 << 20
QSCALE = 0.25 * 1.4426950408889634
LOG2E = 1.4426950408889634
PROF = False
OPT = dict(prio=3, rot=1, pfu=0, D=4, cpf=1, sch=2, wpf=1)
NST = 12
SB = 70

def f32(x):
    return "0x%08x" % struct.unpack("<I", struct.pack("<f", x))[0]

class A:
    def __init__(self):
        self.l = []
    def __call__(self, s):
        for x in s.strip().split("\n"):
            if x.strip():
                self.l.append("  " + x.strip())
    def lab(self, s):
        self.l.append(s + ":")
    def raw(self, s):
        self.l.append(s)
    def text(self):
        return "\n".join(self.l) + "\n"

def vr(b, n):
    return f"v[{b}:{b+n-1}]"
def u32(x):
    return x & 0xffffffff

def GM():
    return OPT.get('gm', 2)
def GMF():
    return GM() == 1
def stamp(a, k):
    if PROF:
        a(f"s_memtime s[{SB+2*k}:{SB+2*k+1}]")

WV = 3
XCD, SLOT_ = 24, 25
CG, MT, BB, HG = 26, 27, 28, 29
SRDW = 36
DBG = 20
WS = 22
WSRD = f"s[{SRDW}:{SRDW+3}]"

def gen(a):
    a.raw(".text")
    a.raw(f".globl {KNAME}")
    a.raw(".p2align 8")
    a.raw(f".type {KNAME},@function")
    a.lab(KNAME)
    a("s_cmp_ge_u32 s2, 256")
    a("s_cbranch_scc1 L_end")
    if PROF:
        a(f"s_memrealtime s[{SB+2*NST}:{SB+2*NST+1}]")
        stamp(a, 0)
    a(f"""
    s_load_dwordx4 s[4:7], s[0:1], 0
    s_load_dwordx2 s[8:9], s[0:1], 16
    s_load_dwordx4 s[12:15], s[0:1], 32
    s_load_dwordx4 s[16:19], s[0:1], 48
    s_load_dwordx4 s[20:23], s[0:1], 64
    v_lshrrev_b32 v2, 6, v0
    v_and_b32 v1, 63, v0
    s_and_b32 s{XCD}, s2, 7
    s_lshr_b32 s{SLOT_}, s2, 3
    """)
    if OPT.get("badmap", 0):
        a(f"""
        s_lshr_b32 s40, s2, 3
        s_xor_b32 s{XCD}, s{XCD}, s40
        s_lshr_b32 s40, s2, 6
        s_xor_b32 s{XCD}, s{XCD}, s40
        s_and_b32 s{XCD}, s{XCD}, 7
        """)
    a(f"""
    v_readfirstlane_b32 s{WV}, v2
    v_lshlrev_b32 v2, 4, v1
    s_lshr_b32 s40, s{XCD}, 1
    s_lshl_b32 s40, s40, 2
    s_and_b32 s41, s{SLOT_}, 3
    s_add_u32 s{CG}, s40, s41
    s_lshr_b32 s{BB}, s{CG}, 3
    s_and_b32 s{HG}, s{CG}, 7
    s_and_b32 s{MT}, s{XCD}, 1
    s_lshl_b32 s{MT}, s{MT}, 3
    s_lshr_b32 s41, s{SLOT_}, 2
    s_add_u32 s{MT}, s{MT}, s41
    """)
    if OPT.get("diag", 0):
        a("s_memrealtime s[94:95]")
        a("s_memtime s[96:97]")
    phase_a(a)
    phase_b(a)
    phase_c(a)
    if OPT.get("diag", 0):
        a(f"""
        s_waitcnt vmcnt(0)
        s_memrealtime s[90:91]
        s_memtime s[92:93]
        s_waitcnt lgkmcnt(0)
        s_sub_u32 s92, s92, s96
        s_not_b32 s94, s94
        s_and_b32 s91, s2, 15
        s_or_b32 s91, s91, s{WV}
        s_cmp_lg_u32 s91, 0
        s_cbranch_scc1 L_end
        s_mov_b64 exec, 1
        v_mov_b32 v4, 16
        v_mov_b32 v5, s92
        global_atomic_umax v4, v5, s[{DBG}:{DBG+1}]
        v_mov_b32 v4, 20
        v_mov_b32 v5, s90
        global_atomic_umax v4, v5, s[{DBG}:{DBG+1}]
        v_mov_b32 v4, 24
        v_mov_b32 v5, s94
        global_atomic_umax v4, v5, s[{DBG}:{DBG+1}]
        s_mov_b64 exec, -1
        """)
    if PROF:
        a("s_waitcnt vmcnt(0)")
        a(f"s_memrealtime s[{SB+2*NST+2}:{SB+2*NST+3}]")
        stamp(a, NST-1)
        a("s_waitcnt lgkmcnt(0)")
        if OPT.get("lprof", 0):
            for k, r in ((8, 98), (9, 99), (10, 100)):
                a(f"s_add_u32 s{SB+2*k}, s{SB}, s{r}")
                a(f"s_addc_u32 s{SB+2*k+1}, s{SB+1}, 0")
            a.lab("L_nolp")
        a(f"""
        s_lshl_b32 s40, s2, 4
        s_add_u32 s40, s40, s{WV}
        s_lshl_b32 s40, s40, 7
        s_add_u32 s40, s40, {WS_T}
        s_add_u32 s40, s{WS}, s40
        s_addc_u32 s41, s{WS+1}, 0
        s_mov_b64 exec, 1
        v_mov_b32 v4, 0
        """)
        for k in range(NST+2):
            a(f"v_mov_b32 v6, s{SB+2*k}")
            a(f"v_mov_b32 v7, s{SB+2*k+1}")
            a(f"global_store_dwordx2 v4, v[6:7], s[40:41] offset:{8*k}")
            a("s_nop 1")
    a.lab("L_end")
    a("s_endpgm")
    a.lab("L_codeend")

SLOT = 40960
NSLOT = 3
GIMG = NSLOT * SLOT
def set_nslot(n):
    global NSLOT, GIMG
    NSLOT = n
    GIMG = 3 * SLOT
QX, KVX, GX = 0, 16384, 49152

def v_init(a, t0, t1):
    a(f"""
    v_and_b32 v{t0}, 27, v1
    v_cmp_eq_u32 vcc, 16, v{t0}
    v_mov_b32 v{t1}, 0x3f803f80
    s_nop 0
    v_cndmask_b32 v{t0}, 0, v{t1}, vcc
    """)
    for r in range(64):
        a(f"v_mov_b32 v{192+r}, v{t0}")

def phase_a(a):
    a(f"""
    v_lshrrev_b32 v5, 4, v1
    s_cmp_ge_u32 s{WV}, 4
    s_cbranch_scc0 A_compute
    """)
    LW = 30
    a(f"""
    s_sub_u32 s{LW}, s{WV}, 4
    s_setprio 3
    v_lshrrev_b32 v3, 3, v1
    v_and_b32 v4, 7, v1
    v_xor_b32 v6, v4, v5
    v_lshlrev_b32 v6, 4, v6
    v_lshl_add_u32 v10, v3, 10, v6
    v_add_u32 v7, 4, v5
    v_xor_b32 v7, v4, v7
    v_lshlrev_b32 v7, 4, v7
    v_lshl_add_u32 v11, v3, 10, v7
    v_and_b32 v8, 1, v5
    v_lshlrev_b32 v8, 2, v8
    v_xor_b32 v8, v4, v8
    v_lshlrev_b32 v8, 4, v8
    v_mul_u32_u24 v9, 3072, v3
    v_add_u32 v12, v9, v8
    s_lshl_b32 s54, s{LW}, 15
    """)
    for u in range(4):
        a(f"s_add_u32 s{44+u}, s54, {u*8192}")
    a(f"s_mul_i32 s54, s{LW}, 49152")
    for g3 in range(3):
        for e in range(2):
            a(f"s_add_u32 s{48+g3*2+e}, s54, {g3*1024 + e*8*3072}")
    a(f"""
    s_lshl_b32 s55, s{LW}, 12
    s_lshl_b32 s56, s{LW}, 11
    s_add_u32 s56, s56, 16384
    s_lshl_b32 s40, s{MT}, 17
    s_lshl_b32 s41, s{HG}, 7
    s_mov_b32 s62, 131072
    s_mov_b32 s63, 0x20000
    s_sub_u32 s34, 1572864, s41
    s_mov_b32 s35, 0x20000
    """)
    if OPT["rot"]:
        a(f"s_mov_b32 s57, s{XCD}")
    else:
        a("s_mov_b32 s57, 0")
    a(f"""
    s_lshl_b32 s42, s57, 7
    v_add_u32 v10, s42, v10
    v_add_u32 v11, s42, v11
    s_mul_i32 s42, s57, 196608
    v_add_u32 v12, s42, v12
    s_mov_b32 s64, {u32(-896)}
    s_mov_b32 s65, 128
    s_mov_b32 s66, {u32(-7*196608)}
    s_mov_b32 s67, 196608
    s_waitcnt lgkmcnt(0)
    s_cmp_eq_u32 s{BB}, 0
    s_cselect_b32 s32, s6, s12
    s_cselect_b32 s33, s7, s13
    s_add_u32 s60, s4, s40
    s_addc_u32 s61, s5, 0
    s_add_u32 s32, s32, s41
    s_addc_u32 s33, s33, 0
    """)
    def issue_stage(extra=None):
        extra = list(extra or [])
        seq = [("w",0,0),("x",0,0),("w",0,1),("x",1,0),("w",1,0),("x",2,0),("w",1,1),("x",3,0),("w",2,0),("w",2,1)]
        for n, (kind, i, e) in enumerate(seq):
            if kind == "x":
                a(f"s_add_u32 m0, s55, {i*1024}")
                a("s_add_u32 s57, s57, 1" if n == 1 else ("s_and_b32 s57, s57, 7" if n == 3 else "s_nop 0"))
                a(f"buffer_load_dwordx4 v{10+(i&1)}, s[60:63], s{44+i} offen lds")
            else:
                a(f"s_add_u32 m0, s56, {i*8192+e*1024}")
                a("s_cmp_eq_u32 s57, 0" if n == 4 else "s_nop 0")
                a(f"buffer_load_dwordx4 v12, s[32:35], s{48+i*2+e} offen lds")
                if n == 4:
                    a("s_cselect_b32 s42, s64, s65")
                    a("s_cselect_b32 s43, s66, s67")
            if n >= 2 and extra:
                k = 1 if n == 2 else 3
                for _ in range(k):
                    if extra: a(extra.pop(0))
        for x in extra:
            a(x)
        a("v_add_u32 v10, s42, v10")
        a("v_add_u32 v11, s42, v11")
        a("v_add_u32 v12, s43, v12")
        a(f"s_add_u32 s55, s55, {SLOT}")
        a(f"s_add_u32 s56, s56, {SLOT}")
        a(f"s_cmp_ge_u32 s56, {NSLOT*SLOT}")
        a(f"s_cselect_b32 s54, {NSLOT*SLOT}, 0")
        a("s_sub_u32 s55, s55, s54")
        a("s_sub_u32 s56, s56, s54")
    a(f"""
    s_mov_b32 s{SRDW}, s16
    s_mov_b32 s{SRDW+1}, s17
    s_mov_b32 s{SRDW+2}, 1024
    s_mov_b32 s{SRDW+3}, 0x20000
    s_lshl_b32 s43, s{LW}, 8
    s_add_u32 m0, s43, {GIMG}
    """)
    if GM() == 2:
        pass
    elif not OPT.get("nogate", 0):
        a(f"""
        s_mov_b64 exec, 0xffff
        buffer_load_dwordx4 v2, {WSRD}, s43 offen lds
        s_mov_b64 exec, -1
        """)
    if GM() == 0:
        a(f"""
        v_and_b32 v20, 31, v1
        v_lshrrev_b32 v21, 5, v1
        v_lshrrev_b32 v22, 1, v1
        v_and_b32 v22, 7, v22
        s_lshl_b32 s40, s{LW}, 12
        v_lshlrev_b32 v23, 7, v20
        v_add_u32 v23, s40, v23
        """)
        for ks in range(4):
            a(f"v_add_u32 v24, {2*ks}, v21")
            a(f"v_xor_b32 v24, v24, v22")
            a(f"v_lshl_add_u32 v{16+ks}, v24, 4, v23")
        a(f"""
        v_lshlrev_b32 v15, 4, v21
        v_add_u32 v15, {GIMG}, v15
        v_mov_b32 v64, 0
        s_mov_b32 s59, 0
        """)
        if OPT["rot"]:
            a(f"s_mov_b32 s31, s{XCD}")
        else:
            a("s_mov_b32 s31, 0")
    LK = OPT.get("look", 2)
    if OPT.get("pfwait", 0):
        a("s_barrier")
    for _ in range(LK):
        issue_stage()
    v_init(a, 60, 61)
    def gate_reads():
        if OPT.get("nogate", 0) or GM() != 0: return
        a("s_lshl_b32 s40, s31, 7")
        a("v_add_u32 v14, s40, v15")
        for ks in range(4):
            a(f"v_add_u32 v24, s59, v{16+ks}")
            a(f"ds_read_b128 {vr(28+8*ks,4)}, v24")
            a(f"ds_read_b128 {vr(32+8*ks,4)}, v14 offset:{ks*32}")
        a("s_add_u32 s31, s31, 1")
        a("s_and_b32 s31, s31, 7")
        a(f"s_add_u32 s59, s59, {SLOT}")
        a(f"s_cmp_ge_u32 s59, {NSLOT*SLOT}")
        a(f"s_cselect_b32 s40, {NSLOT*SLOT}, 0")
        a("s_sub_u32 s59, s59, s40")
    def gate_dots():
        if OPT.get("nogate", 0) or GM() != 0: return
        a("s_waitcnt lgkmcnt(0)")
        for ks in range(4):
            for q in range(4):
                a(f"v_dot2c_f32_bf16 v64, v{28+8*ks+q}, v{32+8*ks+q}")
    if OPT.get("ldprio", 0) == 0:
        a("s_setprio 0")
    a("s_mov_b32 s58, 0")
    LP = PROF and OPT.get("lprof", 0)
    def tick(acc):
        if LP:
            a("s_memtime s[88:89]")
            a("s_waitcnt lgkmcnt(0)")
            a("s_sub_u32 s87, s88, s86")
            a(f"s_add_u32 s{acc}, s{acc}, s87")
            a("s_mov_b32 s86, s88")
    if LP:
        a("s_memtime s[88:89]")
        a("s_waitcnt lgkmcnt(0)")
        a("s_mov_b32 s86, s88")
        a("s_mov_b32 s80, 0"); a("s_mov_b32 s81, 0"); a("s_mov_b32 s82, 0"); a("s_mov_b32 s83, 0"); a("s_mov_b32 s84, 0"); a("s_mov_b32 s85, 0")
    a.lab("A_ld_loop")
    a(f"s_waitcnt vmcnt({10*(LK-1)})")
    tick(80)
    a("s_barrier")
    tick(82)
    gate_reads()
    issue_stage(None if (OPT.get("nogate", 0) or GM() != 0) else ["s_waitcnt lgkmcnt(0)"] + [f"v_dot2c_f32_bf16 v64, v{28+8*ks+q}, v{32+8*ks+q}" for ks in range(4) for q in range(4)])
    tick(84)
    a("s_add_u32 s58, s58, 1")
    a(f"s_cmp_lt_u32 s58, {8-LK}")
    a("s_cbranch_scc1 A_ld_loop")
    if GM() == 2:
        a(f"""
        s_mov_b32 s{SRDW}, s16
        s_mov_b32 s{SRDW+1}, s17
        s_mov_b32 s{SRDW+2}, 1024
        s_mov_b32 s{SRDW+3}, 0x20000
        v_and_b32 v13, 15, v1
        v_lshlrev_b32 v13, 4, v13
        v_lshl_add_u32 v14, v5, 10, v13
        s_lshl_b32 s40, s{CG}, 3
        s_and_b32 s41, s{LW}, 1
        s_lshl_b32 s41, s41, 2
        s_add_u32 s29, s40, s41
        s_lshl_b32 s41, s29, 10
        s_cmp_ge_u32 s{LW}, 2
        s_cbranch_scc1 A_nogl
        """)
        for i in range(4):
            a(f"buffer_load_dwordx4 {vr(16+4*i,4)}, v14, s[60:63], s41 offen offset:{256*i}")
        for i in range(4):
            a(f"buffer_load_dwordx4 {vr(32+4*i,4)}, v13, {WSRD}, 0 offen offset:{256*i}")
        a.lab("A_nogl")
    for k in range(LK):
        a(f"s_waitcnt vmcnt({10*(LK-1-k)})")
        a("s_barrier")
        gate_reads()
        gate_dots()
    if LP:
        a("s_mov_b32 s98, s80"); a("s_mov_b32 s99, s82"); a("s_mov_b32 s100, s84")
    a("s_setprio 0")
    a(f"""
    s_mov_b32 s{SRDW}, s{WS}
    s_mov_b32 s{SRDW+1}, s{WS+1}
    s_mov_b32 s{SRDW+2}, {WS_END}
    s_mov_b32 s{SRDW+3}, 0x20000
    """)
    if GM() == 1:
        a("s_barrier")
    elif GM() == 2:
        a("s_barrier")
        a(f"s_cmp_ge_u32 s{LW}, 2")
        a("s_cbranch_scc1 A_join")
        a("v_mov_b32 v48, 0")
        a("s_waitcnt vmcnt(0)")
        for i in range(16):
            a(f"v_dot2c_f32_bf16 v48, v{16+i}, v{32+i}")
        a("s_nop 3")
        for rot in (8, 4, 2, 1):
            a(f"v_add_f32_dpp v48, v48, v48 row_ror:{rot} row_mask:0xf bank_mask:0xf")
            a("s_nop 1")
        a(f"""
        v_mul_f32 v48, {f32(-LOG2E)}, v48
        v_exp_f32 v48, v48
        s_nop 0
        v_add_f32 v48, 1.0, v48
        v_rcp_f32 v48, v48
        s_lshl_b32 s41, s{MT}, 7
        s_add_u32 s41, s41, s29
        s_lshl_b32 s41, s41, 2
        s_add_u32 s41, s41, {WS_G}
        v_lshlrev_b32 v49, 2, v5
        v_and_b32 v50, 15, v1
        v_cmp_eq_u32 vcc, 0, v50
        s_and_saveexec_b64 s[58:59], vcc
        buffer_store_dword v48, v49, {WSRD}, s41 offen sc1
        s_mov_b64 exec, s[58:59]
        """)
    else:
        a(f"""
        s_nop 3
        v_mov_b32 v20, v64
        s_nop 1
        v_permlane32_swap_b32 v64, v20
        s_nop 1
        v_add_f32 v64, v64, v20
        v_mul_f32 v64, {f32(-LOG2E)}, v64
        v_exp_f32 v64, v64
        s_nop 0
        v_add_f32 v64, 1.0, v64
        v_rcp_f32 v64, v64
        s_nop 0
        v_sub_f32 v20, 1.0, v64
        s_cmp_eq_u32 s{BB}, 0
        s_cselect_b64 vcc, -1, 0
        s_nop 1
        v_cndmask_b32 v20, v20, v64, vcc
        v_and_b32 v19, 31, v1
        v_lshlrev_b32 v19, 2, v19
        s_lshl_b32 s41, s{LW}, 7
        v_add_u32 v19, s41, v19
        s_barrier
        ds_write_b32 v19, v20 offset:{GX}
        """)
    a("""
    s_branch A_join
    """)
    a.lab("A_compute")
    WM, WN = 30, 31
    a(f"""
    s_and_b32 s{WM}, s{WV}, 1
    s_lshr_b32 s{WN}, s{WV}, 1
    v_and_b32 v20, 31, v1
    v_lshrrev_b32 v21, 5, v1
    v_lshrrev_b32 v22, 1, v1
    v_and_b32 v22, 7, v22
    s_lshl_b32 s40, s{WM}, 13
    v_lshlrev_b32 v23, 7, v20
    v_add_u32 v23, s40, v23
    """)
    for ks in range(4):
        a(f"v_add_u32 v24, {2*ks}, v21")
        a(f"v_xor_b32 v24, v24, v22")
        a(f"v_lshl_add_u32 v{16+ks}, v24, 4, v23")
    a(f"""
    v_and_b32 v26, 15, v1
    v_lshrrev_b32 v27, 2, v26
    v_lshl_add_u32 v28, v21, 3, v27
    v_lshlrev_b32 v28, 7, v28
    v_and_b32 v29, 1, v5
    v_lshlrev_b32 v29, 1, v29
    v_bfe_u32 v30, v26, 1, 1
    v_add_u32 v29, v29, v30
    s_lshl_b32 s40, s{WN}, 2
    v_add_u32 v29, s40, v29
    v_bfe_u32 v30, v27, 1, 1
    v_lshlrev_b32 v30, 2, v30
    v_xor_b32 v29, v29, v30
    v_lshl_add_u32 v28, v29, 4, v28
    v_and_b32 v30, 1, v26
    v_lshl_add_u32 v25, v30, 3, v28
    """)
    ACC = 64
    XF = [32, 160]
    WF = [40, 168]
    GF = [52, 180]
    GACC = 192
    assert GM() != 1
    v_init(a, 190, 191)
    for r in range(0, 96, 2):
        a(f"v_mov_b64 v[{ACC+r}:{ACC+r+1}], 0")
    if GMF():
        for r in range(16):
            a(f"v_mov_b32 v{GACC+r}, 0")
        a(f"s_mov_b32 s59, s{XCD}" if OPT["rot"] else "s_mov_b32 s59, 0")
        a(f"""
        s_lshl_b32 s40, s59, 7
        v_lshlrev_b32 v15, 4, v21
        v_add_u32 v15, {GIMG}, v15
        v_add_u32 v14, s40, v15
        s_cmp_eq_u32 s{WN}, 0
        s_cselect_b64 vcc, -1, 0
        """)
    a(f"""
    s_lshl_b32 s40, s{CG}, 2
    s_lshl_b32 s41, s{WN}, 1
    s_add_u32 s40, s40, s41
    s_lshl_b32 s40, s40, 6
    s_lshl_b32 s41, s{MT}, 2
    s_add_u32 s40, s40, s41
    s_lshl_b32 s41, s{WM}, 1
    s_add_u32 s40, s40, s41
    s_lshl_b32 s46, s40, 11
    s_add_u32 s46, s46, {WS_KV}
    s_mov_b32 s48, {f32(QSCALE)}
    v_and_b32 v11, 15, v1
    v_lshlrev_b32 v11, 4, v11
    v_lshl_add_u32 v11, v21, 9, v11
    v_bfe_u32 v12, v1, 4, 1
    v_lshl_add_u32 v13, v12, 13, v11
    v_lshl_add_u32 v11, v12, 17, v11
    v_add_u32 v11, 1024, v11
    s_add_u32 s47, s46, 131072
    s_mov_b32 s{SRDW+2}, {WS_END}
    s_mov_b32 s{SRDW+3}, 0x20000
    s_mov_b32 s57, 0
    s_mov_b32 s58, 0
    """)
    def set_addr():
        for ks in range(4):
            a(f"v_add_u32 v{20+ks}, s57, v{16+ks}")
        a("v_add_u32 v24, s57, v25")
    set_addr()
    a("s_waitcnt lgkmcnt(0)")
    a(f"s_mov_b32 s{SRDW}, s{WS}")
    a(f"s_mov_b32 s{SRDW+1}, s{WS+1}")
    if OPT.get("wpf", 0):
        a(f"""
        s_lshl_b32 s40, s2, 2
        s_add_u32 s40, s40, s{WV}
        s_and_b32 s41, s40, 511
        s_mul_i32 s41, s41, 3072
        s_cmp_lt_u32 s40, 512
        s_cselect_b32 s42, s6, s12
        s_cselect_b32 s43, s7, s13
        s_add_u32 s42, s42, s41
        s_addc_u32 s43, s43, 0
        global_load_dwordx4 v[180:183], v2, s[42:43]
        global_load_dwordx4 v[180:183], v2, s[42:43] offset:1024
        global_load_dwordx4 v[180:183], v2, s[42:43] offset:2048
        s_lshl_b32 s40, s2, 3
        s_lshl_b32 s41, s{WV}, 1
        s_add_u32 s40, s40, s41
        s_lshl_b32 s40, s40, 10
        s_add_u32 s42, s4, s40
        s_addc_u32 s43, s5, 0
        global_load_dwordx4 v[180:183], v2, s[42:43]
        global_load_dwordx4 v[180:183], v2, s[42:43] offset:1024
        """)
    if OPT.get("xpf", 0):
        a(f"""
        s_and_b32 s40, s{XCD}, 1
        s_lshl_b32 s40, s40, 10
        s_lshl_b32 s41, s{SLOT_}, 5
        s_add_u32 s40, s40, s41
        s_lshl_b32 s41, s{WV}, 3
        s_add_u32 s40, s40, s41
        s_lshl_b32 s40, s40, 10
        s_add_u32 s42, s4, s40
        s_addc_u32 s43, s5, 0
        v_mov_b32 v212, v2
        """)
        a(f"""
        s_cmp_eq_u32 s{BB}, 0
        s_cselect_b32 s44, s6, s12
        s_cselect_b32 s45, s7, s13
        s_lshl_b32 s40, s{SLOT_}, 4
        s_lshl_b32 s41, s{WV}, 2
        s_add_u32 s40, s40, s41
        s_mul_i32 s40, s40, 3072
        s_and_b32 s41, s{HG}, 4
        s_lshl_b32 s41, s41, 7
        s_add_u32 s40, s40, s41
        s_add_u32 s44, s44, s40
        s_addc_u32 s45, s45, 0
        v_lshrrev_b32 v213, 5, v1
        v_mul_u32_u24 v213, 3072, v213
        v_and_b32 v214, 31, v1
        v_lshl_add_u32 v213, v214, 4, v213
        v_add_u32 v214, 6144, v213
        """)
        for t in range(3):
            a(f"global_load_dwordx4 v[208:211], v213, s[44:45] offset:{t*1024}")
            a(f"global_load_dwordx4 v[208:211], v214, s[44:45] offset:{t*1024}")
        for i in range(8):
            a(f"global_load_dwordx4 v[208:211], v212, s[42:43]")
            if i < 7: a("v_add_u32 v212, 1024, v212")
    if OPT.get("pfwait", 0):
        a("s_waitcnt vmcnt(0)")
        a("s_barrier")
    if OPT.get("cpf", 0):
        a(f"""
        s_cmp_lg_u32 s{WV}, 3
        s_cbranch_scc1 A_nocpf
        s_cmp_ge_u32 s{SLOT_}, (L_codeend-{KNAME})>>10
        s_cbranch_scc1 A_nocpf
        s_getpc_b64 s[42:43]
        """)
        a.lab("A_pc")
        a(f"""
        s_sub_u32 s42, s42, A_pc-{KNAME}
        s_subb_u32 s43, s43, 0
        s_lshl_b32 s40, s{SLOT_}, 10
        s_add_u32 s42, s42, s40
        s_addc_u32 s43, s43, 0
        global_load_dwordx4 v[180:183], v2, s[42:43]
        """)
        a.lab("A_nocpf")
    if OPT.get("pt", 0):
        a(f"""
        s_cmp_lg_u32 s{WV}, 1
        s_cbranch_scc1 A_nopt1
        s_lshl_b32 s40, s{CG}, 19
        s_add_u32 s40, s40, {WS_KV}
        v_lshlrev_b32 v212, 13, v1
        buffer_load_dword v208, v212, {WSRD}, s40 offen
        """)
        a.lab("A_nopt1")
        a(f"""
        s_cmp_lg_u32 s{WV}, 2
        s_cbranch_scc1 A_nopt2
        v_lshlrev_b32 v212, 16, v1
        s_mov_b32 s40, {WS_O}
        buffer_load_dword v208, v212, {WSRD}, s40 offen
        v_mov_b32 v213, 0
        s_mov_b32 s40, {WS_F}
        buffer_load_dword v209, v213, {WSRD}, s40 offen
        v_lshlrev_b32 v213, 15, v1
        global_load_dword v210, v213, s[18:19]
        v_lshlrev_b32 v214, 13, v1
        global_load_dword v211, v214, s[8:9]
        global_load_dword v211, v214, s[14:15]
        """)
        a.lab("A_nopt2")
    a(f"""
    s_cmp_lg_u32 s{WV}, 0
    s_cbranch_scc1 A_nononce
    s_memrealtime s[40:41]
    s_waitcnt lgkmcnt(0)
    s_or_b32 s40, s40, 1
    v_mov_b32 v186, s40
    v_mov_b32 v187, 0
    v_mov_b32 v188, 0
    s_mov_b64 exec, 1
    global_atomic_cmpswap v189, v188, v[186:187], s[{DBG}:{DBG+1}] sc0
    s_mov_b64 exec, -1
    """)
    a.lab("A_nononce")
    def read_list(ks, f):
        r = []
        r.append(f"ds_read_b64_tr_b16 {vr(WF[f]+0,2)}, v24 offset:{16384+(16*ks+0)*128}")
        r.append(f"ds_read_b64_tr_b16 {vr(WF[f]+2,2)}, v24 offset:{16384+(16*ks+4)*128}")
        r.append(f"ds_read_b128 {vr(XF[f],4)}, v{20+ks} offset:0")
        r.append(f"ds_read_b128 {vr(XF[f]+4,4)}, v{20+ks} offset:4096")
        for g3 in (1, 2):
            for u in range(2):
                r.append(f"ds_read_b64_tr_b16 {vr(WF[f]+4*g3+2*u,2)}, v24 offset:{16384+g3*8192+(16*ks+4*u)*128}")
        if GMF():
            r.append(f"ds_read_b128 {vr(GF[f],4)}, v14 offset:{ks*32}")
        return r
    gl = [0]
    FW = OPT.get("finewait", 1)
    def group(f, rl, barrier=False):
        order = [(0,0),(0,1),(1,0),(1,1),(2,0),(2,1)]
        nold = 9 if GMF() else 8
        need = {0: 3, 1: 4, 2: 6, 4: 8}
        rl = list(rl)
        issued = 0
        per = OPT.get("rpg", 2)
        for i, (g3, tt) in enumerate(order):
            if FW and i in need:
                a(f"s_waitcnt lgkmcnt({min(15, nold - need[i] + issued)})")
            x = vr(XF[f]+4*tt, 4); w = vr(WF[f]+4*g3, 4); d = vr(ACC+16*(tt*3+g3), 16)
            if g3 < 2:
                a(f"v_mfma_f32_32x32x16_bf16 {d}, {w}, {x}, {d}")
            else:
                a(f"v_mfma_f32_32x32x16_bf16 {d}, {x}, {w}, {d}")
            if i == 0 and barrier:
                if PROF and OPT.get("lprof", 0):
                    a("s_memtime s[88:89]")
                a(f"s_waitcnt lgkmcnt(0)")
                a("s_barrier")
                if PROF and OPT.get("lprof", 0):
                    a("s_memtime s[86:87]")
                    a("s_waitcnt lgkmcnt(0)")
                    a("s_sub_u32 s86, s86, s88")
                    a("s_add_u32 s98, s98, s86")
            for _ in range(per):
                if rl:
                    a(rl.pop(0)); issued += 1
        if GMF():
            if FW:
                a(f"s_waitcnt lgkmcnt({min(15, issued)})")
            n = gl[0]; gl[0] += 1
            d = vr(GACC, 16)
            a(f"s_cbranch_vccz A_g{n}a")
            a(f"v_mfma_f32_32x32x16_bf16 {d}, {vr(GF[f],4)}, {vr(XF[f],4)}, {d}")
            a(f"s_branch A_g{n}b")
            a.lab(f"A_g{n}a")
            a(f"v_mfma_f32_32x32x16_bf16 {d}, {vr(GF[f],4)}, {vr(XF[f]+4,4)}, {d}")
            a.lab(f"A_g{n}b")
        for x in rl:
            a(x)
    a("s_barrier")
    stamp(a, 1)
    for x in read_list(0, 0):
        a(x)
    if PROF and OPT.get("lprof", 0):
        a("s_mov_b32 s98, 0"); a("s_mov_b32 s99, 0"); a("s_mov_b32 s100, 0")
    a.lab("A_loop")
    for ks in range(3):
        if not FW: a("s_waitcnt lgkmcnt(0)")
        group(ks & 1, read_list(ks+1, (ks+1) & 1))
    a("s_cmp_eq_u32 s58, 7")
    a("s_cbranch_scc1 A_last")
    a(f"""
    s_add_u32 s57, s57, {SLOT}
    s_cmp_ge_u32 s57, {NSLOT*SLOT}
    s_cselect_b32 s40, {NSLOT*SLOT}, 0
    s_sub_u32 s57, s57, s40
    """)
    if GMF():
        a("""
        s_add_u32 s59, s59, 1
        s_and_b32 s59, s59, 7
        s_lshl_b32 s40, s59, 7
        v_add_u32 v14, s40, v15
        """)
    set_addr()
    if not FW: a("s_waitcnt lgkmcnt(0)")
    group(1, read_list(0, 0), barrier=True)
    a("s_add_u32 s58, s58, 1")
    a("s_branch A_loop")
    a.lab("A_last")
    if not FW: a("s_waitcnt lgkmcnt(0)")
    group(1, [])
    stamp(a, 2)
    a("s_barrier")
    a(f"""
    s_lshl_b32 s40, s{WN}, 3
    s_lshl_b32 s41, s{WM}, 1
    s_add_u32 s40, s40, s41
    s_lshl_b32 s41, s40, 10
    v_add_u32 v16, s41, v2
    s_lshl_b32 s41, s40, 11
    v_add_u32 v17, s41, v2
    v_add_u32 v18, s41, v13
    s_nop 3
    """)
    a(f"""
    s_cmp_lg_u32 s{WV}, 0
    s_cbranch_scc1 A_nononce2
    s_waitcnt vmcnt(0)
    v_cmp_eq_u32 vcc, 0, v189
    s_nop 1
    v_cndmask_b32 v186, v189, v186, vcc
    v_mov_b32 v188, {RELAY}
    s_mov_b64 exec, 1
    ds_write_b64 v188, v[186:187]
    ds_write_b32 v188, v187 offset:8
    s_mov_b64 exec, -1
    """)
    a.lab("A_nononce2")
    STF = {0: ' sc1', 1: ' sc0 sc1', 2: ' sc1 nt', 3: ' sc0 sc1 nt'}[OPT.get('stf', 0)]
    for tt in range(2):
        d = ACC + 16*(tt*3+1)
        for r in range(8):
            a(f"v_cvt_pk_bf16_f32 v{d+r}, v{d+2*r}, v{d+2*r+1}")
        a(f"buffer_store_dwordx4 {vr(d,4)}, v2, {WSRD}, s46 offen offset:{tt*2048}{STF}")
        a(f"buffer_store_dwordx4 {vr(d+4,4)}, v2, {WSRD}, s47 offen offset:{tt*2048}{STF}")
        a(f"ds_write_b128 v17, {vr(d,4)} offset:{KVX+tt*2048}")
        a(f"ds_write_b128 v17, {vr(d+4,4)} offset:{KVX+tt*2048+8192}")
        d = ACC + 16*(tt*3+2)
        for r in range(8):
            a(f"v_cvt_pk_bf16_f32 v{d+r}, v{d+2*r}, v{d+2*r+1}")
        a(f"buffer_store_dwordx4 {vr(d,4)}, v11, {WSRD}, s46 offen offset:{tt*2048}{STF}")
        a(f"buffer_store_dwordx4 {vr(d+4,4)}, v11, {WSRD}, s46 offen offset:{tt*2048+256}{STF}")
        a(f"ds_write_b128 v18, {vr(d,4)} offset:{KVX+tt*2048+1024}")
        a(f"ds_write_b128 v18, {vr(d+4,4)} offset:{KVX+tt*2048+1280}")
    for tt in range(2):
        d = ACC + 16*(tt*3+0)
        for r in range(16):
            a(f"v_mul_f32 v{d+r}, s48, v{d+r}")
        for r in range(8):
            a(f"v_cvt_pk_bf16_f32 v{d+r}, v{d+2*r}, v{d+2*r+1}")
        a(f"ds_write_b128 v16, {vr(d,4)} offset:{QX+tt*1024}")
        a(f"ds_write_b128 v16, {vr(d+4,4)} offset:{QX+tt*1024+4096}")
    if GMF():
        g = GACC
        a(f"""
        v_mul_f32 v{g}, {f32(-LOG2E)}, v{g}
        v_exp_f32 v{g}, v{g}
        s_nop 0
        v_add_f32 v{g}, 1.0, v{g}
        v_rcp_f32 v{g}, v{g}
        s_nop 0
        v_sub_f32 v20, 1.0, v{g}
        s_cmp_eq_u32 s{BB}, 0
        s_cselect_b64 vcc, -1, 0
        v_and_b32 v19, 31, v1
        v_lshlrev_b32 v19, 2, v19
        v_cndmask_b32 v20, v20, v{g}, vcc
        s_lshl_b32 s41, s{WM}, 8
        s_lshl_b32 s40, s{WN}, 7
        s_add_u32 s41, s41, s40
        v_add_u32 v19, s41, v19
        ds_write_b32 v19, v20 offset:{GX}
        """)
    a.lab("A_join")
    a("s_waitcnt lgkmcnt(0)")
    a("s_barrier")
    stamp(a, 3)

def spin(a, lab, addr_v, val_v, cond):
    a("s_mov_b32 s69, 0")
    a.lab(lab)
    a(f"global_load_dword v{val_v}, v{addr_v}, s[{DBG}:{DBG+1}] sc1")
    a("s_add_u32 s69, s69, 1")
    a("s_waitcnt vmcnt(0)")
    cond()
    a(f"s_cbranch_scc1 {lab}_ok")
    a("s_cmp_lt_u32 s69, 200000")
    a(f"s_cbranch_scc1 {lab}")
    a.lab(lab + "_ok")

def phase_b(a):
    Q = [4, 8]; S = [12, 28]; O = [44, 60]; C = [76, 92]
    KB = lambda s, u: 108 + s*16 + u*4
    VB = lambda s, u: 192 + s*32 + u*8
    G = [156, 157]; T0 = 158; T1 = 159; T2 = 160
    H4, QH, PAIR, QT = 30, 31, 32, 33
    a(f"""
    s_lshr_b32 s{H4}, s{WV}, 1
    s_and_b32 s{QH}, s{WV}, 1
    s_lshl_b32 s{PAIR}, s{CG}, 2
    s_add_u32 s{PAIR}, s{PAIR}, s{H4}
    s_lshl_b32 s{QT}, s{MT}, 2
    s_lshl_b32 s40, s{QH}, 1
    s_add_u32 s{QT}, s{QT}, s40
    s_lshl_b32 s46, s{PAIR}, 17
    s_add_u32 s46, s46, {WS_KV}
    s_lshl_b32 s40, s{H4}, 12
    s_lshl_b32 s41, s{QH}, 11
    s_add_u32 s40, s40, s41
    v_add_u32 v{T0}, s40, v2
    ds_read_b128 {vr(Q[0],4)}, v{T0} offset:{QX}
    ds_read_b128 {vr(Q[1],4)}, v{T0} offset:{QX+1024}
    v_and_b32 v{T1}, 31, v1
    v_lshlrev_b32 v{T1}, 2, v{T1}
    s_lshl_b32 s41, s{QH}, 8
    v_add_u32 v{T1}, s41, v{T1}
    """)
    if GM() != 2:
        a(f"ds_read_b32 v{G[0]}, v{T1} offset:{GX}")
        a(f"ds_read_b32 v{G[1]}, v{T1} offset:{GX+128}")
    a(f"""
    """)
    a(f"""
    s_mov_b32 s52, 0x0000ffff
    s_mov_b32 s53, 0x0000ffff
    s_lshl_b32 s40, s{H4}, 13
    v_add_u32 v{T0}, s40, v2
    """)
    for u in range(4):
        a(f"ds_read_b128 {vr(KB(0,u),4)}, v{T0} offset:{KVX+u*2048}")
    a("s_mov_b64 exec, s[52:53]")
    for u in range(4):
        a(f"ds_read_b128 {vr(VB(0,u),4)}, v{T0} offset:{KVX+u*2048+1024}")
        a(f"ds_read_b128 {vr(VB(0,u)+4,4)}, v{T0} offset:{KVX+u*2048+1280}")
    a("s_mov_b64 exec, -1")
    a(f"v_mov_b32 v{T2}, {RELAY}")
    a(f"ds_read_b32 v{T2+1}, v{T2}")
    a("s_waitcnt lgkmcnt(0)")
    a(f"v_readfirstlane_b32 s{NONCE}, v{T2+1}")
    stamp(a, 4)
    c_prefetch_setup(a)
    a("s_mov_b32 s49, 0")
    a("s_mov_b32 s50, 0")
    a("s_mov_b32 s54, 0")
    a(f"s_lshl_b32 s45, 1, s{MT}")
    if OPT.get("nodep", 0):
        a("s_mov_b32 s45, 0xffff")
        a("s_mov_b32 s49, 1")
    if OPT["prio"]:
        a("s_setprio 3")
    for x in range(2):
        a(f"v_mfma_f32_32x32x16_bf16 {vr(S[x],16)}, {vr(KB(0,0),4)}, {vr(Q[x],4)}, 0")
    a("s_nop 7")
    a("s_nop 7")
    MX = [T0, T1]
    for x in range(2):
        a(f"v_max3_f32 v{MX[x]}, v{S[x]}, v{S[x]+1}, v{S[x]+2}")
        for r in range(3, 15, 2):
            a(f"v_max3_f32 v{MX[x]}, v{MX[x]}, v{S[x]+r}, v{S[x]+r+1}")
        a(f"v_max_f32 v{MX[x]}, v{MX[x]}, v{S[x]+15}")
    a.lab("B_setmax")
    for x in range(2):
        a(f"""
        v_mov_b32 v{T2}, v{MX[x]}
        s_nop 1
        v_permlane32_swap_b32 v{MX[x]}, v{T2}
        s_nop 1
        v_max_f32 v{MX[x]}, v{MX[x]}, v{T2}
        """)
        a(f"v_sub_f32 v{C[x]}, 0, v{MX[x]}")
        a(f"v_sub_f32 v{C[x]+1}, 0, v{MX[x]}")
        for r in range(0, 16, 2):
            a(f"v_mov_b64 v[{O[x]+r}:{O[x]+r+1}], 0")
        for r in range(2, 16, 2):
            a(f"v_mov_b64 v[{C[x]+r}:{C[x]+r+1}], v[{C[x]}:{C[x]+1}]")
    a(f"v_mfma_f32_32x32x16_bf16 {vr(S[0],16)}, {vr(KB(0,0),4)}, {vr(Q[0],4)}, {vr(C[0],16)}")
    for r in range(4):
        a(f"v_mov_b32 v{148+4+r}, 0")
    if OPT.get("sch", 1) == 3:
        for r in range(8, 16):
            a(f"v_mov_b32 v{S[1]+r}, 0")
    a(f"s_mov_b32 s44, s{MT}")
    a("s_mov_b32 s55, 0")
    a("s_nop 7")
    def ex(b, lo, hi):
        for r in range(lo, hi):
            a(f"v_exp_f32 v{b+r}, v{b+r}")
    def cv(b, h):
        for r in range(4):
            a(f"v_cvt_pk_bf16_f32 v{b+4*h+r}, v{b+8*h+2*r}, v{b+8*h+2*r+1}")
    def pv(x, vb, h):
        a(f"v_mfma_f32_32x32x16_bf16 {vr(O[x],16)}, {vr(vb+4*h,4)}, {vr(S[x]+4*h,4)}, {vr(O[x],16)}")
    def pf_head(tag):
        if tag == 0 and OPT.get("D", 4) <= 4 and not (OPT.get("late", 1) and OPT.get("D", 4) == 4):
            a("s_cmp_eq_u32 s49, 0")
            a("s_cbranch_scc1 B_first")
            a.lab("B_first_ret")
        a(f"""
        s_add_u32 s44, s44, 1
        s_and_b32 s44, s44, 15
        s_bitcmp1_b32 s45, s44
        s_cbranch_scc0 B_poll{tag}
        """)
        a.lab(f"B_pf{tag}")
        a(f"""
        s_lshl_b32 s47, s44, 13
        s_add_u32 s47, s47, s46
        s_add_u32 s48, s47, 4096
        """)
    def ldk(s, u):
        so = 47 if u < 2 else 48
        a(f"buffer_load_dwordx4 {vr(KB(s,u),4)}, v2, {WSRD}, s{so} offen offset:{(u&1)*2048} sc1")
    def ldv(s, u):
        so = 47 if u < 2 else 48
        a("s_mov_b64 exec, s[52:53]")
        a(f"buffer_load_dwordx4 {vr(VB(s,u),4)}, v2, {WSRD}, s{so} offen offset:{(u&1)*2048+1024} sc1")
        a(f"buffer_load_dwordx4 {vr(VB(s,u)+4,4)}, v2, {WSRD}, s{so} offen offset:{(u&1)*2048+1280} sc1")
        a("s_mov_b64 exec, -1")
    D = OPT.get("D", 4)
    if D > 4:
        a("s_cmp_eq_u32 s49, 0")
        a("s_cbranch_scc1 B_first")
        a.lab("B_first_ret")
        pf_head(2)
        for uu in range(D - 4):
            ldk(1, uu)
            ldv(1, uu)
    a.lab("B_loop")
    SCH = OPT.get("sch", 1)
    P = [140, 148]
    def e1(b, r):
        a(f"v_exp_f32 v{b+r}, v{b+r}")
    def cvp(x, lo, hi):
        for r in range(lo, hi):
            a(f"v_cvt_pk_bf16_f32 v{P[x]+r}, v{S[x]+2*r}, v{S[x]+2*r+1}")
    def pvp(x, vb, h):
        a(f"v_mfma_f32_32x32x16_bf16 {vr(O[x],16)}, {vr(vb+4*h,4)}, {vr(P[x]+4*h,4)}, {vr(O[x],16)}")
    for s in range(2):
        for u in range(4):
            vb = VB(s, u)
            vprev = VB(s, u-1) if u > 0 else VB(1-s, 3)
            kn = KB(s, u+1) if u < 3 else KB(1-s, 0)
            L = (4*s + u + D) % 8
            qs, qu = L // 4, L % 4
            guard = (D < 4 and s == 0 and qs == s)
            if OPT["prio"] == 2 and s == 1 and u == 0:
                a("s_cmp_lg_u32 s55, 7")
                a("s_cbranch_scc1 B_pm")
                a("s_setprio 0")
                a.lab("B_pm")
            LATE = OPT.get("late", 1) and D == 4
            def do_ldk():
                if LATE and s == 0 and u <= 2:
                    if u == 2:
                        a("s_cmp_eq_u32 s49, 1")
                        a("s_cbranch_scc1 B_start")
                        a.lab("B_start_ret")
                        ldk(qs, qu)
                        return
                    a("s_cmp_lt_u32 s49, 2")
                    a(f"s_cbranch_scc1 B_late{u}")
                    if qu == 0:
                        pf_head(s)
                    ldk(qs, qu)
                    a.lab(f"B_late{u}_ret")
                    return
                if qu == 0:
                    pf_head(s)
                if guard:
                    a("s_cmp_eq_u32 s49, 0")
                    a(f"s_cbranch_scc1 B_gk{u}")
                ldk(qs, qu)
                if guard:
                    a.lab(f"B_gk{u}")
            def do_ldv():
                if LATE and s == 0 and u <= 1:
                    a("s_cmp_lt_u32 s49, 2")
                    a(f"s_cbranch_scc1 B_gv{u}")
                    ldv(qs, qu)
                    a.lab(f"B_gv{u}")
                    return
                if guard:
                    a("s_cmp_eq_u32 s49, 0")
                    a(f"s_cbranch_scc1 B_gv{u}")
                ldv(qs, qu)
                if guard:
                    a.lab(f"B_gv{u}")
                if u == 3 and s == 1:
                    a("s_cmp_lt_u32 s50, 4")
                    a("s_cbranch_scc1 B_wo")
                    a.lab("B_wo_ret")
            if SCH == 0:
                a(f"v_mfma_f32_32x32x16_bf16 {vr(S[1],16)}, {vr(KB(s,u),4)}, {vr(Q[1],4)}, {vr(C[1],16)}")
                do_ldk()
                ex(S[0], 0, 8)
                cv(S[0], 0)
                ex(S[0], 8, 16)
                a(f"s_waitcnt vmcnt({3*(D-1)+1})")
                pv(0, vb, 0)
                cv(S[0], 1)
                ex(S[1], 0, 2)
                pv(0, vb, 1)
                ex(S[1], 2, 8)
                a(f"s_waitcnt vmcnt({3*D-3})")
                a(f"v_mfma_f32_32x32x16_bf16 {vr(S[0],16)}, {vr(kn,4)}, {vr(Q[0],4)}, {vr(C[0],16)}")
                cv(S[1], 0)
                ex(S[1], 8, 16)
                pv(1, vb, 0)
                cv(S[1], 1)
                do_ldv()
                pv(1, vb, 1)
            else:
                scheds = {
                 1: "ea0-2 PVb1 ea2-8 QKb LK ca0-4 ea8-12 W PVa0 ea12-16 ca4-8 eb0-2 PVa1 eb2-7 QKa eb7-8 cb0-4 eb8-11 PVb0 LV eb11-16 cb4-8",
                 2: "ea0-2 PVb1 ea2-8 QKb LK ca0-4 ea8-12 W PVa0 ea12-16 eb0-2 ca4-8 eb2-4 PVa1 eb4-8 QKa eb8-10 cb0-4 eb10-12 PVb0 LV eb12-16 cb4-8",
                 3: "cb4-8 ea0-2 PVb1 ea2-8 QKb LK ea8-10 ca0-4 ea10-12 W PVa0 ea12-16 eb0-2 ca4-8 eb2-4 PVa1 eb4-8 QKa eb8-10 cb0-4 eb10-12 PVb0 LV eb12-16",
                 4: "ea0-4 PVb1 ea4-8 LK ca0-4 QKb ea8-12 W PVa0 ea12-16 ca4-8 eb0-2 PVa1 eb2-8 QKa cb0-4 eb8-11 PVb0 LV eb11-16 cb4-8",
                 5: "ea0-2 PVb1 ea2-6 QKb ea6-8 LK ca0-4 ea8-10 W PVa0 ea10-16 ca4-8 eb0-2 PVa1 eb2-6 QKa eb6-8 cb0-4 eb8-10 PVb0 eb10-13 LV eb13-16 cb4-8",
                }
                for tok in scheds[SCH].split():
                    if tok == "PVb1": pvp(1, vprev, 1)
                    elif tok == "PVa0": pvp(0, vb, 0)
                    elif tok == "PVa1": pvp(0, vb, 1)
                    elif tok == "PVb0": pvp(1, vb, 0)
                    elif tok == "QKb": a(f"v_mfma_f32_32x32x16_bf16 {vr(S[1],16)}, {vr(KB(s,u),4)}, {vr(Q[1],4)}, {vr(C[1],16)}")
                    elif tok == "QKa": a(f"v_mfma_f32_32x32x16_bf16 {vr(S[0],16)}, {vr(kn,4)}, {vr(Q[0],4)}, {vr(C[0],16)}")
                    elif tok == "LK": do_ldk()
                    elif tok == "LV": do_ldv()
                    elif tok == "W": a(f"s_waitcnt vmcnt({3*D-3})")
                    else:
                        x = 0 if tok[1] == "a" else 1
                        lo, hi = [int(z) for z in tok[2:].split("-")]
                        if tok[0] == "e": ex(S[x], lo, hi)
                        else: cvp(x, lo, hi)
    a("s_add_u32 s55, s55, 1")
    if OPT["prio"] == 1:
        a("""
        s_and_b32 s40, s55, 1
        s_cbranch_scc1 B_noprio
        s_cmp_eq_u32 s55, 2
        s_cbranch_scc0 B_p1
        s_setprio 2
        """)
        a.lab("B_p1")
        a("s_cmp_eq_u32 s55, 4")
        a("s_cbranch_scc0 B_p2")
        a("s_setprio 1")
        a.lab("B_p2")
        a("s_cmp_eq_u32 s55, 6")
        a("s_cbranch_scc0 B_noprio")
        a("s_setprio 0")
        a.lab("B_noprio")
    if OPT["prio"] == 3:
        a("s_cmp_lt_u32 s55, 5")
        a("s_cbranch_scc1 B_noprio")
        a("s_setprio 2")
        a("s_cmp_eq_u32 s55, 5")
        a("s_cbranch_scc1 B_noprio")
        a("s_setprio 1")
        a("s_cmp_eq_u32 s55, 6")
        a("s_cbranch_scc1 B_noprio")
        a("s_setprio 0")
        a.lab("B_noprio")
    if OPT["prio"] == 2:
        a("s_cmp_lt_u32 s55, 6")
        a("s_cbranch_scc1 B_noprio")
        a("s_setprio 2")
        a("s_cmp_eq_u32 s55, 6")
        a("s_cbranch_scc1 B_noprio")
        a("s_setprio 1")
        a.lab("B_noprio")
    a("s_cmp_ge_u32 s55, 5")
    a("s_cbranch_scc1 B_wobar")
    a.lab("B_wobar_ret")
    if PROF and OPT.get("lstamp", 0):
        a("s_cmp_eq_u32 s55, 1")
        a("s_cbranch_scc0 B_ls1")
        stamp(a, 9)
        a.lab("B_ls1")
        a(f"s_cmp_eq_u32 s55, {OPT.get('ls2', 4)}")
        a("s_cbranch_scc0 B_ls2")
        stamp(a, 10)
        a.lab("B_ls2")
    a("s_cmp_lt_u32 s55, 8")
    a("s_cbranch_scc1 B_loop")
    if OPT.get("sch", 1) == 3:
        for r in range(4, 8):
            a(f"v_cvt_pk_bf16_f32 v{148+r}, v{S[1]+2*r}, v{S[1]+2*r+1}")
    if OPT.get("sch", 1):
        a("s_nop 1")
        a(f"v_mfma_f32_32x32x16_bf16 {vr(O[1],16)}, {vr(VB(1,3)+4,4)}, {vr(148+4,4)}, {vr(O[1],16)}")
    stamp(a, 6)
    a("s_nop 7")
    a("s_nop 7")
    a("s_cmp_lg_u32 s54, 0")
    a("s_cbranch_scc1 B_fin")
    a(f"v_mov_b32 v{T0}, 0")
    a(f"v_mov_b32 v{T1}, 0")
    for x in range(2):
        o = O[x]
        for r in range(0, 8, 2):
            a(f"v_max3_f32 v{T0}, v{T0}, |v{o+r}|, |v{o+r+1}|")
        a(f"v_max_f32 v{T0}, v{T0}, v{o+8}")
        for r in range(8):
            a(f"v_add_f32 v{T1}, v{T1}, v{o+r}")
    a(f"""
    v_mul_f32 v{T1}, 0, v{T1}
    v_add_f32 v{T0}, v{T0}, v{T1}
    s_mov_b32 s57, {f32(2.0**100)}
    v_cmp_gt_f32 vcc, s57, v{T0}
    s_cmp_eq_u64 vcc, exec
    s_cbranch_scc1 B_fin
    """)
    a(f"""
    s_mov_b32 s54, 1
    v_mov_b32 v{T0}, {f32(-3.0e38)}
    v_mov_b32 v{T1}, {f32(-3.0e38)}
    s_mov_b32 s47, s46
    s_mov_b32 s55, 0
    s_waitcnt vmcnt(0)
    """)
    a.lab("B_maxloop")
    a(f"buffer_load_dwordx4 {vr(KB(1,0),4)}, v2, {WSRD}, s47 offen sc1")
    a("s_waitcnt vmcnt(0)")
    for x in range(2):
        a(f"v_mfma_f32_32x32x16_bf16 {vr(S[x],16)}, {vr(KB(1,0),4)}, {vr(Q[x],4)}, 0")
    a("s_nop 7")
    a("s_nop 7")
    for x in range(2):
        for r in range(0, 16, 2):
            a(f"v_max3_f32 v{MX[x]}, v{MX[x]}, v{S[x]+r}, v{S[x]+r+1}")
    a("s_add_u32 s47, s47, 2048")
    a("s_add_u32 s55, s55, 1")
    a("s_cmp_lt_u32 s55, 64")
    a("s_cbranch_scc1 B_maxloop")
    a("s_branch B_setmax")
    if OPT.get("late", 1) and OPT.get("D", 4) == 4:
        a.lab("B_late0")
        a("s_branch B_late0_ret")
        a.lab("B_late1")
        a("s_cmp_lg_u32 s49, 0")
        a("s_cbranch_scc1 B_late1_ret")
        a("s_branch B_first")
        a.lab("B_start")
        pf_head(2)
        for uu in range(2):
            ldk(1, uu)
            ldv(1, uu)
        a("s_mov_b32 s49, 2")
        a("s_branch B_start_ret")
    FRET = "B_late1_ret" if (OPT.get("late", 1) and OPT.get("D", 4) == 4) else "B_first_ret"
    a.lab("B_first")
    a("s_waitcnt vmcnt(0)")
    a("s_barrier")
    stamp(a, 5)
    a("s_mov_b32 s49, 1")
    a(f"""
    s_cmp_lg_u32 s{WV}, 0
    s_cbranch_scc1 {FRET}
    s_lshl_b32 s40, s{CG}, 7
    s_lshl_b32 s41, s{MT}, 2
    s_add_u32 s40, s40, s41
    s_add_u32 s40, s40, {WS_F}
    v_mov_b32 v{T2}, 0
    v_mov_b32 v{T2+1}, s{NONCE}
    s_mov_b64 exec, 1
    buffer_store_dword v{T2+1}, v{T2}, {WSRD}, s40 offen sc1
    s_lshl_b32 s40, s{MT}, 7
    s_lshl_b32 s41, s{CG}, 2
    s_add_u32 s40, s40, s41
    s_add_u32 s40, s40, {WS_GF}
    buffer_store_dword v{T2+1}, v{T2}, {WSRD}, s40 offen sc1
    s_mov_b64 exec, -1
    s_branch {FRET}
    """)
    a.lab("B_wobar")
    a("s_cmp_lg_u32 s54, 0")
    a("s_cbranch_scc1 B_wobar_ret")
    a("s_cmp_eq_u32 s55, 6")
    a("s_cbranch_scc1 B_wobar6")
    if GM() == 2:
        a("s_cmp_lg_u32 s55, 5")
        a("s_cbranch_scc1 B_wobar_ret")
        a(f"s_cmp_lg_u32 s{WV}, 0")
        a("s_cbranch_scc1 B_wobar_ret")
        a(f"""
        s_lshl_b32 s40, s{MT}, 7
        s_add_u32 s40, s40, {WS_GF}
        v_lshlrev_b32 v{T2}, 2, v1
        s_mov_b32 s69, 0
        """)
        a.lab("B_gpoll")
        a(f"""
        s_mov_b64 exec, 0xffff
        buffer_load_dword v{T2+1}, v{T2}, {WSRD}, s40 offen sc1
        s_add_u32 s69, s69, 1
        s_waitcnt vmcnt(0)
        v_cmp_eq_u32 vcc, s{NONCE}, v{T2+1}
        s_mov_b64 exec, -1
        s_cmp_eq_u32 vcc_lo, 0xffff
        s_cbranch_scc1 B_wobar_ret
        s_cmp_lt_u32 s69, 200000
        s_cbranch_scc1 B_gpoll
        """)
    a("s_branch B_wobar_ret")
    a.lab("B_wobar6")
    a("s_barrier")
    if GM() == 2:
        a(f"""
        s_lshl_b32 s40, s{QT}, 7
        s_add_u32 s40, s40, {WS_G}
        v_and_b32 v{T2}, 31, v1
        v_lshlrev_b32 v{T2}, 2, v{T2}
        buffer_load_dword v{G[0]}, v{T2}, {WSRD}, s40 offen sc1
        buffer_load_dword v{G[1]}, v{T2}, {WSRD}, s40 offen offset:128 sc1
        """)
    a("s_branch B_wobar_ret")
    a.lab("B_wo")
    for i in range(4):
        a(f"s_add_u32 m0, s58, {i*1024}")
        a(f"s_add_u32 s51, s59, {i*8192}")
        a(f"buffer_load_dwordx4 v162, s[60:63], s51 offen lds")
    a("s_add_u32 s58, s58, 4096")
    a("s_add_u32 s59, s59, 32768")
    a("s_add_u32 s50, s50, 1")
    a("s_branch B_wo_ret")
    for sset in range(3 if (OPT.get('D', 4) > 4 or (OPT.get('late', 1) and OPT.get('D', 4) == 4)) else 2):
        a.lab(f"B_poll{sset}")
        a("s_mov_b32 s69, 0")
        a(f"s_cmp_lg_u32 s{WV}, 0")
        a(f"s_cbranch_scc1 B_lp{sset}")
        a(f"""
        s_lshl_b32 s40, s{CG}, 7
        s_add_u32 s40, s40, {WS_F}
        v_lshlrev_b32 v{T2}, 2, v1
        """)
        a.lab(f"B_gp{sset}")
        a(f"""
        s_mov_b64 exec, 0xffff
        buffer_load_dword v{T2+1}, v{T2}, {WSRD}, s40 offen sc1
        s_add_u32 s69, s69, 1
        s_waitcnt vmcnt(0)
        v_cmp_eq_u32 vcc, s{NONCE}, v{T2+1}
        s_mov_b64 exec, -1
        s_or_b32 s45, s45, vcc_lo
        s_bitcmp1_b32 s45, s44
        s_cbranch_scc1 B_gok{sset}
        s_cmp_lt_u32 s69, 200000
        s_cbranch_scc1 B_gp{sset}
        s_mov_b32 s45, 0xffff
        """)
        a.lab(f"B_gok{sset}")
        a(f"""
        v_mov_b32 v{T2}, {RELAY+4}
        v_mov_b32 v{T2+1}, s45
        ds_write_b32 v{T2}, v{T2+1}
        s_branch B_pf{sset}
        """)
        a.lab(f"B_lp{sset}")
        a(f"v_mov_b32 v{T2}, {RELAY+4}")
        a.lab(f"B_lpl{sset}")
        a(f"""
        ds_read_b32 v{T2+1}, v{T2}
        s_add_u32 s69, s69, 1
        s_waitcnt lgkmcnt(0)
        v_readfirstlane_b32 s40, v{T2+1}
        s_nop 3
        s_or_b32 s45, s45, s40
        s_bitcmp1_b32 s45, s44
        s_cbranch_scc1 B_pf{sset}
        s_cmp_lt_u32 s69, 4000000
        s_cbranch_scc1 B_lpl{sset}
        s_mov_b32 s45, 0xffff
        s_branch B_pf{sset}
        """)
    a.lab("B_fin")
    if GM() == 2:
        a("s_waitcnt vmcnt(0)")
        a(f"s_cmp_eq_u32 s{BB}, 0")
        a("s_cbranch_scc1 B_fin2")
        a(f"v_sub_f32 v{G[0]}, 1.0, v{G[0]}")
        a(f"v_sub_f32 v{G[1]}, 1.0, v{G[1]}")
        a.lab("B_fin2")
    for x in range(2):
        o = O[x]
        a(f"v_rcp_f32 v{T0}, v{o+8}")
        a("s_nop 0")
        a(f"v_mul_f32 v{T0}, v{T0}, v{G[x]}")
        for r in range(8):
            a(f"v_mul_f32 v{o+r}, v{o+r}, v{T0}")
        for r in range(4):
            a(f"v_cvt_pk_bf16_f32 v{o+r}, v{o+2*r}, v{o+2*r+1}")
    a(f"""
    s_lshl_b32 s40, s{QT}, 6
    s_add_u32 s40, s40, s{PAIR}
    s_lshl_b32 s40, s40, 10
    s_add_u32 s40, s40, {WS_O}
    s_add_u32 s41, s40, 65536
    buffer_store_dwordx4 {vr(O[0],4)}, v2, {WSRD}, s40 offen sc1
    buffer_store_dwordx4 {vr(O[1],4)}, v2, {WSRD}, s41 offen sc1
    """)
    if OPT.get("oflag", 0):
        a(f"""
        s_lshl_b32 s40, s{MT}, 9
        s_lshl_b32 s41, s{QH}, 8
        s_add_u32 s40, s40, s41
        s_lshl_b32 s41, s{CG}, 4
        s_add_u32 s40, s40, s41
        s_lshl_b32 s41, s{H4}, 2
        s_add_u32 s40, s40, s41
        s_add_u32 s40, s40, {WS_F+2048}
        v_mov_b32 v4, 0
        v_mov_b32 v5, s{NONCE}
        s_waitcnt vmcnt(0)
        s_mov_b64 exec, 1
        buffer_store_dword v5, v4, {WSRD}, s40 offen sc1
        s_mov_b64 exec, -1
        """)
        stamp(a, 7)
    else:
        a("s_waitcnt vmcnt(0)")
        a("s_barrier")
        stamp(a, 7)
        a(f"""
        s_cmp_lg_u32 s{WV}, 0
        s_cbranch_scc1 B_opub_done
        s_lshl_b32 s40, s{MT}, 9
        s_lshl_b32 s41, s{CG}, 2
        s_add_u32 s40, s40, s41
        s_add_u32 s40, s40, {WS_F+2048}
        v_mov_b32 v4, 0
        v_mov_b32 v5, s{NONCE}
        s_mov_b64 exec, 1
        buffer_store_dword v5, v4, {WSRD}, s40 offen sc1
        s_mov_b64 exec, -1
        """)
    a.lab("B_opub_done")

def c_prefetch_setup(a):
    a(f"""
    v_lshrrev_b32 v162, 3, v1
    v_and_b32 v163, 7, v1
    v_bfe_u32 v164, v1, 4, 1
    v_lshlrev_b32 v164, 2, v164
    v_xor_b32 v164, v163, v164
    v_lshlrev_b32 v164, 4, v164
    v_lshl_add_u32 v162, v162, 10, v164
    s_cmp_lt_u32 s{WV}, 4
    s_cselect_b32 s60, s8, s14
    s_cselect_b32 s61, s9, s15
    s_and_b32 s56, s{WV}, 3
    s_lshl_b32 s56, s56, 17
    s_and_b32 s57, s{CG}, 7
    s_lshl_b32 s57, s57, 7
    s_add_u32 s56, s56, s57
    s_add_u32 s60, s60, s56
    s_addc_u32 s61, s61, 0
    s_sub_u32 s62, 524288, s56
    s_mov_b32 s63, 0x20000
    s_lshl_b32 s58, s{WV}, 14
    s_mov_b32 s59, 0
    """)

def phase_c(a):
    MT64, NT, KQ, TT = 30, 31, 32, 33
    OF = 64
    ACC = 128
    a(f"""
    s_lshl_b32 s{MT64}, s{MT}, 1
    s_lshr_b32 s40, s{CG}, 3
    s_add_u32 s{MT64}, s{MT64}, s40
    s_and_b32 s{NT}, s{CG}, 7
    s_lshr_b32 s{KQ}, s{WV}, 1
    s_and_b32 s{TT}, s{WV}, 1
    v_lshrrev_b32 v5, 4, v1
    s_lshl_b32 s44, s{MT}, 9
    s_lshr_b32 s40, s{CG}, 3
    s_lshl_b32 s40, s40, 8
    s_add_u32 s44, s44, s40
    s_lshl_b32 s40, s{KQ}, 6
    s_add_u32 s44, s44, s40
    s_add_u32 s44, s44, {WS_F+2048}
    v_lshlrev_b32 v6, 2, v1
    s_mov_b32 s47, 0
    s_lshl_b32 s45, s{MT64}, 1
    s_add_u32 s45, s45, s{TT}
    s_lshl_b32 s45, s45, 6
    s_lshl_b32 s46, s{KQ}, 4
    s_add_u32 s45, s45, s46
    s_lshl_b32 s45, s45, 10
    s_add_u32 s45, s45, {WS_O}
    """)
    if OPT.get("oflag", 0):
        for g in range(4):
            m = 0xf << (4*g)
            a(f"s_and_b32 s40, s47, {m}")
            a(f"s_cmp_eq_u32 s40, {m}")
            a(f"s_cbranch_scc1 C_rdy{g}")
            a("s_mov_b32 s69, 0")
            a.lab(f"C_poll{g}")
            a(f"""
            s_mov_b64 exec, 0xffff
            buffer_load_dword v7, v6, {WSRD}, s44 offen sc1
            s_add_u32 s69, s69, 1
            s_waitcnt vmcnt(0)
            v_cmp_eq_u32 vcc, s{NONCE}, v7
            s_mov_b64 exec, -1
            s_mov_b32 s47, vcc_lo
            s_and_b32 s40, s47, {m}
            s_cmp_eq_u32 s40, {m}
            s_cbranch_scc1 C_rdy{g}
            s_sleep {OPT.get("sleep", 4)}
            s_cmp_lt_u32 s69, 200000
            s_cbranch_scc1 C_poll{g}
            """)
            a.lab(f"C_rdy{g}")
            if g == 3:
                stamp(a, 8)
            for i in range(4*g, 4*g+4):
                a(f"buffer_load_dwordx4 {vr(OF+4*i,4)}, v2, {WSRD}, s45 offen offset:{(i%4)*1024} sc1")
            if g < 3:
                a("s_add_u32 s45, s45, 4096")
    elif OPT.get("cprog", 1):
        a(f"""
        s_lshl_b32 s44, s{MT}, 9
        s_add_u32 s44, s44, {WS_F+2048}
        s_lshl_b32 s50, s{KQ}, 2
        s_lshl_b32 s51, 1, s{CG}
        s_mov_b32 s47, s51
        v_mov_b32 v8, {RELAY+8}
        s_mov_b32 s69, 0
        s_cmp_eq_u32 s{WV}, 7
        s_cbranch_scc1 C_poller
        """)
        def oloads(g):
            for i in range(4*g, 4*g+4):
                a(f"buffer_load_dwordx4 {vr(OF+4*i,4)}, v2, {WSRD}, s45 offen offset:{(i%4)*1024} sc1")
            if g < 3:
                a("s_add_u32 s45, s45, 4096")
        for g in range(4):
            a.lab(f"C_lw{g}")
            a("s_bitcmp1_b32 s47, s50")
            a(f"s_cbranch_scc1 C_lr{g}")
            a(f"""
            ds_read_b32 v9, v8
            s_add_u32 s69, s69, 1
            s_waitcnt lgkmcnt(0)
            v_readfirstlane_b32 s47, v9
            s_nop 3
            s_or_b32 s47, s47, s51
            s_cmp_lt_u32 s69, 4000000
            s_cbranch_scc1 C_lw{g}
            """)
            a.lab(f"C_lr{g}")
            oloads(g)
            a("s_add_u32 s50, s50, 1")
        a("s_branch C_go")
        a.lab("C_poller")
        def poll_issue():
            a("s_mov_b64 exec, 0xffff")
            a(f"buffer_load_dword v7, v6, {WSRD}, s44 offen sc1")
            a("s_mov_b64 exec, -1")
        def poll_take():
            a(f"""
            s_mov_b64 exec, 0xffff
            v_cmp_eq_u32 vcc, s{NONCE}, v7
            s_mov_b64 exec, -1
            s_or_b32 s47, vcc_lo, s51
            v_mov_b32 v9, s47
            ds_write_b32 v8, v9
            """)
        for g in range(4):
            a.lab(f"C_pw{g}")
            a("s_bitcmp1_b32 s47, s50")
            a(f"s_cbranch_scc1 C_pr{g}")
            poll_issue()
            a("s_add_u32 s69, s69, 1")
            a("s_waitcnt vmcnt(0)")
            poll_take()
            a("s_cmp_lt_u32 s69, 200000")
            a(f"s_cbranch_scc1 C_pw{g}")
            a.lab(f"C_pr{g}")
            a("s_cmp_eq_u32 s47, 0xffff")
            a(f"s_cbranch_scc1 C_pf{g}")
            poll_issue()
            for i in range(4*g, 4*g+4):
                a(f"buffer_load_dwordx4 {vr(OF+4*i,4)}, v2, {WSRD}, s45 offen offset:{(i%4)*1024} sc1")
            a("s_waitcnt vmcnt(4)")
            poll_take()
            a(f"s_branch C_pn{g}")
            a.lab(f"C_pf{g}")
            for i in range(4*g, 4*g+4):
                a(f"buffer_load_dwordx4 {vr(OF+4*i,4)}, v2, {WSRD}, s45 offen offset:{(i%4)*1024} sc1")
            a.lab(f"C_pn{g}")
            if g < 3:
                a("s_add_u32 s45, s45, 4096")
            a("s_add_u32 s50, s50, 1")
        a.lab("C_pw4")
        a("s_cmp_eq_u32 s47, 0xffff")
        a("s_cbranch_scc1 C_go")
        poll_issue()
        a("s_add_u32 s69, s69, 1")
        a("s_waitcnt vmcnt(0)")
        poll_take()
        a("s_cmp_lt_u32 s69, 200000")
        a("s_cbranch_scc1 C_pw4")
        a.lab("C_go")
        stamp(a, 8)
    else:
        a(f"""
        s_lshl_b32 s44, s{MT}, 9
        s_add_u32 s44, s44, {WS_F+2048}
        s_cmp_lg_u32 s{WV}, 0
        s_cbranch_scc1 C_wait_done
        s_mov_b32 s69, 0
        """)
        a.lab("C_poll")
        a(f"""
        s_mov_b64 exec, 0xffff
        buffer_load_dword v7, v6, {WSRD}, s44 offen sc1
        s_add_u32 s69, s69, 1
        s_waitcnt vmcnt(0)
        v_cmp_eq_u32 vcc, s{NONCE}, v7
        s_mov_b64 exec, -1
        s_cmp_eq_u32 vcc_lo, 0xffff
        s_cbranch_scc1 C_wait_done
        s_cmp_lt_u32 s69, 200000
        s_cbranch_scc1 C_poll
        """)
        a.lab("C_wait_done")
        a("s_barrier")
        stamp(a, 8)
        for i in range(16):
            if i and i % 4 == 0:
                a("s_add_u32 s45, s45, 4096")
            a(f"buffer_load_dwordx4 {vr(OF+4*i,4)}, v2, {WSRD}, s45 offen offset:{(i%4)*1024} sc1")
    a(f"""
    v_lshrrev_b32 v21, 5, v1
    v_and_b32 v26, 15, v1
    v_lshrrev_b32 v27, 2, v26
    v_lshl_add_u32 v28, v21, 2, v27
    v_lshlrev_b32 v28, 7, v28
    v_and_b32 v29, 1, v5
    v_lshlrev_b32 v29, 1, v29
    v_bfe_u32 v30, v26, 1, 1
    v_add_u32 v29, v29, v30
    v_bfe_u32 v30, v27, 1, 1
    v_lshlrev_b32 v30, 2, v30
    v_xor_b32 v29, v29, v30
    v_lshl_add_u32 v28, v29, 4, v28
    v_and_b32 v30, 1, v26
    v_lshl_add_u32 v28, v30, 3, v28
    s_lshl_b32 s40, s{KQ}, 15
    v_add_u32 v20, s40, v28
    v_xor_b32 v21, 64, v20
    """)
    WFR = [32, 40]
    def rd(i):
        f = WFR[i & 1]
        return [f"ds_read_b64_tr_b16 {vr(f+4*ct+2*u,2)}, v{20+ct} offset:{(16*i+8*u)*128}" for ct in range(2) for u in range(2)]
    for x in rd(0):
        a(x)
    for i in range(16):
        nxt = rd(i+1) if i < 15 else []
        a(f"s_waitcnt vmcnt({15-i}) lgkmcnt(0)")
        f = WFR[i & 1]
        for ct in range(2):
            d = vr(ACC+16*ct, 16)
            c = "0" if i == 0 else d
            a(f"v_mfma_f32_32x32x16_bf16 {d}, {vr(f+4*ct,4)}, {vr(OF+4*i,4)}, {c}")
            for x in nxt[2*ct:2*ct+2]:
                a(x)
    if not OPT.get('lstamp', 0): stamp(a, 9)
    a("s_barrier")
    a(f"""
    v_and_b32 v22, 31, v1
    v_lshrrev_b32 v23, 5, v1
    v_and_b32 v24, 7, v22
    v_lshlrev_b32 v25, 8, v22
    s_lshl_b32 s40, s{KQ}, 14
    s_lshl_b32 s41, s{TT}, 13
    s_add_u32 s40, s40, s41
    v_add_u32 v25, s40, v25
    s_nop 7
    s_nop 7
    """)
    for ct in range(2):
        for q4 in range(4):
            a(f"v_add_u32 v26, {ct*8+2*q4}, v23")
            a(f"v_xor_b32 v26, v26, v24")
            a(f"v_lshl_add_u32 v26, v26, 4, v25")
            a(f"ds_write_b128 v26, {vr(ACC+16*ct+4*q4,4)}")
    a("s_waitcnt lgkmcnt(0)")
    a("s_barrier")
    a("""
    v_lshrrev_b32 v22, 3, v0
    v_and_b32 v23, 7, v0
    v_and_b32 v24, 7, v22
    v_lshlrev_b32 v25, 8, v22
    v_lshlrev_b32 v27, 1, v23
    """)
    for c in range(2):
        a(f"v_add_u32 v26, {c}, v27")
        a(f"v_xor_b32 v26, v26, v24")
        a(f"v_lshl_add_u32 v26, v26, 4, v25")
        for k in range(4):
            a(f"ds_read_b128 {vr(64+k*8+c*4,4)}, v26 offset:{k*16384}")
    a(f"""
    s_mov_b32 s60, s18
    s_mov_b32 s61, s19
    s_mov_b32 s62, 2097152
    s_mov_b32 s63, 0x20000
    v_lshlrev_b32 v22, 10, v22
    v_lshl_add_u32 v22, v23, 4, v22
    s_lshl_b32 s40, s{MT64}, 16
    s_lshl_b32 s41, s{NT}, 7
    s_add_u32 s40, s40, s41
    s_waitcnt lgkmcnt(0)
    """)
    for r in range(8):
        a(f"v_add_f32 v{64+r}, v{64+r}, v{72+r}")
        a(f"v_add_f32 v{80+r}, v{80+r}, v{88+r}")
    for r in range(8):
        a(f"v_add_f32 v{64+r}, v{64+r}, v{80+r}")
    for r in range(4):
        a(f"v_cvt_pk_bf16_f32 v{64+r}, v{64+2*r}, v{64+2*r+1}")
    a("buffer_store_dwordx4 v[64:67], v22, s[60:63], s40 offen" + {0: "", 1: " sc1", 2: " nt", 3: " sc0 sc1"}[OPT.get("ost", 0)])
    if not OPT.get("lstamp", 0): stamp(a, 10)


DOC = """;
"""

HEAD = open("cdna_kernels/%s.s.ref" % NAME).read().split("; Override")[0]

def main(out):
    a = A()
    gen(a)
    s = HEAD
    s += "; @launch grid=(256,1,1) block=(512,1,1) lds=163840\n"
    s += DOC
    s += '.amdgcn_target "amdgcn-amd-amdhsa--gfx950"\n'
    s += a.text()
    s += f""".section .rodata,"a"
.p2align 6
.amdhsa_kernel {KNAME}
  .amdhsa_next_free_vgpr 256
  .amdhsa_next_free_sgpr 102
  .amdhsa_accum_offset 256
  .amdhsa_group_segment_fixed_size 0
  .amdhsa_kernarg_size 80
  .amdhsa_user_sgpr_count 2
  .amdhsa_user_sgpr_kernarg_segment_ptr 1
  .amdhsa_system_sgpr_workgroup_id_x 1
.end_amdhsa_kernel
"""
    open(out, "w").write(s)

if __name__ == "__main__":
    if "--prof" in sys.argv:
        PROF = True
        sys.argv.remove("--prof")
    for x in list(sys.argv):
        if x.startswith("--") and "=" in x:
            k, v = x[2:].split("=")
            OPT[k] = int(v)
            sys.argv.remove(x)
    set_nslot(OPT.get("nslot", 3))
    main(sys.argv[1] if len(sys.argv) > 1 else "fused3.s")
```

```python
import sys, struct

NAME = "gated_mix__mha_block__mha_block__prompt"
KNAME = NAME + "_kernel"
WS_KV = 4 << 20
WS_O = 12 << 20
WS_F = 16 << 20
WS_GF = WS_F + 2048 + 8192
WS_G = WS_GF + 2048
WS_END = WS_G + 8192
RELAY = 160000
NONCE = 68
WS_T = 32 << 20
QSCALE = 0.25 * 1.4426950408889634
LOG2E = 1.4426950408889634
PROF = False
OPT = dict(prio=3, rot=1, pfu=0, D=4, cpf=1, sch=2, wpf=1, ost=1)
NST = 12
SB = 70

def f32(x):
    return "0x%08x" % struct.unpack("<I", struct.pack("<f", x))[0]

class A:
    def __init__(self):
        self.l = []
    def __call__(self, s):
        for x in s.strip().split("\n"):
            if x.strip():
                self.l.append("  " + x.strip())
    def lab(self, s):
        self.l.append(s + ":")
    def raw(self, s):
        self.l.append(s)
    def text(self):
        return "\n".join(self.l) + "\n"

def vr(b, n):
    return f"v[{b}:{b+n-1}]"
def u32(x):
    return x & 0xffffffff

def GM():
    return OPT.get('gm', 2)
def GMF():
    return GM() == 1
def stamp(a, k):
    if PROF:
        a(f"s_memtime s[{SB+2*k}:{SB+2*k+1}]")

WV = 3
XCD, SLOT_ = 24, 25
CG, MT, BB, HG = 26, 27, 28, 29
SRDW = 36
DBG = 20
WS = 22
WSRD = f"s[{SRDW}:{SRDW+3}]"

def gen(a):
    a.raw(".text")
    a.raw(f".globl {KNAME}")
    a.raw(".p2align 8")
    a.raw(f".type {KNAME},@function")
    a.lab(KNAME)
    a("s_cmp_ge_u32 s2, 256")
    a("s_cbranch_scc1 L_end")
    if PROF:
        a(f"s_memrealtime s[{SB+2*NST}:{SB+2*NST+1}]")
        stamp(a, 0)
    a(f"""
    s_load_dwordx4 s[4:7], s[0:1], 0
    s_load_dwordx2 s[8:9], s[0:1], 16
    s_load_dwordx4 s[12:15], s[0:1], 32
    s_load_dwordx4 s[16:19], s[0:1], 48
    s_load_dwordx4 s[20:23], s[0:1], 64
    v_lshrrev_b32 v2, 6, v0
    v_and_b32 v1, 63, v0
    s_and_b32 s{XCD}, s2, 7
    s_lshr_b32 s{SLOT_}, s2, 3
    """)
    if OPT.get("badmap", 0):
        a(f"""
        s_lshr_b32 s40, s2, 3
        s_xor_b32 s{XCD}, s{XCD}, s40
        s_lshr_b32 s40, s2, 6
        s_xor_b32 s{XCD}, s{XCD}, s40
        s_and_b32 s{XCD}, s{XCD}, 7
        """)
    a(f"""
    v_readfirstlane_b32 s{WV}, v2
    v_lshlrev_b32 v2, 4, v1
    s_lshr_b32 s40, s{XCD}, 1
    s_lshl_b32 s40, s40, 2
    s_and_b32 s41, s{SLOT_}, 3
    s_add_u32 s{CG}, s40, s41
    s_lshr_b32 s{BB}, s{CG}, 3
    s_and_b32 s{HG}, s{CG}, 7
    s_and_b32 s{MT}, s{XCD}, 1
    s_lshl_b32 s{MT}, s{MT}, 3
    s_lshr_b32 s41, s{SLOT_}, 2
    s_add_u32 s{MT}, s{MT}, s41
    """)
    if OPT.get("diag", 0):
        a("s_memrealtime s[94:95]")
        a("s_memtime s[96:97]")
    rm = OPT["rot"]
    if rm == 0: a("s_mov_b32 s101, 0")
    elif rm == 1: a(f"s_mov_b32 s101, s{XCD}")
    elif rm == 2: a(f"s_and_b32 s101, s{SLOT_}, 3\ns_lshl_b32 s101, s101, 1\ns_add_u32 s101, s101, s{XCD}\ns_and_b32 s101, s101, 7")
    elif rm == 3: a(f"s_lshr_b32 s101, s{SLOT_}, 2\ns_add_u32 s101, s101, s{XCD}\ns_and_b32 s101, s101, 7")
    elif rm == 4: a(f"s_and_b32 s101, s{SLOT_}, 3\ns_lshl_b32 s101, s101, 1\ns_lshr_b32 s40, s{SLOT_}, 2\ns_add_u32 s101, s101, s40\ns_add_u32 s101, s101, s{XCD}\ns_and_b32 s101, s101, 7")
    elif rm == 5: a(f"s_and_b32 s101, s{SLOT_}, 1\ns_lshl_b32 s101, s101, 2\ns_add_u32 s101, s101, s{XCD}\ns_and_b32 s101, s101, 7")
    phase_a(a)
    phase_b(a)
    phase_c(a)
    if OPT.get("diag", 0):
        a(f"""
        s_waitcnt vmcnt(0)
        s_memrealtime s[90:91]
        s_memtime s[92:93]
        s_waitcnt lgkmcnt(0)
        s_sub_u32 s92, s92, s96
        s_not_b32 s94, s94
        s_and_b32 s91, s2, 15
        s_or_b32 s91, s91, s{WV}
        s_cmp_lg_u32 s91, 0
        s_cbranch_scc1 L_end
        s_mov_b64 exec, 1
        v_mov_b32 v4, 16
        v_mov_b32 v5, s92
        global_atomic_umax v4, v5, s[{DBG}:{DBG+1}]
        v_mov_b32 v4, 20
        v_mov_b32 v5, s90
        global_atomic_umax v4, v5, s[{DBG}:{DBG+1}]
        v_mov_b32 v4, 24
        v_mov_b32 v5, s94
        global_atomic_umax v4, v5, s[{DBG}:{DBG+1}]
        s_mov_b64 exec, -1
        """)
    if PROF:
        a("s_waitcnt vmcnt(0)")
        a(f"s_memrealtime s[{SB+2*NST+2}:{SB+2*NST+3}]")
        stamp(a, NST-1)
        a("s_waitcnt lgkmcnt(0)")
        if OPT.get("lprof", 0):
            for k, r in ((8, 98), (9, 99), (10, 100)):
                a(f"s_add_u32 s{SB+2*k}, s{SB}, s{r}")
                a(f"s_addc_u32 s{SB+2*k+1}, s{SB+1}, 0")
            a.lab("L_nolp")
        a(f"""
        s_lshl_b32 s40, s2, 4
        s_add_u32 s40, s40, s{WV}
        s_lshl_b32 s40, s40, 7
        s_add_u32 s40, s40, {WS_T}
        s_add_u32 s40, s{WS}, s40
        s_addc_u32 s41, s{WS+1}, 0
        s_mov_b64 exec, 1
        v_mov_b32 v4, 0
        """)
        for k in range(NST+2):
            a(f"v_mov_b32 v6, s{SB+2*k}")
            a(f"v_mov_b32 v7, s{SB+2*k+1}")
            a(f"global_store_dwordx2 v4, v[6:7], s[40:41] offset:{8*k}")
            a("s_nop 1")
    a.lab("L_end")
    a("s_endpgm")
    a.lab("L_codeend")

SLOT = 40960
NSLOT = 3
GIMG = NSLOT * SLOT
def set_nslot(n):
    global NSLOT, GIMG
    NSLOT = n
    GIMG = 3 * SLOT
QX, KVX, GX = 0, 16384, 49152

def v_init(a, t0, t1):
    a(f"""
    v_and_b32 v{t0}, 27, v1
    v_cmp_eq_u32 vcc, 16, v{t0}
    v_mov_b32 v{t1}, 0x3f803f80
    s_nop 0
    v_cndmask_b32 v{t0}, 0, v{t1}, vcc
    """)
    for r in range(64):
        a(f"v_mov_b32 v{192+r}, v{t0}")

def phase_a(a):
    a(f"""
    v_lshrrev_b32 v5, 4, v1
    s_cmp_ge_u32 s{WV}, 4
    s_cbranch_scc0 A_compute
    """)
    LW = 30
    a(f"""
    s_sub_u32 s{LW}, s{WV}, 4
    s_setprio 3
    v_lshrrev_b32 v3, 3, v1
    v_and_b32 v4, 7, v1
    v_xor_b32 v6, v4, v5
    v_lshlrev_b32 v6, 4, v6
    v_lshl_add_u32 v10, v3, 10, v6
    v_add_u32 v7, 4, v5
    v_xor_b32 v7, v4, v7
    v_lshlrev_b32 v7, 4, v7
    v_lshl_add_u32 v11, v3, 10, v7
    v_and_b32 v8, 1, v5
    v_lshlrev_b32 v8, 2, v8
    v_xor_b32 v8, v4, v8
    v_lshlrev_b32 v8, 4, v8
    v_mul_u32_u24 v9, 3072, v3
    v_add_u32 v12, v9, v8
    s_lshl_b32 s54, s{LW}, 15
    """)
    for u in range(4):
        a(f"s_add_u32 s{44+u}, s54, {u*8192}")
    a(f"s_mul_i32 s54, s{LW}, 49152")
    for g3 in range(3):
        for e in range(2):
            a(f"s_add_u32 s{48+g3*2+e}, s54, {g3*1024 + e*8*3072}")
    a(f"""
    s_lshl_b32 s55, s{LW}, 12
    s_lshl_b32 s56, s{LW}, 11
    s_add_u32 s56, s56, 16384
    s_lshl_b32 s40, s{MT}, 17
    s_lshl_b32 s41, s{HG}, 7
    s_mov_b32 s62, 131072
    s_mov_b32 s63, 0x20000
    s_sub_u32 s34, 1572864, s41
    s_mov_b32 s35, 0x20000
    """)
    a("s_mov_b32 s57, s101")
    a(f"""
    s_lshl_b32 s42, s57, 7
    v_add_u32 v10, s42, v10
    v_add_u32 v11, s42, v11
    s_mul_i32 s42, s57, 196608
    v_add_u32 v12, s42, v12
    s_mov_b32 s64, {u32(-896)}
    s_mov_b32 s65, 128
    s_mov_b32 s66, {u32(-7*196608)}
    s_mov_b32 s67, 196608
    s_waitcnt lgkmcnt(0)
    s_cmp_eq_u32 s{BB}, 0
    s_cselect_b32 s32, s6, s12
    s_cselect_b32 s33, s7, s13
    s_add_u32 s60, s4, s40
    s_addc_u32 s61, s5, 0
    s_add_u32 s32, s32, s41
    s_addc_u32 s33, s33, 0
    """)
    def issue_stage(extra=None):
        extra = list(extra or [])
        seq = [("w",0,0),("x",0,0),("w",0,1),("x",1,0),("w",1,0),("x",2,0),("w",1,1),("x",3,0),("w",2,0),("w",2,1)]
        for n, (kind, i, e) in enumerate(seq):
            if kind == "x":
                a(f"s_add_u32 m0, s55, {i*1024}")
                a("s_add_u32 s57, s57, 1" if n == 1 else ("s_and_b32 s57, s57, 7" if n == 3 else "s_nop 0"))
                a(f"buffer_load_dwordx4 v{10+(i&1)}, s[60:63], s{44+i} offen lds")
            else:
                a(f"s_add_u32 m0, s56, {i*8192+e*1024}")
                a("s_cmp_eq_u32 s57, 0" if n == 4 else "s_nop 0")
                a(f"buffer_load_dwordx4 v12, s[32:35], s{48+i*2+e} offen lds")
                if n == 4:
                    a("s_cselect_b32 s42, s64, s65")
                    a("s_cselect_b32 s43, s66, s67")
            if n >= 2 and extra:
                k = 1 if n == 2 else 3
                for _ in range(k):
                    if extra: a(extra.pop(0))
        for x in extra:
            a(x)
        a("v_add_u32 v10, s42, v10")
        a("v_add_u32 v11, s42, v11")
        a("v_add_u32 v12, s43, v12")
        a(f"s_add_u32 s55, s55, {SLOT}")
        a(f"s_add_u32 s56, s56, {SLOT}")
        a(f"s_cmp_ge_u32 s56, {NSLOT*SLOT}")
        a(f"s_cselect_b32 s54, {NSLOT*SLOT}, 0")
        a("s_sub_u32 s55, s55, s54")
        a("s_sub_u32 s56, s56, s54")
    a(f"""
    s_mov_b32 s{SRDW}, s16
    s_mov_b32 s{SRDW+1}, s17
    s_mov_b32 s{SRDW+2}, 1024
    s_mov_b32 s{SRDW+3}, 0x20000
    s_lshl_b32 s43, s{LW}, 8
    s_add_u32 m0, s43, {GIMG}
    """)
    if GM() == 2:
        pass
    elif not OPT.get("nogate", 0):
        a(f"""
        s_mov_b64 exec, 0xffff
        buffer_load_dwordx4 v2, {WSRD}, s43 offen lds
        s_mov_b64 exec, -1
        """)
    if GM() == 0:
        a(f"""
        v_and_b32 v20, 31, v1
        v_lshrrev_b32 v21, 5, v1
        v_lshrrev_b32 v22, 1, v1
        v_and_b32 v22, 7, v22
        s_lshl_b32 s40, s{LW}, 12
        v_lshlrev_b32 v23, 7, v20
        v_add_u32 v23, s40, v23
        """)
        for ks in range(4):
            a(f"v_add_u32 v24, {2*ks}, v21")
            a(f"v_xor_b32 v24, v24, v22")
            a(f"v_lshl_add_u32 v{16+ks}, v24, 4, v23")
        a(f"""
        v_lshlrev_b32 v15, 4, v21
        v_add_u32 v15, {GIMG}, v15
        v_mov_b32 v64, 0
        s_mov_b32 s59, 0
        """)
        if OPT["rot"]:
            a(f"s_mov_b32 s31, s{XCD}")
        else:
            a("s_mov_b32 s31, 0")
    LK = OPT.get("look", 2)
    if OPT.get("pfwait", 0):
        a("s_barrier")
    for _ in range(LK):
        issue_stage()
    v_init(a, 60, 61)
    def gate_reads():
        if OPT.get("nogate", 0) or GM() != 0: return
        a("s_lshl_b32 s40, s31, 7")
        a("v_add_u32 v14, s40, v15")
        for ks in range(4):
            a(f"v_add_u32 v24, s59, v{16+ks}")
            a(f"ds_read_b128 {vr(28+8*ks,4)}, v24")
            a(f"ds_read_b128 {vr(32+8*ks,4)}, v14 offset:{ks*32}")
        a("s_add_u32 s31, s31, 1")
        a("s_and_b32 s31, s31, 7")
        a(f"s_add_u32 s59, s59, {SLOT}")
        a(f"s_cmp_ge_u32 s59, {NSLOT*SLOT}")
        a(f"s_cselect_b32 s40, {NSLOT*SLOT}, 0")
        a("s_sub_u32 s59, s59, s40")
    def gate_dots():
        if OPT.get("nogate", 0) or GM() != 0: return
        a("s_waitcnt lgkmcnt(0)")
        for ks in range(4):
            for q in range(4):
                a(f"v_dot2c_f32_bf16 v64, v{28+8*ks+q}, v{32+8*ks+q}")
    if OPT.get("ldprio", 0) == 0:
        a("s_setprio 0")
    a("s_mov_b32 s58, 0")
    LP = PROF and OPT.get("lprof", 0)
    def tick(acc):
        if LP:
            a("s_memtime s[88:89]")
            a("s_waitcnt lgkmcnt(0)")
            a("s_sub_u32 s87, s88, s86")
            a(f"s_add_u32 s{acc}, s{acc}, s87")
            a("s_mov_b32 s86, s88")
    if LP:
        a("s_memtime s[88:89]")
        a("s_waitcnt lgkmcnt(0)")
        a("s_mov_b32 s86, s88")
        a("s_mov_b32 s80, 0"); a("s_mov_b32 s81, 0"); a("s_mov_b32 s82, 0"); a("s_mov_b32 s83, 0"); a("s_mov_b32 s84, 0"); a("s_mov_b32 s85, 0")
    a.lab("A_ld_loop")
    a(f"s_waitcnt vmcnt({10*(LK-1)})")
    tick(80)
    a("s_barrier")
    tick(82)
    gate_reads()
    issue_stage(None if (OPT.get("nogate", 0) or GM() != 0) else ["s_waitcnt lgkmcnt(0)"] + [f"v_dot2c_f32_bf16 v64, v{28+8*ks+q}, v{32+8*ks+q}" for ks in range(4) for q in range(4)])
    tick(84)
    a("s_add_u32 s58, s58, 1")
    a(f"s_cmp_lt_u32 s58, {8-LK}")
    a("s_cbranch_scc1 A_ld_loop")
    if GM() == 2:
        a(f"""
        s_mov_b32 s{SRDW}, s16
        s_mov_b32 s{SRDW+1}, s17
        s_mov_b32 s{SRDW+2}, 1024
        s_mov_b32 s{SRDW+3}, 0x20000
        v_and_b32 v13, 15, v1
        v_lshlrev_b32 v13, 4, v13
        v_lshl_add_u32 v14, v5, 10, v13
        s_lshl_b32 s40, s{CG}, 3
        s_and_b32 s41, s{LW}, 1
        s_lshl_b32 s41, s41, 2
        s_add_u32 s29, s40, s41
        s_lshl_b32 s41, s29, 10
        s_cmp_ge_u32 s{LW}, 2
        s_cbranch_scc1 A_nogl
        """)
        for i in range(4):
            a(f"buffer_load_dwordx4 {vr(16+4*i,4)}, v14, s[60:63], s41 offen offset:{256*i}")
        for i in range(4):
            a(f"buffer_load_dwordx4 {vr(32+4*i,4)}, v13, {WSRD}, 0 offen offset:{256*i}")
        a.lab("A_nogl")
    for k in range(LK):
        a(f"s_waitcnt vmcnt({10*(LK-1-k)})")
        a("s_barrier")
        gate_reads()
        gate_dots()
    if LP:
        a("s_mov_b32 s98, s80"); a("s_mov_b32 s99, s82"); a("s_mov_b32 s100, s84")
    a("s_setprio 0")
    a(f"""
    s_mov_b32 s{SRDW}, s{WS}
    s_mov_b32 s{SRDW+1}, s{WS+1}
    s_mov_b32 s{SRDW+2}, {WS_END}
    s_mov_b32 s{SRDW+3}, 0x20000
    """)
    if GM() == 1:
        a("s_barrier")
    elif GM() == 2:
        a("s_barrier")
        a(f"s_cmp_ge_u32 s{LW}, 2")
        a("s_cbranch_scc1 A_join")
        a("v_mov_b32 v48, 0")
        a("s_waitcnt vmcnt(0)")
        for i in range(16):
            a(f"v_dot2c_f32_bf16 v48, v{16+i}, v{32+i}")
        a("s_nop 3")
        for rot in (8, 4, 2, 1):
            a(f"v_add_f32_dpp v48, v48, v48 row_ror:{rot} row_mask:0xf bank_mask:0xf")
            a("s_nop 1")
        a(f"""
        v_mul_f32 v48, {f32(-LOG2E)}, v48
        v_exp_f32 v48, v48
        s_nop 0
        v_add_f32 v48, 1.0, v48
        v_rcp_f32 v48, v48
        s_lshl_b32 s41, s{MT}, 7
        s_add_u32 s41, s41, s29
        s_lshl_b32 s41, s41, 2
        s_add_u32 s41, s41, {WS_G}
        v_lshlrev_b32 v49, 2, v5
        v_and_b32 v50, 15, v1
        v_cmp_eq_u32 vcc, 0, v50
        s_and_saveexec_b64 s[58:59], vcc
        buffer_store_dword v48, v49, {WSRD}, s41 offen sc1
        s_mov_b64 exec, s[58:59]
        """)
    else:
        a(f"""
        s_nop 3
        v_mov_b32 v20, v64
        s_nop 1
        v_permlane32_swap_b32 v64, v20
        s_nop 1
        v_add_f32 v64, v64, v20
        v_mul_f32 v64, {f32(-LOG2E)}, v64
        v_exp_f32 v64, v64
        s_nop 0
        v_add_f32 v64, 1.0, v64
        v_rcp_f32 v64, v64
        s_nop 0
        v_sub_f32 v20, 1.0, v64
        s_cmp_eq_u32 s{BB}, 0
        s_cselect_b64 vcc, -1, 0
        s_nop 1
        v_cndmask_b32 v20, v20, v64, vcc
        v_and_b32 v19, 31, v1
        v_lshlrev_b32 v19, 2, v19
        s_lshl_b32 s41, s{LW}, 7
        v_add_u32 v19, s41, v19
        s_barrier
        ds_write_b32 v19, v20 offset:{GX}
        """)
    a("""
    s_branch A_join
    """)
    a.lab("A_compute")
    WM, WN = 30, 31
    a(f"""
    s_and_b32 s{WM}, s{WV}, 1
    s_lshr_b32 s{WN}, s{WV}, 1
    v_and_b32 v20, 31, v1
    v_lshrrev_b32 v21, 5, v1
    v_lshrrev_b32 v22, 1, v1
    v_and_b32 v22, 7, v22
    s_lshl_b32 s40, s{WM}, 13
    v_lshlrev_b32 v23, 7, v20
    v_add_u32 v23, s40, v23
    """)
    for ks in range(4):
        a(f"v_add_u32 v24, {2*ks}, v21")
        a(f"v_xor_b32 v24, v24, v22")
        a(f"v_lshl_add_u32 v{16+ks}, v24, 4, v23")
    a(f"""
    v_and_b32 v26, 15, v1
    v_lshrrev_b32 v27, 2, v26
    v_lshl_add_u32 v28, v21, 3, v27
    v_lshlrev_b32 v28, 7, v28
    v_and_b32 v29, 1, v5
    v_lshlrev_b32 v29, 1, v29
    v_bfe_u32 v30, v26, 1, 1
    v_add_u32 v29, v29, v30
    s_lshl_b32 s40, s{WN}, 2
    v_add_u32 v29, s40, v29
    v_bfe_u32 v30, v27, 1, 1
    v_lshlrev_b32 v30, 2, v30
    v_xor_b32 v29, v29, v30
    v_lshl_add_u32 v28, v29, 4, v28
    v_and_b32 v30, 1, v26
    v_lshl_add_u32 v25, v30, 3, v28
    """)
    ACC = 64
    XF = [32, 160]
    WF = [40, 168]
    GF = [52, 180]
    GACC = 192
    assert GM() != 1
    v_init(a, 190, 191)
    for r in range(0, 96, 2):
        a(f"v_mov_b64 v[{ACC+r}:{ACC+r+1}], 0")
    if GMF():
        for r in range(16):
            a(f"v_mov_b32 v{GACC+r}, 0")
        a(f"s_mov_b32 s59, s{XCD}" if OPT["rot"] else "s_mov_b32 s59, 0")
        a(f"""
        s_lshl_b32 s40, s59, 7
        v_lshlrev_b32 v15, 4, v21
        v_add_u32 v15, {GIMG}, v15
        v_add_u32 v14, s40, v15
        s_cmp_eq_u32 s{WN}, 0
        s_cselect_b64 vcc, -1, 0
        """)
    a(f"""
    s_lshl_b32 s40, s{CG}, 2
    s_lshl_b32 s41, s{WN}, 1
    s_add_u32 s40, s40, s41
    s_lshl_b32 s40, s40, 6
    s_lshl_b32 s41, s{MT}, 2
    s_add_u32 s40, s40, s41
    s_lshl_b32 s41, s{WM}, 1
    s_add_u32 s40, s40, s41
    s_lshl_b32 s46, s40, 11
    s_add_u32 s46, s46, {WS_KV}
    s_mov_b32 s48, {f32(QSCALE)}
    v_and_b32 v11, 15, v1
    v_lshlrev_b32 v11, 4, v11
    v_lshl_add_u32 v11, v21, 9, v11
    v_bfe_u32 v12, v1, 4, 1
    v_lshl_add_u32 v13, v12, 13, v11
    v_lshl_add_u32 v11, v12, 17, v11
    v_add_u32 v11, 1024, v11
    s_add_u32 s47, s46, 131072
    s_mov_b32 s{SRDW+2}, {WS_END}
    s_mov_b32 s{SRDW+3}, 0x20000
    s_mov_b32 s57, 0
    s_mov_b32 s58, 0
    """)
    def set_addr():
        for ks in range(4):
            a(f"v_add_u32 v{20+ks}, s57, v{16+ks}")
        a("v_add_u32 v24, s57, v25")
    set_addr()
    a("s_waitcnt lgkmcnt(0)")
    a(f"s_mov_b32 s{SRDW}, s{WS}")
    a(f"s_mov_b32 s{SRDW+1}, s{WS+1}")
    if OPT.get("wpf", 0):
        a(f"""
        s_lshl_b32 s40, s2, 2
        s_add_u32 s40, s40, s{WV}
        s_and_b32 s41, s40, 511
        s_mul_i32 s41, s41, 3072
        s_cmp_lt_u32 s40, 512
        s_cselect_b32 s42, s6, s12
        s_cselect_b32 s43, s7, s13
        s_add_u32 s42, s42, s41
        s_addc_u32 s43, s43, 0
        global_load_dwordx4 v[180:183], v2, s[42:43]
        global_load_dwordx4 v[180:183], v2, s[42:43] offset:1024
        global_load_dwordx4 v[180:183], v2, s[42:43] offset:2048
        s_lshl_b32 s40, s2, 3
        s_lshl_b32 s41, s{WV}, 1
        s_add_u32 s40, s40, s41
        s_lshl_b32 s40, s40, 10
        s_add_u32 s42, s4, s40
        s_addc_u32 s43, s5, 0
        global_load_dwordx4 v[180:183], v2, s[42:43]
        global_load_dwordx4 v[180:183], v2, s[42:43] offset:1024
        """)
    if OPT.get("xpf", 0):
        a(f"""
        s_and_b32 s40, s{XCD}, 1
        s_lshl_b32 s40, s40, 10
        s_lshl_b32 s41, s{SLOT_}, 5
        s_add_u32 s40, s40, s41
        s_lshl_b32 s41, s{WV}, 3
        s_add_u32 s40, s40, s41
        s_lshl_b32 s40, s40, 10
        s_add_u32 s42, s4, s40
        s_addc_u32 s43, s5, 0
        v_mov_b32 v212, v2
        """)
        a(f"""
        s_cmp_eq_u32 s{BB}, 0
        s_cselect_b32 s44, s6, s12
        s_cselect_b32 s45, s7, s13
        s_lshl_b32 s40, s{SLOT_}, 4
        s_lshl_b32 s41, s{WV}, 2
        s_add_u32 s40, s40, s41
        s_mul_i32 s40, s40, 3072
        s_and_b32 s41, s{HG}, 4
        s_lshl_b32 s41, s41, 7
        s_add_u32 s40, s40, s41
        s_add_u32 s44, s44, s40
        s_addc_u32 s45, s45, 0
        v_lshrrev_b32 v213, 5, v1
        v_mul_u32_u24 v213, 3072, v213
        v_and_b32 v214, 31, v1
        v_lshl_add_u32 v213, v214, 4, v213
        v_add_u32 v214, 6144, v213
        """)
        for t in range(3):
            a(f"global_load_dwordx4 v[180:183], v213, s[44:45] offset:{t*1024}")
            a(f"global_load_dwordx4 v[180:183], v214, s[44:45] offset:{t*1024}")
        for i in range(8):
            a(f"global_load_dwordx4 v[180:183], v212, s[42:43]")
            if i < 7: a("v_add_u32 v212, 1024, v212")
    SPF = OPT.get("spf", 0)
    def spf_issue():
        a("s_lshl_b32 s40, s66, 7")
        a("v_add_u32 v190, s40, v184")
        a("s_mul_i32 s40, s66, 196608")
        a("v_add_u32 v191, s40, v185")
        a("global_load_dwordx4 v[180:183], v190, s[62:63]")
        a("global_load_dwordx4 v[180:183], v191, s[64:65]")
        a("s_add_u32 s66, s66, 1")
        a("s_and_b32 s66, s66, 7")
    if SPF:
        a(f"""
        s_and_b32 s40, s{XCD}, 1
        s_lshl_b32 s40, s40, 10
        s_lshl_b32 s41, s{SLOT_}, 5
        s_add_u32 s40, s40, s41
        s_lshl_b32 s41, s{WV}, 3
        s_add_u32 s40, s40, s41
        s_lshl_b32 s40, s40, 10
        s_add_u32 s62, s4, s40
        s_addc_u32 s63, s5, 0
        v_lshrrev_b32 v190, 3, v1
        v_and_b32 v191, 7, v1
        v_lshlrev_b32 v191, 4, v191
        v_lshl_add_u32 v184, v190, 10, v191
        v_mul_u32_u24 v185, 3072, v190
        v_add_u32 v185, v185, v191
        s_cmp_eq_u32 s{BB}, 0
        s_cselect_b32 s64, s6, s12
        s_cselect_b32 s65, s7, s13
        s_lshr_b32 s40, s{SLOT_}, 2
        s_mul_i32 s40, s40, {8*3072}
        s_min_u32 s41, s{WV}, 2
        s_lshl_b32 s41, s41, 10
        s_add_u32 s40, s40, s41
        s_lshl_b32 s41, s{HG}, 7
        s_add_u32 s40, s40, s41
        s_add_u32 s64, s64, s40
        s_addc_u32 s65, s65, 0
        """)
        if OPT["rot"]:
            a(f"s_add_u32 s66, s{XCD}, 2")
        else:
            a("s_mov_b32 s66, 2")
        a("s_and_b32 s66, s66, 7")
        for _ in range(SPF):
            spf_issue()
    if OPT.get("pfwait", 0):
        a("s_waitcnt vmcnt(0)")
        a("s_barrier")
    if OPT.get("cpf", 0):
        a(f"""
        s_cmp_lg_u32 s{WV}, 3
        s_cbranch_scc1 A_nocpf
        s_cmp_ge_u32 s{SLOT_}, (L_codeend-{KNAME})>>10
        s_cbranch_scc1 A_nocpf
        s_getpc_b64 s[42:43]
        """)
        a.lab("A_pc")
        a(f"""
        s_sub_u32 s42, s42, A_pc-{KNAME}
        s_subb_u32 s43, s43, 0
        s_lshl_b32 s40, s{SLOT_}, 10
        s_add_u32 s42, s42, s40
        s_addc_u32 s43, s43, 0
        global_load_dwordx4 v[180:183], v2, s[42:43]
        """)
        a.lab("A_nocpf")
    if OPT.get("pt", 0):
        a(f"""
        s_cmp_lg_u32 s{WV}, 1
        s_cbranch_scc1 A_nopt1
        s_lshl_b32 s40, s{CG}, 19
        s_add_u32 s40, s40, {WS_KV}
        v_lshlrev_b32 v212, 13, v1
        buffer_load_dword v208, v212, {WSRD}, s40 offen
        """)
        a.lab("A_nopt1")
        a(f"""
        s_cmp_lg_u32 s{WV}, 2
        s_cbranch_scc1 A_nopt2
        v_lshlrev_b32 v212, 16, v1
        s_mov_b32 s40, {WS_O}
        buffer_load_dword v208, v212, {WSRD}, s40 offen
        v_mov_b32 v213, 0
        s_mov_b32 s40, {WS_F}
        buffer_load_dword v209, v213, {WSRD}, s40 offen
        v_lshlrev_b32 v213, 15, v1
        global_load_dword v210, v213, s[18:19]
        v_lshlrev_b32 v214, 13, v1
        global_load_dword v211, v214, s[8:9]
        global_load_dword v211, v214, s[14:15]
        """)
        a.lab("A_nopt2")
    a(f"""
    s_cmp_lg_u32 s{WV}, 0
    s_cbranch_scc1 A_nononce
    s_memrealtime s[40:41]
    s_waitcnt lgkmcnt(0)
    s_or_b32 s40, s40, 1
    v_mov_b32 v186, s40
    v_mov_b32 v187, 0
    v_mov_b32 v188, 0
    s_mov_b64 exec, 1
    global_atomic_cmpswap v189, v188, v[186:187], s[{DBG}:{DBG+1}] sc0
    s_mov_b64 exec, -1
    """)
    a.lab("A_nononce")
    def read_list(ks, f):
        r = []
        r.append(f"ds_read_b64_tr_b16 {vr(WF[f]+0,2)}, v24 offset:{16384+(16*ks+0)*128}")
        r.append(f"ds_read_b64_tr_b16 {vr(WF[f]+2,2)}, v24 offset:{16384+(16*ks+4)*128}")
        r.append(f"ds_read_b128 {vr(XF[f],4)}, v{20+ks} offset:0")
        r.append(f"ds_read_b128 {vr(XF[f]+4,4)}, v{20+ks} offset:4096")
        for g3 in (1, 2):
            for u in range(2):
                r.append(f"ds_read_b64_tr_b16 {vr(WF[f]+4*g3+2*u,2)}, v24 offset:{16384+g3*8192+(16*ks+4*u)*128}")
        if GMF():
            r.append(f"ds_read_b128 {vr(GF[f],4)}, v14 offset:{ks*32}")
        return r
    gl = [0]
    FW = OPT.get("finewait", 1)
    def group(f, rl, barrier=False):
        order = [(0,0),(0,1),(1,0),(1,1),(2,0),(2,1)]
        nold = 9 if GMF() else 8
        need = {0: 3, 1: 4, 2: 6, 4: 8}
        rl = list(rl)
        issued = 0
        per = OPT.get("rpg", 2)
        for i, (g3, tt) in enumerate(order):
            if FW and i in need:
                a(f"s_waitcnt lgkmcnt({min(15, nold - need[i] + issued)})")
            x = vr(XF[f]+4*tt, 4); w = vr(WF[f]+4*g3, 4); d = vr(ACC+16*(tt*3+g3), 16)
            if g3 < 2:
                a(f"v_mfma_f32_32x32x16_bf16 {d}, {w}, {x}, {d}")
            else:
                a(f"v_mfma_f32_32x32x16_bf16 {d}, {x}, {w}, {d}")
            if i == 0 and barrier:
                if PROF and OPT.get("lprof", 0):
                    a("s_memtime s[88:89]")
                a(f"s_waitcnt lgkmcnt(0)")
                a("s_barrier")
                if PROF and OPT.get("lprof", 0):
                    a("s_memtime s[86:87]")
                    a("s_waitcnt lgkmcnt(0)")
                    a("s_sub_u32 s86, s86, s88")
                    a("s_add_u32 s98, s98, s86")
            for _ in range(per):
                if rl:
                    a(rl.pop(0)); issued += 1
        if GMF():
            if FW:
                a(f"s_waitcnt lgkmcnt({min(15, issued)})")
            n = gl[0]; gl[0] += 1
            d = vr(GACC, 16)
            a(f"s_cbranch_vccz A_g{n}a")
            a(f"v_mfma_f32_32x32x16_bf16 {d}, {vr(GF[f],4)}, {vr(XF[f],4)}, {d}")
            a(f"s_branch A_g{n}b")
            a.lab(f"A_g{n}a")
            a(f"v_mfma_f32_32x32x16_bf16 {d}, {vr(GF[f],4)}, {vr(XF[f]+4,4)}, {d}")
            a.lab(f"A_g{n}b")
        for x in rl:
            a(x)
    a("s_barrier")
    stamp(a, 1)
    for x in read_list(0, 0):
        a(x)
    if PROF and OPT.get("lprof", 0):
        a("s_mov_b32 s98, 0"); a("s_mov_b32 s99, 0"); a("s_mov_b32 s100, 0")
    a.lab("A_loop")
    for ks in range(3):
        if not FW: a("s_waitcnt lgkmcnt(0)")
        group(ks & 1, read_list(ks+1, (ks+1) & 1))
        if SPF and ks == 0:
            a(f"s_cmp_ge_u32 s58, {8 - 2 - SPF}")
            a("s_cbranch_scc1 A_nospf")
            spf_issue()
            a.lab("A_nospf")
    a("s_cmp_eq_u32 s58, 7")
    a("s_cbranch_scc1 A_last")
    a(f"""
    s_add_u32 s57, s57, {SLOT}
    s_cmp_ge_u32 s57, {NSLOT*SLOT}
    s_cselect_b32 s40, {NSLOT*SLOT}, 0
    s_sub_u32 s57, s57, s40
    """)
    if GMF():
        a("""
        s_add_u32 s59, s59, 1
        s_and_b32 s59, s59, 7
        s_lshl_b32 s40, s59, 7
        v_add_u32 v14, s40, v15
        """)
    set_addr()
    if not FW: a("s_waitcnt lgkmcnt(0)")
    group(1, read_list(0, 0), barrier=True)
    a("s_add_u32 s58, s58, 1")
    a("s_branch A_loop")
    a.lab("A_last")
    if not FW: a("s_waitcnt lgkmcnt(0)")
    group(1, [])
    stamp(a, 2)
    a("s_barrier")
    a(f"""
    s_lshl_b32 s40, s{WN}, 3
    s_lshl_b32 s41, s{WM}, 1
    s_add_u32 s40, s40, s41
    s_lshl_b32 s41, s40, 10
    v_add_u32 v16, s41, v2
    s_lshl_b32 s41, s40, 11
    v_add_u32 v17, s41, v2
    v_add_u32 v18, s41, v13
    s_nop 3
    """)
    a(f"""
    s_cmp_lg_u32 s{WV}, 0
    s_cbranch_scc1 A_nononce2
    s_waitcnt vmcnt(0)
    v_cmp_eq_u32 vcc, 0, v189
    s_nop 1
    v_cndmask_b32 v186, v189, v186, vcc
    v_mov_b32 v188, {RELAY}
    s_mov_b64 exec, 1
    ds_write_b64 v188, v[186:187]
    ds_write_b32 v188, v187 offset:8
    s_mov_b64 exec, -1
    """)
    a.lab("A_nononce2")
    STF = {0: ' sc1', 1: ' sc0 sc1', 2: ' sc1 nt', 3: ' sc0 sc1 nt'}[OPT.get('stf', 0)]
    for tt in range(2):
        d = ACC + 16*(tt*3+1)
        for r in range(8):
            a(f"v_cvt_pk_bf16_f32 v{d+r}, v{d+2*r}, v{d+2*r+1}")
        a(f"buffer_store_dwordx4 {vr(d,4)}, v2, {WSRD}, s46 offen offset:{tt*2048}{STF}")
        a(f"buffer_store_dwordx4 {vr(d+4,4)}, v2, {WSRD}, s47 offen offset:{tt*2048}{STF}")
        a(f"ds_write_b128 v17, {vr(d,4)} offset:{KVX+tt*2048}")
        a(f"ds_write_b128 v17, {vr(d+4,4)} offset:{KVX+tt*2048+8192}")
        d = ACC + 16*(tt*3+2)
        for r in range(8):
            a(f"v_cvt_pk_bf16_f32 v{d+r}, v{d+2*r}, v{d+2*r+1}")
        a(f"buffer_store_dwordx4 {vr(d,4)}, v11, {WSRD}, s46 offen offset:{tt*2048}{STF}")
        a(f"buffer_store_dwordx4 {vr(d+4,4)}, v11, {WSRD}, s46 offen offset:{tt*2048+256}{STF}")
        a(f"ds_write_b128 v18, {vr(d,4)} offset:{KVX+tt*2048+1024}")
        a(f"ds_write_b128 v18, {vr(d+4,4)} offset:{KVX+tt*2048+1280}")
    for tt in range(2):
        d = ACC + 16*(tt*3+0)
        for r in range(16):
            a(f"v_mul_f32 v{d+r}, s48, v{d+r}")
        for r in range(8):
            a(f"v_cvt_pk_bf16_f32 v{d+r}, v{d+2*r}, v{d+2*r+1}")
        a(f"ds_write_b128 v16, {vr(d,4)} offset:{QX+tt*1024}")
        a(f"ds_write_b128 v16, {vr(d+4,4)} offset:{QX+tt*1024+4096}")
    if GMF():
        g = GACC
        a(f"""
        v_mul_f32 v{g}, {f32(-LOG2E)}, v{g}
        v_exp_f32 v{g}, v{g}
        s_nop 0
        v_add_f32 v{g}, 1.0, v{g}
        v_rcp_f32 v{g}, v{g}
        s_nop 0
        v_sub_f32 v20, 1.0, v{g}
        s_cmp_eq_u32 s{BB}, 0
        s_cselect_b64 vcc, -1, 0
        v_and_b32 v19, 31, v1
        v_lshlrev_b32 v19, 2, v19
        v_cndmask_b32 v20, v20, v{g}, vcc
        s_lshl_b32 s41, s{WM}, 8
        s_lshl_b32 s40, s{WN}, 7
        s_add_u32 s41, s41, s40
        v_add_u32 v19, s41, v19
        ds_write_b32 v19, v20 offset:{GX}
        """)
    a.lab("A_join")
    a("s_waitcnt lgkmcnt(0)")
    a("s_barrier")
    stamp(a, 3)

def spin(a, lab, addr_v, val_v, cond):
    a("s_mov_b32 s69, 0")
    a.lab(lab)
    a(f"global_load_dword v{val_v}, v{addr_v}, s[{DBG}:{DBG+1}] sc1")
    a("s_add_u32 s69, s69, 1")
    a("s_waitcnt vmcnt(0)")
    cond()
    a(f"s_cbranch_scc1 {lab}_ok")
    a("s_cmp_lt_u32 s69, 200000")
    a(f"s_cbranch_scc1 {lab}")
    a.lab(lab + "_ok")

def phase_b(a):
    Q = [4, 8]; S = [12, 28]; O = [44, 60]; C = [76, 92]
    KB = lambda s, u: 108 + s*16 + u*4
    VB = lambda s, u: 192 + s*32 + u*8
    G = [156, 157]; T0 = 158; T1 = 159; T2 = 160
    H4, QH, PAIR, QT = 30, 31, 32, 33
    a(f"""
    s_lshr_b32 s{H4}, s{WV}, 1
    s_and_b32 s{QH}, s{WV}, 1
    s_lshl_b32 s{PAIR}, s{CG}, 2
    s_add_u32 s{PAIR}, s{PAIR}, s{H4}
    s_lshl_b32 s{QT}, s{MT}, 2
    s_lshl_b32 s40, s{QH}, 1
    s_add_u32 s{QT}, s{QT}, s40
    s_lshl_b32 s46, s{PAIR}, 17
    s_add_u32 s46, s46, {WS_KV}
    s_lshl_b32 s40, s{H4}, 12
    s_lshl_b32 s41, s{QH}, 11
    s_add_u32 s40, s40, s41
    v_add_u32 v{T0}, s40, v2
    ds_read_b128 {vr(Q[0],4)}, v{T0} offset:{QX}
    ds_read_b128 {vr(Q[1],4)}, v{T0} offset:{QX+1024}
    v_and_b32 v{T1}, 31, v1
    v_lshlrev_b32 v{T1}, 2, v{T1}
    s_lshl_b32 s41, s{QH}, 8
    v_add_u32 v{T1}, s41, v{T1}
    """)
    if GM() != 2:
        a(f"ds_read_b32 v{G[0]}, v{T1} offset:{GX}")
        a(f"ds_read_b32 v{G[1]}, v{T1} offset:{GX+128}")
    a(f"""
    """)
    a(f"""
    s_mov_b32 s52, 0x0000ffff
    s_mov_b32 s53, 0x0000ffff
    s_lshl_b32 s40, s{H4}, 13
    v_add_u32 v{T0}, s40, v2
    """)
    for u in range(4):
        a(f"ds_read_b128 {vr(KB(0,u),4)}, v{T0} offset:{KVX+u*2048}")
    a("s_mov_b64 exec, s[52:53]")
    for u in range(4):
        a(f"ds_read_b128 {vr(VB(0,u),4)}, v{T0} offset:{KVX+u*2048+1024}")
        a(f"ds_read_b128 {vr(VB(0,u)+4,4)}, v{T0} offset:{KVX+u*2048+1280}")
    a("s_mov_b64 exec, -1")
    a(f"v_mov_b32 v{T2}, {RELAY}")
    a(f"ds_read_b32 v{T2+1}, v{T2}")
    a("s_waitcnt lgkmcnt(0)")
    a(f"v_readfirstlane_b32 s{NONCE}, v{T2+1}")
    stamp(a, 4)
    c_prefetch_setup(a)
    a("s_mov_b32 s49, 0")
    a("s_mov_b32 s50, 0")
    a("s_mov_b32 s54, 0")
    a(f"s_lshl_b32 s45, 1, s{MT}")
    if OPT.get("nodep", 0):
        a("s_mov_b32 s45, 0xffff")
        a("s_mov_b32 s49, 1")
    if OPT["prio"]:
        a("s_setprio 3")
    for x in range(2):
        a(f"v_mfma_f32_32x32x16_bf16 {vr(S[x],16)}, {vr(KB(0,0),4)}, {vr(Q[x],4)}, 0")
    a("s_nop 7")
    a("s_nop 7")
    MX = [T0, T1]
    for x in range(2):
        a(f"v_max3_f32 v{MX[x]}, v{S[x]}, v{S[x]+1}, v{S[x]+2}")
        for r in range(3, 15, 2):
            a(f"v_max3_f32 v{MX[x]}, v{MX[x]}, v{S[x]+r}, v{S[x]+r+1}")
        a(f"v_max_f32 v{MX[x]}, v{MX[x]}, v{S[x]+15}")
    a.lab("B_setmax")
    for x in range(2):
        a(f"""
        v_mov_b32 v{T2}, v{MX[x]}
        s_nop 1
        v_permlane32_swap_b32 v{MX[x]}, v{T2}
        s_nop 1
        v_max_f32 v{MX[x]}, v{MX[x]}, v{T2}
        """)
        a(f"v_sub_f32 v{C[x]}, 0, v{MX[x]}")
        a(f"v_sub_f32 v{C[x]+1}, 0, v{MX[x]}")
        for r in range(0, 16, 2):
            a(f"v_mov_b64 v[{O[x]+r}:{O[x]+r+1}], 0")
        for r in range(2, 16, 2):
            a(f"v_mov_b64 v[{C[x]+r}:{C[x]+r+1}], v[{C[x]}:{C[x]+1}]")
    a(f"v_mfma_f32_32x32x16_bf16 {vr(S[0],16)}, {vr(KB(0,0),4)}, {vr(Q[0],4)}, {vr(C[0],16)}")
    for r in range(4):
        a(f"v_mov_b32 v{148+4+r}, 0")
    if OPT.get("sch", 1) == 3:
        for r in range(8, 16):
            a(f"v_mov_b32 v{S[1]+r}, 0")
    a(f"s_mov_b32 s44, s{MT}")
    a("s_mov_b32 s55, 0")
    a("s_nop 7")
    def ex(b, lo, hi):
        for r in range(lo, hi):
            a(f"v_exp_f32 v{b+r}, v{b+r}")
    def cv(b, h):
        for r in range(4):
            a(f"v_cvt_pk_bf16_f32 v{b+4*h+r}, v{b+8*h+2*r}, v{b+8*h+2*r+1}")
    def pv(x, vb, h):
        a(f"v_mfma_f32_32x32x16_bf16 {vr(O[x],16)}, {vr(vb+4*h,4)}, {vr(S[x]+4*h,4)}, {vr(O[x],16)}")
    def pf_head(tag):
        if tag == 0 and OPT.get("D", 4) <= 4 and not (OPT.get("late", 1) and OPT.get("D", 4) == 4):
            a("s_cmp_eq_u32 s49, 0")
            a("s_cbranch_scc1 B_first")
            a.lab("B_first_ret")
        a(f"""
        s_add_u32 s44, s44, 1
        s_and_b32 s44, s44, 15
        s_bitcmp1_b32 s45, s44
        s_cbranch_scc0 B_poll{tag}
        """)
        a.lab(f"B_pf{tag}")
        a(f"""
        s_lshl_b32 s47, s44, 13
        s_add_u32 s47, s47, s46
        s_add_u32 s48, s47, 4096
        """)
    def ldk(s, u):
        if OPT.get("skipld", 0) and s == 0: return
        so = 47 if u < 2 else 48
        a(f"buffer_load_dwordx4 {vr(KB(s,u),4)}, v2, {WSRD}, s{so} offen offset:{(u&1)*2048} sc1")
    def ldv(s, u):
        if OPT.get("skipld", 0) and s == 0: return
        so = 47 if u < 2 else 48
        a("s_mov_b64 exec, s[52:53]")
        a(f"buffer_load_dwordx4 {vr(VB(s,u),4)}, v2, {WSRD}, s{so} offen offset:{(u&1)*2048+1024} sc1")
        a(f"buffer_load_dwordx4 {vr(VB(s,u)+4,4)}, v2, {WSRD}, s{so} offen offset:{(u&1)*2048+1280} sc1")
        a("s_mov_b64 exec, -1")
    D = OPT.get("D", 4)
    if D > 4:
        a("s_cmp_eq_u32 s49, 0")
        a("s_cbranch_scc1 B_first")
        a.lab("B_first_ret")
        pf_head(2)
        for uu in range(D - 4):
            ldk(1, uu)
            ldv(1, uu)
    a.lab("B_loop")
    SCH = OPT.get("sch", 1)
    P = [140, 148]
    def e1(b, r):
        a(f"v_exp_f32 v{b+r}, v{b+r}")
    def cvp(x, lo, hi):
        for r in range(lo, hi):
            a(f"v_cvt_pk_bf16_f32 v{P[x]+r}, v{S[x]+2*r}, v{S[x]+2*r+1}")
    def pvp(x, vb, h):
        a(f"v_mfma_f32_32x32x16_bf16 {vr(O[x],16)}, {vr(vb+4*h,4)}, {vr(P[x]+4*h,4)}, {vr(O[x],16)}")
    for s in range(2):
        for u in range(4):
            vb = VB(s, u)
            vprev = VB(s, u-1) if u > 0 else VB(1-s, 3)
            kn = KB(s, u+1) if u < 3 else KB(1-s, 0)
            L = (4*s + u + D) % 8
            qs, qu = L // 4, L % 4
            guard = (D < 4 and s == 0 and qs == s)
            if OPT["prio"] == 2 and s == 1 and u == 0:
                a("s_cmp_lg_u32 s55, 7")
                a("s_cbranch_scc1 B_pm")
                a("s_setprio 0")
                a.lab("B_pm")
            LATE = OPT.get("late", 1) and D == 4
            def do_ldk():
                if LATE and s == 0 and u <= 2:
                    if u == 2:
                        a("s_cmp_eq_u32 s49, 1")
                        a("s_cbranch_scc1 B_start")
                        a.lab("B_start_ret")
                        ldk(qs, qu)
                        return
                    a("s_cmp_lt_u32 s49, 2")
                    a(f"s_cbranch_scc1 B_late{u}")
                    if qu == 0:
                        pf_head(s)
                    ldk(qs, qu)
                    a.lab(f"B_late{u}_ret")
                    return
                if qu == 0:
                    pf_head(s)
                if guard:
                    a("s_cmp_eq_u32 s49, 0")
                    a(f"s_cbranch_scc1 B_gk{u}")
                ldk(qs, qu)
                if guard:
                    a.lab(f"B_gk{u}")
            def do_ldv():
                if LATE and s == 0 and u <= 1:
                    a("s_cmp_lt_u32 s49, 2")
                    a(f"s_cbranch_scc1 B_gv{u}")
                    ldv(qs, qu)
                    a.lab(f"B_gv{u}")
                    return
                if guard:
                    a("s_cmp_eq_u32 s49, 0")
                    a(f"s_cbranch_scc1 B_gv{u}")
                ldv(qs, qu)
                if guard:
                    a.lab(f"B_gv{u}")
                if u == 3 and s == 1:
                    a("s_cmp_lt_u32 s50, 4")
                    a("s_cbranch_scc1 B_wo")
                    a.lab("B_wo_ret")
            if SCH == 0:
                a(f"v_mfma_f32_32x32x16_bf16 {vr(S[1],16)}, {vr(KB(s,u),4)}, {vr(Q[1],4)}, {vr(C[1],16)}")
                do_ldk()
                ex(S[0], 0, 8)
                cv(S[0], 0)
                ex(S[0], 8, 16)
                a(f"s_waitcnt vmcnt({3*(D-1)+1})")
                pv(0, vb, 0)
                cv(S[0], 1)
                ex(S[1], 0, 2)
                pv(0, vb, 1)
                ex(S[1], 2, 8)
                a(f"s_waitcnt vmcnt({3*D-3})")
                a(f"v_mfma_f32_32x32x16_bf16 {vr(S[0],16)}, {vr(kn,4)}, {vr(Q[0],4)}, {vr(C[0],16)}")
                cv(S[1], 0)
                ex(S[1], 8, 16)
                pv(1, vb, 0)
                cv(S[1], 1)
                do_ldv()
                pv(1, vb, 1)
            else:
                scheds = {
                 1: "ea0-2 PVb1 ea2-8 QKb LK ca0-4 ea8-12 W PVa0 ea12-16 ca4-8 eb0-2 PVa1 eb2-7 QKa eb7-8 cb0-4 eb8-11 PVb0 LV eb11-16 cb4-8",
                 2: "ea0-2 PVb1 ea2-8 QKb LK ca0-4 ea8-12 W PVa0 ea12-16 eb0-2 ca4-8 eb2-4 PVa1 eb4-8 QKa eb8-10 cb0-4 eb10-12 PVb0 LV eb12-16 cb4-8",
                 3: "cb4-8 ea0-2 PVb1 ea2-8 QKb LK ea8-10 ca0-4 ea10-12 W PVa0 ea12-16 eb0-2 ca4-8 eb2-4 PVa1 eb4-8 QKa eb8-10 cb0-4 eb10-12 PVb0 LV eb12-16",
                 4: "ea0-4 PVb1 ea4-8 LK ca0-4 QKb ea8-12 W PVa0 ea12-16 ca4-8 eb0-2 PVa1 eb2-8 QKa cb0-4 eb8-11 PVb0 LV eb11-16 cb4-8",
                 5: "ea0-2 PVb1 ea2-6 QKb ea6-8 LK ca0-4 ea8-10 W PVa0 ea10-16 ca4-8 eb0-2 PVa1 eb2-6 QKa eb6-8 cb0-4 eb8-10 PVb0 eb10-13 LV eb13-16 cb4-8",
                }
                for tok in scheds[SCH].split():
                    if tok == "PVb1": pvp(1, vprev, 1)
                    elif tok == "PVa0": pvp(0, vb, 0)
                    elif tok == "PVa1": pvp(0, vb, 1)
                    elif tok == "PVb0": pvp(1, vb, 0)
                    elif tok == "QKb": a(f"v_mfma_f32_32x32x16_bf16 {vr(S[1],16)}, {vr(KB(s,u),4)}, {vr(Q[1],4)}, {vr(C[1],16)}")
                    elif tok == "QKa": a(f"v_mfma_f32_32x32x16_bf16 {vr(S[0],16)}, {vr(kn,4)}, {vr(Q[0],4)}, {vr(C[0],16)}")
                    elif tok == "LK": do_ldk()
                    elif tok == "LV": do_ldv()
                    elif tok == "W": a(f"s_waitcnt vmcnt({3*D-3})")
                    else:
                        x = 0 if tok[1] == "a" else 1
                        lo, hi = [int(z) for z in tok[2:].split("-")]
                        if tok[0] == "e": ex(S[x], lo, hi)
                        else: cvp(x, lo, hi)
    a("s_add_u32 s55, s55, 1")
    if OPT["prio"] == 1:
        a("""
        s_and_b32 s40, s55, 1
        s_cbranch_scc1 B_noprio
        s_cmp_eq_u32 s55, 2
        s_cbranch_scc0 B_p1
        s_setprio 2
        """)
        a.lab("B_p1")
        a("s_cmp_eq_u32 s55, 4")
        a("s_cbranch_scc0 B_p2")
        a("s_setprio 1")
        a.lab("B_p2")
        a("s_cmp_eq_u32 s55, 6")
        a("s_cbranch_scc0 B_noprio")
        a("s_setprio 0")
        a.lab("B_noprio")
    if OPT["prio"] == 3:
        a("s_cmp_lt_u32 s55, 5")
        a("s_cbranch_scc1 B_noprio")
        a("s_setprio 2")
        a("s_cmp_eq_u32 s55, 5")
        a("s_cbranch_scc1 B_noprio")
        a("s_setprio 1")
        a("s_cmp_eq_u32 s55, 6")
        a("s_cbranch_scc1 B_noprio")
        a("s_setprio 0")
        a.lab("B_noprio")
    if OPT["prio"] == 2:
        a("s_cmp_lt_u32 s55, 6")
        a("s_cbranch_scc1 B_noprio")
        a("s_setprio 2")
        a("s_cmp_eq_u32 s55, 6")
        a("s_cbranch_scc1 B_noprio")
        a("s_setprio 1")
        a.lab("B_noprio")
    a("s_cmp_ge_u32 s55, 5")
    a("s_cbranch_scc1 B_wobar")
    a.lab("B_wobar_ret")
    if PROF and OPT.get("lstamp", 0):
        a("s_cmp_eq_u32 s55, 1")
        a("s_cbranch_scc0 B_ls1")
        stamp(a, 9)
        a.lab("B_ls1")
        a(f"s_cmp_eq_u32 s55, {OPT.get('ls2', 4)}")
        a("s_cbranch_scc0 B_ls2")
        stamp(a, 10)
        a.lab("B_ls2")
    a("s_cmp_lt_u32 s55, 8")
    a("s_cbranch_scc1 B_loop")
    if OPT.get("sch", 1) == 3:
        for r in range(4, 8):
            a(f"v_cvt_pk_bf16_f32 v{148+r}, v{S[1]+2*r}, v{S[1]+2*r+1}")
    if OPT.get("sch", 1):
        a("s_nop 1")
        a(f"v_mfma_f32_32x32x16_bf16 {vr(O[1],16)}, {vr(VB(1,3)+4,4)}, {vr(148+4,4)}, {vr(O[1],16)}")
    stamp(a, 6)
    a("s_nop 7")
    a("s_nop 7")
    a("s_cmp_lg_u32 s54, 0")
    a("s_cbranch_scc1 B_fin")
    a(f"v_mov_b32 v{T0}, 0")
    a(f"v_mov_b32 v{T1}, 0")
    for x in range(2):
        o = O[x]
        for r in range(0, 8, 2):
            a(f"v_max3_f32 v{T0}, v{T0}, |v{o+r}|, |v{o+r+1}|")
        a(f"v_max_f32 v{T0}, v{T0}, v{o+8}")
        for r in range(8):
            a(f"v_add_f32 v{T1}, v{T1}, v{o+r}")
    a(f"""
    v_mul_f32 v{T1}, 0, v{T1}
    v_add_f32 v{T0}, v{T0}, v{T1}
    s_mov_b32 s57, {f32(2.0**100)}
    v_cmp_gt_f32 vcc, s57, v{T0}
    s_cmp_eq_u64 vcc, exec
    s_cbranch_scc1 B_fin
    """)
    a(f"""
    s_mov_b32 s54, 1
    v_mov_b32 v{T0}, {f32(-3.0e38)}
    v_mov_b32 v{T1}, {f32(-3.0e38)}
    s_mov_b32 s47, s46
    s_mov_b32 s55, 0
    s_waitcnt vmcnt(0)
    """)
    a.lab("B_maxloop")
    a(f"buffer_load_dwordx4 {vr(KB(1,0),4)}, v2, {WSRD}, s47 offen sc1")
    a("s_waitcnt vmcnt(0)")
    for x in range(2):
        a(f"v_mfma_f32_32x32x16_bf16 {vr(S[x],16)}, {vr(KB(1,0),4)}, {vr(Q[x],4)}, 0")
    a("s_nop 7")
    a("s_nop 7")
    for x in range(2):
        for r in range(0, 16, 2):
            a(f"v_max3_f32 v{MX[x]}, v{MX[x]}, v{S[x]+r}, v{S[x]+r+1}")
    a("s_add_u32 s47, s47, 2048")
    a("s_add_u32 s55, s55, 1")
    a("s_cmp_lt_u32 s55, 64")
    a("s_cbranch_scc1 B_maxloop")
    a("s_branch B_setmax")
    if OPT.get("late", 1) and OPT.get("D", 4) == 4:
        a.lab("B_late0")
        a("s_branch B_late0_ret")
        a.lab("B_late1")
        a("s_cmp_lg_u32 s49, 0")
        a("s_cbranch_scc1 B_late1_ret")
        a("s_branch B_first")
        a.lab("B_start")
        pf_head(2)
        for uu in range(2):
            ldk(1, uu)
            ldv(1, uu)
        a("s_mov_b32 s49, 2")
        a("s_branch B_start_ret")
    FRET = "B_late1_ret" if (OPT.get("late", 1) and OPT.get("D", 4) == 4) else "B_first_ret"
    a.lab("B_first")
    a("s_waitcnt vmcnt(0)")
    a("s_barrier")
    stamp(a, 5)
    a("s_mov_b32 s49, 1")
    a(f"""
    s_cmp_lg_u32 s{WV}, 0
    s_cbranch_scc1 {FRET}
    s_lshl_b32 s40, s{CG}, 7
    s_lshl_b32 s41, s{MT}, 2
    s_add_u32 s40, s40, s41
    s_add_u32 s40, s40, {WS_F}
    v_mov_b32 v{T2}, 0
    v_mov_b32 v{T2+1}, s{NONCE}
    s_mov_b64 exec, 1
    buffer_store_dword v{T2+1}, v{T2}, {WSRD}, s40 offen sc1
    s_lshl_b32 s40, s{MT}, 7
    s_lshl_b32 s41, s{CG}, 2
    s_add_u32 s40, s40, s41
    s_add_u32 s40, s40, {WS_GF}
    buffer_store_dword v{T2+1}, v{T2}, {WSRD}, s40 offen sc1
    s_mov_b64 exec, -1
    s_branch {FRET}
    """)
    a.lab("B_wobar")
    a("s_cmp_lg_u32 s54, 0")
    a("s_cbranch_scc1 B_wobar_ret")
    a("s_cmp_eq_u32 s55, 6")
    a("s_cbranch_scc1 B_wobar6")
    if GM() == 2:
        a("s_cmp_lg_u32 s55, 5")
        a("s_cbranch_scc1 B_wobar_ret")
        a(f"s_cmp_lg_u32 s{WV}, 0")
        a("s_cbranch_scc1 B_wobar_ret")
        a(f"""
        s_lshl_b32 s40, s{MT}, 7
        s_add_u32 s40, s40, {WS_GF}
        v_lshlrev_b32 v{T2}, 2, v1
        s_mov_b32 s69, 0
        """)
        a.lab("B_gpoll")
        a(f"""
        s_mov_b64 exec, 0xffff
        buffer_load_dword v{T2+1}, v{T2}, {WSRD}, s40 offen sc1
        s_add_u32 s69, s69, 1
        s_waitcnt vmcnt(0)
        v_cmp_eq_u32 vcc, s{NONCE}, v{T2+1}
        s_mov_b64 exec, -1
        s_cmp_eq_u32 vcc_lo, 0xffff
        s_cbranch_scc1 B_wobar_ret
        s_cmp_lt_u32 s69, 200000
        s_cbranch_scc1 B_gpoll
        """)
    a("s_branch B_wobar_ret")
    a.lab("B_wobar6")
    a("s_barrier")
    if GM() == 2:
        a(f"""
        s_lshl_b32 s40, s{QT}, 7
        s_add_u32 s40, s40, {WS_G}
        v_and_b32 v{T2}, 31, v1
        v_lshlrev_b32 v{T2}, 2, v{T2}
        buffer_load_dword v{G[0]}, v{T2}, {WSRD}, s40 offen sc1
        buffer_load_dword v{G[1]}, v{T2}, {WSRD}, s40 offen offset:128 sc1
        """)
    a("s_branch B_wobar_ret")
    a.lab("B_wo")
    for i in range(4):
        a(f"s_add_u32 m0, s58, {i*1024}")
        a(f"s_add_u32 s51, s59, {i*8192}")
        a(f"buffer_load_dwordx4 v162, s[60:63], s51 offen lds")
    a("s_add_u32 s58, s58, 4096")
    a("s_add_u32 s59, s59, 32768")
    a("s_add_u32 s50, s50, 1")
    a("s_branch B_wo_ret")
    for sset in range(3 if (OPT.get('D', 4) > 4 or (OPT.get('late', 1) and OPT.get('D', 4) == 4)) else 2):
        a.lab(f"B_poll{sset}")
        a("s_mov_b32 s69, 0")
        a(f"s_cmp_lg_u32 s{WV}, 0")
        a(f"s_cbranch_scc1 B_lp{sset}")
        a(f"""
        s_lshl_b32 s40, s{CG}, 7
        s_add_u32 s40, s40, {WS_F}
        v_lshlrev_b32 v{T2}, 2, v1
        """)
        a.lab(f"B_gp{sset}")
        a(f"""
        s_mov_b64 exec, 0xffff
        buffer_load_dword v{T2+1}, v{T2}, {WSRD}, s40 offen sc1
        s_add_u32 s69, s69, 1
        s_waitcnt vmcnt(0)
        v_cmp_eq_u32 vcc, s{NONCE}, v{T2+1}
        s_mov_b64 exec, -1
        s_or_b32 s45, s45, vcc_lo
        s_bitcmp1_b32 s45, s44
        s_cbranch_scc1 B_gok{sset}
        s_cmp_lt_u32 s69, 200000
        s_cbranch_scc1 B_gp{sset}
        s_mov_b32 s45, 0xffff
        """)
        a.lab(f"B_gok{sset}")
        a(f"""
        v_mov_b32 v{T2}, {RELAY+4}
        v_mov_b32 v{T2+1}, s45
        ds_write_b32 v{T2}, v{T2+1}
        s_branch B_pf{sset}
        """)
        a.lab(f"B_lp{sset}")
        a(f"v_mov_b32 v{T2}, {RELAY+4}")
        a.lab(f"B_lpl{sset}")
        a(f"""
        ds_read_b32 v{T2+1}, v{T2}
        s_add_u32 s69, s69, 1
        s_waitcnt lgkmcnt(0)
        v_readfirstlane_b32 s40, v{T2+1}
        s_nop 3
        s_or_b32 s45, s45, s40
        s_bitcmp1_b32 s45, s44
        s_cbranch_scc1 B_pf{sset}
        s_cmp_lt_u32 s69, 4000000
        s_cbranch_scc1 B_lpl{sset}
        s_mov_b32 s45, 0xffff
        s_branch B_pf{sset}
        """)
    a.lab("B_fin")
    if GM() == 2:
        a("s_waitcnt vmcnt(0)")
        a(f"s_cmp_eq_u32 s{BB}, 0")
        a("s_cbranch_scc1 B_fin2")
        a(f"v_sub_f32 v{G[0]}, 1.0, v{G[0]}")
        a(f"v_sub_f32 v{G[1]}, 1.0, v{G[1]}")
        a.lab("B_fin2")
    for x in range(2):
        o = O[x]
        a(f"v_rcp_f32 v{T0}, v{o+8}")
        a("s_nop 0")
        a(f"v_mul_f32 v{T0}, v{T0}, v{G[x]}")
        for r in range(8):
            a(f"v_mul_f32 v{o+r}, v{o+r}, v{T0}")
        for r in range(4):
            a(f"v_cvt_pk_bf16_f32 v{o+r}, v{o+2*r}, v{o+2*r+1}")
    a(f"""
    s_lshl_b32 s40, s{QT}, 6
    s_add_u32 s40, s40, s{PAIR}
    s_lshl_b32 s40, s40, 10
    s_add_u32 s40, s40, {WS_O}
    s_add_u32 s41, s40, 65536
    buffer_store_dwordx4 {vr(O[0],4)}, v2, {WSRD}, s40 offen sc1
    buffer_store_dwordx4 {vr(O[1],4)}, v2, {WSRD}, s41 offen sc1
    """)
    if OPT.get("oflag", 0):
        a(f"""
        s_lshl_b32 s40, s{MT}, 9
        s_lshl_b32 s41, s{QH}, 8
        s_add_u32 s40, s40, s41
        s_lshl_b32 s41, s{CG}, 4
        s_add_u32 s40, s40, s41
        s_lshl_b32 s41, s{H4}, 2
        s_add_u32 s40, s40, s41
        s_add_u32 s40, s40, {WS_F+2048}
        v_mov_b32 v4, 0
        v_mov_b32 v5, s{NONCE}
        s_waitcnt vmcnt(0)
        s_mov_b64 exec, 1
        buffer_store_dword v5, v4, {WSRD}, s40 offen sc1
        s_mov_b64 exec, -1
        """)
        stamp(a, 7)
    else:
        a("s_waitcnt vmcnt(0)")
        a("s_barrier")
        stamp(a, 7)
        a(f"""
        s_cmp_lg_u32 s{WV}, 0
        s_cbranch_scc1 B_opub_done
        s_lshl_b32 s40, s{MT}, 9
        s_lshl_b32 s41, s{CG}, 2
        s_add_u32 s40, s40, s41
        s_add_u32 s40, s40, {WS_F+2048}
        v_mov_b32 v4, 0
        v_mov_b32 v5, s{NONCE}
        s_mov_b64 exec, 1
        buffer_store_dword v5, v4, {WSRD}, s40 offen sc1
        s_mov_b64 exec, -1
        """)
    a.lab("B_opub_done")

def c_prefetch_setup(a):
    a(f"""
    v_lshrrev_b32 v162, 3, v1
    v_and_b32 v163, 7, v1
    v_bfe_u32 v164, v1, 4, 1
    v_lshlrev_b32 v164, 2, v164
    v_xor_b32 v164, v163, v164
    v_lshlrev_b32 v164, 4, v164
    v_lshl_add_u32 v162, v162, 10, v164
    s_cmp_lt_u32 s{WV}, 4
    s_cselect_b32 s60, s8, s14
    s_cselect_b32 s61, s9, s15
    s_and_b32 s56, s{WV}, 3
    s_lshl_b32 s56, s56, 17
    s_and_b32 s57, s{CG}, 7
    s_lshl_b32 s57, s57, 7
    s_add_u32 s56, s56, s57
    s_add_u32 s60, s60, s56
    s_addc_u32 s61, s61, 0
    s_sub_u32 s62, 524288, s56
    s_mov_b32 s63, 0x20000
    s_lshl_b32 s58, s{WV}, 14
    s_mov_b32 s59, 0
    """)

def phase_c(a):
    MT64, NT, KQ, TT = 30, 31, 32, 33
    OF = 64
    ACC = 128
    a(f"""
    s_lshl_b32 s{MT64}, s{MT}, 1
    s_lshr_b32 s40, s{CG}, 3
    s_add_u32 s{MT64}, s{MT64}, s40
    s_and_b32 s{NT}, s{CG}, 7
    s_lshr_b32 s{KQ}, s{WV}, 1
    s_and_b32 s{TT}, s{WV}, 1
    v_lshrrev_b32 v5, 4, v1
    s_lshl_b32 s44, s{MT}, 9
    s_lshr_b32 s40, s{CG}, 3
    s_lshl_b32 s40, s40, 8
    s_add_u32 s44, s44, s40
    s_lshl_b32 s40, s{KQ}, 6
    s_add_u32 s44, s44, s40
    s_add_u32 s44, s44, {WS_F+2048}
    v_lshlrev_b32 v6, 2, v1
    s_mov_b32 s47, 0
    s_lshl_b32 s45, s{MT64}, 1
    s_add_u32 s45, s45, s{TT}
    s_lshl_b32 s45, s45, 6
    s_lshl_b32 s46, s{KQ}, 4
    s_add_u32 s45, s45, s46
    s_lshl_b32 s45, s45, 10
    s_add_u32 s45, s45, {WS_O}
    """)
    if OPT.get("oflag", 0):
        for g in range(4):
            m = 0xf << (4*g)
            a(f"s_and_b32 s40, s47, {m}")
            a(f"s_cmp_eq_u32 s40, {m}")
            a(f"s_cbranch_scc1 C_rdy{g}")
            a("s_mov_b32 s69, 0")
            a.lab(f"C_poll{g}")
            a(f"""
            s_mov_b64 exec, 0xffff
            buffer_load_dword v7, v6, {WSRD}, s44 offen sc1
            s_add_u32 s69, s69, 1
            s_waitcnt vmcnt(0)
            v_cmp_eq_u32 vcc, s{NONCE}, v7
            s_mov_b64 exec, -1
            s_mov_b32 s47, vcc_lo
            s_and_b32 s40, s47, {m}
            s_cmp_eq_u32 s40, {m}
            s_cbranch_scc1 C_rdy{g}
            s_sleep {OPT.get("sleep", 4)}
            s_cmp_lt_u32 s69, 200000
            s_cbranch_scc1 C_poll{g}
            """)
            a.lab(f"C_rdy{g}")
            if g == 3:
                stamp(a, 8)
            for i in range(4*g, 4*g+4):
                a(f"buffer_load_dwordx4 {vr(OF+4*i,4)}, v2, {WSRD}, s45 offen offset:{(i%4)*1024} sc1")
            if g < 3:
                a("s_add_u32 s45, s45, 4096")
    elif OPT.get("cprog", 1):
        a(f"""
        s_lshl_b32 s44, s{MT}, 9
        s_add_u32 s44, s44, {WS_F+2048}
        s_lshl_b32 s50, s{KQ}, 2
        s_lshl_b32 s51, 1, s{CG}
        s_mov_b32 s47, s51
        v_mov_b32 v8, {RELAY+8}
        s_mov_b32 s69, 0
        s_cmp_eq_u32 s{WV}, 7
        s_cbranch_scc1 C_poller
        """)
        def oloads(g):
            for i in range(4*g, 4*g+4):
                a(f"buffer_load_dwordx4 {vr(OF+4*i,4)}, v2, {WSRD}, s45 offen offset:{(i%4)*1024} sc1")
            if g < 3:
                a("s_add_u32 s45, s45, 4096")
        for g in range(4):
            a.lab(f"C_lw{g}")
            a("s_bitcmp1_b32 s47, s50")
            a(f"s_cbranch_scc1 C_lr{g}")
            a(f"""
            ds_read_b32 v9, v8
            s_add_u32 s69, s69, 1
            s_waitcnt lgkmcnt(0)
            v_readfirstlane_b32 s47, v9
            s_nop 3
            s_or_b32 s47, s47, s51
            s_cmp_lt_u32 s69, 4000000
            s_cbranch_scc1 C_lw{g}
            """)
            a.lab(f"C_lr{g}")
            oloads(g)
            a("s_add_u32 s50, s50, 1")
        a("s_branch C_go")
        a.lab("C_poller")
        def poll_issue():
            a("s_mov_b64 exec, 0xffff")
            a(f"buffer_load_dword v7, v6, {WSRD}, s44 offen sc1")
            a("s_mov_b64 exec, -1")
        def poll_take():
            a(f"""
            s_mov_b64 exec, 0xffff
            v_cmp_eq_u32 vcc, s{NONCE}, v7
            s_mov_b64 exec, -1
            s_or_b32 s47, vcc_lo, s51
            v_mov_b32 v9, s47
            ds_write_b32 v8, v9
            """)
        for g in range(4):
            a.lab(f"C_pw{g}")
            a("s_bitcmp1_b32 s47, s50")
            a(f"s_cbranch_scc1 C_pr{g}")
            poll_issue()
            a("s_add_u32 s69, s69, 1")
            a("s_waitcnt vmcnt(0)")
            poll_take()
            a("s_cmp_lt_u32 s69, 200000")
            a(f"s_cbranch_scc1 C_pw{g}")
            a.lab(f"C_pr{g}")
            a("s_cmp_eq_u32 s47, 0xffff")
            a(f"s_cbranch_scc1 C_pf{g}")
            poll_issue()
            for i in range(4*g, 4*g+4):
                a(f"buffer_load_dwordx4 {vr(OF+4*i,4)}, v2, {WSRD}, s45 offen offset:{(i%4)*1024} sc1")
            a("s_waitcnt vmcnt(4)")
            poll_take()
            a(f"s_branch C_pn{g}")
            a.lab(f"C_pf{g}")
            for i in range(4*g, 4*g+4):
                a(f"buffer_load_dwordx4 {vr(OF+4*i,4)}, v2, {WSRD}, s45 offen offset:{(i%4)*1024} sc1")
            a.lab(f"C_pn{g}")
            if g < 3:
                a("s_add_u32 s45, s45, 4096")
            a("s_add_u32 s50, s50, 1")
        a.lab("C_pw4")
        a("s_cmp_eq_u32 s47, 0xffff")
        a("s_cbranch_scc1 C_go")
        poll_issue()
        a("s_add_u32 s69, s69, 1")
        a("s_waitcnt vmcnt(0)")
        poll_take()
        a("s_cmp_lt_u32 s69, 200000")
        a("s_cbranch_scc1 C_pw4")
        a.lab("C_go")
        stamp(a, 8)
    else:
        a(f"""
        s_lshl_b32 s44, s{MT}, 9
        s_add_u32 s44, s44, {WS_F+2048}
        s_cmp_lg_u32 s{WV}, 0
        s_cbranch_scc1 C_wait_done
        s_mov_b32 s69, 0
        """)
        a.lab("C_poll")
        a(f"""
        s_mov_b64 exec, 0xffff
        buffer_load_dword v7, v6, {WSRD}, s44 offen sc1
        s_add_u32 s69, s69, 1
        s_waitcnt vmcnt(0)
        v_cmp_eq_u32 vcc, s{NONCE}, v7
        s_mov_b64 exec, -1
        s_cmp_eq_u32 vcc_lo, 0xffff
        s_cbranch_scc1 C_wait_done
        s_cmp_lt_u32 s69, 200000
        s_cbranch_scc1 C_poll
        """)
        a.lab("C_wait_done")
        a("s_barrier")
        stamp(a, 8)
        for i in range(16):
            if i and i % 4 == 0:
                a("s_add_u32 s45, s45, 4096")
            a(f"buffer_load_dwordx4 {vr(OF+4*i,4)}, v2, {WSRD}, s45 offen offset:{(i%4)*1024} sc1")
    a(f"""
    v_lshrrev_b32 v21, 5, v1
    v_and_b32 v26, 15, v1
    v_lshrrev_b32 v27, 2, v26
    v_lshl_add_u32 v28, v21, 2, v27
    v_lshlrev_b32 v28, 7, v28
    v_and_b32 v29, 1, v5
    v_lshlrev_b32 v29, 1, v29
    v_bfe_u32 v30, v26, 1, 1
    v_add_u32 v29, v29, v30
    v_bfe_u32 v30, v27, 1, 1
    v_lshlrev_b32 v30, 2, v30
    v_xor_b32 v29, v29, v30
    v_lshl_add_u32 v28, v29, 4, v28
    v_and_b32 v30, 1, v26
    v_lshl_add_u32 v28, v30, 3, v28
    s_lshl_b32 s40, s{KQ}, 15
    v_add_u32 v20, s40, v28
    v_xor_b32 v21, 64, v20
    """)
    WFR = [32, 40]
    def rd(i):
        f = WFR[i & 1]
        return [f"ds_read_b64_tr_b16 {vr(f+4*ct+2*u,2)}, v{20+ct} offset:{(16*i+8*u)*128}" for ct in range(2) for u in range(2)]
    for x in rd(0):
        a(x)
    for i in range(16):
        nxt = rd(i+1) if i < 15 else []
        a(f"s_waitcnt vmcnt({15-i}) lgkmcnt(0)")
        f = WFR[i & 1]
        for ct in range(2):
            d = vr(ACC+16*ct, 16)
            c = "0" if i == 0 else d
            a(f"v_mfma_f32_32x32x16_bf16 {d}, {vr(f+4*ct,4)}, {vr(OF+4*i,4)}, {c}")
            for x in nxt[2*ct:2*ct+2]:
                a(x)
    if not OPT.get('lstamp', 0): stamp(a, 9)
    a("s_barrier")
    a(f"""
    v_and_b32 v22, 31, v1
    v_lshrrev_b32 v23, 5, v1
    v_and_b32 v24, 7, v22
    v_lshlrev_b32 v25, 8, v22
    s_lshl_b32 s40, s{KQ}, 14
    s_lshl_b32 s41, s{TT}, 13
    s_add_u32 s40, s40, s41
    v_add_u32 v25, s40, v25
    s_nop 7
    s_nop 7
    """)
    for ct in range(2):
        for q4 in range(4):
            a(f"v_add_u32 v26, {ct*8+2*q4}, v23")
            a(f"v_xor_b32 v26, v26, v24")
            a(f"v_lshl_add_u32 v26, v26, 4, v25")
            a(f"ds_write_b128 v26, {vr(ACC+16*ct+4*q4,4)}")
    a("s_waitcnt lgkmcnt(0)")
    a("s_barrier")
    a("""
    v_lshrrev_b32 v22, 3, v0
    v_and_b32 v23, 7, v0
    v_and_b32 v24, 7, v22
    v_lshlrev_b32 v25, 8, v22
    v_lshlrev_b32 v27, 1, v23
    """)
    for c in range(2):
        a(f"v_add_u32 v26, {c}, v27")
        a(f"v_xor_b32 v26, v26, v24")
        a(f"v_lshl_add_u32 v26, v26, 4, v25")
        for k in range(4):
            a(f"ds_read_b128 {vr(64+k*8+c*4,4)}, v26 offset:{k*16384}")
    a(f"""
    s_mov_b32 s60, s18
    s_mov_b32 s61, s19
    s_mov_b32 s62, 2097152
    s_mov_b32 s63, 0x20000
    v_lshlrev_b32 v22, 10, v22
    v_lshl_add_u32 v22, v23, 4, v22
    s_lshl_b32 s40, s{MT64}, 16
    s_lshl_b32 s41, s{NT}, 7
    s_add_u32 s40, s40, s41
    s_waitcnt lgkmcnt(0)
    """)
    for r in range(8):
        a(f"v_add_f32 v{64+r}, v{64+r}, v{72+r}")
        a(f"v_add_f32 v{80+r}, v{80+r}, v{88+r}")
    for r in range(8):
        a(f"v_add_f32 v{64+r}, v{64+r}, v{80+r}")
    for r in range(4):
        a(f"v_cvt_pk_bf16_f32 v{64+r}, v{64+2*r}, v{64+2*r+1}")
    a("buffer_store_dwordx4 v[64:67], v22, s[60:63], s40 offen" + {0: "", 1: " sc1", 2: " nt", 3: " sc0 sc1", 4: " sc1 nt", 5: " sc0 sc1 nt"}[OPT.get("ost", 0)])
    if not OPT.get("lstamp", 0): stamp(a, 10)


DOC = """;
"""

HEAD = open("cdna_kernels/%s.s.ref" % NAME).read().split("; Override")[0]

def main(out):
    a = A()
    gen(a)
    s = HEAD
    s += "; @launch grid=(256,1,1) block=(512,1,1) lds=163840\n"
    s += DOC
    s += '.amdgcn_target "amdgcn-amd-amdhsa--gfx950"\n'
    s += a.text()
    s += f""".section .rodata,"a"
.p2align 6
.amdhsa_kernel {KNAME}
  .amdhsa_next_free_vgpr 256
  .amdhsa_next_free_sgpr 102
  .amdhsa_accum_offset 256
  .amdhsa_group_segment_fixed_size 0
  .amdhsa_kernarg_size 80
  .amdhsa_user_sgpr_count 2
  .amdhsa_user_sgpr_kernarg_segment_ptr 1
  .amdhsa_system_sgpr_workgroup_id_x 1
.end_amdhsa_kernel
"""
    open(out, "w").write(s)

if __name__ == "__main__":
    if "--prof" in sys.argv:
        PROF = True
        sys.argv.remove("--prof")
    for x in list(sys.argv):
        if x.startswith("--") and "=" in x:
            k, v = x[2:].split("=")
            OPT[k] = int(v)
            sys.argv.remove(x)
    set_nslot(OPT.get("nslot", 3))
    main(sys.argv[1] if len(sys.argv) > 1 else "fused3.s")
```

```python
import sys, struct

NAME = "gated_mix__mha_block__mha_block__prompt"
KNAME = NAME + "_kernel"
WS_KV = 4 << 20
WS_O = 12 << 20
WS_F = 16 << 20
WS_GF = WS_F + 2048 + 8192
WS_G = WS_GF + 2048
WS_END = WS_G + 8192
RELAY = 160000
NONCE = 68
WS_T = 32 << 20
QSCALE = 0.25 * 1.4426950408889634
LOG2E = 1.4426950408889634
PROF = False
OPT = dict(prio=3, rot=1, pfu=0, D=4, cpf=1, sch=2, wpf=1, ost=1)
NST = 12
SB = 70

def f32(x):
    return "0x%08x" % struct.unpack("<I", struct.pack("<f", x))[0]

class A:
    def __init__(self):
        self.l = []
    def __call__(self, s):
        for x in s.strip().split("\n"):
            if x.strip():
                self.l.append("  " + x.strip())
    def lab(self, s):
        self.l.append(s + ":")
    def raw(self, s):
        self.l.append(s)
    def text(self):
        return "\n".join(self.l) + "\n"

def vr(b, n):
    return f"v[{b}:{b+n-1}]"
def u32(x):
    return x & 0xffffffff

def GM():
    return OPT.get('gm', 2)
def GMF():
    return GM() == 1
def stamp(a, k):
    if PROF:
        a(f"s_memtime s[{SB+2*k}:{SB+2*k+1}]")

WV = 3
XCD, SLOT_ = 24, 25
CG, MT, BB, HG = 26, 27, 28, 29
SRDW = 36
DBG = 20
WS = 22
WSRD = f"s[{SRDW}:{SRDW+3}]"

def gen(a):
    a.raw(".text")
    a.raw(f".globl {KNAME}")
    a.raw(".p2align 8")
    a.raw(f".type {KNAME},@function")
    a.lab(KNAME)
    a("s_cmp_ge_u32 s2, 256")
    a("s_cbranch_scc1 L_end")
    if PROF:
        a(f"s_memrealtime s[{SB+2*NST}:{SB+2*NST+1}]")
        stamp(a, 0)
    a(f"""
    s_load_dwordx4 s[4:7], s[0:1], 0
    s_load_dwordx2 s[8:9], s[0:1], 16
    s_load_dwordx4 s[12:15], s[0:1], 32
    s_load_dwordx4 s[16:19], s[0:1], 48
    s_load_dwordx4 s[20:23], s[0:1], 64
    v_lshrrev_b32 v2, 6, v0
    v_and_b32 v1, 63, v0
    s_and_b32 s{XCD}, s2, 7
    s_lshr_b32 s{SLOT_}, s2, 3
    """)
    if OPT.get("badmap", 0):
        a(f"""
        s_lshr_b32 s40, s2, 3
        s_xor_b32 s{XCD}, s{XCD}, s40
        s_lshr_b32 s40, s2, 6
        s_xor_b32 s{XCD}, s{XCD}, s40
        s_and_b32 s{XCD}, s{XCD}, 7
        """)
    a(f"""
    v_readfirstlane_b32 s{WV}, v2
    v_lshlrev_b32 v2, 4, v1
    s_lshr_b32 s40, s{XCD}, 1
    s_lshl_b32 s40, s40, 2
    s_and_b32 s41, s{SLOT_}, 3
    s_add_u32 s{CG}, s40, s41
    s_lshr_b32 s{BB}, s{CG}, 3
    s_and_b32 s{HG}, s{CG}, 7
    s_and_b32 s{MT}, s{XCD}, 1
    s_lshl_b32 s{MT}, s{MT}, 3
    s_lshr_b32 s41, s{SLOT_}, 2
    s_add_u32 s{MT}, s{MT}, s41
    """)
    if OPT.get("diag", 0):
        a("s_memrealtime s[94:95]")
        a("s_memtime s[96:97]")
    rm = OPT["rot"]
    if rm == 0: a("s_mov_b32 s101, 0")
    elif rm == 1: a(f"s_mov_b32 s101, s{XCD}")
    elif rm == 2: a(f"s_and_b32 s101, s{SLOT_}, 3\ns_lshl_b32 s101, s101, 1\ns_add_u32 s101, s101, s{XCD}\ns_and_b32 s101, s101, 7")
    elif rm == 3: a(f"s_lshr_b32 s101, s{SLOT_}, 2\ns_add_u32 s101, s101, s{XCD}\ns_and_b32 s101, s101, 7")
    elif rm == 4: a(f"s_and_b32 s101, s{SLOT_}, 3\ns_lshl_b32 s101, s101, 1\ns_lshr_b32 s40, s{SLOT_}, 2\ns_add_u32 s101, s101, s40\ns_add_u32 s101, s101, s{XCD}\ns_and_b32 s101, s101, 7")
    elif rm == 5: a(f"s_and_b32 s101, s{SLOT_}, 1\ns_lshl_b32 s101, s101, 2\ns_add_u32 s101, s101, s{XCD}\ns_and_b32 s101, s101, 7")
    phase_a(a)
    phase_b(a)
    (phase_c2 if OPT.get('cprog', 2) == 2 else phase_c)(a)
    if OPT.get("diag", 0):
        a(f"""
        s_waitcnt vmcnt(0)
        s_memrealtime s[90:91]
        s_memtime s[92:93]
        s_waitcnt lgkmcnt(0)
        s_sub_u32 s92, s92, s96
        s_not_b32 s94, s94
        s_and_b32 s91, s2, 15
        s_or_b32 s91, s91, s{WV}
        s_cmp_lg_u32 s91, 0
        s_cbranch_scc1 L_end
        s_mov_b64 exec, 1
        v_mov_b32 v4, 16
        v_mov_b32 v5, s92
        global_atomic_umax v4, v5, s[{DBG}:{DBG+1}]
        v_mov_b32 v4, 20
        v_mov_b32 v5, s90
        global_atomic_umax v4, v5, s[{DBG}:{DBG+1}]
        v_mov_b32 v4, 24
        v_mov_b32 v5, s94
        global_atomic_umax v4, v5, s[{DBG}:{DBG+1}]
        s_mov_b64 exec, -1
        """)
    if PROF:
        a("s_waitcnt vmcnt(0)")
        a(f"s_memrealtime s[{SB+2*NST+2}:{SB+2*NST+3}]")
        stamp(a, NST-1)
        a("s_waitcnt lgkmcnt(0)")
        if OPT.get("lprof", 0):
            for k, r in ((8, 98), (9, 99), (10, 100)):
                a(f"s_add_u32 s{SB+2*k}, s{SB}, s{r}")
                a(f"s_addc_u32 s{SB+2*k+1}, s{SB+1}, 0")
            a.lab("L_nolp")
        a(f"""
        s_lshl_b32 s40, s2, 4
        s_add_u32 s40, s40, s{WV}
        s_lshl_b32 s40, s40, 7
        s_add_u32 s40, s40, {WS_T}
        s_add_u32 s40, s{WS}, s40
        s_addc_u32 s41, s{WS+1}, 0
        s_mov_b64 exec, 1
        v_mov_b32 v4, 0
        """)
        for k in range(NST+2):
            a(f"v_mov_b32 v6, s{SB+2*k}")
            a(f"v_mov_b32 v7, s{SB+2*k+1}")
            a(f"global_store_dwordx2 v4, v[6:7], s[40:41] offset:{8*k}")
            a("s_nop 1")
    a.lab("L_end")
    a("s_endpgm")
    a.lab("L_codeend")

SLOT = 40960
NSLOT = 3
GIMG = NSLOT * SLOT
def set_nslot(n):
    global NSLOT, GIMG
    NSLOT = n
    GIMG = 3 * SLOT
QX, KVX, GX = 0, 16384, 49152

def v_init(a, t0, t1):
    a(f"""
    v_and_b32 v{t0}, 27, v1
    v_cmp_eq_u32 vcc, 16, v{t0}
    v_mov_b32 v{t1}, 0x3f803f80
    s_nop 0
    v_cndmask_b32 v{t0}, 0, v{t1}, vcc
    """)
    for r in range(64):
        a(f"v_mov_b32 v{192+r}, v{t0}")

def phase_a(a):
    a(f"""
    v_lshrrev_b32 v5, 4, v1
    s_cmp_ge_u32 s{WV}, 4
    s_cbranch_scc0 A_compute
    """)
    LW = 30
    a(f"""
    s_sub_u32 s{LW}, s{WV}, 4
    s_setprio 3
    v_lshrrev_b32 v3, 3, v1
    v_and_b32 v4, 7, v1
    v_xor_b32 v6, v4, v5
    v_lshlrev_b32 v6, 4, v6
    v_lshl_add_u32 v10, v3, 10, v6
    v_add_u32 v7, 4, v5
    v_xor_b32 v7, v4, v7
    v_lshlrev_b32 v7, 4, v7
    v_lshl_add_u32 v11, v3, 10, v7
    v_and_b32 v8, 1, v5
    v_lshlrev_b32 v8, 2, v8
    v_xor_b32 v8, v4, v8
    v_lshlrev_b32 v8, 4, v8
    v_mul_u32_u24 v9, 3072, v3
    v_add_u32 v12, v9, v8
    s_lshl_b32 s54, s{LW}, 15
    """)
    for u in range(4):
        a(f"s_add_u32 s{44+u}, s54, {u*8192}")
    a(f"s_mul_i32 s54, s{LW}, 49152")
    for g3 in range(3):
        for e in range(2):
            a(f"s_add_u32 s{48+g3*2+e}, s54, {g3*1024 + e*8*3072}")
    a(f"""
    s_lshl_b32 s55, s{LW}, 12
    s_lshl_b32 s56, s{LW}, 11
    s_add_u32 s56, s56, 16384
    s_lshl_b32 s40, s{MT}, 17
    s_lshl_b32 s41, s{HG}, 7
    s_mov_b32 s62, 131072
    s_mov_b32 s63, 0x20000
    s_sub_u32 s34, 1572864, s41
    s_mov_b32 s35, 0x20000
    """)
    a("s_mov_b32 s57, s101")
    a(f"""
    s_lshl_b32 s42, s57, 7
    v_add_u32 v10, s42, v10
    v_add_u32 v11, s42, v11
    s_mul_i32 s42, s57, 196608
    v_add_u32 v12, s42, v12
    s_mov_b32 s64, {u32(-896)}
    s_mov_b32 s65, 128
    s_mov_b32 s66, {u32(-7*196608)}
    s_mov_b32 s67, 196608
    s_waitcnt lgkmcnt(0)
    s_cmp_eq_u32 s{BB}, 0
    s_cselect_b32 s32, s6, s12
    s_cselect_b32 s33, s7, s13
    s_add_u32 s60, s4, s40
    s_addc_u32 s61, s5, 0
    s_add_u32 s32, s32, s41
    s_addc_u32 s33, s33, 0
    """)
    def issue_stage(extra=None):
        extra = list(extra or [])
        seq = [("w",0,0),("x",0,0),("w",0,1),("x",1,0),("w",1,0),("x",2,0),("w",1,1),("x",3,0),("w",2,0),("w",2,1)]
        for n, (kind, i, e) in enumerate(seq):
            if kind == "x":
                a(f"s_add_u32 m0, s55, {i*1024}")
                a("s_add_u32 s57, s57, 1" if n == 1 else ("s_and_b32 s57, s57, 7" if n == 3 else "s_nop 0"))
                a(f"buffer_load_dwordx4 v{10+(i&1)}, s[60:63], s{44+i} offen lds")
            else:
                a(f"s_add_u32 m0, s56, {i*8192+e*1024}")
                a("s_cmp_eq_u32 s57, 0" if n == 4 else "s_nop 0")
                a(f"buffer_load_dwordx4 v12, s[32:35], s{48+i*2+e} offen lds")
                if n == 4:
                    a("s_cselect_b32 s42, s64, s65")
                    a("s_cselect_b32 s43, s66, s67")
            if n >= 2 and extra:
                k = 1 if n == 2 else 3
                for _ in range(k):
                    if extra: a(extra.pop(0))
        for x in extra:
            a(x)
        a("v_add_u32 v10, s42, v10")
        a("v_add_u32 v11, s42, v11")
        a("v_add_u32 v12, s43, v12")
        a(f"s_add_u32 s55, s55, {SLOT}")
        a(f"s_add_u32 s56, s56, {SLOT}")
        a(f"s_cmp_ge_u32 s56, {NSLOT*SLOT}")
        a(f"s_cselect_b32 s54, {NSLOT*SLOT}, 0")
        a("s_sub_u32 s55, s55, s54")
        a("s_sub_u32 s56, s56, s54")
    a(f"""
    s_mov_b32 s{SRDW}, s16
    s_mov_b32 s{SRDW+1}, s17
    s_mov_b32 s{SRDW+2}, 1024
    s_mov_b32 s{SRDW+3}, 0x20000
    s_lshl_b32 s43, s{LW}, 8
    s_add_u32 m0, s43, {GIMG}
    """)
    if GM() == 2:
        pass
    elif not OPT.get("nogate", 0):
        a(f"""
        s_mov_b64 exec, 0xffff
        buffer_load_dwordx4 v2, {WSRD}, s43 offen lds
        s_mov_b64 exec, -1
        """)
    if GM() == 0:
        a(f"""
        v_and_b32 v20, 31, v1
        v_lshrrev_b32 v21, 5, v1
        v_lshrrev_b32 v22, 1, v1
        v_and_b32 v22, 7, v22
        s_lshl_b32 s40, s{LW}, 12
        v_lshlrev_b32 v23, 7, v20
        v_add_u32 v23, s40, v23
        """)
        for ks in range(4):
            a(f"v_add_u32 v24, {2*ks}, v21")
            a(f"v_xor_b32 v24, v24, v22")
            a(f"v_lshl_add_u32 v{16+ks}, v24, 4, v23")
        a(f"""
        v_lshlrev_b32 v15, 4, v21
        v_add_u32 v15, {GIMG}, v15
        v_mov_b32 v64, 0
        s_mov_b32 s59, 0
        """)
        if OPT["rot"]:
            a(f"s_mov_b32 s31, s{XCD}")
        else:
            a("s_mov_b32 s31, 0")
    LK = OPT.get("look", 2)
    if OPT.get("pfwait", 0):
        a("s_barrier")
    for _ in range(LK):
        issue_stage()
    v_init(a, 60, 61)
    def gate_reads():
        if OPT.get("nogate", 0) or GM() != 0: return
        a("s_lshl_b32 s40, s31, 7")
        a("v_add_u32 v14, s40, v15")
        for ks in range(4):
            a(f"v_add_u32 v24, s59, v{16+ks}")
            a(f"ds_read_b128 {vr(28+8*ks,4)}, v24")
            a(f"ds_read_b128 {vr(32+8*ks,4)}, v14 offset:{ks*32}")
        a("s_add_u32 s31, s31, 1")
        a("s_and_b32 s31, s31, 7")
        a(f"s_add_u32 s59, s59, {SLOT}")
        a(f"s_cmp_ge_u32 s59, {NSLOT*SLOT}")
        a(f"s_cselect_b32 s40, {NSLOT*SLOT}, 0")
        a("s_sub_u32 s59, s59, s40")
    def gate_dots():
        if OPT.get("nogate", 0) or GM() != 0: return
        a("s_waitcnt lgkmcnt(0)")
        for ks in range(4):
            for q in range(4):
                a(f"v_dot2c_f32_bf16 v64, v{28+8*ks+q}, v{32+8*ks+q}")
    if OPT.get("ldprio", 0) == 0:
        a("s_setprio 0")
    a("s_mov_b32 s58, 0")
    LP = PROF and OPT.get("lprof", 0)
    def tick(acc):
        if LP:
            a("s_memtime s[88:89]")
            a("s_waitcnt lgkmcnt(0)")
            a("s_sub_u32 s87, s88, s86")
            a(f"s_add_u32 s{acc}, s{acc}, s87")
            a("s_mov_b32 s86, s88")
    if LP:
        a("s_memtime s[88:89]")
        a("s_waitcnt lgkmcnt(0)")
        a("s_mov_b32 s86, s88")
        a("s_mov_b32 s80, 0"); a("s_mov_b32 s81, 0"); a("s_mov_b32 s82, 0"); a("s_mov_b32 s83, 0"); a("s_mov_b32 s84, 0"); a("s_mov_b32 s85, 0")
    a.lab("A_ld_loop")
    a(f"s_waitcnt vmcnt({10*(LK-1)})")
    tick(80)
    a("s_barrier")
    tick(82)
    gate_reads()
    issue_stage(None if (OPT.get("nogate", 0) or GM() != 0) else ["s_waitcnt lgkmcnt(0)"] + [f"v_dot2c_f32_bf16 v64, v{28+8*ks+q}, v{32+8*ks+q}" for ks in range(4) for q in range(4)])
    tick(84)
    a("s_add_u32 s58, s58, 1")
    a(f"s_cmp_lt_u32 s58, {8-LK}")
    a("s_cbranch_scc1 A_ld_loop")
    if GM() == 2:
        a(f"""
        s_mov_b32 s{SRDW}, s16
        s_mov_b32 s{SRDW+1}, s17
        s_mov_b32 s{SRDW+2}, 1024
        s_mov_b32 s{SRDW+3}, 0x20000
        v_and_b32 v13, 15, v1
        v_lshlrev_b32 v13, 4, v13
        v_lshl_add_u32 v14, v5, 10, v13
        s_lshl_b32 s40, s{CG}, 3
        s_and_b32 s41, s{LW}, 1
        s_lshl_b32 s41, s41, 2
        s_add_u32 s29, s40, s41
        s_lshl_b32 s41, s29, 10
        s_cmp_ge_u32 s{LW}, 2
        s_cbranch_scc1 A_nogl
        """)
        for i in range(4):
            a(f"buffer_load_dwordx4 {vr(16+4*i,4)}, v14, s[60:63], s41 offen offset:{256*i}")
        for i in range(4):
            a(f"buffer_load_dwordx4 {vr(32+4*i,4)}, v13, {WSRD}, 0 offen offset:{256*i}")
        a.lab("A_nogl")
    for k in range(LK):
        a(f"s_waitcnt vmcnt({10*(LK-1-k)})")
        a("s_barrier")
        gate_reads()
        gate_dots()
    if LP:
        a("s_mov_b32 s98, s80"); a("s_mov_b32 s99, s82"); a("s_mov_b32 s100, s84")
    a("s_setprio 0")
    a(f"""
    s_mov_b32 s{SRDW}, s{WS}
    s_mov_b32 s{SRDW+1}, s{WS+1}
    s_mov_b32 s{SRDW+2}, {WS_END}
    s_mov_b32 s{SRDW+3}, 0x20000
    """)
    if GM() == 1:
        a("s_barrier")
    elif GM() == 2:
        a("s_barrier")
        a(f"s_cmp_ge_u32 s{LW}, 2")
        a("s_cbranch_scc1 A_join")
        a("v_mov_b32 v48, 0")
        a("s_waitcnt vmcnt(0)")
        for i in range(16):
            a(f"v_dot2c_f32_bf16 v48, v{16+i}, v{32+i}")
        a("s_nop 3")
        for rot in (8, 4, 2, 1):
            a(f"v_add_f32_dpp v48, v48, v48 row_ror:{rot} row_mask:0xf bank_mask:0xf")
            a("s_nop 1")
        a(f"""
        v_mul_f32 v48, {f32(-LOG2E)}, v48
        v_exp_f32 v48, v48
        s_nop 0
        v_add_f32 v48, 1.0, v48
        v_rcp_f32 v48, v48
        s_lshl_b32 s41, s{MT}, 7
        s_add_u32 s41, s41, s29
        s_lshl_b32 s41, s41, 2
        s_add_u32 s41, s41, {WS_G}
        v_lshlrev_b32 v49, 2, v5
        v_and_b32 v50, 15, v1
        v_cmp_eq_u32 vcc, 0, v50
        s_and_saveexec_b64 s[58:59], vcc
        buffer_store_dword v48, v49, {WSRD}, s41 offen sc1
        s_mov_b64 exec, s[58:59]
        """)
    else:
        a(f"""
        s_nop 3
        v_mov_b32 v20, v64
        s_nop 1
        v_permlane32_swap_b32 v64, v20
        s_nop 1
        v_add_f32 v64, v64, v20
        v_mul_f32 v64, {f32(-LOG2E)}, v64
        v_exp_f32 v64, v64
        s_nop 0
        v_add_f32 v64, 1.0, v64
        v_rcp_f32 v64, v64
        s_nop 0
        v_sub_f32 v20, 1.0, v64
        s_cmp_eq_u32 s{BB}, 0
        s_cselect_b64 vcc, -1, 0
        s_nop 1
        v_cndmask_b32 v20, v20, v64, vcc
        v_and_b32 v19, 31, v1
        v_lshlrev_b32 v19, 2, v19
        s_lshl_b32 s41, s{LW}, 7
        v_add_u32 v19, s41, v19
        s_barrier
        ds_write_b32 v19, v20 offset:{GX}
        """)
    a("""
    s_branch A_join
    """)
    a.lab("A_compute")
    WM, WN = 30, 31
    a(f"""
    s_and_b32 s{WM}, s{WV}, 1
    s_lshr_b32 s{WN}, s{WV}, 1
    v_and_b32 v20, 31, v1
    v_lshrrev_b32 v21, 5, v1
    v_lshrrev_b32 v22, 1, v1
    v_and_b32 v22, 7, v22
    s_lshl_b32 s40, s{WM}, 13
    v_lshlrev_b32 v23, 7, v20
    v_add_u32 v23, s40, v23
    """)
    for ks in range(4):
        a(f"v_add_u32 v24, {2*ks}, v21")
        a(f"v_xor_b32 v24, v24, v22")
        a(f"v_lshl_add_u32 v{16+ks}, v24, 4, v23")
    a(f"""
    v_and_b32 v26, 15, v1
    v_lshrrev_b32 v27, 2, v26
    v_lshl_add_u32 v28, v21, 3, v27
    v_lshlrev_b32 v28, 7, v28
    v_and_b32 v29, 1, v5
    v_lshlrev_b32 v29, 1, v29
    v_bfe_u32 v30, v26, 1, 1
    v_add_u32 v29, v29, v30
    s_lshl_b32 s40, s{WN}, 2
    v_add_u32 v29, s40, v29
    v_bfe_u32 v30, v27, 1, 1
    v_lshlrev_b32 v30, 2, v30
    v_xor_b32 v29, v29, v30
    v_lshl_add_u32 v28, v29, 4, v28
    v_and_b32 v30, 1, v26
    v_lshl_add_u32 v25, v30, 3, v28
    """)
    ACC = 64
    XF = [32, 160]
    WF = [40, 168]
    GF = [52, 180]
    GACC = 192
    assert GM() != 1
    v_init(a, 190, 191)
    for r in range(0, 96, 2):
        a(f"v_mov_b64 v[{ACC+r}:{ACC+r+1}], 0")
    if GMF():
        for r in range(16):
            a(f"v_mov_b32 v{GACC+r}, 0")
        a(f"s_mov_b32 s59, s{XCD}" if OPT["rot"] else "s_mov_b32 s59, 0")
        a(f"""
        s_lshl_b32 s40, s59, 7
        v_lshlrev_b32 v15, 4, v21
        v_add_u32 v15, {GIMG}, v15
        v_add_u32 v14, s40, v15
        s_cmp_eq_u32 s{WN}, 0
        s_cselect_b64 vcc, -1, 0
        """)
    a(f"""
    s_lshl_b32 s40, s{CG}, 2
    s_lshl_b32 s41, s{WN}, 1
    s_add_u32 s40, s40, s41
    s_lshl_b32 s40, s40, 6
    s_lshl_b32 s41, s{MT}, 2
    s_add_u32 s40, s40, s41
    s_lshl_b32 s41, s{WM}, 1
    s_add_u32 s40, s40, s41
    s_lshl_b32 s46, s40, 11
    s_add_u32 s46, s46, {WS_KV}
    s_mov_b32 s48, {f32(QSCALE)}
    v_and_b32 v11, 15, v1
    v_lshlrev_b32 v11, 4, v11
    v_lshl_add_u32 v11, v21, 9, v11
    v_bfe_u32 v12, v1, 4, 1
    v_lshl_add_u32 v13, v12, 13, v11
    v_lshl_add_u32 v11, v12, 17, v11
    v_add_u32 v11, 1024, v11
    s_add_u32 s47, s46, 131072
    s_mov_b32 s{SRDW+2}, {WS_END}
    s_mov_b32 s{SRDW+3}, 0x20000
    s_mov_b32 s57, 0
    s_mov_b32 s58, 0
    """)
    def set_addr():
        for ks in range(4):
            a(f"v_add_u32 v{20+ks}, s57, v{16+ks}")
        a("v_add_u32 v24, s57, v25")
    set_addr()
    a("s_waitcnt lgkmcnt(0)")
    a(f"s_mov_b32 s{SRDW}, s{WS}")
    a(f"s_mov_b32 s{SRDW+1}, s{WS+1}")
    if OPT.get("wpf", 0):
        a(f"""
        s_lshl_b32 s40, s2, 2
        s_add_u32 s40, s40, s{WV}
        s_and_b32 s41, s40, 511
        s_mul_i32 s41, s41, 3072
        s_cmp_lt_u32 s40, 512
        s_cselect_b32 s42, s6, s12
        s_cselect_b32 s43, s7, s13
        s_add_u32 s42, s42, s41
        s_addc_u32 s43, s43, 0
        global_load_dwordx4 v[180:183], v2, s[42:43]
        global_load_dwordx4 v[180:183], v2, s[42:43] offset:1024
        global_load_dwordx4 v[180:183], v2, s[42:43] offset:2048
        s_lshl_b32 s40, s2, 3
        s_lshl_b32 s41, s{WV}, 1
        s_add_u32 s40, s40, s41
        s_lshl_b32 s40, s40, 10
        s_add_u32 s42, s4, s40
        s_addc_u32 s43, s5, 0
        global_load_dwordx4 v[180:183], v2, s[42:43]
        global_load_dwordx4 v[180:183], v2, s[42:43] offset:1024
        """)
    if OPT.get("xpf", 0):
        a(f"""
        s_and_b32 s40, s{XCD}, 1
        s_lshl_b32 s40, s40, 10
        s_lshl_b32 s41, s{SLOT_}, 5
        s_add_u32 s40, s40, s41
        s_lshl_b32 s41, s{WV}, 3
        s_add_u32 s40, s40, s41
        s_lshl_b32 s40, s40, 10
        s_add_u32 s42, s4, s40
        s_addc_u32 s43, s5, 0
        v_mov_b32 v212, v2
        """)
        a(f"""
        s_cmp_eq_u32 s{BB}, 0
        s_cselect_b32 s44, s6, s12
        s_cselect_b32 s45, s7, s13
        s_lshl_b32 s40, s{SLOT_}, 4
        s_lshl_b32 s41, s{WV}, 2
        s_add_u32 s40, s40, s41
        s_mul_i32 s40, s40, 3072
        s_and_b32 s41, s{HG}, 4
        s_lshl_b32 s41, s41, 7
        s_add_u32 s40, s40, s41
        s_add_u32 s44, s44, s40
        s_addc_u32 s45, s45, 0
        v_lshrrev_b32 v213, 5, v1
        v_mul_u32_u24 v213, 3072, v213
        v_and_b32 v214, 31, v1
        v_lshl_add_u32 v213, v214, 4, v213
        v_add_u32 v214, 6144, v213
        """)
        for t in range(3):
            a(f"global_load_dwordx4 v[180:183], v213, s[44:45] offset:{t*1024}")
            a(f"global_load_dwordx4 v[180:183], v214, s[44:45] offset:{t*1024}")
        for i in range(8):
            a(f"global_load_dwordx4 v[180:183], v212, s[42:43]")
            if i < 7: a("v_add_u32 v212, 1024, v212")
    SPF = OPT.get("spf", 0)
    def spf_issue():
        a("s_lshl_b32 s40, s66, 7")
        a("v_add_u32 v190, s40, v184")
        a("s_mul_i32 s40, s66, 196608")
        a("v_add_u32 v191, s40, v185")
        a("global_load_dwordx4 v[180:183], v190, s[62:63]")
        a("global_load_dwordx4 v[180:183], v191, s[64:65]")
        a("s_add_u32 s66, s66, 1")
        a("s_and_b32 s66, s66, 7")
    if SPF:
        a(f"""
        s_and_b32 s40, s{XCD}, 1
        s_lshl_b32 s40, s40, 10
        s_lshl_b32 s41, s{SLOT_}, 5
        s_add_u32 s40, s40, s41
        s_lshl_b32 s41, s{WV}, 3
        s_add_u32 s40, s40, s41
        s_lshl_b32 s40, s40, 10
        s_add_u32 s62, s4, s40
        s_addc_u32 s63, s5, 0
        v_lshrrev_b32 v190, 3, v1
        v_and_b32 v191, 7, v1
        v_lshlrev_b32 v191, 4, v191
        v_lshl_add_u32 v184, v190, 10, v191
        v_mul_u32_u24 v185, 3072, v190
        v_add_u32 v185, v185, v191
        s_cmp_eq_u32 s{BB}, 0
        s_cselect_b32 s64, s6, s12
        s_cselect_b32 s65, s7, s13
        s_lshr_b32 s40, s{SLOT_}, 2
        s_mul_i32 s40, s40, {8*3072}
        s_min_u32 s41, s{WV}, 2
        s_lshl_b32 s41, s41, 10
        s_add_u32 s40, s40, s41
        s_lshl_b32 s41, s{HG}, 7
        s_add_u32 s40, s40, s41
        s_add_u32 s64, s64, s40
        s_addc_u32 s65, s65, 0
        """)
        if OPT["rot"]:
            a(f"s_add_u32 s66, s{XCD}, 2")
        else:
            a("s_mov_b32 s66, 2")
        a("s_and_b32 s66, s66, 7")
        for _ in range(SPF):
            spf_issue()
    if OPT.get("pfwait", 0):
        a("s_waitcnt vmcnt(0)")
        a("s_barrier")
    if OPT.get("cpf", 0):
        a(f"""
        s_cmp_lg_u32 s{WV}, 3
        s_cbranch_scc1 A_nocpf
        s_cmp_ge_u32 s{SLOT_}, (L_codeend-{KNAME})>>10
        s_cbranch_scc1 A_nocpf
        s_getpc_b64 s[42:43]
        """)
        a.lab("A_pc")
        a(f"""
        s_sub_u32 s42, s42, A_pc-{KNAME}
        s_subb_u32 s43, s43, 0
        s_lshl_b32 s40, s{SLOT_}, 10
        s_add_u32 s42, s42, s40
        s_addc_u32 s43, s43, 0
        global_load_dwordx4 v[180:183], v2, s[42:43]
        """)
        a.lab("A_nocpf")
    if OPT.get("pt", 0):
        a(f"""
        s_cmp_lg_u32 s{WV}, 1
        s_cbranch_scc1 A_nopt1
        s_lshl_b32 s40, s{CG}, 19
        s_add_u32 s40, s40, {WS_KV}
        v_lshlrev_b32 v212, 13, v1
        buffer_load_dword v208, v212, {WSRD}, s40 offen
        """)
        a.lab("A_nopt1")
        a(f"""
        s_cmp_lg_u32 s{WV}, 2
        s_cbranch_scc1 A_nopt2
        v_lshlrev_b32 v212, 16, v1
        s_mov_b32 s40, {WS_O}
        buffer_load_dword v208, v212, {WSRD}, s40 offen
        v_mov_b32 v213, 0
        s_mov_b32 s40, {WS_F}
        buffer_load_dword v209, v213, {WSRD}, s40 offen
        v_lshlrev_b32 v213, 15, v1
        global_load_dword v210, v213, s[18:19]
        v_lshlrev_b32 v214, 13, v1
        global_load_dword v211, v214, s[8:9]
        global_load_dword v211, v214, s[14:15]
        """)
        a.lab("A_nopt2")
    a(f"""
    s_cmp_lg_u32 s{WV}, 0
    s_cbranch_scc1 A_nononce
    s_memrealtime s[40:41]
    s_waitcnt lgkmcnt(0)
    s_or_b32 s40, s40, 1
    v_mov_b32 v186, s40
    v_mov_b32 v187, 0
    v_mov_b32 v188, 0
    s_mov_b64 exec, 1
    global_atomic_cmpswap v189, v188, v[186:187], s[{DBG}:{DBG+1}] sc0
    s_mov_b64 exec, -1
    """)
    a.lab("A_nononce")
    def read_list(ks, f):
        r = []
        r.append(f"ds_read_b64_tr_b16 {vr(WF[f]+0,2)}, v24 offset:{16384+(16*ks+0)*128}")
        r.append(f"ds_read_b64_tr_b16 {vr(WF[f]+2,2)}, v24 offset:{16384+(16*ks+4)*128}")
        r.append(f"ds_read_b128 {vr(XF[f],4)}, v{20+ks} offset:0")
        r.append(f"ds_read_b128 {vr(XF[f]+4,4)}, v{20+ks} offset:4096")
        for g3 in (1, 2):
            for u in range(2):
                r.append(f"ds_read_b64_tr_b16 {vr(WF[f]+4*g3+2*u,2)}, v24 offset:{16384+g3*8192+(16*ks+4*u)*128}")
        if GMF():
            r.append(f"ds_read_b128 {vr(GF[f],4)}, v14 offset:{ks*32}")
        return r
    gl = [0]
    FW = OPT.get("finewait", 1)
    def group(f, rl, barrier=False):
        order = [(0,0),(0,1),(1,0),(1,1),(2,0),(2,1)]
        nold = 9 if GMF() else 8
        need = {0: 3, 1: 4, 2: 6, 4: 8}
        rl = list(rl)
        issued = 0
        per = OPT.get("rpg", 2)
        for i, (g3, tt) in enumerate(order):
            if FW and i in need:
                a(f"s_waitcnt lgkmcnt({min(15, nold - need[i] + issued)})")
            x = vr(XF[f]+4*tt, 4); w = vr(WF[f]+4*g3, 4); d = vr(ACC+16*(tt*3+g3), 16)
            if g3 < 2:
                a(f"v_mfma_f32_32x32x16_bf16 {d}, {w}, {x}, {d}")
            else:
                a(f"v_mfma_f32_32x32x16_bf16 {d}, {x}, {w}, {d}")
            if i == 0 and barrier:
                if PROF and OPT.get("lprof", 0):
                    a("s_memtime s[88:89]")
                a(f"s_waitcnt lgkmcnt(0)")
                a("s_barrier")
                if PROF and OPT.get("lprof", 0):
                    a("s_memtime s[86:87]")
                    a("s_waitcnt lgkmcnt(0)")
                    a("s_sub_u32 s86, s86, s88")
                    a("s_add_u32 s98, s98, s86")
            for _ in range(per):
                if rl:
                    a(rl.pop(0)); issued += 1
        if GMF():
            if FW:
                a(f"s_waitcnt lgkmcnt({min(15, issued)})")
            n = gl[0]; gl[0] += 1
            d = vr(GACC, 16)
            a(f"s_cbranch_vccz A_g{n}a")
            a(f"v_mfma_f32_32x32x16_bf16 {d}, {vr(GF[f],4)}, {vr(XF[f],4)}, {d}")
            a(f"s_branch A_g{n}b")
            a.lab(f"A_g{n}a")
            a(f"v_mfma_f32_32x32x16_bf16 {d}, {vr(GF[f],4)}, {vr(XF[f]+4,4)}, {d}")
            a.lab(f"A_g{n}b")
        for x in rl:
            a(x)
    a("s_barrier")
    stamp(a, 1)
    for x in read_list(0, 0):
        a(x)
    if PROF and OPT.get("lprof", 0):
        a("s_mov_b32 s98, 0"); a("s_mov_b32 s99, 0"); a("s_mov_b32 s100, 0")
    a.lab("A_loop")
    for ks in range(3):
        if not FW: a("s_waitcnt lgkmcnt(0)")
        group(ks & 1, read_list(ks+1, (ks+1) & 1))
        if SPF and ks == 0:
            a(f"s_cmp_ge_u32 s58, {8 - 2 - SPF}")
            a("s_cbranch_scc1 A_nospf")
            spf_issue()
            a.lab("A_nospf")
    a("s_cmp_eq_u32 s58, 7")
    a("s_cbranch_scc1 A_last")
    a(f"""
    s_add_u32 s57, s57, {SLOT}
    s_cmp_ge_u32 s57, {NSLOT*SLOT}
    s_cselect_b32 s40, {NSLOT*SLOT}, 0
    s_sub_u32 s57, s57, s40
    """)
    if GMF():
        a("""
        s_add_u32 s59, s59, 1
        s_and_b32 s59, s59, 7
        s_lshl_b32 s40, s59, 7
        v_add_u32 v14, s40, v15
        """)
    set_addr()
    if not FW: a("s_waitcnt lgkmcnt(0)")
    group(1, read_list(0, 0), barrier=True)
    a("s_add_u32 s58, s58, 1")
    a("s_branch A_loop")
    a.lab("A_last")
    if not FW: a("s_waitcnt lgkmcnt(0)")
    group(1, [])
    stamp(a, 2)
    a("s_barrier")
    a(f"""
    s_lshl_b32 s40, s{WN}, 3
    s_lshl_b32 s41, s{WM}, 1
    s_add_u32 s40, s40, s41
    s_lshl_b32 s41, s40, 10
    v_add_u32 v16, s41, v2
    s_lshl_b32 s41, s40, 11
    v_add_u32 v17, s41, v2
    v_add_u32 v18, s41, v13
    s_nop 3
    """)
    a(f"""
    s_cmp_lg_u32 s{WV}, 0
    s_cbranch_scc1 A_nononce2
    s_waitcnt vmcnt(0)
    v_cmp_eq_u32 vcc, 0, v189
    s_nop 1
    v_cndmask_b32 v186, v189, v186, vcc
    v_mov_b32 v188, {RELAY}
    s_mov_b64 exec, 1
    ds_write_b64 v188, v[186:187]
    ds_write_b32 v188, v187 offset:8
    s_mov_b64 exec, -1
    """)
    a.lab("A_nononce2")
    STF = {0: ' sc1', 1: ' sc0 sc1', 2: ' sc1 nt', 3: ' sc0 sc1 nt'}[OPT.get('stf', 0)]
    for tt in range(2):
        d = ACC + 16*(tt*3+1)
        for r in range(8):
            a(f"v_cvt_pk_bf16_f32 v{d+r}, v{d+2*r}, v{d+2*r+1}")
        a(f"buffer_store_dwordx4 {vr(d,4)}, v2, {WSRD}, s46 offen offset:{tt*2048}{STF}")
        a(f"buffer_store_dwordx4 {vr(d+4,4)}, v2, {WSRD}, s47 offen offset:{tt*2048}{STF}")
        a(f"ds_write_b128 v17, {vr(d,4)} offset:{KVX+tt*2048}")
        a(f"ds_write_b128 v17, {vr(d+4,4)} offset:{KVX+tt*2048+8192}")
        d = ACC + 16*(tt*3+2)
        for r in range(8):
            a(f"v_cvt_pk_bf16_f32 v{d+r}, v{d+2*r}, v{d+2*r+1}")
        a(f"buffer_store_dwordx4 {vr(d,4)}, v11, {WSRD}, s46 offen offset:{tt*2048}{STF}")
        a(f"buffer_store_dwordx4 {vr(d+4,4)}, v11, {WSRD}, s46 offen offset:{tt*2048+256}{STF}")
        a(f"ds_write_b128 v18, {vr(d,4)} offset:{KVX+tt*2048+1024}")
        a(f"ds_write_b128 v18, {vr(d+4,4)} offset:{KVX+tt*2048+1280}")
    for tt in range(2):
        d = ACC + 16*(tt*3+0)
        for r in range(16):
            a(f"v_mul_f32 v{d+r}, s48, v{d+r}")
        for r in range(8):
            a(f"v_cvt_pk_bf16_f32 v{d+r}, v{d+2*r}, v{d+2*r+1}")
        a(f"ds_write_b128 v16, {vr(d,4)} offset:{QX+tt*1024}")
        a(f"ds_write_b128 v16, {vr(d+4,4)} offset:{QX+tt*1024+4096}")
    if GMF():
        g = GACC
        a(f"""
        v_mul_f32 v{g}, {f32(-LOG2E)}, v{g}
        v_exp_f32 v{g}, v{g}
        s_nop 0
        v_add_f32 v{g}, 1.0, v{g}
        v_rcp_f32 v{g}, v{g}
        s_nop 0
        v_sub_f32 v20, 1.0, v{g}
        s_cmp_eq_u32 s{BB}, 0
        s_cselect_b64 vcc, -1, 0
        v_and_b32 v19, 31, v1
        v_lshlrev_b32 v19, 2, v19
        v_cndmask_b32 v20, v20, v{g}, vcc
        s_lshl_b32 s41, s{WM}, 8
        s_lshl_b32 s40, s{WN}, 7
        s_add_u32 s41, s41, s40
        v_add_u32 v19, s41, v19
        ds_write_b32 v19, v20 offset:{GX}
        """)
    a.lab("A_join")
    a("s_waitcnt lgkmcnt(0)")
    a("s_barrier")
    stamp(a, 3)

def spin(a, lab, addr_v, val_v, cond):
    a("s_mov_b32 s69, 0")
    a.lab(lab)
    a(f"global_load_dword v{val_v}, v{addr_v}, s[{DBG}:{DBG+1}] sc1")
    a("s_add_u32 s69, s69, 1")
    a("s_waitcnt vmcnt(0)")
    cond()
    a(f"s_cbranch_scc1 {lab}_ok")
    a("s_cmp_lt_u32 s69, 200000")
    a(f"s_cbranch_scc1 {lab}")
    a.lab(lab + "_ok")

def phase_b(a):
    Q = [4, 8]; S = [12, 28]; O = [44, 60]; C = [76, 92]
    KB = lambda s, u: 108 + s*16 + u*4
    VB = lambda s, u: 192 + s*32 + u*8
    G = [156, 157]; T0 = 158; T1 = 159; T2 = 160
    H4, QH, PAIR, QT = 30, 31, 32, 33
    a(f"""
    s_lshr_b32 s{H4}, s{WV}, 1
    s_and_b32 s{QH}, s{WV}, 1
    s_lshl_b32 s{PAIR}, s{CG}, 2
    s_add_u32 s{PAIR}, s{PAIR}, s{H4}
    s_lshl_b32 s{QT}, s{MT}, 2
    s_lshl_b32 s40, s{QH}, 1
    s_add_u32 s{QT}, s{QT}, s40
    s_lshl_b32 s46, s{PAIR}, 17
    s_add_u32 s46, s46, {WS_KV}
    s_lshl_b32 s40, s{H4}, 12
    s_lshl_b32 s41, s{QH}, 11
    s_add_u32 s40, s40, s41
    v_add_u32 v{T0}, s40, v2
    ds_read_b128 {vr(Q[0],4)}, v{T0} offset:{QX}
    ds_read_b128 {vr(Q[1],4)}, v{T0} offset:{QX+1024}
    v_and_b32 v{T1}, 31, v1
    v_lshlrev_b32 v{T1}, 2, v{T1}
    s_lshl_b32 s41, s{QH}, 8
    v_add_u32 v{T1}, s41, v{T1}
    """)
    if GM() != 2:
        a(f"ds_read_b32 v{G[0]}, v{T1} offset:{GX}")
        a(f"ds_read_b32 v{G[1]}, v{T1} offset:{GX+128}")
    a(f"""
    """)
    a(f"""
    s_mov_b32 s52, 0x0000ffff
    s_mov_b32 s53, 0x0000ffff
    s_lshl_b32 s40, s{H4}, 13
    v_add_u32 v{T0}, s40, v2
    """)
    for u in range(4):
        a(f"ds_read_b128 {vr(KB(0,u),4)}, v{T0} offset:{KVX+u*2048}")
    a("s_mov_b64 exec, s[52:53]")
    for u in range(4):
        a(f"ds_read_b128 {vr(VB(0,u),4)}, v{T0} offset:{KVX+u*2048+1024}")
        a(f"ds_read_b128 {vr(VB(0,u)+4,4)}, v{T0} offset:{KVX+u*2048+1280}")
    a("s_mov_b64 exec, -1")
    a(f"v_mov_b32 v{T2}, {RELAY}")
    a(f"ds_read_b32 v{T2+1}, v{T2}")
    a("s_waitcnt lgkmcnt(0)")
    a(f"v_readfirstlane_b32 s{NONCE}, v{T2+1}")
    stamp(a, 4)
    c_prefetch_setup(a)
    a("s_mov_b32 s49, 0")
    a("s_mov_b32 s50, 0")
    a("s_mov_b32 s54, 0")
    a(f"s_lshl_b32 s45, 1, s{MT}")
    if OPT.get("nodep", 0):
        a("s_mov_b32 s45, 0xffff")
        a("s_mov_b32 s49, 1")
    if OPT["prio"]:
        a("s_setprio 3")
    for x in range(2):
        a(f"v_mfma_f32_32x32x16_bf16 {vr(S[x],16)}, {vr(KB(0,0),4)}, {vr(Q[x],4)}, 0")
    a("s_nop 7")
    a("s_nop 7")
    MX = [T0, T1]
    for x in range(2):
        a(f"v_max3_f32 v{MX[x]}, v{S[x]}, v{S[x]+1}, v{S[x]+2}")
        for r in range(3, 15, 2):
            a(f"v_max3_f32 v{MX[x]}, v{MX[x]}, v{S[x]+r}, v{S[x]+r+1}")
        a(f"v_max_f32 v{MX[x]}, v{MX[x]}, v{S[x]+15}")
    a.lab("B_setmax")
    for x in range(2):
        a(f"""
        v_mov_b32 v{T2}, v{MX[x]}
        s_nop 1
        v_permlane32_swap_b32 v{MX[x]}, v{T2}
        s_nop 1
        v_max_f32 v{MX[x]}, v{MX[x]}, v{T2}
        """)
        a(f"v_sub_f32 v{C[x]}, 0, v{MX[x]}")
        a(f"v_sub_f32 v{C[x]+1}, 0, v{MX[x]}")
        for r in range(0, 16, 2):
            a(f"v_mov_b64 v[{O[x]+r}:{O[x]+r+1}], 0")
        for r in range(2, 16, 2):
            a(f"v_mov_b64 v[{C[x]+r}:{C[x]+r+1}], v[{C[x]}:{C[x]+1}]")
    a(f"v_mfma_f32_32x32x16_bf16 {vr(S[0],16)}, {vr(KB(0,0),4)}, {vr(Q[0],4)}, {vr(C[0],16)}")
    for r in range(4):
        a(f"v_mov_b32 v{148+4+r}, 0")
    if OPT.get("sch", 1) == 3:
        for r in range(8, 16):
            a(f"v_mov_b32 v{S[1]+r}, 0")
    a(f"s_mov_b32 s44, s{MT}")
    a("s_mov_b32 s55, 0")
    a("s_nop 7")
    def ex(b, lo, hi):
        for r in range(lo, hi):
            a(f"v_exp_f32 v{b+r}, v{b+r}")
    def cv(b, h):
        for r in range(4):
            a(f"v_cvt_pk_bf16_f32 v{b+4*h+r}, v{b+8*h+2*r}, v{b+8*h+2*r+1}")
    def pv(x, vb, h):
        a(f"v_mfma_f32_32x32x16_bf16 {vr(O[x],16)}, {vr(vb+4*h,4)}, {vr(S[x]+4*h,4)}, {vr(O[x],16)}")
    def pf_head(tag):
        if tag == 0 and OPT.get("D", 4) <= 4 and not (OPT.get("late", 1) and OPT.get("D", 4) == 4):
            a("s_cmp_eq_u32 s49, 0")
            a("s_cbranch_scc1 B_first")
            a.lab("B_first_ret")
        a(f"""
        s_add_u32 s44, s44, 1
        s_and_b32 s44, s44, 15
        s_bitcmp1_b32 s45, s44
        s_cbranch_scc0 B_poll{tag}
        """)
        a.lab(f"B_pf{tag}")
        a(f"""
        s_lshl_b32 s47, s44, 13
        s_add_u32 s47, s47, s46
        s_add_u32 s48, s47, 4096
        """)
    def ldk(s, u):
        if OPT.get("skipld", 0) and s == 0: return
        so = 47 if u < 2 else 48
        a(f"buffer_load_dwordx4 {vr(KB(s,u),4)}, v2, {WSRD}, s{so} offen offset:{(u&1)*2048} sc1")
    def ldv(s, u):
        if OPT.get("skipld", 0) and s == 0: return
        so = 47 if u < 2 else 48
        a("s_mov_b64 exec, s[52:53]")
        a(f"buffer_load_dwordx4 {vr(VB(s,u),4)}, v2, {WSRD}, s{so} offen offset:{(u&1)*2048+1024} sc1")
        a(f"buffer_load_dwordx4 {vr(VB(s,u)+4,4)}, v2, {WSRD}, s{so} offen offset:{(u&1)*2048+1280} sc1")
        a("s_mov_b64 exec, -1")
    D = OPT.get("D", 4)
    if D > 4:
        a("s_cmp_eq_u32 s49, 0")
        a("s_cbranch_scc1 B_first")
        a.lab("B_first_ret")
        pf_head(2)
        for uu in range(D - 4):
            ldk(1, uu)
            ldv(1, uu)
    a.lab("B_loop")
    SCH = OPT.get("sch", 1)
    P = [140, 148]
    def e1(b, r):
        a(f"v_exp_f32 v{b+r}, v{b+r}")
    def cvp(x, lo, hi):
        for r in range(lo, hi):
            a(f"v_cvt_pk_bf16_f32 v{P[x]+r}, v{S[x]+2*r}, v{S[x]+2*r+1}")
    def pvp(x, vb, h):
        a(f"v_mfma_f32_32x32x16_bf16 {vr(O[x],16)}, {vr(vb+4*h,4)}, {vr(P[x]+4*h,4)}, {vr(O[x],16)}")
    for s in range(2):
        for u in range(4):
            vb = VB(s, u)
            vprev = VB(s, u-1) if u > 0 else VB(1-s, 3)
            kn = KB(s, u+1) if u < 3 else KB(1-s, 0)
            L = (4*s + u + D) % 8
            qs, qu = L // 4, L % 4
            guard = (D < 4 and s == 0 and qs == s)
            if OPT["prio"] == 2 and s == 1 and u == 0:
                a("s_cmp_lg_u32 s55, 7")
                a("s_cbranch_scc1 B_pm")
                a("s_setprio 0")
                a.lab("B_pm")
            LATE = OPT.get("late", 1) and D == 4
            def do_ldk():
                if LATE and s == 0 and u <= 2:
                    if u == 2:
                        a("s_cmp_eq_u32 s49, 1")
                        a("s_cbranch_scc1 B_start")
                        a.lab("B_start_ret")
                        ldk(qs, qu)
                        return
                    a("s_cmp_lt_u32 s49, 2")
                    a(f"s_cbranch_scc1 B_late{u}")
                    if qu == 0:
                        pf_head(s)
                    ldk(qs, qu)
                    a.lab(f"B_late{u}_ret")
                    return
                if qu == 0:
                    pf_head(s)
                if guard:
                    a("s_cmp_eq_u32 s49, 0")
                    a(f"s_cbranch_scc1 B_gk{u}")
                ldk(qs, qu)
                if guard:
                    a.lab(f"B_gk{u}")
            def do_ldv():
                if LATE and s == 0 and u <= 1:
                    a("s_cmp_lt_u32 s49, 2")
                    a(f"s_cbranch_scc1 B_gv{u}")
                    ldv(qs, qu)
                    a.lab(f"B_gv{u}")
                    return
                if guard:
                    a("s_cmp_eq_u32 s49, 0")
                    a(f"s_cbranch_scc1 B_gv{u}")
                ldv(qs, qu)
                if guard:
                    a.lab(f"B_gv{u}")
                if u == 3 and s == 1:
                    a("s_cmp_lt_u32 s50, 4")
                    a("s_cbranch_scc1 B_wo")
                    a.lab("B_wo_ret")
            if SCH == 0:
                a(f"v_mfma_f32_32x32x16_bf16 {vr(S[1],16)}, {vr(KB(s,u),4)}, {vr(Q[1],4)}, {vr(C[1],16)}")
                do_ldk()
                ex(S[0], 0, 8)
                cv(S[0], 0)
                ex(S[0], 8, 16)
                a(f"s_waitcnt vmcnt({3*(D-1)+1})")
                pv(0, vb, 0)
                cv(S[0], 1)
                ex(S[1], 0, 2)
                pv(0, vb, 1)
                ex(S[1], 2, 8)
                a(f"s_waitcnt vmcnt({3*D-3})")
                a(f"v_mfma_f32_32x32x16_bf16 {vr(S[0],16)}, {vr(kn,4)}, {vr(Q[0],4)}, {vr(C[0],16)}")
                cv(S[1], 0)
                ex(S[1], 8, 16)
                pv(1, vb, 0)
                cv(S[1], 1)
                do_ldv()
                pv(1, vb, 1)
            else:
                scheds = {
                 1: "ea0-2 PVb1 ea2-8 QKb LK ca0-4 ea8-12 W PVa0 ea12-16 ca4-8 eb0-2 PVa1 eb2-7 QKa eb7-8 cb0-4 eb8-11 PVb0 LV eb11-16 cb4-8",
                 2: "ea0-2 PVb1 ea2-8 QKb LK ca0-4 ea8-12 W PVa0 ea12-16 eb0-2 ca4-8 eb2-4 PVa1 eb4-8 QKa eb8-10 cb0-4 eb10-12 PVb0 LV eb12-16 cb4-8",
                 3: "cb4-8 ea0-2 PVb1 ea2-8 QKb LK ea8-10 ca0-4 ea10-12 W PVa0 ea12-16 eb0-2 ca4-8 eb2-4 PVa1 eb4-8 QKa eb8-10 cb0-4 eb10-12 PVb0 LV eb12-16",
                 4: "ea0-4 PVb1 ea4-8 LK ca0-4 QKb ea8-12 W PVa0 ea12-16 ca4-8 eb0-2 PVa1 eb2-8 QKa cb0-4 eb8-11 PVb0 LV eb11-16 cb4-8",
                 5: "ea0-2 PVb1 ea2-6 QKb ea6-8 LK ca0-4 ea8-10 W PVa0 ea10-16 ca4-8 eb0-2 PVa1 eb2-6 QKa eb6-8 cb0-4 eb8-10 PVb0 eb10-13 LV eb13-16 cb4-8",
                }
                for tok in scheds[SCH].split():
                    if tok == "PVb1": pvp(1, vprev, 1)
                    elif tok == "PVa0": pvp(0, vb, 0)
                    elif tok == "PVa1": pvp(0, vb, 1)
                    elif tok == "PVb0": pvp(1, vb, 0)
                    elif tok == "QKb": a(f"v_mfma_f32_32x32x16_bf16 {vr(S[1],16)}, {vr(KB(s,u),4)}, {vr(Q[1],4)}, {vr(C[1],16)}")
                    elif tok == "QKa": a(f"v_mfma_f32_32x32x16_bf16 {vr(S[0],16)}, {vr(kn,4)}, {vr(Q[0],4)}, {vr(C[0],16)}")
                    elif tok == "LK": do_ldk()
                    elif tok == "LV": do_ldv()
                    elif tok == "W": a(f"s_waitcnt vmcnt({3*D-3})")
                    else:
                        x = 0 if tok[1] == "a" else 1
                        lo, hi = [int(z) for z in tok[2:].split("-")]
                        if tok[0] == "e": ex(S[x], lo, hi)
                        else: cvp(x, lo, hi)
    a("s_add_u32 s55, s55, 1")
    if OPT["prio"] == 1:
        a("""
        s_and_b32 s40, s55, 1
        s_cbranch_scc1 B_noprio
        s_cmp_eq_u32 s55, 2
        s_cbranch_scc0 B_p1
        s_setprio 2
        """)
        a.lab("B_p1")
        a("s_cmp_eq_u32 s55, 4")
        a("s_cbranch_scc0 B_p2")
        a("s_setprio 1")
        a.lab("B_p2")
        a("s_cmp_eq_u32 s55, 6")
        a("s_cbranch_scc0 B_noprio")
        a("s_setprio 0")
        a.lab("B_noprio")
    if OPT["prio"] == 3:
        a("s_cmp_lt_u32 s55, 5")
        a("s_cbranch_scc1 B_noprio")
        a("s_setprio 2")
        a("s_cmp_eq_u32 s55, 5")
        a("s_cbranch_scc1 B_noprio")
        a("s_setprio 1")
        a("s_cmp_eq_u32 s55, 6")
        a("s_cbranch_scc1 B_noprio")
        a("s_setprio 0")
        a.lab("B_noprio")
    if OPT["prio"] == 2:
        a("s_cmp_lt_u32 s55, 6")
        a("s_cbranch_scc1 B_noprio")
        a("s_setprio 2")
        a("s_cmp_eq_u32 s55, 6")
        a("s_cbranch_scc1 B_noprio")
        a("s_setprio 1")
        a.lab("B_noprio")
    a("s_cmp_ge_u32 s55, 5")
    a("s_cbranch_scc1 B_wobar")
    a.lab("B_wobar_ret")
    if PROF and OPT.get("lstamp", 0):
        a("s_cmp_eq_u32 s55, 1")
        a("s_cbranch_scc0 B_ls1")
        stamp(a, 9)
        a.lab("B_ls1")
        a(f"s_cmp_eq_u32 s55, {OPT.get('ls2', 4)}")
        a("s_cbranch_scc0 B_ls2")
        stamp(a, 10)
        a.lab("B_ls2")
    a("s_cmp_lt_u32 s55, 8")
    a("s_cbranch_scc1 B_loop")
    if OPT.get("sch", 1) == 3:
        for r in range(4, 8):
            a(f"v_cvt_pk_bf16_f32 v{148+r}, v{S[1]+2*r}, v{S[1]+2*r+1}")
    if OPT.get("sch", 1):
        a("s_nop 1")
        a(f"v_mfma_f32_32x32x16_bf16 {vr(O[1],16)}, {vr(VB(1,3)+4,4)}, {vr(148+4,4)}, {vr(O[1],16)}")
    stamp(a, 6)
    a("s_nop 7")
    a("s_nop 7")
    a("s_cmp_lg_u32 s54, 0")
    a("s_cbranch_scc1 B_fin")
    a(f"v_mov_b32 v{T0}, 0")
    a(f"v_mov_b32 v{T1}, 0")
    for x in range(2):
        o = O[x]
        for r in range(0, 8, 2):
            a(f"v_max3_f32 v{T0}, v{T0}, |v{o+r}|, |v{o+r+1}|")
        a(f"v_max_f32 v{T0}, v{T0}, v{o+8}")
        for r in range(8):
            a(f"v_add_f32 v{T1}, v{T1}, v{o+r}")
    a(f"""
    v_mul_f32 v{T1}, 0, v{T1}
    v_add_f32 v{T0}, v{T0}, v{T1}
    s_mov_b32 s57, {f32(2.0**100)}
    v_cmp_gt_f32 vcc, s57, v{T0}
    s_cmp_eq_u64 vcc, exec
    s_cbranch_scc1 B_fin
    """)
    a(f"""
    s_mov_b32 s54, 1
    v_mov_b32 v{T0}, {f32(-3.0e38)}
    v_mov_b32 v{T1}, {f32(-3.0e38)}
    s_mov_b32 s47, s46
    s_mov_b32 s55, 0
    s_waitcnt vmcnt(0)
    """)
    a.lab("B_maxloop")
    a(f"buffer_load_dwordx4 {vr(KB(1,0),4)}, v2, {WSRD}, s47 offen sc1")
    a("s_waitcnt vmcnt(0)")
    for x in range(2):
        a(f"v_mfma_f32_32x32x16_bf16 {vr(S[x],16)}, {vr(KB(1,0),4)}, {vr(Q[x],4)}, 0")
    a("s_nop 7")
    a("s_nop 7")
    for x in range(2):
        for r in range(0, 16, 2):
            a(f"v_max3_f32 v{MX[x]}, v{MX[x]}, v{S[x]+r}, v{S[x]+r+1}")
    a("s_add_u32 s47, s47, 2048")
    a("s_add_u32 s55, s55, 1")
    a("s_cmp_lt_u32 s55, 64")
    a("s_cbranch_scc1 B_maxloop")
    a("s_branch B_setmax")
    if OPT.get("late", 1) and OPT.get("D", 4) == 4:
        a.lab("B_late0")
        a("s_branch B_late0_ret")
        a.lab("B_late1")
        a("s_cmp_lg_u32 s49, 0")
        a("s_cbranch_scc1 B_late1_ret")
        a("s_branch B_first")
        a.lab("B_start")
        pf_head(2)
        for uu in range(2):
            ldk(1, uu)
            ldv(1, uu)
        a("s_mov_b32 s49, 2")
        a("s_branch B_start_ret")
    FRET = "B_late1_ret" if (OPT.get("late", 1) and OPT.get("D", 4) == 4) else "B_first_ret"
    a.lab("B_first")
    a("s_waitcnt vmcnt(0)")
    a("s_barrier")
    stamp(a, 5)
    a("s_mov_b32 s49, 1")
    a(f"""
    s_cmp_lg_u32 s{WV}, 0
    s_cbranch_scc1 {FRET}
    s_lshl_b32 s40, s{CG}, 7
    s_lshl_b32 s41, s{MT}, 2
    s_add_u32 s40, s40, s41
    s_add_u32 s40, s40, {WS_F}
    v_mov_b32 v{T2}, 0
    v_mov_b32 v{T2+1}, s{NONCE}
    s_mov_b64 exec, 1
    buffer_store_dword v{T2+1}, v{T2}, {WSRD}, s40 offen sc1
    s_lshl_b32 s40, s{MT}, 7
    s_lshl_b32 s41, s{CG}, 2
    s_add_u32 s40, s40, s41
    s_add_u32 s40, s40, {WS_GF}
    buffer_store_dword v{T2+1}, v{T2}, {WSRD}, s40 offen sc1
    s_mov_b64 exec, -1
    s_branch {FRET}
    """)
    a.lab("B_wobar")
    a("s_cmp_lg_u32 s54, 0")
    a("s_cbranch_scc1 B_wobar_ret")
    a("s_cmp_eq_u32 s55, 6")
    a("s_cbranch_scc1 B_wobar6")
    if GM() == 2:
        a("s_cmp_lg_u32 s55, 5")
        a("s_cbranch_scc1 B_wobar_ret")
        a(f"s_cmp_lg_u32 s{WV}, 0")
        a("s_cbranch_scc1 B_wobar_ret")
        a(f"""
        s_lshl_b32 s40, s{MT}, 7
        s_add_u32 s40, s40, {WS_GF}
        v_lshlrev_b32 v{T2}, 2, v1
        s_mov_b32 s69, 0
        """)
        a.lab("B_gpoll")
        a(f"""
        s_mov_b64 exec, 0xffff
        buffer_load_dword v{T2+1}, v{T2}, {WSRD}, s40 offen sc1
        s_add_u32 s69, s69, 1
        s_waitcnt vmcnt(0)
        v_cmp_eq_u32 vcc, s{NONCE}, v{T2+1}
        s_mov_b64 exec, -1
        s_cmp_eq_u32 vcc_lo, 0xffff
        s_cbranch_scc1 B_wobar_ret
        s_cmp_lt_u32 s69, 200000
        s_cbranch_scc1 B_gpoll
        """)
    a("s_branch B_wobar_ret")
    a.lab("B_wobar6")
    a("s_barrier")
    if GM() == 2:
        a(f"""
        s_lshl_b32 s40, s{QT}, 7
        s_add_u32 s40, s40, {WS_G}
        v_and_b32 v{T2}, 31, v1
        v_lshlrev_b32 v{T2}, 2, v{T2}
        buffer_load_dword v{G[0]}, v{T2}, {WSRD}, s40 offen sc1
        buffer_load_dword v{G[1]}, v{T2}, {WSRD}, s40 offen offset:128 sc1
        """)
    a("s_branch B_wobar_ret")
    a.lab("B_wo")
    for i in range(4):
        a(f"s_add_u32 m0, s58, {i*1024}")
        a(f"s_add_u32 s51, s59, {i*8192}")
        a(f"buffer_load_dwordx4 v162, s[60:63], s51 offen lds")
    a("s_add_u32 s58, s58, 4096")
    a("s_add_u32 s59, s59, 32768")
    a("s_add_u32 s50, s50, 1")
    a("s_branch B_wo_ret")
    for sset in range(3 if (OPT.get('D', 4) > 4 or (OPT.get('late', 1) and OPT.get('D', 4) == 4)) else 2):
        a.lab(f"B_poll{sset}")
        a("s_mov_b32 s69, 0")
        a(f"s_cmp_lg_u32 s{WV}, 0")
        a(f"s_cbranch_scc1 B_lp{sset}")
        a(f"""
        s_lshl_b32 s40, s{CG}, 7
        s_add_u32 s40, s40, {WS_F}
        v_lshlrev_b32 v{T2}, 2, v1
        """)
        a.lab(f"B_gp{sset}")
        a(f"""
        s_mov_b64 exec, 0xffff
        buffer_load_dword v{T2+1}, v{T2}, {WSRD}, s40 offen sc1
        s_add_u32 s69, s69, 1
        s_waitcnt vmcnt(0)
        v_cmp_eq_u32 vcc, s{NONCE}, v{T2+1}
        s_mov_b64 exec, -1
        s_or_b32 s45, s45, vcc_lo
        s_bitcmp1_b32 s45, s44
        s_cbranch_scc1 B_gok{sset}
        s_cmp_lt_u32 s69, 200000
        s_cbranch_scc1 B_gp{sset}
        s_mov_b32 s45, 0xffff
        """)
        a.lab(f"B_gok{sset}")
        a(f"""
        v_mov_b32 v{T2}, {RELAY+4}
        v_mov_b32 v{T2+1}, s45
        ds_write_b32 v{T2}, v{T2+1}
        s_branch B_pf{sset}
        """)
        a.lab(f"B_lp{sset}")
        a(f"v_mov_b32 v{T2}, {RELAY+4}")
        a.lab(f"B_lpl{sset}")
        a(f"""
        ds_read_b32 v{T2+1}, v{T2}
        s_add_u32 s69, s69, 1
        s_waitcnt lgkmcnt(0)
        v_readfirstlane_b32 s40, v{T2+1}
        s_nop 3
        s_or_b32 s45, s45, s40
        s_bitcmp1_b32 s45, s44
        s_cbranch_scc1 B_pf{sset}
        s_cmp_lt_u32 s69, 4000000
        s_cbranch_scc1 B_lpl{sset}
        s_mov_b32 s45, 0xffff
        s_branch B_pf{sset}
        """)
    a.lab("B_fin")
    if GM() == 2:
        a("s_waitcnt vmcnt(0)")
        a(f"s_cmp_eq_u32 s{BB}, 0")
        a("s_cbranch_scc1 B_fin2")
        a(f"v_sub_f32 v{G[0]}, 1.0, v{G[0]}")
        a(f"v_sub_f32 v{G[1]}, 1.0, v{G[1]}")
        a.lab("B_fin2")
    for x in range(2):
        o = O[x]
        a(f"v_rcp_f32 v{T0}, v{o+8}")
        a("s_nop 0")
        a(f"v_mul_f32 v{T0}, v{T0}, v{G[x]}")
        for r in range(8):
            a(f"v_mul_f32 v{o+r}, v{o+r}, v{T0}")
        for r in range(4):
            a(f"v_cvt_pk_bf16_f32 v{o+r}, v{o+2*r}, v{o+2*r+1}")
    a(f"""
    s_lshl_b32 s40, s{QT}, 6
    s_add_u32 s40, s40, s{PAIR}
    s_lshl_b32 s40, s40, 10
    s_add_u32 s40, s40, {WS_O}
    s_add_u32 s41, s40, 65536
    buffer_store_dwordx4 {vr(O[0],4)}, v2, {WSRD}, s40 offen sc1
    buffer_store_dwordx4 {vr(O[1],4)}, v2, {WSRD}, s41 offen sc1
    """)
    if OPT.get("oflag", 0):
        a(f"""
        s_lshl_b32 s40, s{MT}, 9
        s_lshl_b32 s41, s{QH}, 8
        s_add_u32 s40, s40, s41
        s_lshl_b32 s41, s{CG}, 4
        s_add_u32 s40, s40, s41
        s_lshl_b32 s41, s{H4}, 2
        s_add_u32 s40, s40, s41
        s_add_u32 s40, s40, {WS_F+2048}
        v_mov_b32 v4, 0
        v_mov_b32 v5, s{NONCE}
        s_waitcnt vmcnt(0)
        s_mov_b64 exec, 1
        buffer_store_dword v5, v4, {WSRD}, s40 offen sc1
        s_mov_b64 exec, -1
        """)
        stamp(a, 7)
    else:
        a("s_waitcnt vmcnt(0)")
        a("s_barrier")
        stamp(a, 7)
        a(f"""
        s_cmp_lg_u32 s{WV}, 0
        s_cbranch_scc1 B_opub_done
        s_lshl_b32 s40, s{MT}, 9
        s_lshl_b32 s41, s{CG}, 2
        s_add_u32 s40, s40, s41
        s_add_u32 s40, s40, {WS_F+2048}
        v_mov_b32 v4, 0
        v_mov_b32 v5, s{NONCE}
        s_mov_b64 exec, 1
        buffer_store_dword v5, v4, {WSRD}, s40 offen sc1
        s_mov_b64 exec, -1
        """)
    a.lab("B_opub_done")

def c_prefetch_setup(a):
    a(f"""
    v_lshrrev_b32 v162, 3, v1
    v_and_b32 v163, 7, v1
    v_bfe_u32 v164, v1, 4, 1
    v_lshlrev_b32 v164, 2, v164
    v_xor_b32 v164, v163, v164
    v_lshlrev_b32 v164, 4, v164
    v_lshl_add_u32 v162, v162, 10, v164
    s_cmp_lt_u32 s{WV}, 4
    s_cselect_b32 s60, s8, s14
    s_cselect_b32 s61, s9, s15
    s_and_b32 s56, s{WV}, 3
    s_lshl_b32 s56, s56, 17
    s_and_b32 s57, s{CG}, 7
    s_lshl_b32 s57, s57, 7
    s_add_u32 s56, s56, s57
    s_add_u32 s60, s60, s56
    s_addc_u32 s61, s61, 0
    s_sub_u32 s62, 524288, s56
    s_mov_b32 s63, 0x20000
    s_lshl_b32 s58, s{WV}, 14
    s_mov_b32 s59, 0
    """)

def phase_c2(a):
    MT64, NT, KQ, TT = 30, 31, 32, 33
    OF = 64
    ACC = 128
    WFi = lambda i: (160 + 8*i) if i < 12 else (32 + 8*(i-12))
    PW = 10
    a(f"""
    s_lshl_b32 s{MT64}, s{MT}, 1
    s_lshr_b32 s40, s{CG}, 3
    s_add_u32 s{MT64}, s{MT64}, s40
    s_and_b32 s{NT}, s{CG}, 7
    s_lshr_b32 s{KQ}, s{WV}, 1
    s_and_b32 s{TT}, s{WV}, 1
    v_lshrrev_b32 v5, 4, v1
    v_lshrrev_b32 v21, 5, v1
    v_and_b32 v26, 15, v1
    v_lshrrev_b32 v27, 2, v26
    v_lshl_add_u32 v28, v21, 2, v27
    v_lshlrev_b32 v28, 7, v28
    v_and_b32 v29, 1, v5
    v_lshlrev_b32 v29, 1, v29
    v_bfe_u32 v30, v26, 1, 1
    v_add_u32 v29, v29, v30
    v_bfe_u32 v30, v27, 1, 1
    v_lshlrev_b32 v30, 2, v30
    v_xor_b32 v29, v29, v30
    v_lshl_add_u32 v28, v29, 4, v28
    v_and_b32 v30, 1, v26
    v_lshl_add_u32 v28, v30, 3, v28
    s_lshl_b32 s40, s{KQ}, 15
    v_add_u32 v20, s40, v28
    v_xor_b32 v23, 64, v20
    """)
    for i in range(16):
        f = WFi(i)
        for ct in range(2):
            for u in range(2):
                a(f"ds_read_b64_tr_b16 {vr(f+4*ct+2*u,2)}, v{20 if ct == 0 else 23} offset:{(16*i+8*u)*128}")
    a(f"""
    v_lshlrev_b32 v6, 2, v1
    s_lshl_b32 s45, s{MT64}, 1
    s_add_u32 s45, s45, s{TT}
    s_lshl_b32 s45, s45, 6
    s_lshl_b32 s46, s{KQ}, 4
    s_add_u32 s45, s45, s46
    s_lshl_b32 s45, s45, 10
    s_add_u32 s45, s45, {WS_O}
    s_lshl_b32 s44, s{MT}, 9
    s_add_u32 s44, s44, {WS_F+2048}
    s_lshl_b32 s50, s{KQ}, 2
    s_lshl_b32 s51, 1, s{CG}
    s_mov_b32 s47, s51
    v_mov_b32 v8, {RELAY+8}
    s_mov_b32 s69, 0
    v_and_b32 v24, 31, v1
    v_and_b32 v25, 7, v24
    v_lshlrev_b32 v24, 8, v24
    s_lshl_b32 s40, s{KQ}, 14
    s_lshl_b32 s41, s{TT}, 13
    s_add_u32 s40, s40, s41
    v_add_u32 v24, s40, v24
    """)
    for n in range(8):
        a(f"v_add_u32 v26, {2*n}, v21")
        a(f"v_xor_b32 v26, v26, v25")
        a(f"v_lshl_add_u32 v{PW+n}, v26, 4, v24")
    a(f"""
    v_lshrrev_b32 v24, 3, v0
    v_and_b32 v25, 7, v0
    v_and_b32 v26, 7, v24
    v_lshlrev_b32 v27, 8, v24
    v_lshlrev_b32 v28, 1, v25
    v_xor_b32 v29, v28, v26
    v_lshl_add_u32 v18, v29, 4, v27
    v_add_u32 v28, 1, v28
    v_xor_b32 v29, v28, v26
    v_lshl_add_u32 v19, v29, 4, v27
    v_lshlrev_b32 v22, 10, v24
    v_lshl_add_u32 v22, v25, 4, v22
    s_mov_b32 s60, s18
    s_mov_b32 s61, s19
    s_mov_b32 s62, 2097152
    s_mov_b32 s63, 0x20000
    s_lshl_b32 s48, s{MT64}, 16
    s_lshl_b32 s41, s{NT}, 7
    s_add_u32 s48, s48, s41
    s_cmp_eq_u32 s{WV}, 7
    s_cbranch_scc1 C_poller
    """)
    def ol(g):
        for i in range(4*g, 4*g+4):
            a(f"buffer_load_dwordx4 {vr(OF+4*i,4)}, v2, {WSRD}, s45 offen offset:{(i%4)*1024} sc1")
    def mf(g):
        for i in range(4*g, 4*g+4):
            for ct in range(2):
                d = vr(ACC+16*ct, 16)
                c = "0" if i == 0 else d
                a(f"v_mfma_f32_32x32x16_bf16 {d}, {vr(WFi(i)+4*ct,4)}, {vr(OF+4*i,4)}, {c}")
    for g in range(4):
        a.lab(f"C_lw{g}")
        a("s_bitcmp1_b32 s47, s50")
        a(f"s_cbranch_scc1 C_lr{g}")
        a(f"""
        ds_read_b32 v9, v8
        s_add_u32 s69, s69, 1
        s_waitcnt lgkmcnt(0)
        v_readfirstlane_b32 s47, v9
        s_nop 3
        s_or_b32 s47, s47, s51
        s_cmp_lt_u32 s69, 4000000
        s_cbranch_scc1 C_lw{g}
        """)
        a.lab(f"C_lr{g}")
        ol(g)
        a("s_add_u32 s45, s45, 4096")
        a("s_add_u32 s50, s50, 1")
        if g >= 1:
            a("s_waitcnt vmcnt(4) lgkmcnt(0)")
            mf(g-1)
    a("s_branch C_go")
    a.lab("C_poller")
    def poll_issue():
        a("s_mov_b64 exec, 0xffff")
        a(f"buffer_load_dword v7, v6, {WSRD}, s44 offen sc1")
        a("s_mov_b64 exec, -1")
    def poll_take():
        a(f"""
        s_mov_b64 exec, 0xffff
        v_cmp_eq_u32 vcc, s{NONCE}, v7
        s_mov_b64 exec, -1
        s_or_b32 s47, vcc_lo, s51
        v_mov_b32 v9, s47
        ds_write_b32 v8, v9
        """)
    for g in range(4):
        a("s_mov_b32 s52, 0" if g >= 1 else "s_mov_b32 s52, 1")
        a.lab(f"C_pw{g}")
        a("s_bitcmp1_b32 s47, s50")
        a(f"s_cbranch_scc1 C_pr{g}")
        poll_issue()
        a("s_add_u32 s69, s69, 1")
        a("s_waitcnt vmcnt(0)")
        poll_take()
        if g >= 1:
            a("s_cmp_lg_u32 s52, 0")
            a(f"s_cbranch_scc1 C_pd{g}")
            a("s_waitcnt lgkmcnt(0)")
            mf(g-1)
            a("s_mov_b32 s52, 1")
            a.lab(f"C_pd{g}")
        a("s_cmp_lt_u32 s69, 200000")
        a(f"s_cbranch_scc1 C_pw{g}")
        a.lab(f"C_pr{g}")
        a("s_cmp_eq_u32 s47, 0xffff")
        a(f"s_cbranch_scc1 C_pf{g}")
        poll_issue()
        ol(g)
        a("s_waitcnt vmcnt(4)")
        poll_take()
        a(f"s_branch C_pn{g}")
        a.lab(f"C_pf{g}")
        ol(g)
        a("s_waitcnt vmcnt(4)")
        a.lab(f"C_pn{g}")
        if g >= 1:
            a("s_cmp_lg_u32 s52, 0")
            a(f"s_cbranch_scc1 C_pe{g}")
            a("s_waitcnt lgkmcnt(0)")
            mf(g-1)
            a.lab(f"C_pe{g}")
        a("s_add_u32 s45, s45, 4096")
        a("s_add_u32 s50, s50, 1")
    a.lab("C_pw4")
    a("s_cmp_eq_u32 s47, 0xffff")
    a("s_cbranch_scc1 C_go")
    poll_issue()
    a("s_add_u32 s69, s69, 1")
    a("s_waitcnt vmcnt(0)")
    poll_take()
    a("s_cmp_lt_u32 s69, 200000")
    a("s_cbranch_scc1 C_pw4")
    a.lab("C_go")
    stamp(a, 8)
    a("s_waitcnt vmcnt(0) lgkmcnt(0)")
    mf(3)
    stamp(a, 9)
    a("s_barrier")
    a("s_nop 7")
    a("s_nop 3")
    for n in range(8):
        a(f"ds_write_b128 v{PW+n}, {vr(ACC+4*n,4)}")
    a("s_waitcnt lgkmcnt(0)")
    a("s_barrier")
    for c in range(2):
        for k in range(4):
            a(f"ds_read_b128 {vr(64+k*8+c*4,4)}, v{18+c} offset:{k*16384}")
    a("s_waitcnt lgkmcnt(0)")
    for r in range(0, 8, 2):
        a(f"v_pk_add_f32 v[{64+r}:{65+r}], v[{64+r}:{65+r}], v[{72+r}:{73+r}]")
        a(f"v_pk_add_f32 v[{80+r}:{81+r}], v[{80+r}:{81+r}], v[{88+r}:{89+r}]")
    for r in range(0, 8, 2):
        a(f"v_pk_add_f32 v[{64+r}:{65+r}], v[{64+r}:{65+r}], v[{80+r}:{81+r}]")
    for r in range(4):
        a(f"v_cvt_pk_bf16_f32 v{64+r}, v{64+2*r}, v{64+2*r+1}")
    a("buffer_store_dwordx4 v[64:67], v22, s[60:63], s48 offen" + {0: "", 1: " sc1", 2: " nt", 3: " sc0 sc1", 4: " sc1 nt", 5: " sc0 sc1 nt"}[OPT.get("ost", 0)])
    stamp(a, 10)

def phase_c(a):
    MT64, NT, KQ, TT = 30, 31, 32, 33
    OF = 64
    ACC = 128
    a(f"""
    s_lshl_b32 s{MT64}, s{MT}, 1
    s_lshr_b32 s40, s{CG}, 3
    s_add_u32 s{MT64}, s{MT64}, s40
    s_and_b32 s{NT}, s{CG}, 7
    s_lshr_b32 s{KQ}, s{WV}, 1
    s_and_b32 s{TT}, s{WV}, 1
    v_lshrrev_b32 v5, 4, v1
    s_lshl_b32 s44, s{MT}, 9
    s_lshr_b32 s40, s{CG}, 3
    s_lshl_b32 s40, s40, 8
    s_add_u32 s44, s44, s40
    s_lshl_b32 s40, s{KQ}, 6
    s_add_u32 s44, s44, s40
    s_add_u32 s44, s44, {WS_F+2048}
    v_lshlrev_b32 v6, 2, v1
    s_mov_b32 s47, 0
    s_lshl_b32 s45, s{MT64}, 1
    s_add_u32 s45, s45, s{TT}
    s_lshl_b32 s45, s45, 6
    s_lshl_b32 s46, s{KQ}, 4
    s_add_u32 s45, s45, s46
    s_lshl_b32 s45, s45, 10
    s_add_u32 s45, s45, {WS_O}
    """)
    if OPT.get("oflag", 0):
        for g in range(4):
            m = 0xf << (4*g)
            a(f"s_and_b32 s40, s47, {m}")
            a(f"s_cmp_eq_u32 s40, {m}")
            a(f"s_cbranch_scc1 C_rdy{g}")
            a("s_mov_b32 s69, 0")
            a.lab(f"C_poll{g}")
            a(f"""
            s_mov_b64 exec, 0xffff
            buffer_load_dword v7, v6, {WSRD}, s44 offen sc1
            s_add_u32 s69, s69, 1
            s_waitcnt vmcnt(0)
            v_cmp_eq_u32 vcc, s{NONCE}, v7
            s_mov_b64 exec, -1
            s_mov_b32 s47, vcc_lo
            s_and_b32 s40, s47, {m}
            s_cmp_eq_u32 s40, {m}
            s_cbranch_scc1 C_rdy{g}
            s_sleep {OPT.get("sleep", 4)}
            s_cmp_lt_u32 s69, 200000
            s_cbranch_scc1 C_poll{g}
            """)
            a.lab(f"C_rdy{g}")
            if g == 3:
                stamp(a, 8)
            for i in range(4*g, 4*g+4):
                a(f"buffer_load_dwordx4 {vr(OF+4*i,4)}, v2, {WSRD}, s45 offen offset:{(i%4)*1024} sc1")
            if g < 3:
                a("s_add_u32 s45, s45, 4096")
    elif OPT.get("cprog", 1):
        a(f"""
        s_lshl_b32 s44, s{MT}, 9
        s_add_u32 s44, s44, {WS_F+2048}
        s_lshl_b32 s50, s{KQ}, 2
        s_lshl_b32 s51, 1, s{CG}
        s_mov_b32 s47, s51
        v_mov_b32 v8, {RELAY+8}
        s_mov_b32 s69, 0
        s_cmp_eq_u32 s{WV}, 7
        s_cbranch_scc1 C_poller
        """)
        def oloads(g):
            for i in range(4*g, 4*g+4):
                a(f"buffer_load_dwordx4 {vr(OF+4*i,4)}, v2, {WSRD}, s45 offen offset:{(i%4)*1024} sc1")
            if g < 3:
                a("s_add_u32 s45, s45, 4096")
        for g in range(4):
            a.lab(f"C_lw{g}")
            a("s_bitcmp1_b32 s47, s50")
            a(f"s_cbranch_scc1 C_lr{g}")
            a(f"""
            ds_read_b32 v9, v8
            s_add_u32 s69, s69, 1
            s_waitcnt lgkmcnt(0)
            v_readfirstlane_b32 s47, v9
            s_nop 3
            s_or_b32 s47, s47, s51
            s_cmp_lt_u32 s69, 4000000
            s_cbranch_scc1 C_lw{g}
            """)
            a.lab(f"C_lr{g}")
            oloads(g)
            a("s_add_u32 s50, s50, 1")
        a("s_branch C_go")
        a.lab("C_poller")
        def poll_issue():
            a("s_mov_b64 exec, 0xffff")
            a(f"buffer_load_dword v7, v6, {WSRD}, s44 offen sc1")
            a("s_mov_b64 exec, -1")
        def poll_take():
            a(f"""
            s_mov_b64 exec, 0xffff
            v_cmp_eq_u32 vcc, s{NONCE}, v7
            s_mov_b64 exec, -1
            s_or_b32 s47, vcc_lo, s51
            v_mov_b32 v9, s47
            ds_write_b32 v8, v9
            """)
        for g in range(4):
            a.lab(f"C_pw{g}")
            a("s_bitcmp1_b32 s47, s50")
            a(f"s_cbranch_scc1 C_pr{g}")
            poll_issue()
            a("s_add_u32 s69, s69, 1")
            a("s_waitcnt vmcnt(0)")
            poll_take()
            a("s_cmp_lt_u32 s69, 200000")
            a(f"s_cbranch_scc1 C_pw{g}")
            a.lab(f"C_pr{g}")
            a("s_cmp_eq_u32 s47, 0xffff")
            a(f"s_cbranch_scc1 C_pf{g}")
            poll_issue()
            for i in range(4*g, 4*g+4):
                a(f"buffer_load_dwordx4 {vr(OF+4*i,4)}, v2, {WSRD}, s45 offen offset:{(i%4)*1024} sc1")
            a("s_waitcnt vmcnt(4)")
            poll_take()
            a(f"s_branch C_pn{g}")
            a.lab(f"C_pf{g}")
            for i in range(4*g, 4*g+4):
                a(f"buffer_load_dwordx4 {vr(OF+4*i,4)}, v2, {WSRD}, s45 offen offset:{(i%4)*1024} sc1")
            a.lab(f"C_pn{g}")
            if g < 3:
                a("s_add_u32 s45, s45, 4096")
            a("s_add_u32 s50, s50, 1")
        a.lab("C_pw4")
        a("s_cmp_eq_u32 s47, 0xffff")
        a("s_cbranch_scc1 C_go")
        poll_issue()
        a("s_add_u32 s69, s69, 1")
        a("s_waitcnt vmcnt(0)")
        poll_take()
        a("s_cmp_lt_u32 s69, 200000")
        a("s_cbranch_scc1 C_pw4")
        a.lab("C_go")
        stamp(a, 8)
    else:
        a(f"""
        s_lshl_b32 s44, s{MT}, 9
        s_add_u32 s44, s44, {WS_F+2048}
        s_cmp_lg_u32 s{WV}, 0
        s_cbranch_scc1 C_wait_done
        s_mov_b32 s69, 0
        """)
        a.lab("C_poll")
        a(f"""
        s_mov_b64 exec, 0xffff
        buffer_load_dword v7, v6, {WSRD}, s44 offen sc1
        s_add_u32 s69, s69, 1
        s_waitcnt vmcnt(0)
        v_cmp_eq_u32 vcc, s{NONCE}, v7
        s_mov_b64 exec, -1
        s_cmp_eq_u32 vcc_lo, 0xffff
        s_cbranch_scc1 C_wait_done
        s_cmp_lt_u32 s69, 200000
        s_cbranch_scc1 C_poll
        """)
        a.lab("C_wait_done")
        a("s_barrier")
        stamp(a, 8)
        for i in range(16):
            if i and i % 4 == 0:
                a("s_add_u32 s45, s45, 4096")
            a(f"buffer_load_dwordx4 {vr(OF+4*i,4)}, v2, {WSRD}, s45 offen offset:{(i%4)*1024} sc1")
    a(f"""
    v_lshrrev_b32 v21, 5, v1
    v_and_b32 v26, 15, v1
    v_lshrrev_b32 v27, 2, v26
    v_lshl_add_u32 v28, v21, 2, v27
    v_lshlrev_b32 v28, 7, v28
    v_and_b32 v29, 1, v5
    v_lshlrev_b32 v29, 1, v29
    v_bfe_u32 v30, v26, 1, 1
    v_add_u32 v29, v29, v30
    v_bfe_u32 v30, v27, 1, 1
    v_lshlrev_b32 v30, 2, v30
    v_xor_b32 v29, v29, v30
    v_lshl_add_u32 v28, v29, 4, v28
    v_and_b32 v30, 1, v26
    v_lshl_add_u32 v28, v30, 3, v28
    s_lshl_b32 s40, s{KQ}, 15
    v_add_u32 v20, s40, v28
    v_xor_b32 v21, 64, v20
    """)
    WFR = [32, 40]
    def rd(i):
        f = WFR[i & 1]
        return [f"ds_read_b64_tr_b16 {vr(f+4*ct+2*u,2)}, v{20+ct} offset:{(16*i+8*u)*128}" for ct in range(2) for u in range(2)]
    for x in rd(0):
        a(x)
    for i in range(16):
        nxt = rd(i+1) if i < 15 else []
        a(f"s_waitcnt vmcnt({15-i}) lgkmcnt(0)")
        f = WFR[i & 1]
        for ct in range(2):
            d = vr(ACC+16*ct, 16)
            c = "0" if i == 0 else d
            a(f"v_mfma_f32_32x32x16_bf16 {d}, {vr(f+4*ct,4)}, {vr(OF+4*i,4)}, {c}")
            for x in nxt[2*ct:2*ct+2]:
                a(x)
    if not OPT.get('lstamp', 0): stamp(a, 9)
    a("s_barrier")
    a(f"""
    v_and_b32 v22, 31, v1
    v_lshrrev_b32 v23, 5, v1
    v_and_b32 v24, 7, v22
    v_lshlrev_b32 v25, 8, v22
    s_lshl_b32 s40, s{KQ}, 14
    s_lshl_b32 s41, s{TT}, 13
    s_add_u32 s40, s40, s41
    v_add_u32 v25, s40, v25
    s_nop 7
    s_nop 7
    """)
    for ct in range(2):
        for q4 in range(4):
            a(f"v_add_u32 v26, {ct*8+2*q4}, v23")
            a(f"v_xor_b32 v26, v26, v24")
            a(f"v_lshl_add_u32 v26, v26, 4, v25")
            a(f"ds_write_b128 v26, {vr(ACC+16*ct+4*q4,4)}")
    a("s_waitcnt lgkmcnt(0)")
    a("s_barrier")
    a("""
    v_lshrrev_b32 v22, 3, v0
    v_and_b32 v23, 7, v0
    v_and_b32 v24, 7, v22
    v_lshlrev_b32 v25, 8, v22
    v_lshlrev_b32 v27, 1, v23
    """)
    for c in range(2):
        a(f"v_add_u32 v26, {c}, v27")
        a(f"v_xor_b32 v26, v26, v24")
        a(f"v_lshl_add_u32 v26, v26, 4, v25")
        for k in range(4):
            a(f"ds_read_b128 {vr(64+k*8+c*4,4)}, v26 offset:{k*16384}")
    a(f"""
    s_mov_b32 s60, s18
    s_mov_b32 s61, s19
    s_mov_b32 s62, 2097152
    s_mov_b32 s63, 0x20000
    v_lshlrev_b32 v22, 10, v22
    v_lshl_add_u32 v22, v23, 4, v22
    s_lshl_b32 s40, s{MT64}, 16
    s_lshl_b32 s41, s{NT}, 7
    s_add_u32 s40, s40, s41
    s_waitcnt lgkmcnt(0)
    """)
    for r in range(8):
        a(f"v_add_f32 v{64+r}, v{64+r}, v{72+r}")
        a(f"v_add_f32 v{80+r}, v{80+r}, v{88+r}")
    for r in range(8):
        a(f"v_add_f32 v{64+r}, v{64+r}, v{80+r}")
    for r in range(4):
        a(f"v_cvt_pk_bf16_f32 v{64+r}, v{64+2*r}, v{64+2*r+1}")
    a("buffer_store_dwordx4 v[64:67], v22, s[60:63], s40 offen" + {0: "", 1: " sc1", 2: " nt", 3: " sc0 sc1", 4: " sc1 nt", 5: " sc0 sc1 nt"}[OPT.get("ost", 0)])
    if not OPT.get("lstamp", 0): stamp(a, 10)


DOC = """;
"""

HEAD = open("cdna_kernels/%s.s.ref" % NAME).read().split("; Override")[0]

def main(out):
    a = A()
    gen(a)
    s = HEAD
    s += "; @launch grid=(256,1,1) block=(512,1,1) lds=163840\n"
    s += DOC
    s += '.amdgcn_target "amdgcn-amd-amdhsa--gfx950"\n'
    s += a.text()
    s += f""".section .rodata,"a"
.p2align 6
.amdhsa_kernel {KNAME}
  .amdhsa_next_free_vgpr 256
  .amdhsa_next_free_sgpr 102
  .amdhsa_accum_offset 256
  .amdhsa_group_segment_fixed_size 0
  .amdhsa_kernarg_size 80
  .amdhsa_user_sgpr_count 2
  .amdhsa_user_sgpr_kernarg_segment_ptr 1
  .amdhsa_system_sgpr_workgroup_id_x 1
.end_amdhsa_kernel
"""
    open(out, "w").write(s)

if __name__ == "__main__":
    if "--prof" in sys.argv:
        PROF = True
        sys.argv.remove("--prof")
    for x in list(sys.argv):
        if x.startswith("--") and "=" in x:
            k, v = x[2:].split("=")
            OPT[k] = int(v)
            sys.argv.remove(x)
    set_nslot(OPT.get("nslot", 3))
    main(sys.argv[1] if len(sys.argv) > 1 else "fused3.s")
```
